```python
import torch

def _softmax(x, axis=-1):
    return torch.softmax(x, dim=axis)
def _gelu(x):
    return torch.nn.functional.gelu(x, approximate="tanh")
def _silu(x):
    return torch.nn.functional.silu(x)
def _sigmoid(x):
    return torch.sigmoid(x)
def _layernorm(x, axis=-1, eps=1e-5):
    m = x.mean(dim=axis, keepdim=True)
    v = x.var(dim=axis, keepdim=True, unbiased=False)
    return (x - m) / torch.sqrt(v + eps)
def _scatter_add(tgt, idx, src, axis=0):
    return tgt.clone().index_add_(axis, idx, src)
def _segment_sum(src, seg, n):
    out = torch.zeros((n,) + src.shape[1:], dtype=src.dtype)
    return out.index_add_(0, seg, src)
def _pad(x, pw):
    flat = tuple(v for pair in reversed(pw) for v in pair)
    return torch.nn.functional.pad(x, flat)

kernel_name = 'interleave_layers__sliding_local_dilated__glu_gated_swiglu__prompt'

def setup_inputs():

    _w = (lambda a: (lambda t: t.to(torch.bfloat16) if t.is_floating_point() else t)(torch.as_tensor(a)))
    def _A_setup():
        B, S, D = 1, 2048, 1024
        return {
            "x": _w((lambda *s: torch.randn(*s, dtype=torch.bfloat16) * 0.05)(B, S, D)),
            "wqkv": _w((lambda *s: torch.randn(*s, dtype=torch.bfloat16) * 0.05)(D, 3 * D)),
            "wo": _w((lambda *s: torch.randn(*s, dtype=torch.bfloat16) * 0.05)(D, D)),
        }
    _A_in = _A_setup()

    def _B_setup():
        B, S, D, F = 1, 2048, 1024, 3584
        return {
            "x": _w((lambda *s: torch.randn(*s, dtype=torch.bfloat16) * 0.05)(B, S, D)),
            "w1": _w((lambda *s: torch.randn(*s, dtype=torch.bfloat16) * 0.8)(D, F) * (2.0 / D) ** 0.5),
            "w3": _w((lambda *s: torch.randn(*s, dtype=torch.bfloat16) * 0.8)(D, F) * (2.0 / D) ** 0.5),
            "w2": _w((lambda *s: torch.randn(*s, dtype=torch.bfloat16) * 0.8)(F, D) * (2.0 / F) ** 0.5),
        }
    _B_in = _B_setup()

    return {
        "A_x": _A_in["x"],
        "A_wqkv": _A_in["wqkv"],
        "A_wo": _A_in["wo"],
        "B_x": _B_in["x"],
        "B_w1": _B_in["w1"],
        "B_w3": _B_in["w3"],
        "B_w2": _B_in["w2"],
    }

def reference(A_x, A_wqkv, A_wo, B_x, B_w1, B_w3, B_w2):
    def _A_ref(x, wqkv, wo):
        B, S, D = x.shape
        H = 32; Dh = D // H
        W, dil = 8, 2
        qkv = (lambda x, *d: x.permute(*d))((x @ wqkv).reshape(B, S, 3, H, Dh), 2, 0, 3, 1, 4)
        q, k, v = qkv[0], qkv[1], qkv[2]
        scale = Dh ** -0.5
        pos = torch.arange(S)
        off = torch.arange(W) * dil
        idx = pos[:, None] - off[None, :]
        mask = idx >= 0
        idx_c = torch.where(mask, idx, 0).reshape(-1)
        kg = k[:, :, idx_c, :].reshape(B, H, S, W, Dh)
        vg = v[:, :, idx_c, :].reshape(B, H, S, W, Dh)
        logits = torch.einsum("bhsd,bhswd->bhsw", q, kg) * scale
        logits = torch.where(mask[None, None, :, :], logits, -1e9)
        attn = _softmax(logits, axis=-1)
        o = torch.einsum("bhsw,bhswd->bhsd", attn, vg)
        return (lambda x, *d: x.permute(*d))(o, 0, 2, 1, 3).reshape(B, S, D) @ wo

    def _B_ref(x, w1, w3, w2):
        gate = torch.einsum("bsd,df->bsf", x, w1)
        up = torch.einsum("bsd,df->bsf", x, w3)
        h = _silu(gate) * up
        out = torch.einsum("bsf,fd->bsd", h, w2)
        return out

    x = A_x
    x = x + _A_ref(_layernorm(x, axis=-1), A_wqkv, A_wo)
    x = x + _B_ref(_layernorm(x, axis=-1), B_w1, B_w3, B_w2)
    x = x + _A_ref(_layernorm(x, axis=-1), A_wqkv, A_wo)
    x = x + _B_ref(_layernorm(x, axis=-1), B_w1, B_w3, B_w2)
    return x
```

```python
class Asm:
    def __init__(self):
        self.L = []
    def e(self, s):
        self.L.append("    " + s)
    def c(self, s):
        self.L.append("    ; " + s)
    def label(self, s):
        self.L.append(s + ":")
    def raw(self, s):
        self.L.append(s)
    def text(self):
        return "\n".join(self.L) + "\n"

def vr(b, n=1):
    return f"v{b}" if n == 1 else f"v[{b}:{b+n-1}]"
def sr(b, n=1):
    return f"s{b}" if n == 1 else f"s[{b}:{b+n-1}]"

def interleave(main, others, start=0, end=None):
    n = len(main)
    if end is None: end = n
    out = []
    m = len(others)
    span = max(end - start, 1)
    j = 0
    for i, ins in enumerate(main):
        out.append(ins)
        if i >= start:
            want = min(m, ((i - start + 1) * m + span - 1) // span) if i < end else m
            while j < want:
                out.extend(others[j]); j += 1
    while j < m:
        out.extend(others[j]); j += 1
    return out
```

```python
import struct
from asmlib import *
NAME = "interleave_layers__sliding_local_dilated__glu_gated_swiglu__prompt"
MB = 1 << 20
kernels = []

def kernel_header(a, name):
    a.raw(".text")
    a.raw(f".globl {name}")
    a.raw(".p2align 8")
    a.raw(f".type {name},@function")
    a.label(name)

def kernel_desc(name, vg, sg):
    return f""".amdhsa_kernel {name}
  .amdhsa_next_free_vgpr {vg}
  .amdhsa_next_free_sgpr {sg}
  .amdhsa_accum_offset {(vg + 3) // 4 * 4}
  .amdhsa_group_segment_fixed_size 0
  .amdhsa_kernarg_size 80
  .amdhsa_user_sgpr_count 2
  .amdhsa_user_sgpr_kernarg_segment_ptr 1
  .amdhsa_system_sgpr_workgroup_id_x 1
.end_amdhsa_kernel
"""

def make_srd(a, d, lo, hi, size, add=0):
    if add:
        a.e(f"s_add_u32 s{d}, s{lo}, {add}")
        a.e(f"s_addc_u32 s{d+1}, s{hi}, 0")
    else:
        a.e(f"s_mov_b32 s{d}, s{lo}")
        a.e(f"s_mov_b32 s{d+1}, s{hi}")
    a.e(f"s_mov_b32 s{d+2}, {size}")
    a.e(f"s_mov_b32 s{d+3}, 0x00020000")

def build(launch_list, bodies, single=False):
    hdr = open("/code/" + NAME + ".s.ref").read().split("; Override launch")[0] if True else ""
    out = hdr
    for (k, g, b, lds) in launch_list:
        if single: out += f"; @launch grid=({g},1,1) block=({b},1,1) lds={lds}\n"
        else: out += f"; @launch kernel={k} grid=({g},1,1) block=({b},1,1) lds={lds}\n"
    out += '.amdgcn_target "amdgcn-amd-amdhsa--gfx950"\n'
    out += "".join(bodies)
    out += '.section .rodata,"a"\n'
    for (n, vg, sg) in kernels:
        out += ".p2align 6\n" + kernel_desc(n, vg, sg)
    return out

def parse_opts(args):
    opt = {}
    for x in args:
        k, _, v = x.partition("=")
        try: opt[k] = (v if '_' in v else float(v)) if v else True
        except ValueError: opt[k] = v
    return opt

def emit(a, groups):
    for g in groups:
        if isinstance(g, str): a.e(g)
        else:
            for x in g: a.e(x)

def mfma(c, A, B, cin=None):
    ci = f"v[{c}:{c+3}]" if cin is None else cin
    return f"v_mfma_f32_16x16x32_bf16 v[{c}:{c+3}], v[{A}:{A+3}], v[{B}:{B+3}], {ci}"

def place(main, others, slots):
    out = []
    byslot = {}
    for o, s in zip(others, slots): byslot.setdefault(s, []).extend(o if not isinstance(o, str) else [o])
    out.extend(byslot.get(-1, []))
    for i, m in enumerate(main):
        out.append(m)
        out.extend(byslot.get(i, []))
    return out

def spread(n_items, first, last):
    if n_items == 0: return []
    if n_items == 1: return [first]
    return [first + (i * (last - first + 1)) // n_items for i in range(n_items)]

def f32bits(x): return struct.unpack("<I", struct.pack("<f", x))[0]
```

```python
import sys, re
from common import *

KB = 1024
WS_O = 0
WS_X1 = 8 * MB
WS_H = 20 * MB
WS_P = 48 * MB
WS_ST = 64 * MB
WS_HALO = 66 * MB
WS_HST = 66 * MB + 512 * KB
WS_ST0 = 67 * MB
WS_CSQ = 67 * MB + 256 * KB
WS_CS13 = 67 * MB + 512 * KB
WS_FL = 68 * MB
WS_SF = 68 * MB + 256 * KB
WS_TS = 69 * MB
OOB = 0x7f000000
POLL = 0x40000
WSLOT = 16384
LA = 98304
L_ST = 153600
L_CSQ = L_ST + 1152
L_CSA = L_CSQ + 768
L_CSB = L_CSA + 1024
L_MODE = L_CSB + 1024
L_CNT = L_MODE + 16
L_TR = L_MODE + 64
sWAVE = 3
sWS, sQKV, sWO, sW13, sW2, sX0, sOUT, sDBG, sA1 = 4, 8, 12, 16, 20, 24, 28, 32, 36
sMT, sNT, sLW, sWM, sWN, sMODE, sLAY = 40, 41, 42, 43, 44, 45, 46
sOo, sX2, sXm, sHo, sN4, sSTm, sSTo, sFl = 47, 48, 49, 50, 51, 52, 53, 54
sT, sT2, sT3, sCnt = 55, 56, 57, 58
sD0, sD1 = 59, 60
sMb, sGb, sGb2, sGh, sSu, sSh = 61, 62, 63, 64, 65, 66
sMb2, sGc, sGc2 = 67, 68, 69
sEX = 70
sAT = 72
sCur, sRi, sRh = 93, 94, 95
sTS = 96
vL16, vTS = 254, 255
vF0, vF1 = 252, 253
EPS_BITS = 0x3727c5ac


class VM:
    def __init__(self): self.ops = []
    def issue(self, tag): self.ops.append(tag)
    def need(self, *tags):
        last = -1
        for i, t in enumerate(self.ops):
            if t in tags: last = i
        n = len(self.ops) - 1 - last
        if last < 0: return None
        self.ops = self.ops[last + 1:]
        return n
    def clear(self): self.ops = []


class Gen:
    def __init__(self, opt):
        self.opt = opt
        self.a = Asm()
        self.nlab = 0
        self.bars = {}
        self.trp = {}
    def e(self, s): self.a.e(s)
    def lab(self, p="L"):
        self.nlab += 1
        return f"{p}_{self.nlab}"
    def label(self, l): self.a.label(l)
    def al(self): self.a.raw("    .p2align 3")
    def bar(self, path, name):
        self.bars.setdefault(path, []).append(name)
        self.e("s_barrier")
    PH0 = {"G1": 1, "G2": 34, "G3A": 51, "G3B": 83, "G4": 115}
    def tr_flush(self, path):
        p = self.trp.pop(path[0], None)
        if p is None: return
        l = self.lab("tr")
        self.e("s_waitcnt lgkmcnt(0)")
        self.e(f"s_cmp_lg_u32 s{sLAY}, {int(self.opt['trace'])}"); self.e(f"s_cbranch_scc1 {l}")
        for k in range(3):
            if path[0] == "X": i = p[1] * 3 + k; reg = 233 + i // 64
            else: i = (self.PH0[p[0]] + p[1]) * 3 + k; reg = 228 + i // 64
            self.e(f"v_writelane_b32 v{reg}, s{96 + 2 * k}, {i % 64}")
        self.label(l)
    def pb(self, path, name, vm=None, lgkm=None):
        tr = self.opt.get("trace") is not None
        if tr:
            if path[0] not in self.trp: self.e("s_waitcnt lgkmcnt(0)")
            self.tr_flush(path)
            self.e("s_memtime s[96:97]")
            lgkm = None
        self.wait(vm, lgkm)
        if tr: self.e("s_memtime s[98:99]")
        self.bar(path, name)
        if tr:
            self.e("s_memtime s[100:101]")
            self.trp[path[0]] = name
    def tr_dump(self, grp):
        if self.opt.get("trace") is None: return
        e = self.e; l = self.lab("td")
        e(f"s_cmp_lg_u32 s{sLAY}, {int(self.opt['trace'])}"); e(f"s_cbranch_scc1 {l}")
        e(f"s_lshl_b32 s{sT}, s2, 3"); e(f"s_add_u32 s{sT}, s{sT}, s{sWAVE}"); e(f"s_lshl_b32 s{sT}, s{sT}, 11"); e(f"s_add_u32 s{sT}, s{sT}, {WS_TS + MB}")
        e(f"v_lshrrev_b32 v{vF0}, 2, v{vL16}")
        for k in range(2 if grp == "X" else 7):
            e(f"buffer_store_dword v{(233 if grp == 'X' else 228) + k}, v{vF0}, s[{sWS}:{sWS+3}], s{sT} offen offset:{256 * k}")
        self.label(l)
    def wait(self, vm=None, lgkm=None):
        p = []
        if vm is not None:
            assert vm <= 63
            p.append(f"vmcnt({vm})")
        if lgkm is not None: p.append(f"lgkmcnt({lgkm})")
        if p: self.e("s_waitcnt " + " ".join(p))
    def ts(self, k):
        if self.opt.get("ts"):
            self.e(f"s_memrealtime s[{sTS}:{sTS+1}]")
            self.e(f"s_lshl_b32 s{sT3}, s{sLAY}, 5")
            self.e(f"s_add_u32 m0, s{sT3}, {k}")
            self.e("s_waitcnt lgkmcnt(0)")
            self.e(f"v_writelane_b32 v{vTS}, s{sTS}, m0")
    def tsc(self, k):
        if self.opt.get("ts"):
            self.e(f"s_memtime s[{sTS}:{sTS+1}]")
            self.e(f"s_lshl_b32 s{sT3}, s{sLAY}, 5")
            self.e(f"s_add_u32 m0, s{sT3}, {k}")
            self.e("s_waitcnt lgkmcnt(0)")
            self.e(f"v_writelane_b32 v{vTS}, s{sTS}, m0")

    def lanes(self, vL, vG=None, vI=None):
        self.e(f"v_lshrrev_b32 v{vL}, 4, v{vL16}")
        if vG is not None: self.e(f"v_lshrrev_b32 v{vG}, 8, v{vL16}")
        if vI is not None: self.e(f"v_and_b32 v{vI}, 15, v{vL}")

    def dstore(self, instr):
        if self.opt.get("fast"): return self.store(instr)
        return [instr + " sc0 sc1"]
    def store(self, instr):
        l1, l2 = self.lab("st"), self.lab("st")
        return [f"s_cmp_eq_u32 s{sMODE}, 0", f"s_cbranch_scc1 {l1}", instr + " sc0 sc1", f"s_branch {l2}", f"@{l1}", instr, f"@{l2}"]

    def emit(self, seq):
        for x in seq:
            if isinstance(x, (list, tuple)): self.emit(x)
            elif x.startswith("@"): self.label(x[1:])
            elif x.startswith("."): self.a.raw("    " + x)
            else: self.e(x)

    def flag_set(self, kind, byteoff_extra, vt0=None, vt1=None):
        vt0, vt1 = vF0, vF1
        return [f"s_lshl_b32 s{sT}, s{sNT}, 2", f"s_add_u32 s{sT}, s{sT}, s{sLW}", f"s_add_u32 s{sT}, s{sT}, s{sFl}",
                f"s_add_u32 s{sT}, s{sT}, {kind * 2048 + byteoff_extra}",
                f"v_mov_b32 v{vt0}, 0", f"v_mov_b32 v{vt1}, 1", "s_mov_b64 exec, 1"] + \
               self.store(f"buffer_store_byte v{vt1}, v{vt0}, s[{sWS}:{sWS+3}], s{sT} offen") + ["s_mov_b64 exec, -1"]

    def wg_flag(self, kind, back=False):
        e = self.e
        e(f"s_lshl_b32 s{sT}, s{sN4}, 2"); e(f"s_add_u32 s{sT}, s{sT}, s{sFl}"); e(f"s_add_u32 s{sT}, s{sT}, {(kind * 2048 - (16 * KB if back else 0)) & 0xffffffff}")
        e(f"v_mov_b32 v{vF0}, 0"); e(f"v_mov_b32 v250, 0x01010101")
        e("s_mov_b64 exec, 1")
        e(f"buffer_store_dword v250, v{vF0}, s[{sWS}:{sWS+3}], s{sT} offen sc0 sc1")
        e("s_mov_b64 exec, -1")
    def wg_flag_if(self, lw, kind, back=False):
        l = self.lab("wf")
        self.e(f"s_cmp_lg_u32 s{sLW}, {lw}"); self.e(f"s_cbranch_scc1 {l}")
        self.wg_flag(kind, back)
        self.label(l)

    def poll(self, setup, nl, want, vt0, vt1, soff):
        lp, ld = self.lab("poll"), self.lab("pd")
        self.emit(setup)
        self.e(f"s_mov_b32 s{sT2}, {POLL}")
        self.e(f"s_mov_b32 s{sT3}, 0x{want:08x}")
        self.e(f"s_mov_b64 exec, {hex((1 << nl) - 1) if nl < 64 else -1}")
        self.label(lp)
        self.e(f"buffer_load_dword v{vt1}, v{vt0}, s[{sWS}:{sWS+3}], s{soff} offen sc0 sc1")
        self.e("s_waitcnt vmcnt(0)")
        self.e(f"v_cmp_ne_u32 vcc, s{sT3}, v{vt1}")
        self.e(f"s_cbranch_vccz {ld}")
        if self.opt.get("psleep", 1): self.e(f"s_sleep {int(self.opt.get('psleep', 1))}")
        self.e(f"s_sub_u32 s{sT2}, s{sT2}, 1")
        self.e(f"s_cmp_lg_u32 s{sT2}, 0")
        self.e(f"s_cbranch_scc1 {lp}")
        self.label(ld)
        self.e("s_mov_b64 exec, -1")

    def poll_flags(self, kind, byteoff, nl, vt0, vt1, extra_s=None):
        vt0, vt1 = vF0, vF1
        setup = [f"v_lshrrev_b32 v{vt0}, 2, v{vL16}", f"s_add_u32 s{sT}, s{sFl}, {kind * 2048 + byteoff}"]
        if extra_s is not None: setup.append(f"s_add_u32 s{sT}, s{sT}, s{extra_s}")
        self.poll(setup, nl, 0x01010101, vt0, vt1, sT)

    def apoll_issue(self, vm, kind, byteoff, nl, vP, extra_s=None):
        e = self.e
        e(f"v_lshrrev_b32 v{vF0}, 2, v{vL16}"); e(f"v_min_u32 v{vF0}, {4 * (nl - 1)}, v{vF0}")
        e(f"s_add_u32 s{sT}, s{sFl}, {kind * 2048 + byteoff}")
        if extra_s is not None: e(f"s_add_u32 s{sT}, s{sT}, s{extra_s}")
        e(f"buffer_load_dword v{vP}, v{vF0}, s[{sWS}:{sWS+3}], s{sT} offen sc0 sc1"); vm.issue("ap")
    def apoll_check(self, vm, kind, byteoff, nl, vP, extra_s=None):
        e = self.e; l = self.lab("ap")
        self.wait(vm.need("ap"))
        e(f"v_cmp_ne_u32 vcc, 0x01010101, v{vP}")
        e(f"s_cbranch_vccz {l}")
        self.poll_flags(kind, byteoff, nl, None, None, extra_s)
        self.label(l)
    def junk(self, sbase, lit):
        return [f"s_add_u32 s{sT}, s{sbase}, {lit}", f"buffer_store_dwordx4 v[0:3], v{vL16}, s[{sWS}:{sWS+3}], s{sT} offen sc0 sc1"]

    def round_bf16(self, v): return [f"v_cvt_pk_bf16_f32 v{v}, v{v}, v{v}", f"v_lshlrev_b32 v{v}, 16, v{v}"]
    def finish_stats(self, vs, vq):
        o = [f"v_mul_f32 v{vs}, 0x3a800000, v{vs}", f"v_mul_f32 v{vq}, 0x3a800000, v{vq}",
             f"v_fma_f32 v{vq}, -v{vs}, v{vs}, v{vq}", f"v_max_f32 v{vq}, 0, v{vq}"]
        o += self.round_bf16(vs) + self.round_bf16(vq)
        o += [f"v_add_f32 v{vq}, 0x{EPS_BITS:08x}, v{vq}"] + self.round_bf16(vq)
        o += [f"v_sqrt_f32 v{vq}, v{vq}", "s_nop 0"] + self.round_bf16(vq)
        o += [f"v_rcp_f32 v{vq}, v{vq}", "s_nop 0"]
        return o
    def xred(self, regs, tmps, op="v_add_f32", steps=("v_permlane16_swap_b32", "v_permlane32_swap_b32")):
        o = []
        for sw in steps:
            o += [f"v_mov_b32 v{t}, v{v}" for v, t in zip(regs, tmps)]
            o += ["s_nop 1"]
            o += [f"{sw} v{v}, v{t}" for v, t in zip(regs, tmps)]
            o += [f"{op} v{v}, v{v}, v{t}" for v, t in zip(regs, tmps)]
        return o

    def dma(self, vm, tag, srd, pats, mbase, mlit, gbase, glit, tmp, flags=""):
        g = []
        for i, p in enumerate(pats):
            pre = []
            if i == 0:
                pre.append(f"s_add_u32 m0, s{mbase}, {mlit}" if mbase is not None else f"s_mov_b32 m0, {mlit}")
                pre.append(f"s_add_u32 s{tmp}, s{gbase}, {glit}")
            off = f" offset:{1024 * i}" if i else ""
            g.append(pre + [f"buffer_load_dwordx4 v{p}, s[{srd}:{srd+3}], s{tmp} offen{off}{flags} lds"])
            vm.issue(tag)
        return g

    def mix(self, dmas, side):
        if not dmas: return list(side)
        out = []; n = len(dmas); k = 0
        for i, d in enumerate(dmas):
            out.append(d)
            want = (len(side) * (i + 1)) // n
            out += side[k:want]; k = want
        return out

    def w_issue(self, vm, n, P):
        n0 = n; n = n % 132
        slot = (n % 6) * WSLOT
        tag = ("W", n)
        if n < 72:
            if n < 32:
                init = [f"s_lshl_b32 s{sRi}, s{sN4}, 1"] if n == 0 else []
                srd, p0, p1, mb, d2, mul, base, g2, inc, msk = sQKV, P["g1"][0:3], P["g1"][3:6], sMb, 3072, 32 * 6144, sGb, 0, 1, 31
            elif n < 40:
                init = [f"s_add_u32 s{sRi}, s{sN4}, s{sWM}", f"s_and_b32 s{sRi}, s{sRi}, 15"] if n == 32 else []
                srd, p0, p1, mb, d2, mul, base, g2, inc, msk = sWO, P["g2"], P["g2"], sMb2, 4096, 64 * 2048, sGc, 32 * 2048, 2, 15
            else:
                init = [f"s_lshl_b32 s{sRi}, s{sN4}, 1"] if n == 40 else []
                srd, p0, p1, mb, d2, mul, base, g2, inc, msk = sW13, P["g3a"], P["g3a"], sMb2, 4096, 32 * 7168, sGb, 16 * 7168, 1, 31
            g = self.dma(vm, tag, srd, p0, mb, slot, sD0, f"s{base}", sD0) + self.dma(vm, tag, srd, p1, mb, slot + d2, sD0, g2, sD1)
            g[0] = init + [f"s_mul_i32 s{sD0}, s{sRi}, {mul}"] + g[0]
            g[1] = g[1] + [f"s_add_u32 s{sRi}, s{sRi}, {inc}", f"s_and_b32 s{sRi}, s{sRi}, {msk}"]
            return g
        if n < 104:
            s = n - 72
            return self.dma(vm, tag, sW13, P["g3b"], sMb, slot, sGb2, s * 32 * 7168, sD0) + \
                   self.dma(vm, tag, sW13, P["g3b"], sMb, slot + 3072, sGb2, (s * 32 + 16) * 7168, sD1)
        u = n - 104
        if u < 24:
            p = u & 7; c = u >> 3
            colA = 224 * p + (96 if p & 1 else 0); colB = 224 * p + (0 if p & 1 else 128)
            row = [colA, colA + 32, colB][c]; base = sGc
        else:
            row = 448 * (u - 24) + 160; base = sGc2
        return self.dma(vm, tag, sW2, P["g4"], sMb2, slot, base, row * 2048, sD0) + \
               self.dma(vm, tag, sW2, P["g4"], sMb2, slot + 4096, base, (row + 16) * 2048, sD1)

    def pat_g1(self, P, t0, t1, t2, first):
        o = [f"v_lshrrev_b32 v{t0}, 7, v{vL16}",
             f"v_and_b32 v{t1}, 0x70, v{vL16}",
             f"v_and_b32 v{t2}, 6, v{t0}", f"v_lshlrev_b32 v{t2}, 4, v{t2}", f"v_xor_b32 v{t1}, v{t1}, v{t2}"]
        if first:
            o += [f"v_and_b32 v{t2}, 4, v{t0}", f"v_add_u32 v{t0}, v{t0}, v{t2}"]
        o += [f"v_mul_u32_u24 v{t0}, 6144, v{t0}", f"v_add_u32 v{t0}, v{t0}, v{t1}"]
        rb = [0, 16, 4, 20] if first else [0, 8, 16, 24]
        def cst(q): return rb[q & 3] * 6144 + (q >> 2) * 2048 - 1024 * (q % 3)
        for i in range(6):
            o += [f"s_cmp_eq_u32 s{sWM}, 0", f"s_mov_b32 s{sT}, {cst(i) + 4096}", f"s_cselect_b32 s{sT}, s{sT}, {cst(6 + i) + 4096}",
                  f"v_add_u32 v{P['g1'][i]}, s{sT}, v{t0}", f"v_subrev_u32 v{P['g1'][i]}, 4096, v{P['g1'][i]}"]
        o += [f"s_mul_i32 s{sMb}, s{sWM}, 6144", f"s_lshl_b32 s{sGb}, s{sN4}, 7"]
        return o
    def pat_g2(self, P, t0, t1, t2):
        o = [f"v_lshrrev_b32 v{t0}, 7, v{vL16}", f"v_and_b32 v{t1}, 0x70, v{vL16}",
             f"v_and_b32 v{t2}, 6, v{t0}", f"v_lshlrev_b32 v{t2}, 4, v{t2}", f"v_xor_b32 v{t1}, v{t1}, v{t2}",
             f"v_lshl_add_u32 v{P['g2'][0]}, v{t0}, 11, v{t1}"]
        for i in range(1, 4): o.append(f"v_add_u32 v{P['g2'][i]}, {i * (8 * 2048 - 1024)}, v{P['g2'][0]}")
        o += [f"s_lshl_b32 s{sMb2}, s{sWM}, 13", f"s_lshl_b32 s{sGc}, s{sN4}, 7"]
        return o
    def pat_256(self, regs, pitch, t0, t1, t2):
        o = [f"v_and_b32 v{t1}, 0xf0, v{vL16}"]
        for i in range(4):
            o += [f"v_lshrrev_b32 v{t0}, 8, v{vL16}"]
            if i: o += [f"v_add_u32 v{t0}, {4 * i}, v{t0}"]
            o += [f"v_and_b32 v{t2}, 7, v{t0}", f"v_lshlrev_b32 v{t2}, 5, v{t2}", f"v_xor_b32 v{t2}, v{t1}, v{t2}",
                  f"v_mul_u32_u24 v{t0}, {pitch}, v{t0}", f"v_add_u32 v{regs[i]}, v{t0}, v{t2}"]
            if i: o += [f"v_subrev_u32 v{regs[i]}, {1024 * i}, v{regs[i]}"]
        return o
    def pat_g3a(self, P, t0, t1, t2):
        return self.pat_256(P["g3a"], 7168, t0, t1, t2) + \
            [f"s_lshl_b32 s{sMb2}, s{sWM}, 13", f"s_mul_i32 s{sGb}, s{sNT}, 448", f"s_and_b32 s{sT}, s{sNT}, 1", f"s_mul_i32 s{sT}, s{sT}, 192", f"s_add_u32 s{sGb}, s{sGb}, s{sT}"]
    def pat_g3b(self, P, t0, t1, t2):
        o = [f"s_mov_b32 s{sT}, 5462"]
        for i in range(3):
            o += [f"v_lshrrev_b32 v{t0}, 4, v{vL16}"]
            if i: o += [f"v_add_u32 v{t0}, {64 * i}, v{t0}"]
            o += [f"v_mul_lo_u32 v{t1}, v{t0}, s{sT}", f"v_lshrrev_b32 v{t1}, 16, v{t1}",
                  f"v_mul_u32_u24 v{t2}, 12, v{t1}", f"v_sub_u32 v{t0}, v{t0}, v{t2}",
                  f"v_lshrrev_b32 v{t2}, 1, v{t1}", f"v_and_b32 v{t2}, 2, v{t2}", f"v_xor_b32 v{t0}, v{t0}, v{t2}",
                  f"v_mul_u32_u24 v{t1}, 7168, v{t1}", f"v_lshl_add_u32 v{P['g3b'][i]}, v{t0}, 4, v{t1}"]
            if i: o += [f"v_subrev_u32 v{P['g3b'][i]}, {1024 * i}, v{P['g3b'][i]}"]
        o += [f"s_mul_i32 s{sMb}, s{sWM}, 6144", f"s_mul_i32 s{sGb2}, s{sNT}, 448", f"s_and_b32 s{sT}, s{sNT}, 1", f"s_xor_b32 s{sT}, s{sT}, 1",
              f"s_lshl_b32 s{sT}, s{sT}, 8", f"s_add_u32 s{sGb2}, s{sGb2}, s{sT}"]
        return o
    def pat_g4(self, P, t0, t1, t2):
        return self.pat_256(P["g4"], 2048, t0, t1, t2) + \
            [f"s_lshl_b32 s{sMb2}, s{sWM}, 13", f"s_and_b32 s{sT}, s{sN4}, 1", f"s_mul_i32 s{sGc}, s{sT}, {1792 * 2048}",
             f"s_lshr_b32 s{sT}, s{sN4}, 1", f"s_lshl_b32 s{sT}, s{sT}, 8", f"s_add_u32 s{sGc}, s{sGc}, s{sT}",
             f"s_mul_i32 s{sT}, s{sWM}, {96 * 2048}", f"s_add_u32 s{sGc2}, s{sGc}, s{sT}",
             f"s_lshl_b32 s{sT}, s{sWM}, 17", f"s_add_u32 s{sGc}, s{sGc}, s{sT}"]

    def a_issue(self, vm, tag, slot, gbase, glit, part=None):
        g = []
        for h in ((0, 1) if part is None else (part,)):
            if glit is None:
                if h == 0: g += self.dma(vm, tag, sWS, [vL16] * 4, sMb, LA + slot * 16384, gbase, f"s{sRi}", sD0)
                else:
                    x = self.dma(vm, tag, sWS, [vL16] * 4, sMb, LA + slot * 16384 + 4096, sD0, 4096, sD1)
                    x[1] = x[1] + [f"s_add_u32 s{sRi}, s{sRi}, 16384", f"s_and_b32 s{sRi}, s{sRi}, 0x3ffff"]
                    g += x
            else:
                g += self.dma(vm, tag, sWS, [vL16] * 4, sMb, LA + slot * 16384 + h * 4096, gbase, glit + h * 4096, sD0 + h)
        return g

    def step(self, path, name, mf, reads, vmw=None, bar=True, last=None, extra=None):
        self.wait(vmw, 0)
        if bar: self.bar(path, name)
        self.al()
        oth = [[r] for r in reads]
        if last is None: last = len(reads) - 1
        sl = spread(len(reads), 0, last)
        if extra:
            for s, x in extra:
                oth.append(x + [".p2align 3"]); sl.append(s)
        self.emit(place(mf, oth, sl))

    def looped(self, path, nsteps, body, fn):
        trips = (nsteps - 1) // body
        l = self.lab("loop")
        self.e(f"s_mov_b32 s{sCnt}, {trips}")
        self.al()
        self.label(l)
        nb0 = len(self.bars.get(path, []))
        for s in range(body):
            ex = None
            if s == body - 1: ex = "cnt"
            fn(s, ex)
        self.e(f"s_cbranch_scc1 {l}")
        names = self.bars[path][nb0:]
        for t in range(1, trips):
            for nm in names: self.bars[path].append((nm[0], nm[1] + t * len(names)))
        for s in range(trips * body, nsteps): fn(s, None)

    CNT = [f"s_sub_u32 s{sCnt}, s{sCnt}, 1", f"s_cmp_lg_u32 s{sCnt}, 0"]

    def x_prep(self):
        e = self.e
        l3, ld = self.lab("xp"), self.lab("xp")
        D = 0; AC = 64; T = 80
        vO, vS0, vS1, vS2 = 100, 101, 102, 103
        e(f"s_getpc_b64 s[{sAT}:{sAT+1}]")
        self.label("K_pc")
        e(f"s_mov_b32 s{sAT+2}, K_end-K_pc")
        e(f"s_mov_b32 s{sAT+3}, 0x00020000")
        e(f"s_lshr_b32 s{sT}, s2, 3"); e(f"s_lshl_b32 s{sT}, s{sT}, 2"); e(f"s_add_u32 s{sT}, s{sT}, s{sLW}"); e(f"s_lshl_b32 s{sT}, s{sT}, 10")
        e(f"v_lshlrev_b32 v{vO}, 3, v{vL16}")
        e("s_mov_b64 exec, 0xff")
        e(f"buffer_load_dword v{vS0}, v{vO}, s[{sAT}:{sAT+3}], s{sT} offen")
        e("s_mov_b64 exec, -1")
        e(f"v_lshrrev_b32 v{vO}, 7, v{vL16}")
        e(f"v_and_b32 v{vS1}, 0x70, v{vL16}")
        e(f"s_cmp_eq_u32 s{sLW}, 3"); e(f"s_cbranch_scc1 {l3}")
        e(f"v_mul_u32_u24 v{vO}, 6144, v{vO}"); e(f"v_add_u32 v{vO}, v{vO}, v{vS1}")
        e(f"s_mul_i32 s{sT2}, s2, 3"); e(f"s_add_u32 s{sT2}, s{sT2}, s{sLW}")
        e(f"s_and_b32 s{sT}, s{sT2}, 15"); e(f"s_mul_i32 s{sT}, s{sT}, {64 * 6144}")
        e(f"s_lshr_b32 s{sT3}, s{sT2}, 4"); e(f"s_lshl_b32 s{sT3}, s{sT3}, 7"); e(f"s_add_u32 s{sT}, s{sT}, s{sT3}")
        for i in range(8):
            e(f"buffer_load_dwordx4 v[{D+4*i}:{D+4*i+3}], v{vO}, s[{sQKV}:{sQKV+3}], s{sT} offen")
            e(f"s_add_u32 s{sT}, s{sT}, {8 * 6144}")
        for i in range(8): e(f"v_mov_b32 v{AC+i}, 0")
        e(f"v_mov_b32 v{vS1}, 0x00003f80"); e(f"v_mov_b32 v{vS2}, 0x3f800000")
        for i in range(8):
            e(f"s_waitcnt vmcnt({7 - i})")
            for j in range(4):
                e(f"v_dot2_f32_bf16 v{AC+2*j}, v{D+4*i+j}, v{vS1}, v{AC+2*j}")
                e(f"v_dot2_f32_bf16 v{AC+2*j+1}, v{D+4*i+j}, v{vS2}, v{AC+2*j+1}")
        e("s_nop 3")
        for i in range(8): e(f"v_add_f32_dpp v{AC+i}, v{AC+i}, v{AC+i} row_ror:8 row_mask:0xf bank_mask:0xf")
        self.emit(self.xred(list(range(AC, AC + 8)), list(range(T, T + 8))))
        e(f"s_and_b32 s{sT}, s{sT2}, 15"); e(f"s_mul_i32 s{sT}, s{sT}, 12288")
        e(f"s_lshl_b32 s{sT3}, s{sT3}, 1"); e(f"s_add_u32 s{sT}, s{sT}, s{sT3}"); e(f"s_add_u32 s{sT}, s{sT}, {WS_CSQ}")
        e(f"v_lshlrev_b32 v{vO}, 1, v{vL16}")
        e("s_mov_b64 exec, 0xff")
        e(f"buffer_store_dwordx4 v[{AC}:{AC+3}], v{vO}, s[{sWS}:{sWS+3}], s{sT} offen sc0 sc1")
        e(f"buffer_store_dwordx4 v[{AC+4}:{AC+7}], v{vO}, s[{sWS}:{sWS+3}], s{sT} offen offset:16 sc0 sc1")
        e("s_mov_b64 exec, -1")
        e(f"s_branch {ld}")
        self.label(l3)
        e(f"v_lshl_add_u32 v{vO}, v{vO}, 11, v{vS1}")
        e(f"s_lshl_b32 s{sT}, s2, 14")
        for i in range(16):
            e(f"buffer_load_dwordx4 v[{D+4*i}:{D+4*i+3}], v{vO}, s[{sX0}:{sX0+3}], s{sT} offen offset:{128 * i}")
        for i in range(4): e(f"v_mov_b32 v{AC+i}, 0")
        e(f"v_mov_b32 v{vS1}, 0x3f803f80")
        for i in range(16):
            e(f"s_waitcnt vmcnt({15 - i})")
            for j in range(4):
                e(f"v_dot2_f32_bf16 v{AC+2*(j&1)}, v{D+4*i+j}, v{vS1}, v{AC+2*(j&1)}")
                e(f"v_dot2_f32_bf16 v{AC+2*(j&1)+1}, v{D+4*i+j}, v{D+4*i+j}, v{AC+2*(j&1)+1}")
        e("s_nop 3")
        e(f"v_add_f32 v{AC}, v{AC}, v{AC+2}"); e(f"v_add_f32 v{AC+1}, v{AC+1}, v{AC+3}")
        for m in ("quad_perm:[1,0,3,2]", "quad_perm:[2,3,0,1]", "row_half_mirror"):
            e("s_nop 1")
            for i in range(2): e(f"v_add_f32_dpp v{AC+i}, v{AC+i}, v{AC+i} {m} row_mask:0xf bank_mask:0xf")
        e(f"v_lshrrev_b32 v{vO}, 4, v{vL16}")
        e(f"s_lshl_b32 s{sT}, s2, 6"); e(f"s_add_u32 s{sT}, s{sT}, {WS_ST0}")
        e(f"s_mov_b32 s{sEX}, 0x01010101"); e(f"s_mov_b32 s{sEX+1}, 0x01010101")
        e(f"s_mov_b64 exec, s[{sEX}:{sEX+1}]")
        e(f"buffer_store_dwordx2 v[{AC}:{AC+1}], v{vO}, s[{sWS}:{sWS+3}], s{sT} offen sc0 sc1")
        e("s_mov_b64 exec, -1")
        self.label(ld)

    def waddr128(self, dst, sel, t0, t1, t2, nt=2):
        e = self.e
        e(f"v_lshrrev_b32 v{t0}, 6, v{vL16}")
        e(f"v_lshrrev_b32 v{t1}, 1, v{t0}"); e(f"v_and_b32 v{t1}, 3, v{t1}")
        e(f"s_lshl_b32 s{sT}, s{sel}, 1")
        e(f"v_xor_b32 v{t1}, s{sT}, v{t1}")
        e(f"v_lshlrev_b32 v{t0}, 7, v{t0}")
        e(f"v_lshl_add_u32 v{t0}, v{t1}, 5, v{t0}")
        e(f"v_and_b32 v{t1}, 0x30, v{vL16}"); e(f"v_lshrrev_b32 v{t1}, 1, v{t1}")
        e(f"v_add_u32 v{dst}, v{t0}, v{t1}")
        e(f"v_xor_b32 v{dst+1}, 32, v{dst}")
        for t in range(2): e(f"v_add_u32 v{dst+2+t}, {3 * WSLOT}, v{dst+t}")

    def waddr256(self, dst, xs, sbase, t0, t1):
        o = [f"v_lshrrev_b32 v{t0}, 6, v{vL16}", f"v_and_b32 v{t1}, 7, v{t0}", f"v_xor_b32 v{t1}, s{sbase}, v{t1}",
             f"v_lshlrev_b32 v{t0}, 8, v{t0}", f"v_lshl_add_u32 v{t0}, v{t1}, 5, v{t0}",
             f"v_and_b32 v{t1}, 0x30, v{vL16}", f"v_lshrrev_b32 v{t1}, 1, v{t1}", f"v_add_u32 v{t0}, v{t0}, v{t1}"]
        for t in range(4): o.append(f"v_xor_b32 v{dst+t}, {xs[t] << 5}, v{t0}")
        for t in range(4): o.append(f"v_add_u32 v{dst+4+t}, {3 * WSLOT}, v{dst+t}")
        return o

    def x_g1(self):
        e = self.e; P = "X"
        ACCQ, ACCK, ACCV, XF, WF = 0, 32, 72, 112, 152
        vXa, vWa = 200, 202
        vL, vG, vI, vT0, vT1, vT2, vT3, vOA = 206, 207, 208, 209, 210, 211, 212, 213
        def aq(j, ab): return ACCQ + ((j - 1) * 2 + ab) * 4
        def ak(j, ab): return ACCK + (j * 2 + ab) * 4
        def av(j, ab): return ACCV + (j * 2 + ab) * 4
        def xf(b, j): return XF + b * 20 + j * 4
        def wf(b, seg, ab): return WF + b * 24 + (seg * 2 + ab) * 4
        self.lanes(vL, vG, vI)
        l2, l3 = self.lab("g1"), self.lab("g1")
        e(f"s_lshl_b32 s{sT}, s{sWN}, 13"); e(f"s_add_u32 s{sT}, s{sT}, {LA}")
        e(f"s_cmp_lg_u32 s{sLAY}, 0"); e(f"s_cbranch_scc1 {l2}")
        e(f"v_and_b32 v{vT1}, 6, v{vI}"); e(f"v_xor_b32 v{vT1}, v{vT1}, v{vG}"); e(f"v_lshlrev_b32 v{vT1}, 4, v{vT1}")
        e(f"v_lshl_add_u32 v{vXa}, v{vI}, 7, v{vT1}"); e(f"v_xor_b32 v{vXa+1}, 64, v{vXa}")
        e(f"s_branch {l3}")
        self.label(l2)
        e(f"v_mov_b32 v{vXa}, v{vL16}"); e(f"v_add_u32 v{vXa+1}, 1024, v{vL16}")
        self.label(l3)
        e(f"v_add_u32 v{vXa}, s{sT}, v{vXa}"); e(f"v_add_u32 v{vXa+1}, s{sT}, v{vXa+1}")
        self.waddr128(vWa, sWM, vT0, vT1, vT2)
        for i in range(112): e(f"v_mov_b32 v{i}, 0")
        e(f"s_lshl_b32 s{sT}, s{sN4}, 14"); e(f"s_lshl_b32 s{sT2}, s{sWN}, 13"); e(f"s_add_u32 s{sT}, s{sT}, s{sT2}")
        e(f"s_lshl_b32 s{sT2}, s{sWM}, 10"); e(f"s_add_u32 s{sT}, s{sT}, s{sT2}"); e(f"s_add_u32 s{sGb}, s{sT}, s{sOo}")
        e(f"v_lshrrev_b32 v{vT0}, 3, v{vL}"); e(f"v_and_b32 v{vT0}, 3, v{vT0}"); e(f"v_lshlrev_b32 v{vT0}, 11, v{vT0}")
        e(f"v_and_b32 v{vT1}, 7, v{vL}"); e(f"v_lshl_add_u32 v{vOA}, v{vT1}, 7, v{vT0}")
        def reads(s):
            b = s & 1; u = s >> 1; sl = s % 6
            xr = [f"ds_read_b128 v[{xf(b,j)}:{xf(b,j)+3}], v{vXa + (s & 1)} offset:{(u % 3) * 18432 + j * 2048}" for j in range(5)]
            wr = []
            for seg in range(3):
                for ab in range(2):
                    r = wf(b, seg, ab); ad = vWa + 2 * (sl // 3) + ab; off = (sl % 3) * WSLOT + seg * 4096
                    wr.append(f"ds_read_b64_tr_b16 v[{r}:{r+1}], v{ad} offset:{off}")
                    wr.append(f"ds_read_b64_tr_b16 v[{r+2}:{r+3}], v{ad} offset:{off + 2048}")
            return wr[0:2] + xr[1:] + wr[2:6] + xr[0:1] + wr[6:]
        def mf(s):
            b = s & 1; m = []
            for ab in range(2):
                for j in range(1, 5): m.append(mfma(aq(j, ab), wf(b, 0, ab), xf(b, j)))
            for ab in range(2):
                for j in range(5): m.append(mfma(ak(j, ab), wf(b, 1, ab), xf(b, j)))
            for ab in range(2):
                for j in range(5): m.append(mfma(av(j, ab), xf(b, j), wf(b, 2, ab)))
            return m
        self.ts(0)
        self.bar(P, ("G1", -1))
        self.ts(1); self.tsc(16)
        self.emit(reads(0))
        def fn(s, ex):
            extra = []
            if ex: extra.append((24, self.CNT))
            if s == 30 and self.opt.get("fast"): extra.append((22, [f"buffer_load_dword v{vOA}, v{vOA}, s[{sWS}:{sWS+3}], s{sGb} offen sc0 sc1"]))
            self.step(P, ("G1", s), mf(s), reads(s + 1) if s < 31 else [], vmw=(0 if s == 2 else None), last=20, extra=extra)
        self.looped(P, 32, 6, fn)
        self.ts(2); self.tsc(17)
        CSQ = WF; CSV = WF + 16; SQ = XF
        e(f"v_mov_b32 v{vT2}, {L_MODE}")
        e(f"ds_read_b32 v{vT2}, v{vT2}")
        e(f"s_lshl_b32 s{sT}, s{sWM}, 7"); e(f"s_add_u32 s{sT}, s{sT}, {L_CSQ}")
        e(f"v_lshlrev_b32 v{vT0}, 4, v{vG}"); e(f"v_add_u32 v{vT0}, s{sT}, v{vT0}")
        e(f"v_lshlrev_b32 v{vT1}, 2, v{vI}"); e(f"v_add_u32 v{vT1}, s{sT}, v{vT1}")
        for seg in range(2):
            for ab in range(2):
                b = CSQ + (seg * 2 + ab) * 4
                e(f"ds_read_b128 v[{b}:{b+3}], v{vT0} offset:{256*seg + 64*ab}")
        for ab in range(2): e(f"ds_read_b32 v{CSV+ab}, v{vT1} offset:{512 + 64*ab}")
        e("s_waitcnt lgkmcnt(6)")
        e(f"v_readfirstlane_b32 s{sMODE}, v{vT2}")
        e(f"s_lshl_b32 s{sT}, s{sWN}, 9"); e(f"s_add_u32 s{sT}, s{sT}, {L_ST}")
        e(f"v_lshlrev_b32 v{vT2}, 3, v{vI}"); e(f"v_add_u32 v{vT2}, s{sT}, v{vT2}")
        for j in range(5): e(f"ds_read_b64 v[{SQ+2*j}:{SQ+2*j+1}], v{vT2} offset:{128*j}")
        e(f"v_lshlrev_b32 v{vT3}, 5, v{vG}"); e(f"v_add_u32 v{vT3}, s{sT}, v{vT3}")
        e("s_waitcnt lgkmcnt(0)")
        QP = 220; KP = XF + 20; VP = WF + 24; SV = 236; NM = 244
        for j in range(5):
            e(f"v_sub_f32 v{NM}, 0, v{SQ+2*j}")
            for seg in range(2):
                if seg == 0 and j == 0: continue
                for ab in range(2):
                    c = aq(j, ab) if seg == 0 else ak(j, ab)
                    cs = CSQ + (seg * 2 + ab) * 4
                    for r in range(4): e(f"v_fmac_f32 v{c+r}, v{NM}, v{cs+r}")
                    for r in range(4): e(f"v_mul_f32 v{c+r}, v{SQ+2*j+1}, v{c+r}")
                    Pk = (QP + (j - 1) * 4 if seg == 0 else KP + j * 4) + 2 * ab
                    e(f"v_cvt_pk_bf16_f32 v{Pk}, v{c}, v{c+1}")
                    e(f"v_cvt_pk_bf16_f32 v{Pk+1}, v{c+2}, v{c+3}")
        for j in range(5):
            e(f"ds_read_b128 v[{SV}:{SV+3}], v{vT3} offset:{128*j}")
            e(f"ds_read_b128 v[{SV+4}:{SV+7}], v{vT3} offset:{128*j+16}")
            e("s_waitcnt lgkmcnt(0)")
            for ab in range(2):
                c = av(j, ab)
                for r in range(4): e(f"v_fma_f32 v{c+r}, -v{SV+2*r}, v{CSV+ab}, v{c+r}")
                for r in range(4): e(f"v_mul_f32 v{c+r}, v{SV+2*r+1}, v{c+r}")
                Pk = VP + ab * 10 + 2 * j
                e(f"v_cvt_pk_bf16_f32 v{Pk}, v{c}, v{c+1}")
                e(f"v_cvt_pk_bf16_f32 v{Pk+1}, v{c+2}, v{c+3}")
        sM = sAT; sPM = sAT + 16
        e(f"v_lshlrev_b32 v{vT0}, 2, v{vG}"); e(f"v_sub_u32 v{vT0}, v{vI}, v{vT0}")
        for r in range(4):
            e(f"v_subrev_u32 v{vT1}, {r}, v{vT0}")
            e(f"v_and_b32 v{vT2}, 1, v{vT1}")
            e(f"v_cmp_eq_u32 s[{sEX}:{sEX+1}], 0, v{vT2}")
            e(f"v_cmp_le_i32 vcc, 0, v{vT1}")
            e(f"s_and_b64 s[{sM+2*r}:{sM+2*r+1}], s[{sEX}:{sEX+1}], vcc")
            e(f"v_cmp_ge_i32 vcc, -2, v{vT1}")
            e(f"s_and_b64 s[{sM+8+2*r}:{sM+8+2*r+1}], s[{sEX}:{sEX+1}], vcc")
        sZ, sSC = sD0, sGb2
        e(f"s_or_b32 s{sZ}, s{sMT}, s{sWN}")
        e(f"s_mov_b32 s{sSC}, 0x{f32bits((32 ** -0.5) * 1.4426950408889634):08x}")
        e(f"s_mov_b32 s{sSC+1}, 0xf149f2ca")
        S = 0; PP = 8; OO = 12; OP = 20; TT = 24
        for j in range(1, 5):
            q = QP + (j - 1) * 4
            e("s_nop 1")
            e(mfma(S, KP + 4 * j, q, "0"))
            e(mfma(S + 4, KP + 4 * (j - 1), q, "0"))
            if j == 1:
                e(f"s_cmp_eq_u32 s{sZ}, 0")
                for r in range(4): e(f"s_cselect_b64 s[{sPM+2*r}:{sPM+1+2*r}], 0, s[{sM+8+2*r}:{sM+9+2*r}]")
            e("s_nop 7")
            pm = (lambda r: sPM + 2 * r) if j == 1 else (lambda r: sM + 8 + 2 * r)
            e(f"v_mov_b32 v{TT}, s{sSC+1}")
            for r in range(4):
                e(f"v_mul_f32 v{S+r}, s{sSC}, v{S+r}"); e(f"v_mul_f32 v{S+4+r}, s{sSC}, v{S+4+r}")
            for r in range(4):
                e(f"v_cndmask_b32 v{S+r}, v{TT}, v{S+r}, s[{sM+2*r}:{sM+2*r+1}]")
                e(f"v_cndmask_b32 v{S+4+r}, v{TT}, v{S+4+r}, s[{pm(r)}:{pm(r)+1}]")
            e(f"v_max3_f32 v{TT+1}, v{S}, v{S+1}, v{S+2}"); e(f"v_max3_f32 v{TT+2}, v{S+3}, v{S+4}, v{S+5}")
            e(f"v_max3_f32 v{TT+1}, v{TT+1}, v{S+6}, v{S+7}"); e(f"v_max_f32 v{TT+1}, v{TT+1}, v{TT+2}")
            self.emit(self.xred([TT + 1], [TT + 2], "v_max_f32"))
            for r in range(8): e(f"v_sub_f32 v{S+r}, v{S+r}, v{TT+1}")
            for r in range(8): e(f"v_exp_f32 v{S+r}, v{S+r}")
            e(f"v_add_f32 v{TT+1}, v{S}, v{S+1}")
            for r in range(2, 8): e(f"v_add_f32 v{TT+1}, v{TT+1}, v{S+r}")
            self.emit(self.xred([TT + 1], [TT + 2], "v_add_f32"))
            e(f"v_rcp_f32 v{TT+1}, v{TT+1}"); e("s_nop 0")
            for r in range(8): e(f"v_mul_f32 v{S+r}, v{S+r}, v{TT+1}")
            e(f"v_cvt_pk_bf16_f32 v{PP}, v{S+4}, v{S+5}"); e(f"v_cvt_pk_bf16_f32 v{PP+1}, v{S+6}, v{S+7}")
            e(f"v_cvt_pk_bf16_f32 v{PP+2}, v{S}, v{S+1}"); e(f"v_cvt_pk_bf16_f32 v{PP+3}, v{S+2}, v{S+3}")
            e("s_nop 1")
            for ab in range(2):
                vb = VP + ab * 10 + 2 * (j - 1)
                e(mfma(OO + 4 * ab, vb, PP, "0"))
            e("s_nop 7")
            for i in range(4): e(f"v_cvt_pk_bf16_f32 v{OP+i}, v{OO+2*i}, v{OO+2*i+1}")
            e(f"s_add_u32 s{sT}, s{sGb}, {(j - 1) * 2048}")
            self.emit(self.dstore(f"buffer_store_dwordx4 v[{OP}:{OP+3}], v{vL16}, s[{sWS}:{sWS+3}], s{sT} offen"))
            e("s_nop 1")
        self.ts(3)
        e("s_waitcnt vmcnt(0)")
        self.bar(P, ("G2", -2))
        self.ts(4)

    def unpack(self, dst, src):
        return [f"v_lshlrev_b32 v{dst}, 16, v{src}", f"v_and_b32 v{dst+1}, 0xffff0000, v{src}"]

    def res_epilogue(self, acc, barname, sX, sST, PK, T, sN):
        e = self.e
        e(f"s_lshl_b32 s{sT}, s{sN}, 14"); e(f"s_lshl_b32 s{sT2}, s{sWM}, 13"); e(f"s_add_u32 s{sT}, s{sT}, s{sT2}")
        e(f"s_lshl_b32 s{sT2}, s{sWN}, 10"); e(f"s_add_u32 s{sT}, s{sT}, s{sT2}"); e(f"s_add_u32 s{sD0}, s{sT}, s{sX}")
        e(f"s_add_u32 s{sD1}, s{sD0}, 4096")
        for rt in range(4):
            for t in range(2):
                c = acc(t, rt)
                e(f"v_cvt_pk_bf16_f32 v{PK+4*rt+2*t}, v{c}, v{c+1}"); e(f"v_cvt_pk_bf16_f32 v{PK+4*rt+2*t+1}, v{c+2}, v{c+3}")
            e(f"buffer_store_dwordx4 v[{PK+4*rt}:{PK+4*rt+3}], v{vL16}, s[{sWS}:{sWS+3}], s{sD0 + (rt >> 1)} offen offset:{2048 * (rt & 1)} sc0 sc1")
        S = T; Q = T + 4; ON = T + 8
        e(f"v_mov_b32 v{ON}, 0x3f803f80")
        for rt in range(4):
            e(f"v_mov_b32 v{S+rt}, 0"); e(f"v_mov_b32 v{Q+rt}, 0")
        for i in range(4):
            for rt in range(4):
                e(f"v_dot2_f32_bf16 v{S+rt}, v{PK+4*rt+i}, v{ON}, v{S+rt}")
                e(f"v_dot2_f32_bf16 v{Q+rt}, v{PK+4*rt+i}, v{PK+4*rt+i}, v{Q+rt}")
        e("s_nop 3")
        for B in (S, Q):
            e(f"v_permlane32_swap_b32 v{B}, v{B+2}"); e(f"v_permlane32_swap_b32 v{B+1}, v{B+3}")
        for B in (S, Q):
            e(f"v_add_f32 v{B}, v{B}, v{B+2}"); e(f"v_add_f32 v{B+1}, v{B+1}, v{B+3}")
        e("s_nop 1")
        for B in (S, Q): e(f"v_permlane16_swap_b32 v{B}, v{B+1}")
        e(f"v_add_f32 v{S}, v{S}, v{S+1}"); e(f"v_add_f32 v{S+1}, v{Q}, v{Q+1}")
        e(f"s_lshl_b32 s{sT}, s{sN}, 11"); e(f"s_lshl_b32 s{sT2}, s{sWN}, 10"); e(f"s_add_u32 s{sT}, s{sT}, s{sT2}")
        e(f"s_lshl_b32 s{sT2}, s{sWM}, 9"); e(f"s_add_u32 s{sT}, s{sT}, s{sT2}"); e(f"s_add_u32 s{sD0}, s{sT}, s{sST}")
        e(f"v_lshrrev_b32 v{Q}, 1, v{vL16}")
        e("s_waitcnt vmcnt(0)")
        self.bar("X", barname)
        e(f"buffer_store_dwordx2 v[{S}:{S+1}], v{Q}, s[{sWS}:{sWS+3}], s{sD0} offen sc0 sc1")

    def x_g2(self):
        e = self.e; P = "X"
        ACC, XF, WF, vXa, vWa = 0, 32, 96, 128, 129
        R, T0, T1, T2, vTo = 136, 152, 153, 154, 155
        def acc(t, rt): return ACC + (t * 4 + rt) * 4
        def xf(b, h, rt): return XF + b * 32 + h * 16 + rt * 4
        def wf(b, h, t): return WF + b * 16 + h * 8 + t * 4
        l2, l3 = self.lab("g2"), self.lab("g2")
        e(f"s_cmp_lg_u32 s{sLAY}, 0"); e(f"s_cbranch_scc1 {l2}")
        e(f"v_and_b32 v{T0}, 0xf0, v{vL16}"); e(f"v_lshlrev_b32 v{T0}, 7, v{T0}")
        e(f"v_lshrrev_b32 v{T1}, 8, v{vL16}"); e(f"v_lshl_add_u32 v{T0}, v{T1}, 3, v{T0}")
        e(f"s_lshl_b32 s{sT}, s{sMT}, 18"); e(f"s_lshl_b32 s{sT2}, s{sWM}, 17"); e(f"s_add_u32 s{sT}, s{sT}, s{sT2}")
        e(f"s_lshl_b32 s{sT2}, s{sN4}, 7"); e(f"s_add_u32 s{sT}, s{sT}, s{sT2}")
        e(f"s_lshl_b32 s{sT2}, s{sWN}, 6"); e(f"s_add_u32 s{sT}, s{sT}, s{sT2}")
        for rt in range(4):
            for t in range(2):
                e(f"buffer_load_dwordx2 v[{R+4*rt+2*t}:{R+4*rt+2*t+1}], v{T0}, s[{sX0}:{sX0+3}], s{sT} offen offset:{32 * t}")
            e(f"s_add_u32 s{sT}, s{sT}, {16 * 2048}")
        e(f"s_branch {l3}")
        self.label(l2)
        e(f"s_lshl_b32 s{sT}, s{sN4}, 14"); e(f"s_lshl_b32 s{sT2}, s{sWM}, 13"); e(f"s_add_u32 s{sT}, s{sT}, s{sT2}")
        e(f"s_lshl_b32 s{sT2}, s{sWN}, 10"); e(f"s_add_u32 s{sT}, s{sT}, s{sT2}"); e(f"s_add_u32 s{sT}, s{sT}, s{sX2}")
        for rt in range(4):
            e(f"buffer_load_dwordx4 v[{R+4*rt}:{R+4*rt+3}], v{vL16}, s[{sWS}:{sWS+3}], s{sT} offen")
            e(f"s_add_u32 s{sT}, s{sT}, 2048")
        self.label(l3)
        for i in range(4): e(f"v_mov_b32 v{156+i}, -1")
        e(f"s_lshl_b32 s{sT}, s{sN4}, 14"); e(f"s_lshl_b32 s{sT2}, s{sLW}, 12"); e(f"s_add_u32 s{sT}, s{sT}, s{sT2}")
        e(f"s_add_u32 s{sT}, s{sT}, s{sOo}"); e(f"s_add_u32 s{sT}, s{sT}, {WS_P}")
        for i in range(4): e(f"buffer_store_dwordx4 v[156:159], v{vL16}, s[{sWS}:{sWS+3}], s{sT} offen offset:{1024 * i} sc0 sc1")
        e(f"s_lshl_b32 s{sT}, s{sWM}, 13"); e(f"s_add_u32 s{sT}, s{sT}, {LA}")
        e(f"v_add_u32 v{vXa}, s{sT}, v{vL16}")
        self.waddr128(vWa, sWN, T0, T1, T2)
        e("s_waitcnt vmcnt(4)")
        for rt in range(4):
            for t in range(2):
                for k in range(2): self.emit(self.unpack(acc(t, rt) + 2 * k, R + 4 * rt + 2 * t + k))
        def reads(u):
            b = u & 1; o = []
            sl = (32 + (u >> 1)) % 6
            for h in range(2):
                wr = []
                for t in range(2):
                    r = wf(b, h, t); ad = vWa + 2 * (sl // 3) + t; off = (sl % 3) * WSLOT + ((u & 1) * 2 + h) * 4096
                    wr += [f"ds_read_b64_tr_b16 v[{r}:{r+1}], v{ad} offset:{off}", f"ds_read_b64_tr_b16 v[{r+2}:{r+3}], v{ad} offset:{off + 2048}"]
                xr = [f"ds_read_b128 v[{xf(b,h,rt)}:{xf(b,h,rt)+3}], v{vXa} offset:{(u % 3) * 16384 + rt * 2048 + h * 1024}" for rt in range(4)]
                o += wr[0:2] + xr + wr[2:]
            return o
        def mf(u):
            b = u & 1
            return [mfma(acc(t, rt), wf(b, h, t), xf(b, h, rt)) for h in range(2) for t in range(2) for rt in range(4)]
        self.ts(5)
        self.bar(P, ("G2", -1))
        self.ts(6); self.tsc(18)
        self.emit(reads(0))
        for u in range(16):
            self.step(P, ("G2", u), mf(u), reads(u + 1) if u < 15 else [], last=int(self.opt.get("g2last", 11)))
        self.ts(7); self.tsc(19)
        e("s_nop 7")
        self.res_epilogue(acc, ("G3A", -2), sXm, sSTm, 136, 160, sN4)
        self.ts(8)

    def a3(self, mat, t, rt): return ((mat * 4 + t) * 4 + rt) * 4
    def a4(self, t, rt): return 128 + (t * 4 + rt) * 4
    V4X, V4W = 243, 244
    XP = {"g3b": [236, 237, 238], "g4": [239, 240, 241, 242]}

    def x_g3a(self):
        e = self.e; P = "X"
        XF, WF, vXa, vWa, T0, T1, vTo = 128, 160, 224, 225, 233, 234, 235
        def xf(b, rt): return XF + b * 16 + rt * 4
        def wf(b, mat, t): return WF + b * 32 + (mat * 4 + t) * 4
        e(f"s_lshl_b32 s{sT}, s{sWM}, 13"); e(f"s_add_u32 s{sT}, s{sT}, {LA}")
        e(f"v_add_u32 v{vXa}, s{sT}, v{vL16}")
        e(f"s_lshl_b32 s{sT2}, s{sWN}, 2")
        self.emit(self.waddr256(vWa, [0, 1, 2, 3], sT2, T0, T1))
        lw, lj = self.lab("x3"), self.lab("x3")
        e(f"s_cmp_ge_u32 s{sLW}, 2"); e(f"s_cbranch_scc1 {lw}")
        e(f"s_lshl_b32 s{sMb}, s{sWM}, 13"); e(f"s_add_u32 s{sGb}, s{sXm}, s{sMb}")
        e(f"s_and_b32 s{sT}, s{sN4}, 1"); e(f"s_mul_i32 s{sT}, s{sT}, {28 * 16384}"); e(f"s_add_u32 s{sGb2}, s{sHo}, s{sT}"); e(f"s_add_u32 s{sGb2}, s{sGb2}, s{sMb}")
        e(f"s_branch {lj}")
        self.label(lw)
        self.emit(self.pat_g3b(self.XP, T0, T1, vTo)); self.emit(self.pat_g4(self.XP, T0, T1, vTo))
        self.label(lj)
        e(f"v_mov_b32 v{self.V4X}, v{vXa}")
        e(f"s_and_b32 s{sT2}, s{sN4}, 1"); e(f"s_lshl_b32 s{sT2}, s{sT2}, 2"); e(f"s_lshl_b32 s{sT}, s{sWN}, 1"); e(f"s_add_u32 s{sT2}, s{sT2}, s{sT}")
        self.emit(self.waddr256(self.V4W, [0, 1, 4, 5], sT2, T0, T1))
        for i in range(128): e(f"v_mov_b32 v{i}, 0")
        e(f"s_lshr_b32 s{sT}, s{sNT}, 3"); e(f"s_mul_i32 s{sT}, s{sT}, 28"); e(f"s_and_b32 s{sT2}, s{sNT}, 7"); e(f"s_add_u32 s{sT}, s{sT}, s{sT2}")
        e(f"s_lshl_b32 s{sT}, s{sT}, 14"); e(f"s_lshl_b32 s{sT2}, s{sWM}, 13"); e(f"s_add_u32 s{sT}, s{sT}, s{sT2}")
        e(f"s_lshl_b32 s{sT2}, s{sWN}, 10"); e(f"s_add_u32 s{sT}, s{sT}, s{sT2}"); e(f"s_add_u32 s{sGh}, s{sT}, s{sHo}")
        def reads(s):
            b = s & 1; sl = (40 + s) % 6
            xr = [f"ds_read_b128 v[{xf(b,rt)}:{xf(b,rt)+3}], v{vXa} offset:{((s >> 1) % 3) * 16384 + rt * 2048 + (s & 1) * 1024}" for rt in range(4)]
            wr = []
            for t in range(4):
                for mat in range(2):
                    r = wf(b, mat, t); ad = vWa + 4 * (sl // 3) + t; off = (sl % 3) * WSLOT + mat * 8192
                    wr += [f"ds_read_b64_tr_b16 v[{r}:{r+1}], v{ad} offset:{off}", f"ds_read_b64_tr_b16 v[{r+2}:{r+3}], v{ad} offset:{off + 4096}"]
            return wr[0:2] + xr + wr[2:]
        def mf(s):
            b = s & 1
            return [mfma(self.a3(mat, t, rt), wf(b, mat, t), xf(b, rt)) for t in range(4) for mat in range(2) for rt in range(4)]
        self.ts(9)
        self.bar(P, ("G3A", -1))
        self.ts(10); self.tsc(20)
        self.emit(reads(0))
        def fn(s, ex):
            extra = []
            if ex: extra.append((28, self.CNT))
            self.step(P, ("G3A", s), mf(s), reads(s + 1) if s < 31 else [], vmw=(0 if s == 2 else None), last=23, extra=extra)
        self.looped(P, 32, 6, fn)
        self.ts(11); self.tsc(21)

    def silu_group(self, cg, cu, E, RL, I2, O, NM=None, sg=None, su=None):
        o = []
        if NM is not None: o += [f"v_fmac_f32 v{cg+r}, v{NM}, v{sg+r}" for r in range(4)]
        o += [f"v_mul_f32 v{E+r}, v{RL}, v{cg+r}" for r in range(4)]
        if NM is not None: o += [f"v_fmac_f32 v{cu+r}, v{NM}, v{su+r}" for r in range(4)]
        o += [f"v_exp_f32 v{E+r}, v{E+r}" for r in range(4)]
        o += [f"v_mul_f32 v{cg+r}, v{cg+r}, v{cu+r}" for r in range(4)]
        o += [f"v_fma_f32 v{E+r}, v{E+r}, v{I2}, v{I2}" for r in range(4)]
        o += [f"v_rcp_f32 v{E+r}, v{E+r}" for r in range(4)]
        o += [f"v_mul_f32 v{cg+r}, v{cg+r}, v{E+r}" for r in range(4)]
        o += [f"v_cvt_pk_bf16_f32 v{O}, v{cg}, v{cg+1}", f"v_cvt_pk_bf16_f32 v{O+1}, v{cg+2}, v{cg+3}"]
        return o

    def stat_regs(self, MR, NM, RL, I2, t0):
        o = [f"s_lshl_b32 s{sT}, s{sWM}, 9", f"s_add_u32 s{sT}, s{sT}, {L_ST}", f"v_and_b32 v{t0}, 0xf0, v{vL16}", f"v_lshrrev_b32 v{t0}, 1, v{t0}",
             f"v_add_u32 v{t0}, s{sT}, v{t0}"]
        o += [f"ds_read_b64 v[{MR+2*rt}:{MR+2*rt+1}], v{t0} offset:{128*rt}" for rt in range(4)]
        o += ["s_waitcnt lgkmcnt(0)"]
        for rt in range(4):
            o += [f"v_sub_f32 v{NM+rt}, 0, v{MR+2*rt}", f"v_mul_f32 v{RL+rt}, 0xbfb8aa3b, v{MR+2*rt+1}", f"v_mul_f32 v{I2+rt}, v{MR+2*rt+1}, v{MR+2*rt+1}"]
        o += [f"v_rcp_f32 v{I2+rt}, v{I2+rt}" for rt in range(4)] + ["s_nop 0"]
        return o

    def chunk(self, work, budget):
        out = []; c = 0
        while work and (c + work[0][0] <= budget or not out):
            k, it = work.pop(0); c += k; out.append(it)
        return out
    def atomize(self, instrs):
        tm = [f"s{sT}", f"s{sT2}", f"s{sT3}"]
        def toks(x): return re.findall(r"[a-z_0-9]+", x)
        n = len(instrs); end = list(range(n))
        for i, x in enumerate(instrs):
            if not isinstance(x, str) or not x.startswith("s_") or x.startswith(("s_waitcnt", "s_nop")): continue
            t = toks(x)
            if t[0].startswith("s_cmp"):
                for j in range(i + 1, n):
                    if isinstance(instrs[j], str) and instrs[j].startswith("s_cselect"): end[i] = j; break
                continue
            d = t[1]
            if d not in tm: continue
            for j in range(i + 1, n):
                y = instrs[j]
                if not isinstance(y, str): continue
                ty = toks(y)
                if d in ty[2:]: end[i] = j
                if ty[1:2] == [d] and y.startswith("s_"): break
        out = []; i = 0
        while i < n:
            k = end[i]; j = i
            while j < k:
                j += 1; k = max(k, end[j])
            out.append(instrs[i] if k == i else list(instrs[i:k + 1])); i = k + 1
        return out
    def costed(self, instrs):
        w = []
        for x in self.atomize(instrs):
            if isinstance(x, list) and all(isinstance(y, str) for y in x):
                w.append((sum(1 if y.startswith("v_") else 0.5 for y in x), x)); continue
            if isinstance(x, (list, tuple)): w.append((4, x))
            elif callable(x): w.append((4, x))
            elif x.startswith(("v_exp", "v_rcp", "v_sqrt")): w.append((2, x))
            elif x.startswith("v_"): w.append((1, x))
            else: w.append((0.5, x))
        return w
    def run_period(self, dmas, items):
        seq = self.mix(dmas, items)
        for x in seq:
            if callable(x): x()
            else: self.emit([x])

    class LVM(VM):
        pass

    def lazy(self, vm, fn):
        tmp = VM(); groups = fn(tmp); out = []
        for g, tag in zip(groups, tmp.ops):
            def mk(g=g, tag=tag):
                def f():
                    vm.issue(tag); self.emit(g)
                return f
            out.append(mk())
        return out

    def x_g3b(self, role):
        e = self.e; P = "X" + role; vm = VM()
        NM, RL, I2, CS, E, OUT = 192, 196, 200, 204, 220, 224
        PT = self.XP
        T0, T1, vCS = 232, 234, 235
        e("s_setprio 1")
        work = []
        work += self.stat_regs(E, NM, RL, I2, T0)
        work += [f"s_lshl_b32 s{sT}, s{sWN}, 8", f"s_add_u32 s{sT}, s{sT}, {L_CSA}", f"v_lshrrev_b32 v{vCS}, 8, v{vL16}", f"v_lshlrev_b32 v{vCS}, 4, v{vCS}", f"v_add_u32 v{vCS}, s{sT}, v{vCS}"]
        for b in range(2):
            for t in range(2):
                for mat in range(2):
                    c = CS + (t * 2 + mat) * 4
                    work.append(f"ds_read_b128 v[{c}:{c+3}], v{vCS} offset:{mat * 512 + (2 * b + t) * 64}")
            work.append("s_waitcnt lgkmcnt(0)")
            for rt in range(4):
                O = OUT + 4 * (rt & 1)
                for t in range(2):
                    work += self.silu_group(self.a3(0, 2 * b + t, rt), self.a3(1, 2 * b + t, rt), E, RL + rt, I2 + rt, O + 2 * t, NM + rt, CS + t * 8, CS + t * 8 + 4)
                def st(b=b, rt=rt, O=O):
                    vm.issue(("H", b))
                    e(f"s_add_u32 s{sT}, s{sGh}, {b * 8 * 16384 + rt * 2048}")
                    e(f"buffer_store_dwordx4 v[{O}:{O+3}], v{vL16}, s[{sWS}:{sWS+3}], s{sT} offen sc0 sc1")
                work.append(st)
            work.append(("FLAG", b))
        def resld():
            e(f"s_lshl_b32 s{sT}, s{sN4}, 14"); e(f"s_lshl_b32 s{sT2}, s{sWM}, 13"); e(f"s_add_u32 s{sT}, s{sT}, s{sT2}")
            e(f"s_lshl_b32 s{sT2}, s{sWN}, 10"); e(f"s_add_u32 s{sT}, s{sT}, s{sT2}"); e(f"s_add_u32 s{sT}, s{sT}, s{sXm}")
            for rt in range(4):
                vm.issue("res")
                e(f"buffer_load_dwordx4 v[{160+4*rt}:{163+4*rt}], v{vL16}, s[{sWS}:{sWS+3}], s{sT} offen offset:{2048 * (rt & 1)}")
                if rt == 1: e(f"s_add_u32 s{sT}, s{sT}, 4096")
        prep0 = [resld]
        prep2 = []
        for rt in range(4):
            for t in range(2):
                for k in range(2): prep2 += self.unpack(self.a4(t, rt) + 2 * k, 160 + 4 * rt + 2 * t + k)
        prep2 += [f"v_mov_b32 v{160+i}, 0" for i in range(32)]
        work = self.costed(prep0) + self.costed(work)
        tail = [(0, "RESWAIT")] + self.costed(prep2)
        budget = float(self.opt.get("budXW" if role == "W" else "budXA", 26 if role == "W" else 30))
        pend = []
        lag = 6 if role == "W" else 4
        for s in range(32):
            need = [("W", 72 + s + 1)] if role == "W" else ([("A", 16 + (s + 1) // 2)] if s & 1 else [])
            ready = [b for b, p in pend if p <= s]
            n = vm.need(*(need + [("H", b) for b in ready]))
            self.pb(P, ("G3B", s), n, 0)
            for b in ready:
                self.emit(self.flag_set(2, 64 * b, T0, T1)); vm.issue("flag")
            pend = [(b, p) for b, p in pend if p > s]
            if role == "W":
                dm = self.lazy(vm, lambda v: self.w_issue(v, 72 + s + 6, PT))
            else:
                dm = []
                if s == 25:
                    e(f"s_and_b32 s{sSh}, s{sN4}, 1"); e(f"s_lshl_b32 s{sSh}, s{sSh}, 5")
                    self.apoll_issue(vm, 2, 0, 8, T0, sSh)
                if s == 27: self.apoll_check(vm, 2, 0, 8, T0, sSh)
                if s == 0: dm = self.lazy(vm, lambda v: self.a_issue(v, ("A", 18), 0, sGb, 2 * 16384))
                elif s <= 30:
                    idx = 16 + (s - 1) // 2 + 3; part = (s - 1) & 1
                    if idx < 32: dm = self.lazy(vm, lambda v: self.a_issue(v, ("A", idx), idx % 3, sGb, (idx - 16) * 16384, part))
                    else: dm = self.lazy(vm, lambda v: self.a_issue(v, ("A", idx), idx % 3, sGb2, (idx - 32) * 16384, part))
            src = work if work else tail
            its = self.chunk(src, budget if s < 31 else 1e9) if s > 0 or True else []
            if s == 31: its += self.chunk(tail, 1e9) if tail else []
            items = []
            for it in its:
                if isinstance(it, tuple) and it and it[0] == "FLAG":
                    pend.append((it[1], s + lag)); assert it[1] == 1 or s + lag < 27
                elif it == "RESWAIT":
                    def rw():
                        n = vm.need("res")
                        if n is not None: self.wait(n)
                    items.append(rw)
                else: items.append(it)
            if s == 0: e("s_nop 7")
            self.run_period(dm, items)
            if not work and not hasattr(self, "_done" + role): setattr(self, "_done" + role, s)
        assert not work and not tail
        if pend:
            n = vm.need(*[("H", b) for b, p in pend]); self.wait(n)
            for b, p in pend:
                self.emit(self.flag_set(2, 64 * b, T0, T1)); vm.issue("flag")
        self.tr_flush(P)
        if role == "A": self.wait(0)
        e("s_setprio 0")
        self.info.append(f"G3B X{role}: epilogue work done in period {getattr(self, '_done' + role)}, late flags {pend}, vm left {len(vm.ops)}")

    def x_g4(self):
        e = self.e; P = "X"
        XF, WF = 0, 32
        vXa, vWa = self.V4X, self.V4W
        T0, T1, vTo, vTp = 192, 193, 194, 195
        def xf(b, rt): return XF + b * 16 + rt * 4
        def wf(b, t): return WF + b * 16 + t * 4
        def reads(s):
            b = s & 1; u = s >> 1; sl = (104 + u) % 6
            xr = [f"ds_read_b128 v[{xf(b,rt)}:{xf(b,rt)+3}], v{vXa} offset:{((32 + u) % 3) * 16384 + rt * 2048 + b * 1024}" for rt in range(4)]
            wr = []
            for t in range(4):
                r = wf(b, t); ad = vWa + 4 * (sl // 3) + t; off = (sl % 3) * WSLOT + b * 8192
                wr += [f"ds_read_b64_tr_b16 v[{r}:{r+1}], v{ad} offset:{off}", f"ds_read_b64_tr_b16 v[{r+2}:{r+3}], v{ad} offset:{off + 4096}"]
            return wr[0:2] + xr + wr[2:]
        def mf(s):
            b = s & 1
            return [mfma(self.a4(t, rt), wf(b, t), xf(b, rt)) for t in range(4) for rt in range(4)]
        self.emit(reads(0))
        e(f"s_lshl_b32 s{sT}, s{sN4}, 14"); e(f"s_lshl_b32 s{sT2}, s{sLW}, 12"); e(f"s_add_u32 s{sT}, s{sT}, s{sT2}")
        e(f"s_add_u32 s{sT}, s{sT}, s{sOo}"); e(f"s_add_u32 s{sGb}, s{sT}, {WS_P}")
        e(f"s_xor_b32 s{sGb2}, s{sGb}, {1 << 14}")
        self.ts(12); self.tsc(22)
        def fn(u, ex):
            extra = []
            self.step(P, None, mf(2 * u), reads(2 * u + 1), bar=False, last=11, extra=extra)
            extra = []
            if ex: extra.append((13, self.CNT))
            self.step(P, ("G4", u), mf(2 * u + 1), reads(2 * u + 2) if u < 27 else [], vmw=(8 * (4 - u) if u < 5 else None), last=11, extra=extra)
        self.looped(P, 28, 6, fn)
        self.ts(13); self.tsc(23)
        e("s_nop 7")
        SP, RP = 64, 80
        for rt in range(4):
            for t in range(2):
                c = self.a4(2 + t, rt); p = SP + 4 * rt + 2 * t
                e(f"v_cvt_pk_bf16_f32 v{p}, v{c}, v{c+1}"); e(f"v_cvt_pk_bf16_f32 v{p+1}, v{c+2}, v{c+3}")
            for i in range(4): e(f"v_min_u32 v{SP+4*rt+i}, -2, v{SP+4*rt+i}")
            e(f"buffer_store_dwordx4 v[{SP+4*rt}:{SP+4*rt+3}], v{vL16}, s[{sWS}:{sWS+3}], s{sGb} offen offset:{1024 * rt} sc0 sc1")
        lp, ld = self.lab("poll"), self.lab("pd")
        e(f"s_mov_b32 s{sT2}, {POLL}")
        self.label(lp)
        for rt in range(4):
            e(f"buffer_load_dwordx4 v[{RP+4*rt}:{RP+4*rt+3}], v{vL16}, s[{sWS}:{sWS+3}], s{sGb2} offen offset:{1024 * rt} sc0 sc1")
        e("s_waitcnt vmcnt(0)")
        e(f"v_max3_u32 v{T0}, v{RP}, v{RP+1}, v{RP+2}"); e(f"v_max3_u32 v{T1}, v{RP+3}, v{RP+4}, v{RP+5}")
        for k in range(6, 14, 4):
            e(f"v_max3_u32 v{T0}, v{T0}, v{RP+k}, v{RP+k+1}"); e(f"v_max3_u32 v{T1}, v{T1}, v{RP+k+2}, v{RP+k+3}")
        e(f"v_max3_u32 v{T0}, v{T0}, v{RP+14}, v{RP+15}"); e(f"v_max_u32 v{T0}, v{T0}, v{T1}")
        e(f"v_cmp_eq_u32 vcc, -1, v{T0}")
        e(f"s_cbranch_vccz {ld}")
        e(f"s_sub_u32 s{sT2}, s{sT2}, 1"); e(f"s_cmp_lg_u32 s{sT2}, 0"); e(f"s_cbranch_scc1 {lp}")
        self.label(ld)
        for rt in range(4):
            for t in range(2):
                for k in range(2):
                    self.emit(self.unpack(160 + 2 * k, RP + 4 * rt + 2 * t + k))
                c = self.a4(t, rt)
                for k in range(2): e(f"v_pk_add_f32 v[{c+2*k}:{c+2*k+1}], v[{c+2*k}:{c+2*k+1}], v[{160+2*k}:{161+2*k}]")
        self.ts(14)
        self.tr_dump("X")

    def x_final(self):
        e = self.e
        T0, T1, PK = 192, 193, 0
        e(f"v_and_b32 v{T0}, 0xf0, v{vL16}"); e(f"v_lshlrev_b32 v{T0}, 7, v{T0}")
        e(f"v_and_b32 v{T1}, 0x100, v{vL16}"); e(f"v_lshrrev_b32 v{T1}, 3, v{T1}"); e(f"v_add_u32 v{T0}, v{T0}, v{T1}")
        e(f"v_and_b32 v{T1}, 0x200, v{vL16}"); e(f"v_lshrrev_b32 v{T1}, 5, v{T1}"); e(f"v_add_u32 v{T0}, v{T0}, v{T1}")
        e(f"s_lshl_b32 s{sT}, s{sMT}, 18"); e(f"s_lshl_b32 s{sT2}, s{sWM}, 17"); e(f"s_add_u32 s{sT}, s{sT}, s{sT2}")
        e(f"s_lshl_b32 s{sT2}, s{sN4}, 7"); e(f"s_add_u32 s{sT}, s{sT}, s{sT2}")
        e(f"s_lshl_b32 s{sT2}, s{sWN}, 6"); e(f"s_add_u32 s{sT}, s{sT}, s{sT2}")
        for rt in range(4):
            for t in range(2):
                c = self.a4(t, rt)
                e(f"v_cvt_pk_bf16_f32 v{PK+4*rt+2*t}, v{c}, v{c+1}"); e(f"v_cvt_pk_bf16_f32 v{PK+4*rt+2*t+1}, v{c+2}, v{c+3}")
            e("s_nop 1")
            e(f"v_permlane16_swap_b32 v{PK+4*rt}, v{PK+4*rt+2}"); e(f"v_permlane16_swap_b32 v{PK+4*rt+1}, v{PK+4*rt+3}")
            e(f"buffer_store_dwordx4 v[{PK+4*rt}:{PK+4*rt+3}], v{T0}, s[{sOUT}:{sOUT+3}], s{sT} offen")
            e(f"s_add_u32 s{sT}, s{sT}, {16 * 2048}")

    YP = {"g1": [200, 201, 202, 203, 204, 205], "g2": [206, 207, 208, 209], "g3a": [210, 211, 212, 213], "g3b": [214, 215, 216], "g4": [217, 218, 219, 220]}
    YT = [224, 225, 226, 227]
    YAP = [200, 201, 202, 203]

    def read_mode(self, t):
        self.e(f"v_mov_b32 v{t}, {L_MODE}"); self.e(f"ds_read_b32 v{t}, v{t}"); self.e("s_waitcnt lgkmcnt(0)")
        self.e(f"v_readfirstlane_b32 s{sMODE}, v{t}")

    def g1a_setup(self, halo=False):
        e = self.e; T0, T1, T2, _ = self.YT; AP = self.YAP
        l2, l3 = self.lab("ya"), self.lab("ya")
        e(f"s_cmp_lg_u32 s{sLAY}, 0"); e(f"s_cbranch_scc1 {l2}")
        for i in range(4): e(f"s_mov_b32 s{sA1+i}, s{sX0+i}")
        e(f"v_lshrrev_b32 v{T0}, 7, v{vL16}"); e(f"v_and_b32 v{T1}, 0x70, v{vL16}")
        e(f"v_and_b32 v{T2}, 6, v{T0}"); e(f"v_lshlrev_b32 v{T2}, 4, v{T2}"); e(f"v_xor_b32 v{T1}, v{T1}, v{T2}")
        if halo:
            e(f"v_lshl_add_u32 v221, v{T0}, 11, v{T1}")
            e(f"s_lshl_b32 s{sGh}, s{sMT}, 18"); e(f"s_sub_u32 s{sGh}, s{sGh}, 32768"); e(f"s_lshl_b32 s{sT}, s{sWM}, 14"); e(f"s_add_u32 s{sGh}, s{sGh}, s{sT}")
            e(f"s_mov_b32 s{sSh}, 128")
        else:
            e(f"v_lshl_add_u32 v{AP[0]}, v{T0}, 11, v{T1}")
            for i in range(1, 4): e(f"v_add_u32 v{AP[i]}, {i * (16384 - 1024)}, v{AP[0]}")
            e(f"s_lshl_b32 s{sGb}, s{sMT}, 18")
            e(f"s_mov_b32 s{sGb2}, 65536"); e(f"s_mov_b32 s{sSu}, 128")
        e(f"s_branch {l3}")
        self.label(l2)
        for i in range(4): e(f"s_mov_b32 s{sA1+i}, s{sWS+i}")
        if halo:
            e(f"v_mov_b32 v221, v{vL16}")
            e(f"s_sub_u32 s{sGh}, s{sX2}, {262144 - 14336}"); e(f"s_lshl_b32 s{sT}, s{sWM}, 10"); e(f"s_add_u32 s{sGh}, s{sGh}, s{sT}")
            e(f"s_mov_b32 s{sSh}, 16384")
        else:
            for i in range(4): e(f"v_mov_b32 v{AP[i]}, v{vL16}")
            e(f"s_mov_b32 s{sGb}, s{sX2}")
            e(f"s_mov_b32 s{sGb2}, 4096"); e(f"s_mov_b32 s{sSu}, 16384")
        self.label(l3)
        if halo:
            e(f"s_cmp_eq_u32 s{sMT}, 0"); e(f"s_cselect_b32 s{sGh}, {OOB}, s{sGh}")
            e(f"s_lshl_b32 s{sSu}, s{sWM}, 10")
            e(f"s_mov_b32 s{sRh}, s{sN4}")
        else:
            e(f"s_mov_b32 s{sRi}, s{sN4}"); e(f"s_mul_i32 s{sCur}, s{sRi}, s{sSu}"); e(f"s_add_u32 s{sCur}, s{sCur}, s{sGb}")

    def g1a_skip(self, b):
        if b < 3: return [f"s_add_u32 s{sCur}, s{sCur}, s{sGb2}"]
        return [f"s_add_u32 s{sRi}, s{sRi}, 1", f"s_and_b32 s{sRi}, s{sRi}, 15", f"s_mul_i32 s{sCur}, s{sRi}, s{sSu}", f"s_add_u32 s{sCur}, s{sCur}, s{sGb}"]
    def g1a_issue(self, vm, u, batches):
        g = []; AP = self.YAP; base = LA + (u % 3) * 18432
        for b in batches:
            for i in range(4):
                off = f" offset:{1024 * i}" if i else ""
                x = [f"buffer_load_dwordx4 v{AP[i]}, s[{sA1}:{sA1+3}], s{sCur} offen{off} lds"]
                if i == 0: x = [f"s_mov_b32 m0, {base + 2048 + 4096 * b}", "s_nop 0"] + x
                if i == 3: x += self.g1a_skip(b)
                g.append(x); vm.issue(("A", u))
        return g
    def g1h_issue(self, vm, u):
        vm.issue(("Ah", u))
        return [f"s_mul_i32 s{sCur}, s{sRh}, s{sSh}", f"s_add_u32 m0, s{sSu}, {LA + (u % 3) * 18432}", f"s_add_u32 s{sCur}, s{sCur}, s{sGh}",
                f"buffer_load_dwordx4 v221, s[{sA1}:{sA1+3}], s{sCur} offen lds", f"s_add_u32 s{sRh}, s{sRh}, 1", f"s_and_b32 s{sRh}, s{sRh}, 15"]

    def g1_wait_inputs(self, halo):
        e = self.e; T0, T1, T2, _ = self.YT
        l = self.lab("gw")
        e(f"s_cmp_eq_u32 s{sLAY}, 0"); e(f"s_cbranch_scc1 {l}")
        e("s_barrier")
        if not halo:
            self.wg_flag_if(0, 4, True)
            e(f"s_mov_b32 s{sD1}, {-16 * KB & 0xffffffff}")
            self.poll_flags(4, 0, 16, T0, T1, sD1)
        else:
            e(f"s_cmp_eq_u32 s{sMT}, 0"); e(f"s_cbranch_scc1 {l}")
            e(f"s_mov_b32 s{sD1}, {(-16 * KB - 128) & 0xffffffff}")
            self.poll_flags(4, 0, 16, T0, T1, sD1)
        self.label(l)

    def y_g1_a0(self):
        e = self.e; P = "YA0"; vm = VM()
        self.g1a_setup()
        self.g1_wait_inputs(False)
        for u in range(2):
            self.emit(self.g1a_issue(vm, u, [0, 1])); self.emit(self.g1a_skip(2) + self.g1a_skip(3))
        self.emit(self.g1a_issue(vm, 2, [0, 1, 2, 3]))
        self.pb(P, ("G1", -1), vm.need(("A", 0)))
        for s in range(32):
            self.pb(P, ("G1", s), vm.need(("A", (s + 1) // 2)) if s & 1 else None)
            if s >= 1:
                u = (s - 1) // 2 + 3
                if u < 16: self.emit(self.g1a_issue(vm, u, [0, 1] if s & 1 else [2, 3]))
        self.tr_flush(P)
        self.read_mode(self.YT[0])

    def y_g1_side(self):
        e = self.e; P = "YS"; vm = VM(); T0, T1, T2, T3 = self.YT
        self.g1a_setup()
        self.g1_wait_inputs(False)
        for u in range(2):
            self.emit(self.g1a_skip(0) + self.g1a_skip(1)); self.emit(self.g1a_issue(vm, u, [2, 3]))
        l2, l3 = self.lab("ys"), self.lab("ys")
        e(f"s_cmp_lg_u32 s{sLAY}, 0"); e(f"s_cbranch_scc1 {l2}")
        save = list(self.bars.get(P, []))
        vm0 = VM(); vm0.ops = list(vm.ops)
        self.side_first(P, vm0)
        e(f"s_branch {l3}")
        n1 = self.bars[P][len(save):]
        self.bars[P] = list(save)
        self.label(l2)
        self.side_second(P, vm)
        assert n1 == self.bars[P][len(save):]
        self.label(l3)
        self.read_mode(T0)

    def side_first(self, P, vm):
        e = self.e; T0, T1, T2, T3 = self.YT
        RING, AC, vJ, G = 0, 128, 140, 144
        sJ = sAT; sJo = sAT + 4; sXc = sAT + 5
        e("s_setprio 1")
        e(f"v_mov_b32 v{T2}, 0"); e(f"v_mov_b32 v{T3}, 0")
        e(f"v_lshrrev_b32 v{T0}, 1, v{vL16}")
        e(f"s_lshl_b32 s{sT}, s2, 7"); e(f"s_add_u32 s{sT}, s{sT}, {WS_FL}")
        e("s_mov_b64 exec, 0xffff")
        e(f"buffer_store_dwordx2 v[{T2}:{T3}], v{T0}, s[{sWS}:{sWS+3}], s{sT} offen sc0 sc1"); vm.issue("z")
        e("s_mov_b64 exec, 0xf")
        e(f"v_add_u32 v{T0}, {L_CNT}, v{T0}"); e(f"ds_write_b64 v{T0}, v[{T2}:{T3}]")
        e("s_mov_b64 exec, -1")
        e(f"v_lshlrev_b32 v{T0}, 6, v{vL16}")
        e(f"s_lshl_b32 s{sT}, s2, 2"); e(f"s_add_u32 s{sT}, s{sT}, {WS_SF}")
        e("s_mov_b64 exec, 3")
        e(f"buffer_store_dword v{T2}, v{T0}, s[{sWS}:{sWS+3}], s{sT} offen sc0 sc1"); vm.issue("z")
        e("s_mov_b64 exec, -1")
        e(f"s_load_dwordx4 s[{sAT+8}:{sAT+11}], s[0:1], 32")
        e(f"s_lshr_b32 s{sT}, s2, 1")
        e("s_waitcnt lgkmcnt(0)")
        e(f"s_cmp_lt_u32 s{sT}, 56")
        e(f"s_cselect_b32 s{sJ}, s{sAT+8}, s{sAT+10}"); e(f"s_cselect_b32 s{sJ+1}, s{sAT+9}, s{sAT+11}")
        e(f"s_cselect_b32 s{sT2}, 0, 56"); e(f"s_sub_u32 s{sT}, s{sT}, s{sT2}")
        e(f"s_mov_b32 s{sJ+2}, {1024 * 7168}"); e(f"s_mov_b32 s{sJ+3}, 0x00020000")
        e(f"s_lshl_b32 s{sJo}, s{sT}, 7"); e(f"s_and_b32 s{sT}, s2, 1"); e(f"s_mul_i32 s{sT}, s{sT}, {512 * 7168}"); e(f"s_add_u32 s{sJo}, s{sJo}, s{sT}")
        e("s_cmp_lt_u32 s2, 224"); e(f"s_cselect_b32 s{sJo}, s{sJo}, {OOB}")
        e(f"v_lshrrev_b32 v{vJ}, 7, v{vL16}"); e(f"v_mul_u32_u24 v{vJ}, 7168, v{vJ}"); e(f"v_and_b32 v{T0}, 0x70, v{vL16}"); e(f"v_add_u32 v{vJ}, v{vJ}, v{T0}")
        for i in range(8): e(f"v_mov_b32 v{AC+i}, 0")
        e(f"s_getreg_b32 s{sXc}, hwreg(HW_REG_XCC_ID, 0, 4)")
        if self.opt.get("slow"): e(f"s_lshr_b32 s{sXc}, s2, 7")
        e(f"s_mul_i32 s{sT}, s{sXc}, s{sXc}"); e(f"s_lshl_b32 s{sT}, s{sT}, 15"); e(f"s_lshl_b32 s{sXc}, s{sXc}, 6"); e(f"s_add_u32 s{sXc}, s{sXc}, s{sT}"); e(f"s_add_u32 s{sXc}, s{sXc}, 1")
        self.pb(P, ("G1", -1), vm.need(("A", 0)))
        NL = 64; DEP = 32
        nl = [0]; npz = [0]
        def ld():
            i = nl[0]; nl[0] += 1
            b = RING + (i % DEP) * 4
            e(f"buffer_load_dwordx4 v[{b}:{b+3}], v{vJ}, s[{sJ}:{sJ+3}], s{sJo} offen"); vm.issue(("J", i))
            e(f"s_add_u32 s{sJo}, s{sJo}, {8 * 7168}")
        def proc():
            i = npz[0]; npz[0] += 1
            b = RING + (i % DEP) * 4
            self.wait(vm.need(("J", i)))
            for j in range(4):
                e(f"v_lshlrev_b32 v{T0}, 16, v{b+j}"); e(f"v_and_b32 v{T1}, 0xffff0000, v{b+j}")
                e(f"v_add_f32 v{AC+2*j}, v{AC+2*j}, v{T0}"); e(f"v_add_f32 v{AC+2*j+1}, v{AC+2*j+1}, v{T1}")
        p0 = int(self.opt.get("sp0", 8)); gat = int(self.opt.get("gat", 22))
        for s in range(32):
            self.pb(P, ("G1", s), vm.need(("A", 1), "z") if s == 1 else None, 0)
            if s == 1:
                e(f"v_mov_b32 v{T0}, s{sXc}"); e(f"s_and_b32 s{sT}, s2, 7"); e(f"s_lshl_b32 s{sT}, s{sT}, 5"); e(f"v_mov_b32 v{T1}, 0")
                e("s_mov_b64 exec, 1")
                e(f"buffer_atomic_add v{T0}, v{T1}, s[{sDBG}:{sDBG+3}], s{sT} offen sc1"); vm.issue("at")
                e("s_mov_b64 exec, -1")
                e(f"v_lshlrev_b32 v{T0}, 3, v{vL16}"); e(f"s_lshl_b32 s{sT}, s2, 13")
                e(f"buffer_load_dword v{G}, v{T0}, s[{sWO}:{sWO+3}], s{sT} offen"); vm.issue("t")
            if s == 3:
                e(f"v_mov_b32 v{T0}, 0"); e(f"v_mov_b32 v{T1}, 1"); e(f"s_lshl_b32 s{sT}, s2, 2"); e(f"s_add_u32 s{sT}, s{sT}, {WS_SF}")
                e("s_mov_b64 exec, 1")
                e(f"buffer_store_dword v{T1}, v{T0}, s[{sWS}:{sWS+3}], s{sT} offen sc0 sc1"); vm.issue("f")
                e("s_mov_b64 exec, -1")
            if 2 <= s < gat - 3:
                k = 0
                while nl[0] < NL and nl[0] - npz[0] < DEP and k < 4: ld(); k += 1
            if s >= p0 and s not in (gat, gat + 1, gat + 2, gat + 3):
                k = 0
                while npz[0] < nl[0] and k < 3 and (nl[0] - npz[0] > 12 or s >= gat - 3 or nl[0] == NL): proc(); k += 1
            if s == gat:
                lp, ld_ = self.lab("hs"), self.lab("hs")
                e(f"v_lshlrev_b32 v{T0}, 1, v{vL16}")
                e(f"s_mov_b32 s{sT2}, {POLL}")
                e("s_mov_b64 exec, 0xff")
                self.label(lp)
                e(f"buffer_load_dword v{T1}, v{T0}, s[{sDBG}:{sDBG+3}], 0 offen sc0 sc1")
                e("s_waitcnt vmcnt(0)")
                e(f"v_and_b32 v{T2}, 63, v{T1}")
                e(f"v_cmp_ne_u32 vcc, 32, v{T2}")
                e(f"s_cbranch_vccz {ld_}")
                e("s_sleep 1"); e(f"s_sub_u32 s{sT2}, s{sT2}, 1"); e(f"s_cmp_lg_u32 s{sT2}, 0"); e(f"s_cbranch_scc1 {lp}")
                self.label(ld_)
                e("s_mov_b64 exec, -1")
                vm.clear()
                e(f"s_and_b32 s{sT}, s2, 7"); e("s_nop 3")
                e(f"v_readlane_b32 s{sT}, v{T1}, s{sT}")
                e(f"s_lshl_b32 s{sT2}, s{sXc}, 5")
                e("s_nop 3")
                e(f"s_cmp_lg_u32 s{sT}, s{sT2}"); e(f"s_cselect_b32 s{sT}, 1, 0")
                e(f"v_mov_b32 v{T0}, {L_MODE}"); e(f"v_mov_b32 v{T1}, s{sT}"); e(f"ds_write_b32 v{T0}, v{T1}")
                self.poll4(WS_SF, T0, G)
                e(f"v_lshrrev_b32 v{T0}, 1, v{vL16}")
                e(f"s_lshl_b32 s{sT}, s{sMT}, 10"); e(f"s_add_u32 s{sT}, s{sT}, {WS_ST0 - 128}")
                for k in range(3):
                    e(f"buffer_load_dwordx2 v[{G+2*k}:{G+2*k+1}], v{T0}, s[{sWS}:{sWS+3}], s{sT} offen offset:{512 * k} sc1"); vm.issue("g0")
                e(f"v_lshrrev_b32 v{T1}, 8, v{vL16}"); e(f"v_and_b32 v{T0}, 0xf0, v{vL16}"); e(f"v_lshl_add_u32 v{T0}, v{T1}, 12, v{T0}")
                e(f"s_lshl_b32 s{sT}, s{sN4}, 8"); e(f"s_add_u32 s{sT}, s{sT}, {WS_CSQ}")
                for k in range(8):
                    e(f"buffer_load_dwordx4 v[{G+8+4*k}:{G+11+4*k}], v{T0}, s[{sWS}:{sWS+3}], s{sT} offen sc1"); vm.issue("g1")
                    e(f"s_add_u32 s{sT}, s{sT}, 12288")
                e(f"s_mov_b32 s{sAT+6}, s{sT}"); e(f"v_mov_b32 v{vJ+1}, v{T0}")
            if s == gat + 1:
                self.wait(vm.need("g0"))
                e(f"s_cmp_eq_u32 s{sMT}, 0"); e(f"s_cselect_b32 s{sEX}, 0xffff, 0"); e(f"s_mov_b32 s{sEX+1}, 0")
                e(f"v_cndmask_b32 v{G}, v{G}, 0, s[{sEX}:{sEX+1}]"); e(f"v_cndmask_b32 v{G+1}, v{G+1}, 0, s[{sEX}:{sEX+1}]")
                for k in range(3): self.emit(self.finish_stats(G + 2 * k, G + 2 * k + 1))
                e(f"v_lshrrev_b32 v{T0}, 1, v{vL16}"); e(f"v_add_u32 v{T0}, {L_ST}, v{T0}")
                e(f"ds_write_b64 v{T0}, v[{G}:{G+1}]"); e(f"ds_write_b64 v{T0}, v[{G+2}:{G+3}] offset:512")
                e("s_mov_b64 exec, 0xffff"); e(f"ds_write_b64 v{T0}, v[{G+4}:{G+5}] offset:1024"); e("s_mov_b64 exec, -1")
            if s == gat + 2:
                self.wait(vm.need("g1"))
                for k in range(1, 8):
                    for r in range(4): e(f"v_add_f32 v{G+8+r}, v{G+8+r}, v{G+8+4*k+r}")
                e("s_nop 1")
                for k in range(8):
                    e(f"buffer_load_dwordx4 v[{G+12+4*k}:{G+15+4*k}], v{vJ+1}, s[{sWS}:{sWS+3}], s{sAT+6} offen sc1"); vm.issue("g2")
                    e(f"s_add_u32 s{sAT+6}, s{sAT+6}, 12288")
            if s == gat + 4:
                self.wait(vm.need("g2"))
                for k in range(8):
                    for r in range(4): e(f"v_add_f32 v{G+8+r}, v{G+8+r}, v{G+12+4*k+r}")
                e(f"v_add_u32 v{T0}, {L_CSQ}, v{vL16}")
                e(f"s_mov_b32 s{sEX}, -1"); e(f"s_mov_b32 s{sEX+1}, 0xffff"); e(f"s_mov_b64 exec, s[{sEX}:{sEX+1}]")
                e(f"ds_write_b128 v{T0}, v[{G+8}:{G+11}]")
                e("s_mov_b64 exec, -1")
            if s > gat + 4:
                k = 0
                while nl[0] < NL and nl[0] - npz[0] < DEP and k < 4: ld(); k += 1
        self.tr_flush(P)
        self.info.append(f"side: loads issued {nl[0]} processed {npz[0]} by end of G1")
        while nl[0] < NL:
            while nl[0] - npz[0] >= DEP: proc()
            ld()
        while npz[0] < NL: proc()
        e("s_nop 1")
        for i in range(8): e(f"v_add_f32_dpp v{AC+i}, v{AC+i}, v{AC+i} row_ror:8 row_mask:0xf bank_mask:0xf")
        self.emit(self.xred(list(range(AC, AC + 8)), list(range(G, G + 8))))
        e(f"s_lshr_b32 s{sT}, s2, 1"); e(f"s_lshl_b32 s{sT}, s{sT}, 8"); e(f"s_and_b32 s{sT2}, s2, 1"); e(f"s_mul_i32 s{sT2}, s{sT2}, 28672")
        e(f"s_add_u32 s{sT}, s{sT}, s{sT2}"); e(f"s_add_u32 s{sT}, s{sT}, {WS_CS13}")
        e("s_cmp_lt_u32 s2, 224"); e(f"s_cselect_b32 s{sT}, s{sT}, {OOB}")
        e(f"v_lshlrev_b32 v{T0}, 1, v{vL16}")
        e("s_mov_b64 exec, 0xff")
        e(f"buffer_store_dwordx4 v[{AC}:{AC+3}], v{T0}, s[{sWS}:{sWS+3}], s{sT} offen sc0 sc1")
        e(f"buffer_store_dwordx4 v[{AC+4}:{AC+7}], v{T0}, s[{sWS}:{sWS+3}], s{sT} offen offset:16 sc0 sc1")
        e("s_waitcnt vmcnt(0)")
        e(f"v_mov_b32 v{T0}, 0"); e(f"v_mov_b32 v{T1}, 1"); e(f"s_lshl_b32 s{sT}, s2, 2"); e(f"s_add_u32 s{sT}, s{sT}, {WS_SF + 1024}")
        e("s_mov_b64 exec, 1")
        e(f"buffer_store_dword v{T1}, v{T0}, s[{sWS}:{sWS+3}], s{sT} offen sc0 sc1")
        e("s_mov_b64 exec, -1")
        e("s_setprio 0")

    def poll4(self, off, T0, G):
        e = self.e
        lp, ld = self.lab("p4"), self.lab("p4")
        e(f"s_mov_b32 s{sT}, {off}"); e(f"s_mov_b32 s{sT2}, {POLL}")
        self.label(lp)
        e(f"buffer_load_dwordx4 v[{G}:{G+3}], v{vL16}, s[{sWS}:{sWS+3}], s{sT} offen sc0 sc1")
        e("s_waitcnt vmcnt(0)")
        e(f"v_and_b32 v{G}, v{G}, v{G+1}"); e(f"v_and_b32 v{G+2}, v{G+2}, v{G+3}"); e(f"v_and_b32 v{G}, v{G}, v{G+2}")
        e(f"v_cmp_ne_u32 vcc, 1, v{G}")
        e(f"s_cbranch_vccz {ld}")
        e("s_sleep 1"); e(f"s_sub_u32 s{sT2}, s{sT2}, 1"); e(f"s_cmp_lg_u32 s{sT2}, 0"); e(f"s_cbranch_scc1 {lp}")
        self.label(ld)

    def side_second(self, P, vm):
        e = self.e; T0, T1, T2, T3 = self.YT
        R, AC, HB = 0, 128, 132
        e("s_setprio 1")
        self.pb(P, ("G1", -1), vm.need(("A", 0)))
        for s in range(32):
            self.pb(P, ("G1", s), vm.need(("A", 1)) if s == 1 else None, 0)
            if s == 2:
                self.wg_flag(7); vm.issue("f")
                e(f"s_mov_b32 s{sD1}, 0")
            s -= 4
            if s == 2: self.apoll_issue(vm, 7, 0, 16, 251, sD1)
            if s == 5: self.apoll_check(vm, 7, 0, 16, 251, sD1)
            if 5 <= s < 13:
                for k in range(4 * (s - 5), 4 * (s - 4)):
                    if k % 4 == 0: e(f"s_add_u32 s{sT}, s{sSTo}, {1024 * k}")
                    e(f"buffer_load_dwordx4 v[{R+4*k}:{R+4*k+3}], v{vL16}, s[{sWS}:{sWS+3}], s{sT} offen offset:{1024 * (k % 4)}"); vm.issue(("S", k))
            if s == 13:
                e(f"s_cmp_eq_u32 s{sMT}, 0"); e(f"s_cselect_b32 s{sD0}, 0, 128"); e(f"s_sub_u32 s{sD1}, s{sD1}, s{sD0}")
                self.apoll_issue(vm, 7, 0, 16, 251, sD1)
            if 9 <= s < 17:
                for k in range(4 * (s - 9), 4 * (s - 8)):
                    self.wait(vm.need(("S", k)))
                    for r in range(4):
                        e(f"v_mov_b32 v{AC+r}, v{R+r}" if k == 0 else f"v_add_f32 v{AC+r}, v{AC+r}, v{R+4*k+r}")
            if s == 17:
                self.apoll_check(vm, 7, 0, 16, 251, sD1)
                e(f"s_sub_u32 s{sT}, s{sSTo}, {32768 - 896}")
                e(f"s_cmp_eq_u32 s{sMT}, 0"); e(f"s_cselect_b32 s{sT}, {OOB}, s{sT}")
                e(f"v_lshrrev_b32 v{T0}, 7, v{vL16}"); e(f"v_and_b32 v{T1}, 0x70, v{vL16}"); e(f"v_lshl_add_u32 v{T0}, v{T0}, 10, v{T1}")
                for k in range(4):
                    e(f"buffer_load_dwordx4 v[{R+4*k}:{R+4*k+3}], v{T0}, s[{sWS}:{sWS+3}], s{sT} offen"); vm.issue("h")
                    e(f"s_add_u32 s{sT}, s{sT}, 8192")
            if s == 18:
                self.emit(self.finish_stats(AC, AC + 1)); self.emit(self.finish_stats(AC + 2, AC + 3))
                e(f"v_add_u32 v{T0}, {L_ST + 128}, v{vL16}")
                e(f"ds_write_b128 v{T0}, v[{AC}:{AC+3}]")
            if s == 22:
                self.wait(vm.need("h"))
                for r in range(4):
                    e(f"v_add_f32 v{R+r}, v{R+r}, v{R+4+r}"); e(f"v_add_f32 v{R+8+r}, v{R+8+r}, v{R+12+r}")
                for r in range(4): e(f"v_add_f32 v{R+r}, v{R+r}, v{R+8+r}")
                e("s_nop 1")
                for r in range(4): e(f"v_add_f32_dpp v{R+r}, v{R+r}, v{R+r} row_ror:8 row_mask:0xf bank_mask:0xf")
                self.emit(self.xred(list(range(R, R + 4)), list(range(R + 4, R + 8))))
            if s == 23:
                self.emit(self.finish_stats(R, R + 1)); self.emit(self.finish_stats(R + 2, R + 3))
                e(f"v_add_u32 v{T0}, {L_ST}, v{vL16}")
                e("s_mov_b64 exec, 0xff"); e(f"ds_write_b128 v{T0}, v[{R}:{R+3}]"); e("s_mov_b64 exec, -1")
        self.tr_flush(P)
        e("s_setprio 0")

    def y_w_g1g2g3a(self, vm):
        e = self.e; P = "YW"; T0, T1, T2, _ = self.YT; PT = self.YP
        self.g1a_setup(True)
        self.g1_wait_inputs(True)
        for u in range(3): self.emit(self.g1h_issue(vm, u))
        self.pb(P, ("G1", -1), vm.need(("W", 0), ("Ah", 0)))
        e("s_setprio 1")
        for s in range(32):
            self.pb(P, ("G1", s), vm.need(("W", s + 1), ("Ah", (s + 1) // 2)) if s < 31 else None)
            if s & 1 and (s - 1) // 2 + 3 < 16: self.emit(self.g1h_issue(vm, (s - 1) // 2 + 3))
            self.emit(self.w_issue(vm, s + 6, PT))
            if s == 8: self.emit(self.pat_g2(PT, T0, T1, T2))
        self.read_mode(T0)
        self.emit(self.pat_g3a(PT, T0, T1, T2))
        self.emit(self.pat_g3b(PT, T0, T1, T2))
        g2w = int(self.opt.get("g2w", 13))
        sched = {1: [38], 3: [39]}
        nxt = g2w
        for n in range(40, 46):
            p = max(2 * (n - 38) + 1, nxt)
            while len(sched.get(p, [])) >= 2 and p < 15: p += 1
            sched.setdefault(p, []).append(n)
        self.bar(P, ("G2", -2))
        self.pb(P, ("G2", -1), vm.need(("W", 32)))
        for u in range(16):
            self.pb(P, ("G2", u), vm.need(("W", 32 + (u + 1) // 2)) if (u & 1 and u < 15) else None)
            for n in sched.get(u, []): self.emit(self.w_issue(vm, n, PT))
        self.y_g3a("W", vm)

    def y_a_g2(self):
        e = self.e; P = "YA"; vm = VM(); T0, T1, T2, _ = self.YT
        e(f"s_lshl_b32 s{sMb}, s{sWM}, 13"); e(f"s_add_u32 s{sGb}, s{sOo}, s{sMb}")
        e(f"s_lshl_b32 s{sRi}, s{sN4}, 14")
        self.bar(P, ("G2", -2))
        self.wg_flag_if(0, 0)
        self.emit(self.a_issue(vm, ("A", 0), 0, sGb, None))
        self.pb(P, ("G2", -1), 0)
        self.poll_flags(0, 0, 16, T0, T1); vm.clear()
        for u in range(1, 3): self.emit(self.a_issue(vm, ("A", u), u, sGb, None))
        for u in range(16):
            self.pb(P, ("G2", u), vm.need(("A", u + 1)) if u < 15 else None)
            if u + 3 < 16: self.emit(self.a_issue(vm, ("A", u + 3), u % 3, sGb, None))
        self.y_g3a("A", vm)

    def b3(self, mat, t, rt): return ((mat * 3 + t) * 4 + rt) * 4
    VBX, VBW, YRL, YI2 = 176, 177, 184, 188

    def y_g3a(self, role, vm):
        e = self.e; P = "Y" + role; T0, T1, T2, T3 = self.YT; PT = self.YP
        R = 96; AC = 192; NM = 196; CS = 96
        e("s_setprio 1")
        if role == "A":
            e(f"s_add_u32 s{sGb}, s{sXm}, s{sMb}")
            e(f"s_lshl_b32 s{sRi}, s{sN4}, 14")
        self.bar(P, ("G3A", -2))
        if role == "A":
            self.wg_flag_if(0, 1)
            self.emit(self.a_issue(vm, ("A", 0), 0, sGb, None))
            self.pb(P, ("G3A", -1), 0); vm.clear()
        else:
            self.pb(P, ("G3A", -1), vm.need(("W", 40)))
        work = self.stat_regs(R, NM, self.YRL, self.YI2, T0)
        work += [f"v_lshrrev_b32 v{T0}, 8, v{vL16}", f"v_lshlrev_b32 v{T0}, 4, v{T0}", f"v_add_u32 v{T0}, {L_CSB}, v{T0}",
                 f"s_lshl_b32 s{sT}, s{sWN}, 8", f"v_add_u32 v{T1}, s{sT}, v{T0}", f"s_lshl_b32 s{sT}, s{sWN}, 6", f"v_add_u32 v{T0}, s{sT}, v{T0}"]
        for mat in range(2):
            for t in range(3):
                c = CS + (mat * 3 + t) * 4
                work.append(f"ds_read_b128 v[{c}:{c+3}], v{T1 if t < 2 else T0} offset:{mat * 512 + 64 * t}")
        work.append("s_waitcnt lgkmcnt(0)")
        for mat in range(2):
            for t in range(3):
                for rt in range(4):
                    work += [f"v_mul_f32 v{self.b3(mat,t,rt)+r}, v{NM+rt}, v{CS+(mat*3+t)*4+r}" for r in range(4)]
        vW = self.VBW
        work += [f"s_lshl_b32 s{sT}, s{sWM}, 13", f"s_add_u32 s{sT}, s{sT}, {LA}", f"v_add_u32 v{self.VBX}, s{sT}, v{vL16}",
                 f"v_lshrrev_b32 v{T0}, 6, v{vL16}", f"v_mul_u32_u24 v{T0}, 192, v{T0}",
                 f"v_and_b32 v{T1}, 0x30, v{vL16}", f"v_lshrrev_b32 v{T1}, 1, v{T1}", f"v_add_u32 v{T0}, v{T0}, v{T1}",
                 f"v_lshrrev_b32 v{T1}, 8, v{vL16}", f"v_and_b32 v{T1}, 1, v{T1}",
                 f"s_lshl_b32 s{sT}, s{sWN}, 2", f"v_xor_b32 v{T2}, s{sT}, v{T1}", f"v_lshl_add_u32 v{vW}, v{T2}, 5, v{T0}",
                 f"v_xor_b32 v{T2}, 1, v{T2}", f"v_lshl_add_u32 v{vW+1}, v{T2}, 5, v{T0}",
                 f"s_add_u32 s{sT}, s{sWN}, 2", f"v_xor_b32 v{T2}, s{sT}, v{T1}", f"v_lshl_add_u32 v{vW+2}, v{T2}, 5, v{T0}"]
        work += [f"v_add_u32 v{vW+3+t}, {3 * WSLOT}, v{vW+t}" for t in range(3)]
        work = self.costed(work)
        c0 = 22; S0 = 8
        for s in range(32):
            need = [("W", 40 + s + 1)] if role == "W" else ([("A", (s + 1) // 2)] if s & 1 else [])
            self.pb(P, ("G3A", s), vm.need(*need) if need else None, 0)
            items = []
            if role == "W":
                dm = self.lazy(vm, lambda v: self.w_issue(v, 40 + s + 6, PT))
            else:
                dm = []
                if s == 0:
                    self.poll_flags(1, 0, 16, T0, T1); vm.clear()
                    for u in range(1, 3): self.emit(self.a_issue(vm, ("A", u), u, sGb, None))
                if s == 2: self.wg_flag_if(0, 6)
                if s == S0 - 2: self.apoll_issue(vm, 6, 0, 16, 251)
                if s == S0:
                    self.apoll_check(vm, 6, 0, 16, 251)
                    e(f"v_and_b32 v{T2}, 0x1f0, v{vL16}"); e(f"v_and_b32 v{T3}, 0x200, v{vL16}"); e(f"v_lshl_add_u32 v{T3}, v{T3}, 1, v{T2}")
                    e(f"s_lshl_b32 s{sGc}, s{sWM}, 9"); e(f"s_add_u32 s{sGc}, s{sGc}, s{sSTm}")
                if 1 <= s <= 30:
                    idx = (s - 1) // 2 + 3; part = (s - 1) & 1
                    dm = self.lazy(vm, lambda v: self.a_issue(v, ("A", idx), idx % 3, sGb, None if idx < 16 else (idx % 16) * 16384, part))
                if S0 <= s < S0 + 4:
                    for k in range(4 * (s - S0), 4 * (s - S0 + 1)):
                        def ld(k=k):
                            if k % 2 == 0: e(f"s_add_u32 s{sT}, s{sGc}, {2048 * k}")
                            e(f"buffer_load_dwordx4 v[{R+4*k}:{R+4*k+3}], v{T3}, s[{sWS}:{sWS+3}], s{sT} offen offset:{2048 * (k % 2)}"); vm.issue(("S", k))
                        items.append(ld)
                if S0 + 4 <= s < S0 + 8:
                    self.wait(vm.need(("S", 4 * (s - S0 - 4) + 3)))
                    for k in range(4 * (s - S0 - 4), 4 * (s - S0 - 3)):
                        items += [f"v_mov_b32 v{AC+r}, v{R+r}" if k == 0 else f"v_add_f32 v{AC+r}, v{AC+r}, v{R+4*k+r}" for r in range(4)]
                if s == S0 + 8:
                    items += self.xred(list(range(AC, AC + 4)), list(range(R, R + 4)), steps=("v_permlane32_swap_b32",))
                if s == S0 + 9: items += self.finish_stats(AC, AC + 1)
                if s == S0 + 10:
                    items += self.finish_stats(AC + 2, AC + 3)
                    items += [[f"s_lshl_b32 s{sT}, s{sWM}, 9", f"s_add_u32 s{sT}, s{sT}, {L_ST}", f"v_add_u32 v{T2}, s{sT}, v{T2}", f"ds_write_b128 v{T2}, v[{AC}:{AC+3}]"]]
                if s == 3:
                    l = self.lab("cs")
                    e(f"s_cmp_lg_u32 s{sLAY}, 0"); e(f"s_cbranch_scc1 {l}")
                    self.poll4(WS_SF + 1024, T0, R)
                    self.label(l)
                    e(f"s_and_b32 s{sT}, s{sNT}, 1"); e(f"s_mul_i32 s{sT2}, s{sT}, 384")
                    e(f"s_xor_b32 s{sT}, s{sT}, 1"); e(f"s_lshl_b32 s{sT}, s{sT}, 9")
                    e(f"s_cmp_eq_u32 s{sWM}, 0"); e(f"s_cselect_b32 s{sT}, s{sT2}, s{sT}")
                    e(f"s_mul_i32 s{sT2}, s{sNT}, 896"); e(f"s_add_u32 s{sT}, s{sT}, s{sT2}"); e(f"s_add_u32 s{sT}, s{sT}, {WS_CS13}")
                    e(f"s_cmp_eq_u32 s{sLAY}, 0"); e(f"s_cselect_b32 s{sT}, s{sT}, {OOB}")
                    e(f"v_lshrrev_b32 v{T0}, 9, v{vL16}"); e(f"v_mul_u32_u24 v{T0}, 14336, v{T0}"); e(f"v_and_b32 v{T1}, 0x1f0, v{vL16}"); e(f"v_add_u32 v{T0}, v{T0}, v{T1}")
                    e(f"buffer_load_dwordx4 v[{R}:{R+3}], v{T0}, s[{sWS}:{sWS+3}], s{sT} offen sc1"); vm.issue("c")
                    e(f"s_add_u32 s{sT}, s{sT}, 28672")
                    e(f"buffer_load_dwordx4 v[{R+4}:{R+7}], v{T0}, s[{sWS}:{sWS+3}], s{sT} offen sc1"); vm.issue("c")
                if s == 6:
                    self.wait(vm.need("c"))
                    l = self.lab("cs")
                    e(f"s_cmp_lg_u32 s{sLAY}, 0"); e(f"s_cbranch_scc1 {l}")
                    for r in range(4): e(f"v_add_f32 v{R+r}, v{R+r}, v{R+4+r}")
                    e(f"s_lshl_b32 s{sT}, s{sWM}, 10"); e(f"s_add_u32 s{sT}, s{sT}, {L_CSA}"); e(f"v_add_u32 v{T0}, s{sT}, v{vL16}")
                    e(f"ds_write_b128 v{T0}, v[{R}:{R+3}]")
                    self.label(l)
            if role == "W" and s == 4:
                e(f"v_lshlrev_b32 v{T0}, 3, v{vL16}"); e(f"s_lshl_b32 s{sT}, s2, 1"); e(f"s_add_u32 s{sT}, s{sT}, s{sWM}"); e(f"s_lshl_b32 s{sT}, s{sT}, 14")
                e(f"s_cmp_eq_u32 s{sLAY}, 0"); e(f"s_cselect_b32 s{sT}, s{sT}, {OOB}")
                e(f"buffer_load_dword v{T1}, v{T0}, s[{sW2}:{sW2+3}], s{sT} offen"); vm.issue("t")
                e(f"s_add_u32 s{sT}, s{sT}, 8192")
                e(f"buffer_load_dword v{T1}, v{T0}, s[{sW2}:{sW2+3}], s{sT} offen"); vm.issue("t")
            if s >= c0: items += self.chunk(work, float(self.opt.get("budC", 20)) if s < 30 else 1e9)
            self.run_period(dm, items)
        assert not work
        self.tr_flush(P)
        if role == "A": self.wait(0)
        else: self.info.append(f"G3A YW leaves {vm.ops}")
        e("s_setprio 0")

    def y_g3b(self):
        e = self.e; P = "Y"
        XF, WF = 96, 128
        vXa, vWa = self.VBX, self.VBW
        T0, T1, vTo = 192, 193, 194
        def xf(b, rt): return XF + b * 16 + rt * 4
        def wf(b, mat, t): return WF + b * 24 + (mat * 3 + t) * 4
        def reads(s):
            b = s & 1; sl = (72 + s) % 6
            xr = [f"ds_read_b128 v[{xf(b,rt)}:{xf(b,rt)+3}], v{vXa} offset:{((16 + (s >> 1)) % 3) * 16384 + rt * 2048 + (s & 1) * 1024}" for rt in range(4)]
            wr = []
            for t in range(3):
                for mat in range(2):
                    r = wf(b, mat, t); ad = vWa + 3 * (sl // 3) + t; off = (sl % 3) * WSLOT + mat * 6144
                    wr += [f"ds_read_b64_tr_b16 v[{r}:{r+1}], v{ad} offset:{off}", f"ds_read_b64_tr_b16 v[{r+2}:{r+3}], v{ad} offset:{off + 3072}"]
            return wr[0:2] + xr + wr[2:]
        def mf(s):
            b = s & 1
            return [mfma(self.b3(mat, t, rt), wf(b, mat, t), xf(b, rt)) for t in range(3) for mat in range(2) for rt in range(4)]
        self.emit(reads(0))
        e(f"s_lshr_b32 s{sT}, s{sNT}, 3"); e(f"s_mul_i32 s{sT}, s{sT}, {28 * 16384}"); e(f"s_add_u32 s{sT}, s{sT}, s{sHo}")
        e(f"s_lshl_b32 s{sT2}, s{sWM}, 13"); e(f"s_add_u32 s{sT}, s{sT}, s{sT2}")
        e(f"s_and_b32 s{sT2}, s{sNT}, 7"); e(f"s_add_u32 s{sT2}, s{sT2}, 16"); e(f"s_lshl_b32 s{sT2}, s{sT2}, 14"); e(f"s_add_u32 s{sGh}, s{sT}, s{sT2}")
        e(f"s_lshl_b32 s{sT2}, s{sWN}, 10"); e(f"s_add_u32 s{sGh}, s{sGh}, s{sT2}")
        e(f"s_and_b32 s{sT2}, s{sNT}, 6"); e(f"s_add_u32 s{sT2}, s{sT2}, 48"); e(f"s_lshl_b32 s{sT2}, s{sT2}, 13"); e(f"s_add_u32 s{sSu}, s{sT}, s{sT2}")
        e(f"s_and_b32 s{sT2}, s{sNT}, 1"); e(f"s_lshl_b32 s{sT2}, s{sT2}, 10"); e(f"s_add_u32 s{sSu}, s{sSu}, s{sT2}")
        def fn(s, ex):
            extra = []
            if ex: extra.append((20, self.CNT))
            self.step(P, ("G3B", s), mf(s), reads(s + 1) if s < 31 else [], vmw=(6 * (4 - s) if s < 5 else None), last=17, extra=extra)
        self.looped(P, 32, 6, fn)

    def y_g4(self, role):
        e = self.e; P = "Y" + role; vm = VM(); T0, T1, T2, _ = self.YT; PT = self.YP
        E, OUT = 96, 100
        e("s_setprio 1")
        if role == "A":
            e(f"s_and_b32 s{sT}, s{sN4}, 1"); e(f"s_mul_i32 s{sT}, s{sT}, {28 * 16384}"); e(f"s_add_u32 s{sGb2}, s{sHo}, s{sT}"); e(f"s_add_u32 s{sGb2}, s{sGb2}, s{sMb}")
            e(f"s_and_b32 s{sSh}, s{sN4}, 1"); e(f"s_lshl_b32 s{sSh}, s{sSh}, 5")
            self.emit(self.a_issue(vm, ("A", 2), 34 % 3, sGb2, 2 * 16384))
        else:
            self.emit(self.pat_g4(PT, T0, T1, T2))
        work = []
        for rt in range(4):
            O = OUT + 4 * (rt & 1)
            for t in range(2):
                work += self.silu_group(self.b3(0, t, rt), self.b3(1, t, rt), E, self.YRL + rt, self.YI2 + rt, O + 2 * t)
            def st(rt=rt, O=O):
                vm.issue(("H", 0))
                e(f"s_add_u32 s{sT}, s{sGh}, {rt * 2048}")
                e(f"buffer_store_dwordx4 v[{O}:{O+3}], v{vL16}, s[{sWS}:{sWS+3}], s{sT} offen sc0 sc1")
            work.append(st)
        work.append(("FLAG", 0))
        SND, KP, vX = 108, 112, 120
        send = (2, 3) if role == "A" else (0, 1); keep = (0, 1) if role == "A" else (2, 3); own = 0 if role == "A" else 2
        work += [f"v_lshrrev_b32 v{vX}, 1, v{vL16}", f"s_lshl_b32 s{sT}, s{sWM}, 11", f"s_add_u32 s{sT}, s{sT}, {L_TR}", f"v_add_u32 v{vX}, s{sT}, v{vX}"]
        for k, rt in enumerate(send):
            work += self.silu_group(self.b3(0, 2, rt), self.b3(1, 2, rt), E, self.YRL + rt, self.YI2 + rt, SND + 2 * k)
            work.append(f"ds_write_b64 v{vX}, v[{SND+2*k}:{SND+2*k+1}] offset:{512 * rt}")
        work.append("s_waitcnt lgkmcnt(0)")
        work.append(("MARK", 0))
        for k, rt in enumerate(keep):
            work += self.silu_group(self.b3(0, 2, rt), self.b3(1, 2, rt), E, self.YRL + rt, self.YI2 + rt, KP + 4 * k + own)
        work.append(("GATE", 0))
        for k, rt in enumerate(keep):
            work.append(f"ds_read_b64 v[{KP+4*k+2-own}:{KP+4*k+3-own}], v{vX} offset:{512 * rt}")
        work.append("s_waitcnt lgkmcnt(0)")
        for k, rt in enumerate(keep):
            def st(rt=rt, O=KP + 4 * k):
                vm.issue(("H", 1))
                e(f"s_add_u32 s{sT}, s{sSu}, {rt * 2048}")
                e(f"buffer_store_dwordx4 v[{O}:{O+3}], v{vL16}, s[{sWS}:{sWS+3}], s{sT} offen sc0 sc1")
            work.append(st)
        work.append(("FLAG", 1))
        work = self.costed(work)
        if role == "W":
            work += self.costed(self.pat_g1(PT, T0, T1, T2, False) + [[f"s_cmp_eq_u32 s{sLAY}, 0", f"s_cselect_b32 s{sGb}, s{sGb}, {OOB}"]])
        budget = float(self.opt.get("budY", 34))
        lag = int(self.opt.get("lagYW", 3)) if role == "W" else int(self.opt.get("lagYA", 3))
        e("s_nop 7")
        self.run_period([], self.chunk(work, float(self.opt.get("budY0", 16))))
        pend = []; done = None
        for u in range(28):
            need = [("W", 104 + u + 1)] if role == "W" else [("A", u + 1)]
            if u == 27: need = []
            ready = [b for b, p in pend if p <= u]
            n = vm.need(*(need + [("H", b) for b in ready]))
            self.pb(P, ("G4", u), n)
            for b in ready:
                self.emit(self.flag_set(3, 64 * b, T0, T1)); vm.issue("flag")
            pend = [(b, p) for b, p in pend if p > u]
            if role == "W":
                if u == 22: assert not work
                dm = self.lazy(vm, lambda v: self.w_issue(v, 104 + u + 6, PT))
            else:
                dm = []
                if u + 4 in (8, 16, 24):
                    k, off = {8: (2, 64), 16: (3, 0), 24: (3, 64)}[u + 4]
                    self.apoll_issue(vm, k, off, 8, 251, sSh)
                if u + 3 in (8, 16, 24):
                    k, off = {8: (2, 64), 16: (3, 0), 24: (3, 64)}[u + 3]
                    self.apoll_check(vm, k, off, 8, 251, sSh)
                if u + 3 < 28: dm = self.lazy(vm, lambda v: self.a_issue(v, ("A", u + 3), (32 + u + 3) % 3, sGb2, (u + 3) * 16384))
            items = []
            gate = int(self.opt.get("gate", 13))
            its = self.chunk(work, budget) if work and not (work[0][1] == ("GATE", 0) and u < gate) else []
            if ("GATE", 0) in its[1:] and u < gate:
                k = its.index(("GATE", 0)); work[0:0] = self.costed(its[k:]); its = its[:k]
            for it in its:
                if it == ("GATE", 0): continue
                if it == ("MARK", 0):
                    assert u < gate, u
                    continue
                if isinstance(it, tuple) and it and it[0] == "FLAG":
                    assert u + lag <= (13, 21)[it[1]]
                    pend.append((it[1], u + lag)); self.info.append(f"G4 Y{role}: flag {it[1]} work done in period {u}")
                else: items.append(it)
            self.run_period(dm, items)
        assert not work and not pend
        self.tr_flush(P); self.tr_dump("Y")
        e("s_setprio 0")
        return vm

    def next_layer(self):
        e = self.e
        e(f"s_mov_b32 s{sLAY}, 1")
        e(f"s_add_u32 s{sOo}, s{sOo}, {4 * MB}"); e(f"s_add_u32 s{sXm}, s{sXm}, {8 * MB}"); e(f"s_add_u32 s{sHo}, s{sHo}, {14 * MB}")
        e(f"s_add_u32 s{sSTm}, s{sSTm}, {1 * MB}"); e(f"s_add_u32 s{sFl}, s{sFl}, {16 * KB}")

    def far(self, target):
        self.e(f"s_branch {target}")

    def gen(self, name):
        e = self.e; a = self.a; self.info = []
        kernel_header(a, name)
        e("s_cmp_ge_u32 s2, 256"); e("s_cbranch_scc0 K_go"); e("s_endpgm")
        self.label("K_go")
        K = sAT
        e(f"s_load_dwordx4 s[{K}:{K+3}], s[0:1], 0")
        e(f"s_load_dwordx2 s[{K+4}:{K+5}], s[0:1], 16")
        e(f"s_load_dwordx8 s[{K+8}:{K+15}], s[0:1], 32")
        e(f"s_load_dwordx4 s[{K+16}:{K+19}], s[0:1], 64")
        e("v_lshrrev_b32 v1, 6, v0"); e(f"v_and_b32 v{vL16}, 63, v0")
        e(f"v_readfirstlane_b32 s{sWAVE}, v1")
        e(f"v_lshlrev_b32 v{vL16}, 4, v{vL16}")
        e(f"v_mov_b32 v{vTS}, 0")
        e(f"s_and_b32 s{sT}, s2, 6"); e(f"s_lshl_b32 s{sT}, s{sT}, 1"); e(f"s_lshr_b32 s{sT2}, s2, 3"); e(f"s_and_b32 s{sT2}, s{sT2}, 3")
        e(f"s_add_u32 s{sMT}, s{sT}, s{sT2}")
        e(f"s_and_b32 s{sT}, s2, 1"); e(f"s_lshr_b32 s{sT2}, s2, 5")
        e(f"s_lshl_b32 s{sNT}, s{sT}, 3"); e(f"s_add_u32 s{sNT}, s{sNT}, s{sT2}")
        e(f"s_lshl_b32 s{sN4}, s{sT2}, 1"); e(f"s_add_u32 s{sN4}, s{sN4}, s{sT}")
        e(f"s_and_b32 s{sLW}, s{sWAVE}, 3"); e(f"s_and_b32 s{sWM}, s{sWAVE}, 1"); e(f"s_lshr_b32 s{sWN}, s{sLW}, 1")
        e(f"s_mov_b32 s{sMODE}, 1"); e(f"s_mov_b32 s{sLAY}, 0")
        e(f"s_lshl_b32 s{sOo}, s{sMT}, 18"); e(f"s_add_u32 s{sXm}, s{sOo}, {WS_X1}"); e(f"s_add_u32 s{sX2}, s{sOo}, {WS_X1 + 4 * MB}")
        e(f"s_mul_i32 s{sHo}, s{sMT}, {56 * 16384}"); e(f"s_add_u32 s{sHo}, s{sHo}, {WS_H}")
        e(f"s_lshl_b32 s{sSTm}, s{sMT}, 15"); e(f"s_add_u32 s{sSTm}, s{sSTm}, {WS_ST}"); e(f"s_add_u32 s{sSTo}, s{sSTm}, {512 * KB}")
        e(f"s_lshl_b32 s{sFl}, s{sMT}, 7"); e(f"s_add_u32 s{sFl}, s{sFl}, {WS_FL}")
        e("s_waitcnt lgkmcnt(0)")
        make_srd(a, sWS, K + 18, K + 19, 256 * MB)
        make_srd(a, sQKV, K + 2, K + 3, 1024 * 6144)
        make_srd(a, sX0, K, K + 1, 4 * MB)
        make_srd(a, sWO, K + 4, K + 5, 1024 * 2048)
        e(f"s_cmp_eq_u32 s{sWM}, 0")
        e(f"s_cselect_b32 s{sW13}, s{K+8}, s{K+10}"); e(f"s_cselect_b32 s{sW13+1}, s{K+9}, s{K+11}")
        e(f"s_mov_b32 s{sW13+2}, {1024 * 7168}"); e(f"s_mov_b32 s{sW13+3}, 0x00020000")
        make_srd(a, sW2, K + 12, K + 13, 3584 * 2048)
        make_srd(a, sOUT, K + 14, K + 15, 4 * MB)
        make_srd(a, sDBG, K + 16, K + 17, 256)
        make_srd(a, sA1, K, K + 1, 4 * MB)
        e(f"s_cmp_ge_u32 s{sWAVE}, 4"); e("s_cbranch_scc1 Y_start")
        self.ts(15)
        self.x_prep()
        self.label("X_layer")
        self.x_g1(); self.x_g2(); self.x_g3a()
        e(f"s_cmp_ge_u32 s{sLW}, 2"); e("s_cbranch_scc1 X_w")
        self.x_g3b("A"); e("s_branch X_g4")
        self.label("X_w"); self.x_g3b("W")
        self.label("X_g4"); self.x_g4()
        e(f"s_cmp_lg_u32 s{sLAY}, 0"); e("s_cbranch_scc1 X_fin")
        self.res_epilogue(self.a4, ("G4", 99), sX2, sSTo, 216, 232, sN4)
        self.next_layer()
        e("s_branch X_layer")
        self.label("X_fin")
        self.x_final()
        if self.opt.get("ts"):
            e("s_waitcnt vmcnt(0)")
            self.ts(24)
            e(f"s_lshl_b32 s{sT}, s2, 2"); e(f"s_add_u32 s{sT}, s{sT}, s{sLW}"); e(f"s_lshl_b32 s{sT}, s{sT}, 8"); e(f"s_add_u32 s{sT}, s{sT}, {WS_TS}")
            e(f"v_lshrrev_b32 v1, 2, v{vL16}")
            e(f"buffer_store_dword v{vTS}, v1, s[{sWS}:{sWS+3}], s{sT} offen")
        e("s_endpgm")
        self.label("Y_start")
        e(f"s_cmp_ge_u32 s{sLW}, 2"); e("s_cbranch_scc1 YW_start")
        self.label("YA_layer")
        e(f"s_cmp_eq_u32 s{sLW}, 1"); e("s_cbranch_scc1 YS_g1")
        self.y_g1_a0(); e("s_branch YA_g2")
        self.label("YS_g1"); self.y_g1_side()
        self.label("YA_g2"); self.y_a_g2()
        e("s_branch Y_g3b")
        self.label("YW_start")
        vm = VM()
        self.emit(self.pat_g1(self.YP, *self.YT[:3], True))
        for n in range(6): self.emit(self.w_issue(vm, n, self.YP))
        entry = list(vm.ops)
        self.label("YW_layer")
        self.y_w_g1g2g3a(vm)
        self.label("Y_g3b"); self.y_g3b()
        e(f"s_cmp_ge_u32 s{sLW}, 2"); e("s_cbranch_scc1 YW_g4")
        self.y_g4("A")
        e(f"s_cmp_lg_u32 s{sLAY}, 0"); e("s_cbranch_scc1 K_end")
        self.next_layer(); self.bars["YA"].append(("G4", 99)); e("s_branch YA_layer")
        self.label("YW_g4")
        vm = self.y_g4("W")
        assert vm.ops[-len(entry):] == entry, (vm.ops, entry)
        e(f"s_cmp_lg_u32 s{sLAY}, 0"); e("s_cbranch_scc1 K_end")
        self.next_layer(); self.bars["YW"].append(("G4", 99)); e("s_branch YW_layer")
        self.label("K_end")
        e("s_endpgm")
        B = self.bars
        def ph(p, *names): return [x for x in B[p] if x[0] in names]
        ref = ph("X", "G1", "G2", "G3A") + ph("XA", "G3B") + ph("X", "G4")
        assert B["XA"] == B["XW"] == B["Y"], "G3B barriers"
        for seq in (B["YA0"] + ph("YA", "G2", "G3A") + B["Y"] + ph("YA", "G4"), B["YS"] + ph("YA", "G2", "G3A") + B["Y"] + ph("YA", "G4"),
                    ph("YW", "G1", "G2", "G3A") + B["Y"] + ph("YW", "G4")):
            assert seq == ref, (seq, ref)
        kernels.append((name, 256, 102))
        return a.text()


def full(opt):
    kernels.clear()
    g = Gen(opt)
    if opt.get("list"):
        t = build([("mega_kernel", 256, 512, 163840)], [g.gen("mega_kernel")])
    else:
        KN = NAME + "_kernel"
        t = build([(KN, 256, 512, 163840)], [g.gen(KN)], single=True)
    for x in g.info: print(x, file=sys.stderr)
    return t

if __name__ == "__main__":
    opt = parse_opts(sys.argv[2:])
    open(sys.argv[1], "w").write(full(opt))
```

```python
import sys, re
from common import *

KB = 1024
ARENA = 4 * MB
WS_O = 0
WS_X1 = 512 * KB
WS_P = 1280 * KB
WS_ST = 1792 * KB
WS_H = 2 * MB
WS_ST0 = 67 * MB
WS_CSQ = 67 * MB + 256 * KB
WS_CS13 = 67 * MB + 512 * KB
WS_FL = 68 * MB
WS_SF = 68 * MB + 256 * KB
WS_TS = 69 * MB
OOB = 0x7f000000
POLL = 0x40000
WSLOT = 16384
LA = 98304
L_ST = 153600
L_CSQ = L_ST + 1152
L_CSA = L_CSQ + 768
L_CSB = L_CSA + 1024
L_MODE = L_CSB + 1024
L_CNT = L_MODE + 16
L_TR = L_MODE + 64
sWAVE = 3
sFL = 0
sWS, sQKV, sWO, sW13, sW2, sX0, sOUT, sDBG, sA1 = 4, 8, 12, 16, 20, 24, 28, 32, 36
sMT, sNT, sLW, sWM, sWN, sMODE, sLAY = 40, 41, 42, 43, 44, 45, 46
sOo, sX2, sXm, sHo, sN4, sSTm, sSTo, sFl = 47, 48, 49, 50, 51, 52, 53, 54
sT, sT2, sT3, sCnt = 55, 56, 57, 58
sD0, sD1 = 59, 60
sMb, sGb, sGb2, sGh, sSu, sSh = 61, 62, 63, 64, 65, 66
sMb2, sGc, sGc2 = 67, 68, 69
sEX = 70
sAT = 72
sCur, sRi, sRh = 93, 94, 95
sTS = 96
vL16, vTS = 254, 255
vF0, vF1 = 252, 253
EPS_BITS = 0x3727c5ac


class VM:
    def __init__(self): self.ops = []
    def issue(self, tag): self.ops.append(tag)
    def need(self, *tags):
        last = -1
        for i, t in enumerate(self.ops):
            if t in tags: last = i
        n = len(self.ops) - 1 - last
        if last < 0: return None
        self.ops = self.ops[last + 1:]
        return n
    def clear(self): self.ops = []


class Gen:
    def __init__(self, opt):
        self.opt = opt
        self.a = Asm()
        self.nlab = 0
        self.bars = {}
        self.trp = {}
        self.g4pre = int(opt.get("g4pre", 6))
    def e(self, s): self.a.e(s)
    def lab(self, p="L"):
        self.nlab += 1
        return f"{p}_{self.nlab}"
    def label(self, l): self.a.label(l)
    def al(self): self.a.raw("    .p2align 3")
    def bar(self, path, name):
        self.bars.setdefault(path, []).append(name)
        self.e("s_barrier")
    PH0 = {"G1": 1, "G2": 34, "G3A": 51, "G3B": 83, "G4": 115}
    def tr_flush(self, path):
        p = self.trp.pop(path[0], None)
        if p is None: return
        l = self.lab("tr")
        self.e("s_waitcnt lgkmcnt(0)")
        self.e(f"s_cmp_lg_u32 s{sLAY}, {int(self.opt['trace'])}"); self.e(f"s_cbranch_scc1 {l}")
        for k in range(3):
            if path[0] == "X": i = p[1] * 3 + k; reg = 233 + i // 64
            else: i = (self.PH0[p[0]] + p[1]) * 3 + k; reg = 228 + i // 64
            self.e(f"v_writelane_b32 v{reg}, s{96 + 2 * k}, {i % 64}")
        self.label(l)
    def pb(self, path, name, vm=None, lgkm=None):
        tr = self.opt.get("trace") is not None
        if tr:
            if path[0] not in self.trp: self.e("s_waitcnt lgkmcnt(0)")
            self.tr_flush(path)
            self.e("s_memtime s[96:97]")
            lgkm = None
        self.wait(vm, lgkm)
        if tr: self.e("s_memtime s[98:99]")
        self.bar(path, name)
        if tr:
            self.e("s_memtime s[100:101]")
            self.trp[path[0]] = name
    def tr_dump(self, grp):
        if self.opt.get("trace") is None: return
        e = self.e; l = self.lab("td")
        e(f"s_cmp_lg_u32 s{sLAY}, {int(self.opt['trace'])}"); e(f"s_cbranch_scc1 {l}")
        e(f"s_lshl_b32 s{sT}, s2, 3"); e(f"s_add_u32 s{sT}, s{sT}, s{sWAVE}"); e(f"s_lshl_b32 s{sT}, s{sT}, 11"); e(f"s_add_u32 s{sT}, s{sT}, {WS_TS + MB}")
        e(f"v_lshrrev_b32 v{vF0}, 2, v{vL16}")
        for k in range(2 if grp == "X" else 7):
            e(f"buffer_store_dword v{(233 if grp == 'X' else 228) + k}, v{vF0}, s[{sWS}:{sWS+3}], s{sT} offen offset:{256 * k}")
        self.label(l)
    def wait(self, vm=None, lgkm=None):
        p = []
        if vm is not None:
            assert vm <= 63
            p.append(f"vmcnt({vm})")
        if lgkm is not None: p.append(f"lgkmcnt({lgkm})")
        if p: self.e("s_waitcnt " + " ".join(p))
    def ts(self, k):
        if self.opt.get("ts"):
            self.e(f"s_memrealtime s[{sTS}:{sTS+1}]")
            self.e(f"s_lshl_b32 s{sT3}, s{sLAY}, 5")
            self.e(f"s_add_u32 m0, s{sT3}, {k}")
            self.e("s_waitcnt lgkmcnt(0)")
            self.e(f"v_writelane_b32 v{vTS}, s{sTS}, m0")
    def tsc(self, k):
        if self.opt.get("ts"):
            self.e(f"s_memtime s[{sTS}:{sTS+1}]")
            self.e(f"s_lshl_b32 s{sT3}, s{sLAY}, 5")
            self.e(f"s_add_u32 m0, s{sT3}, {k}")
            self.e("s_waitcnt lgkmcnt(0)")
            self.e(f"v_writelane_b32 v{vTS}, s{sTS}, m0")

    def lanes(self, vL, vG=None, vI=None):
        self.e(f"v_lshrrev_b32 v{vL}, 4, v{vL16}")
        if vG is not None: self.e(f"v_lshrrev_b32 v{vG}, 8, v{vL16}")
        if vI is not None: self.e(f"v_and_b32 v{vI}, 15, v{vL}")

    def dstore(self, instr):
        if self.opt.get("fast"): return self.store(instr)
        return [instr + " sc0 sc1"]
    def store(self, instr):
        l1, l2 = self.lab("st"), self.lab("st")
        return [f"s_cmp_eq_u32 s{sMODE}, 0", f"s_cbranch_scc1 {l1}", instr + " sc0 sc1", f"s_branch {l2}", f"@{l1}", instr, f"@{l2}"]

    def emit(self, seq):
        for x in seq:
            if isinstance(x, (list, tuple)): self.emit(x)
            elif x.startswith("@"): self.label(x[1:])
            elif x.startswith("."): self.a.raw("    " + x)
            else: self.e(x)

    @staticmethod
    def FG(kind): return (sFl, kind * 2048)
    @staticmethod
    def FL(line, off): return (sFL, line * 2048 + off)
    def flag_set(self, fa):
        return [f"s_and_b32 s{sT}, s{sNT}, 7", f"s_lshl_b32 s{sT}, s{sT}, 2", f"s_add_u32 s{sT}, s{sT}, s{sLW}", f"s_add_u32 s{sT}, s{sT}, s{fa[0]}",
                f"s_add_u32 s{sT}, s{sT}, {fa[1]}",
                f"v_mov_b32 v{vF0}, 0", f"v_mov_b32 v{vF1}, 1", "s_mov_b64 exec, 1"] + \
               self.store(f"buffer_store_byte v{vF1}, v{vF0}, s[{sWS}:{sWS+3}], s{sT} offen") + ["s_mov_b64 exec, -1"]
    def wg_flag(self, fa):
        e = self.e; loc = fa[0] == sFL
        if loc: e(f"s_and_b32 s{sT}, s{sN4}, 14"); e(f"s_lshl_b32 s{sT}, s{sT}, 1")
        else: e(f"s_lshl_b32 s{sT}, s{sN4}, 2")
        e(f"s_add_u32 s{sT}, s{sT}, s{fa[0]}")
        e(f"v_mov_b32 v{vF0}, {fa[1]}"); e(f"v_mov_b32 v250, 0x01010101")
        e("s_mov_b64 exec, 1")
        ins = f"buffer_store_dword v250, v{vF0}, s[{sWS}:{sWS+3}], s{sT} offen"
        self.emit(self.store(ins) if loc else [ins + " sc0 sc1"])
        e("s_mov_b64 exec, -1")
    def wg_flags(self, fg, fl):
        l, l2 = self.lab("wf"), self.lab("wf")
        self.e(f"s_cmp_lg_u32 s{sLW}, 2"); self.e(f"s_cbranch_scc1 {l}")
        self.wg_flag(fl); self.e(f"s_branch {l2}")
        self.label(l); self.wg_flag(fg); self.label(l2)
    def wg_flag_if(self, lw, fa):
        l = self.lab("wf")
        self.e(f"s_cmp_lg_u32 s{sLW}, {lw}"); self.e(f"s_cbranch_scc1 {l}")
        self.wg_flag(fa)
        self.label(l)
    def fl_addr(self, fa, nl):
        lim = f"s{nl[1]}" if isinstance(nl, tuple) else str(4 * (nl - 1))
        return [f"v_lshrrev_b32 v{vF0}, 2, v{vL16}", f"v_min_u32 v{vF0}, {lim}, v{vF0}", f"s_add_u32 s{sT}, s{fa[0]}, {fa[1] & 0xffffffff}"]
    def poll_flags(self, fa, nl):
        lp, ld = self.lab("poll"), self.lab("pd")
        self.emit(self.fl_addr(fa, nl))
        self.e(f"s_mov_b32 s{sT2}, {POLL}")
        self.label(lp)
        self.e(f"buffer_load_dword v{vF1}, v{vF0}, s[{sWS}:{sWS+3}], s{sT} offen sc0 sc1")
        self.e("s_waitcnt vmcnt(0)")
        self.e(f"v_cmp_ne_u32 vcc, 0x01010101, v{vF1}")
        self.e(f"s_cbranch_vccz {ld}")
        if self.opt.get("psleep", 1): self.e(f"s_sleep {int(self.opt.get('psleep', 1))}")
        self.e(f"s_sub_u32 s{sT2}, s{sT2}, 1")
        self.e(f"s_cmp_lg_u32 s{sT2}, 0")
        self.e(f"s_cbranch_scc1 {lp}")
        self.label(ld)
    def apoll_issue(self, vm, fa, nl, vP):
        self.emit(self.fl_addr(fa, nl))
        self.e(f"buffer_load_dword v{vP}, v{vF0}, s[{sWS}:{sWS+3}], s{sT} offen sc0 sc1"); vm.issue("ap")
    def apoll_check(self, vm, fa, nl, vP, skip=()):
        e = self.e; l = self.lab("ap")
        self.wait(vm.need("ap"))
        e(f"v_cmp_ne_u32 vcc, 0x01010101, v{vP}")
        e(f"s_cbranch_vccz {l}")
        for r, v in skip:
            e(f"s_cmp_eq_u32 s{r}, {v}"); e(f"s_cbranch_scc1 {l}")
        self.poll_flags(fa, nl)
        self.label(l)
    def junk(self, sbase, lit):
        return [f"s_add_u32 s{sT}, s{sbase}, {lit}", f"buffer_store_dwordx4 v[0:3], v{vL16}, s[{sWS}:{sWS+3}], s{sT} offen sc0 sc1"]

    def round_bf16(self, v): return [f"v_cvt_pk_bf16_f32 v{v}, v{v}, v{v}", f"v_lshlrev_b32 v{v}, 16, v{v}"]
    def finish_stats(self, vs, vq):
        o = [f"v_mul_f32 v{vs}, 0x3a800000, v{vs}", f"v_mul_f32 v{vq}, 0x3a800000, v{vq}",
             f"v_fma_f32 v{vq}, -v{vs}, v{vs}, v{vq}", f"v_max_f32 v{vq}, 0, v{vq}"]
        o += self.round_bf16(vs) + self.round_bf16(vq)
        o += [f"v_add_f32 v{vq}, 0x{EPS_BITS:08x}, v{vq}"] + self.round_bf16(vq)
        o += [f"v_sqrt_f32 v{vq}, v{vq}", "s_nop 0"] + self.round_bf16(vq)
        o += [f"v_rcp_f32 v{vq}, v{vq}", "s_nop 0"]
        return o
    def xred(self, regs, tmps, op="v_add_f32", steps=("v_permlane16_swap_b32", "v_permlane32_swap_b32")):
        o = []
        for sw in steps:
            o += [f"v_mov_b32 v{t}, v{v}" for v, t in zip(regs, tmps)]
            o += ["s_nop 1"]
            o += [f"{sw} v{v}, v{t}" for v, t in zip(regs, tmps)]
            o += [f"{op} v{v}, v{v}, v{t}" for v, t in zip(regs, tmps)]
        return o

    def dma(self, vm, tag, srd, pats, mbase, mlit, gbase, glit, tmp, flags=""):
        g = []
        for i, p in enumerate(pats):
            pre = []
            if i == 0:
                pre.append(f"s_add_u32 m0, s{mbase}, {mlit}" if mbase is not None else f"s_mov_b32 m0, {mlit}")
                pre.append(f"s_add_u32 s{tmp}, s{gbase}, {glit}")
            off = f" offset:{1024 * i}" if i else ""
            g.append(pre + [f"buffer_load_dwordx4 v{p}, s[{srd}:{srd+3}], s{tmp} offen{off}{flags} lds"])
            vm.issue(tag)
        return g

    def mix(self, dmas, side):
        if not dmas: return list(side)
        out = []; n = len(dmas); k = 0
        for i, d in enumerate(dmas):
            out.append(d)
            want = (len(side) * (i + 1)) // n
            out += side[k:want]; k = want
        return out

    def w_issue(self, vm, n, P):
        n0 = n; n = n % 132
        slot = (n % 6) * WSLOT
        tag = ("W", n)
        if n < 72:
            if n < 32:
                init = [f"s_lshl_b32 s{sRi}, s{sN4}, 1"] if n == 0 else []
                srd, p0, p1, mb, d2, mul, base, g2, inc, msk = sQKV, P["g1"][0:3], P["g1"][3:6], sMb, 3072, 32 * 6144, sGb, 0, 1, 31
            elif n < 40:
                init = [f"s_lshl_b32 s{sRi}, s{sWM}, 1", f"s_add_u32 s{sRi}, s{sN4}, s{sRi}", f"s_and_b32 s{sRi}, s{sRi}, 15"] if n == 32 else []
                srd, p0, p1, mb, d2, mul, base, g2, inc, msk = sWO, P["g2"], P["g2"], sMb2, 4096, 64 * 2048, sGc, 32 * 2048, 2, 15
            else:
                init = [f"s_lshl_b32 s{sRi}, s{sN4}, 1"] if n == 40 else []
                srd, p0, p1, mb, d2, mul, base, g2, inc, msk = sW13, P["g3a"], P["g3a"], sMb2, 4096, 32 * 7168, sGb, 16 * 7168, 1, 31
            g = self.dma(vm, tag, srd, p0, mb, slot, sD0, f"s{base}", sD0) + self.dma(vm, tag, srd, p1, mb, slot + d2, sD0, g2, sD1)
            g[0] = init + [f"s_mul_i32 s{sD0}, s{sRi}, {mul}"] + g[0]
            if inc == 1:
                st = n if n < 32 else n - 40
                inc = 1 if st % 2 == 0 else (5 if st == 15 else 3)
            else: inc = 5 if n == 35 else 4
            g[1] = g[1] + [f"s_add_u32 s{sRi}, s{sRi}, {inc}", f"s_and_b32 s{sRi}, s{sRi}, {msk}"]
            return g
        if n < 104:
            s = n - 72
            return self.dma(vm, tag, sW13, P["g3b"], sMb, slot, sGb2, s * 32 * 7168, sD0) + \
                   self.dma(vm, tag, sW13, P["g3b"], sMb, slot + 3072, sGb2, (s * 32 + 16) * 7168, sD1)
        u = n - 104
        if u < 24:
            p = u & 7; c = u >> 3
            colA = 224 * p + (96 if p & 1 else 0); colB = 224 * p + (0 if p & 1 else 128)
            row = [colA, colA + 32, colB][c]; base = sGc
        else:
            row = 448 * (u - 24) + 160; base = sGc2
        return self.dma(vm, tag, sW2, P["g4"], sMb2, slot, base, row * 2048, sD0) + \
               self.dma(vm, tag, sW2, P["g4"], sMb2, slot + 4096, base, (row + 16) * 2048, sD1)

    def w_batches(self, vm, n, P):
        g = self.lazy(vm, lambda v: self.w_issue(v, n, P)); h = len(g) // 2
        return [g[:h], g[h:]]
    def w_take(self, vm, P, cnt, freed):
        out = []
        for _ in range(cnt):
            if not self.wq:
                if self.wn - 6 > freed or self.wn >= self.wlim: break
                self.wq = self.w_batches(vm, self.wn, P); self.wn += 1
            out += self.wq.pop(0)
        return out

    def pat_g1(self, P, t0, t1, t2, first):
        o = [f"v_lshrrev_b32 v{t0}, 7, v{vL16}",
             f"v_and_b32 v{t1}, 0x70, v{vL16}",
             f"v_and_b32 v{t2}, 6, v{t0}", f"v_lshlrev_b32 v{t2}, 4, v{t2}", f"v_xor_b32 v{t1}, v{t1}, v{t2}"]
        if first:
            o += [f"v_and_b32 v{t2}, 4, v{t0}", f"v_add_u32 v{t0}, v{t0}, v{t2}"]
        o += [f"v_mul_u32_u24 v{t0}, 6144, v{t0}", f"v_add_u32 v{t0}, v{t0}, v{t1}"]
        rb = [0, 16, 4, 20] if first else [0, 8, 16, 24]
        def cst(q): return rb[q & 3] * 6144 + (q >> 2) * 2048 - 1024 * (q % 3)
        for i in range(6):
            o += [f"s_cmp_eq_u32 s{sWM}, 0", f"s_mov_b32 s{sT}, {cst(i) + 4096}", f"s_cselect_b32 s{sT}, s{sT}, {cst(6 + i) + 4096}",
                  f"v_add_u32 v{P['g1'][i]}, s{sT}, v{t0}", f"v_subrev_u32 v{P['g1'][i]}, 4096, v{P['g1'][i]}"]
        o += [f"s_mul_i32 s{sMb}, s{sWM}, 6144", f"s_lshl_b32 s{sGb}, s{sN4}, 7"]
        return o
    def pat_g2(self, P, t0, t1, t2):
        o = [f"v_lshrrev_b32 v{t0}, 7, v{vL16}", f"v_and_b32 v{t1}, 0x70, v{vL16}",
             f"v_and_b32 v{t2}, 6, v{t0}", f"v_lshlrev_b32 v{t2}, 4, v{t2}", f"v_xor_b32 v{t1}, v{t1}, v{t2}",
             f"v_lshl_add_u32 v{P['g2'][0]}, v{t0}, 11, v{t1}"]
        for i in range(1, 4): o.append(f"v_add_u32 v{P['g2'][i]}, {i * (8 * 2048 - 1024)}, v{P['g2'][0]}")
        o += [f"s_lshl_b32 s{sMb2}, s{sWM}, 13", f"s_lshl_b32 s{sGc}, s{sN4}, 7"]
        return o
    def pat_256(self, regs, pitch, t0, t1, t2):
        o = [f"v_and_b32 v{t1}, 0xf0, v{vL16}"]
        for i in range(4):
            o += [f"v_lshrrev_b32 v{t0}, 8, v{vL16}"]
            if i: o += [f"v_add_u32 v{t0}, {4 * i}, v{t0}"]
            o += [f"v_and_b32 v{t2}, 7, v{t0}", f"v_lshlrev_b32 v{t2}, 5, v{t2}", f"v_xor_b32 v{t2}, v{t1}, v{t2}",
                  f"v_mul_u32_u24 v{t0}, {pitch}, v{t0}", f"v_add_u32 v{regs[i]}, v{t0}, v{t2}"]
            if i: o += [f"v_subrev_u32 v{regs[i]}, {1024 * i}, v{regs[i]}"]
        return o
    def pat_g3a(self, P, t0, t1, t2):
        return self.pat_256(P["g3a"], 7168, t0, t1, t2) + \
            [f"s_lshl_b32 s{sMb2}, s{sWM}, 13", f"s_mul_i32 s{sGb}, s{sNT}, 448", f"s_and_b32 s{sT}, s{sNT}, 1", f"s_mul_i32 s{sT}, s{sT}, 192", f"s_add_u32 s{sGb}, s{sGb}, s{sT}"]
    def pat_g3b(self, P, t0, t1, t2):
        o = [f"s_mov_b32 s{sT}, 5462"]
        for i in range(3):
            o += [f"v_lshrrev_b32 v{t0}, 4, v{vL16}"]
            if i: o += [f"v_add_u32 v{t0}, {64 * i}, v{t0}"]
            o += [f"v_mul_lo_u32 v{t1}, v{t0}, s{sT}", f"v_lshrrev_b32 v{t1}, 16, v{t1}",
                  f"v_mul_u32_u24 v{t2}, 12, v{t1}", f"v_sub_u32 v{t0}, v{t0}, v{t2}",
                  f"v_lshrrev_b32 v{t2}, 1, v{t1}", f"v_and_b32 v{t2}, 2, v{t2}", f"v_xor_b32 v{t0}, v{t0}, v{t2}",
                  f"v_mul_u32_u24 v{t1}, 7168, v{t1}", f"v_lshl_add_u32 v{P['g3b'][i]}, v{t0}, 4, v{t1}"]
            if i: o += [f"v_subrev_u32 v{P['g3b'][i]}, {1024 * i}, v{P['g3b'][i]}"]
        o += [f"s_mul_i32 s{sMb}, s{sWM}, 6144", f"s_mul_i32 s{sGb2}, s{sNT}, 448", f"s_and_b32 s{sT}, s{sNT}, 1", f"s_xor_b32 s{sT}, s{sT}, 1",
              f"s_lshl_b32 s{sT}, s{sT}, 8", f"s_add_u32 s{sGb2}, s{sGb2}, s{sT}"]
        return o
    def pat_g4(self, P, t0, t1, t2):
        return self.pat_256(P["g4"], 2048, t0, t1, t2) + \
            [f"s_lshl_b32 s{sMb2}, s{sWM}, 13", f"s_and_b32 s{sT}, s{sN4}, 1", f"s_mul_i32 s{sGc}, s{sT}, {1792 * 2048}",
             f"s_lshr_b32 s{sT}, s{sN4}, 1", f"s_lshl_b32 s{sT}, s{sT}, 8", f"s_add_u32 s{sGc}, s{sGc}, s{sT}",
             f"s_mul_i32 s{sT}, s{sWM}, {96 * 2048}", f"s_add_u32 s{sGc2}, s{sGc}, s{sT}",
             f"s_lshl_b32 s{sT}, s{sWM}, 17", f"s_add_u32 s{sGc}, s{sGc}, s{sT}"]

    def a_issue(self, vm, tag, slot, gbase, glit, part=None):
        g = []
        for h in ((0, 1) if part is None else (part,)):
            if glit is None:
                if h == 0: g += self.dma(vm, tag, sWS, [vL16] * 4, sMb, LA + slot * 16384, gbase, f"s{sRi}", sD0)
                else:
                    x = self.dma(vm, tag, sWS, [vL16] * 4, sMb, LA + slot * 16384 + 4096, sD0, 4096, sD1)
                    x[1] = x[1] + [f"s_add_u32 s{sRi}, s{sRi}, {16384 * (3 if tag[1] == 7 else 2)}", f"s_and_b32 s{sRi}, s{sRi}, 0x3ffff"]
                    g += x
            else:
                g += self.dma(vm, tag, sWS, [vL16] * 4, sMb, LA + slot * 16384 + h * 4096, gbase, glit + h * 4096, sD0 + h)
        return g

    def step(self, path, name, mf, reads, vmw=None, bar=True, last=None, extra=None):
        self.wait(vmw, 0)
        if bar: self.bar(path, name)
        self.al()
        oth = [[r] for r in reads]
        if last is None: last = len(reads) - 1
        sl = spread(len(reads), 0, last)
        if extra:
            for s, x in extra:
                oth.append(x + [".p2align 3"]); sl.append(s)
        self.emit(place(mf, oth, sl))

    def looped(self, path, nsteps, body, fn):
        trips = (nsteps - 1) // body
        l = self.lab("loop")
        self.e(f"s_mov_b32 s{sCnt}, {trips}")
        self.al()
        self.label(l)
        nb0 = len(self.bars.get(path, []))
        for s in range(body):
            ex = None
            if s == body - 1: ex = "cnt"
            fn(s, ex)
        self.e(f"s_cbranch_scc1 {l}")
        names = self.bars[path][nb0:]
        for t in range(1, trips):
            for nm in names: self.bars[path].append((nm[0], nm[1] + t * len(names)))
        for s in range(trips * body, nsteps): fn(s, None)

    CNT = [f"s_sub_u32 s{sCnt}, s{sCnt}, 1", f"s_cmp_lg_u32 s{sCnt}, 0"]

    def x_prep(self):
        e = self.e
        l3, ld = self.lab("xp"), self.lab("xp")
        D = 0; AC = 64; T = 80
        vO, vS0, vS1, vS2 = 100, 101, 102, 103
        e(f"s_getpc_b64 s[{sAT}:{sAT+1}]")
        self.label("K_pc")
        e(f"s_mov_b32 s{sAT+2}, K_end-K_pc")
        e(f"s_mov_b32 s{sAT+3}, 0x00020000")
        e(f"s_lshr_b32 s{sT}, s2, 3"); e(f"s_lshl_b32 s{sT}, s{sT}, 2"); e(f"s_add_u32 s{sT}, s{sT}, s{sLW}"); e(f"s_lshl_b32 s{sT}, s{sT}, 10")
        e(f"v_lshlrev_b32 v{vO}, 3, v{vL16}")
        e("s_mov_b64 exec, 0xff")
        e(f"buffer_load_dword v{vS0}, v{vO}, s[{sAT}:{sAT+3}], s{sT} offen")
        e("s_mov_b64 exec, -1")
        e(f"v_lshrrev_b32 v{vO}, 7, v{vL16}")
        e(f"v_and_b32 v{vS1}, 0x70, v{vL16}")
        e(f"s_cmp_eq_u32 s{sLW}, 3"); e(f"s_cbranch_scc1 {l3}")
        e(f"v_mul_u32_u24 v{vO}, 6144, v{vO}"); e(f"v_add_u32 v{vO}, v{vO}, v{vS1}")
        e(f"s_mul_i32 s{sT2}, s2, 3"); e(f"s_add_u32 s{sT2}, s{sT2}, s{sLW}")
        e(f"s_and_b32 s{sT}, s{sT2}, 15"); e(f"s_mul_i32 s{sT}, s{sT}, {64 * 6144}")
        e(f"s_lshr_b32 s{sT3}, s{sT2}, 4"); e(f"s_lshl_b32 s{sT3}, s{sT3}, 7"); e(f"s_add_u32 s{sT}, s{sT}, s{sT3}")
        for i in range(8):
            e(f"buffer_load_dwordx4 v[{D+4*i}:{D+4*i+3}], v{vO}, s[{sQKV}:{sQKV+3}], s{sT} offen")
            e(f"s_add_u32 s{sT}, s{sT}, {8 * 6144}")
        for i in range(8): e(f"v_mov_b32 v{AC+i}, 0")
        e(f"v_mov_b32 v{vS1}, 0x00003f80"); e(f"v_mov_b32 v{vS2}, 0x3f800000")
        for i in range(8):
            e(f"s_waitcnt vmcnt({7 - i})")
            for j in range(4):
                e(f"v_dot2_f32_bf16 v{AC+2*j}, v{D+4*i+j}, v{vS1}, v{AC+2*j}")
                e(f"v_dot2_f32_bf16 v{AC+2*j+1}, v{D+4*i+j}, v{vS2}, v{AC+2*j+1}")
        e("s_nop 3")
        for i in range(8): e(f"v_add_f32_dpp v{AC+i}, v{AC+i}, v{AC+i} row_ror:8 row_mask:0xf bank_mask:0xf")
        self.emit(self.xred(list(range(AC, AC + 8)), list(range(T, T + 8))))
        e(f"s_and_b32 s{sT}, s{sT2}, 15"); e(f"s_mul_i32 s{sT}, s{sT}, 12288")
        e(f"s_lshl_b32 s{sT3}, s{sT3}, 1"); e(f"s_add_u32 s{sT}, s{sT}, s{sT3}"); e(f"s_add_u32 s{sT}, s{sT}, {WS_CSQ}")
        e(f"v_lshlrev_b32 v{vO}, 1, v{vL16}")
        e("s_mov_b64 exec, 0xff")
        e(f"buffer_store_dwordx4 v[{AC}:{AC+3}], v{vO}, s[{sWS}:{sWS+3}], s{sT} offen sc0 sc1")
        e(f"buffer_store_dwordx4 v[{AC+4}:{AC+7}], v{vO}, s[{sWS}:{sWS+3}], s{sT} offen offset:16 sc0 sc1")
        e("s_mov_b64 exec, -1")
        e(f"s_branch {ld}")
        self.label(l3)
        e(f"v_lshl_add_u32 v{vO}, v{vO}, 11, v{vS1}")
        e(f"s_lshl_b32 s{sT}, s2, 14")
        for i in range(16):
            e(f"buffer_load_dwordx4 v[{D+4*i}:{D+4*i+3}], v{vO}, s[{sX0}:{sX0+3}], s{sT} offen offset:{128 * i}")
        for i in range(4): e(f"v_mov_b32 v{AC+i}, 0")
        e(f"v_mov_b32 v{vS1}, 0x3f803f80")
        for i in range(16):
            e(f"s_waitcnt vmcnt({15 - i})")
            for j in range(4):
                e(f"v_dot2_f32_bf16 v{AC+2*(j&1)}, v{D+4*i+j}, v{vS1}, v{AC+2*(j&1)}")
                e(f"v_dot2_f32_bf16 v{AC+2*(j&1)+1}, v{D+4*i+j}, v{D+4*i+j}, v{AC+2*(j&1)+1}")
        e("s_nop 3")
        e(f"v_add_f32 v{AC}, v{AC}, v{AC+2}"); e(f"v_add_f32 v{AC+1}, v{AC+1}, v{AC+3}")
        for m in ("quad_perm:[1,0,3,2]", "quad_perm:[2,3,0,1]", "row_half_mirror"):
            e("s_nop 1")
            for i in range(2): e(f"v_add_f32_dpp v{AC+i}, v{AC+i}, v{AC+i} {m} row_mask:0xf bank_mask:0xf")
        e(f"v_lshrrev_b32 v{vO}, 4, v{vL16}")
        e(f"s_lshl_b32 s{sT}, s2, 6"); e(f"s_add_u32 s{sT}, s{sT}, {WS_ST0}")
        e(f"s_mov_b32 s{sEX}, 0x01010101"); e(f"s_mov_b32 s{sEX+1}, 0x01010101")
        e(f"s_mov_b64 exec, s[{sEX}:{sEX+1}]")
        e(f"buffer_store_dwordx2 v[{AC}:{AC+1}], v{vO}, s[{sWS}:{sWS+3}], s{sT} offen sc0 sc1")
        e("s_mov_b64 exec, -1")
        self.label(ld)
        R = 236
        e(f"v_and_b32 v{vO}, 0xf0, v{vL16}"); e(f"v_lshlrev_b32 v{vO}, 7, v{vO}")
        e(f"v_lshrrev_b32 v{vS1}, 8, v{vL16}"); e(f"v_lshl_add_u32 v{vO}, v{vS1}, 3, v{vO}")
        e(f"s_lshl_b32 s{sT}, s{sMT}, 18"); e(f"s_lshl_b32 s{sT2}, s{sWM}, 17"); e(f"s_add_u32 s{sT}, s{sT}, s{sT2}")
        e(f"s_lshl_b32 s{sT2}, s{sN4}, 7"); e(f"s_add_u32 s{sT}, s{sT}, s{sT2}")
        e(f"s_lshl_b32 s{sT2}, s{sWN}, 6"); e(f"s_add_u32 s{sT}, s{sT}, s{sT2}")
        for rt in range(4):
            for t in range(2):
                e(f"buffer_load_dwordx2 v[{R+4*rt+2*t}:{R+4*rt+2*t+1}], v{vO}, s[{sX0}:{sX0+3}], s{sT} offen offset:{32 * t}")
            e(f"s_add_u32 s{sT}, s{sT}, {16 * 2048}")

    def waddr128(self, dst, sel, t0, t1, t2, nt=2):
        e = self.e
        e(f"v_lshrrev_b32 v{t0}, 6, v{vL16}")
        e(f"v_lshrrev_b32 v{t1}, 1, v{t0}"); e(f"v_and_b32 v{t1}, 3, v{t1}")
        e(f"s_lshl_b32 s{sT}, s{sel}, 1")
        e(f"v_xor_b32 v{t1}, s{sT}, v{t1}")
        e(f"v_lshlrev_b32 v{t0}, 7, v{t0}")
        e(f"v_lshl_add_u32 v{t0}, v{t1}, 5, v{t0}")
        e(f"v_and_b32 v{t1}, 0x30, v{vL16}"); e(f"v_lshrrev_b32 v{t1}, 1, v{t1}")
        e(f"v_add_u32 v{dst}, v{t0}, v{t1}")
        e(f"v_xor_b32 v{dst+1}, 32, v{dst}")
        for t in range(2): e(f"v_add_u32 v{dst+2+t}, {3 * WSLOT}, v{dst+t}")

    def waddr256(self, dst, xs, sbase, t0, t1):
        o = [f"v_lshrrev_b32 v{t0}, 6, v{vL16}", f"v_and_b32 v{t1}, 7, v{t0}", f"v_xor_b32 v{t1}, s{sbase}, v{t1}",
             f"v_lshlrev_b32 v{t0}, 8, v{t0}", f"v_lshl_add_u32 v{t0}, v{t1}, 5, v{t0}",
             f"v_and_b32 v{t1}, 0x30, v{vL16}", f"v_lshrrev_b32 v{t1}, 1, v{t1}", f"v_add_u32 v{t0}, v{t0}, v{t1}"]
        for t in range(4): o.append(f"v_xor_b32 v{dst+t}, {xs[t] << 5}, v{t0}")
        for t in range(4): o.append(f"v_add_u32 v{dst+4+t}, {3 * WSLOT}, v{dst+t}")
        return o

    def x_g1(self):
        e = self.e; P = "X"
        ACCQ, ACCK, ACCV, XF, WF = 0, 32, 72, 112, 152
        vXa, vWa = 200, 202
        vL, vG, vI, vT0, vT1, vT2, vT3, vOA = 206, 207, 208, 209, 210, 211, 212, 213
        def aq(j, ab): return ACCQ + ((j - 1) * 2 + ab) * 4
        def ak(j, ab): return ACCK + (j * 2 + ab) * 4
        def av(j, ab): return ACCV + (j * 2 + ab) * 4
        def xf(b, j): return XF + b * 20 + j * 4
        def wf(b, seg, ab): return WF + b * 24 + (seg * 2 + ab) * 4
        self.lanes(vL, vG, vI)
        l2, l3 = self.lab("g1"), self.lab("g1")
        e(f"s_lshl_b32 s{sT}, s{sWN}, 13"); e(f"s_add_u32 s{sT}, s{sT}, {LA}")
        e(f"s_cmp_lg_u32 s{sLAY}, 0"); e(f"s_cbranch_scc1 {l2}")
        e(f"v_and_b32 v{vT1}, 6, v{vI}"); e(f"v_xor_b32 v{vT1}, v{vT1}, v{vG}"); e(f"v_lshlrev_b32 v{vT1}, 4, v{vT1}")
        e(f"v_lshl_add_u32 v{vXa}, v{vI}, 7, v{vT1}"); e(f"v_xor_b32 v{vXa+1}, 64, v{vXa}")
        e(f"s_branch {l3}")
        self.label(l2)
        e(f"v_mov_b32 v{vXa}, v{vL16}"); e(f"v_add_u32 v{vXa+1}, 1024, v{vL16}")
        self.label(l3)
        e(f"v_add_u32 v{vXa}, s{sT}, v{vXa}"); e(f"v_add_u32 v{vXa+1}, s{sT}, v{vXa+1}")
        self.waddr128(vWa, sWM, vT0, vT1, vT2)
        for i in range(112): e(f"v_mov_b32 v{i}, 0")
        e(f"s_lshl_b32 s{sT}, s{sN4}, 14"); e(f"s_lshl_b32 s{sT2}, s{sWN}, 13"); e(f"s_add_u32 s{sT}, s{sT}, s{sT2}")
        e(f"s_lshl_b32 s{sT2}, s{sWM}, 10"); e(f"s_add_u32 s{sT}, s{sT}, s{sT2}"); e(f"s_add_u32 s{sGb}, s{sT}, s{sOo}")
        SEL, vQa, vVa, vCq, vCv, ONES = 214, 218, 219, 220, 221, 222
        sM = sAT; sOdd = sAT + 8; sInv = sAT + 10
        e(f"v_lshlrev_b32 v{vT0}, 2, v{vG}"); e(f"v_sub_u32 v{vT0}, v{vI}, v{vT0}")
        for r in range(4): e(f"v_cmp_le_i32 s[{sM+2*r}:{sM+2*r+1}], {r}, v{vT0}")
        e(f"v_and_b32 v{vT1}, 1, v{vI}"); e(f"v_cmp_eq_u32 s[{sOdd}:{sOdd+1}], 1, v{vT1}")
        e(f"v_sub_u32 v{vT0}, v{vT0}, v{vT1}")
        e(f"v_mov_b32 v{vT3}, 0x0c0c0c0c")
        for k in range(2):
            e(f"v_mov_b32 v{vT1}, {hex([0x0c0c0100, 0x0c0c0302][k])}"); e(f"v_mov_b32 v{vT2}, {hex([0x01000c0c, 0x03020c0c][k])}")
            e(f"v_cmp_le_i32 vcc, {2 * k}, v{vT0}")
            e(f"v_cndmask_b32 v{vT1}, v{vT1}, v{vT2}, s[{sOdd}:{sOdd+1}]")
            e(f"s_not_b64 s[{sInv+2*k}:{sInv+2*k+1}], vcc")
            e(f"v_cndmask_b32 v{SEL+k}, v{vT1}, v{vT3}, vcc")
            e(f"v_cndmask_b32 v{SEL+2+k}, v{vT3}, v{vT1}, vcc")
        e(f"s_or_b32 s{sT}, s{sMT}, s{sWN}"); e(f"s_cmp_eq_u32 s{sT}, 0")
        for k in range(2): e(f"s_cselect_b64 s[{sInv+2*k}:{sInv+2*k+1}], s[{sInv+2*k}:{sInv+2*k+1}], 0")
        e(f"s_lshl_b32 s{sT}, s{sWN}, 8"); e(f"s_add_u32 s{sT}, s{sT}, {L_ST}")
        e(f"v_lshlrev_b32 v{vQa}, 2, v{vI}"); e(f"v_add_u32 v{vQa}, s{sT}, v{vQa}")
        e(f"v_lshlrev_b32 v{vVa}, 4, v{vG}"); e(f"v_add_u32 v{vVa}, s{sT}, v{vVa}")
        e(f"s_lshl_b32 s{sT}, s{sWM}, 7"); e(f"s_add_u32 s{sT}, s{sT}, {L_CSQ}")
        e(f"v_lshlrev_b32 v{vCq}, 4, v{vG}"); e(f"v_add_u32 v{vCq}, s{sT}, v{vCq}")
        e(f"v_lshlrev_b32 v{vCv}, 2, v{vI}"); e(f"v_add_u32 v{vCv}, s{sT}, v{vCv}")
        for i in range(4): e(f"v_mov_b32 v{ONES+i}, 0x3f803f80")
        e(f"v_mov_b32 v{vOA}, {L_MODE}")
        CS, CSV, NMq, RSq, NMv, RSv = 152, 168, 112, 118, 132, 176
        tab = [f"ds_read_b128 v[{CS+4*k}:{CS+4*k+3}], v{vCq} offset:{256 * (k >> 1) + 64 * (k & 1)}" for k in range(4)]
        tab += [f"ds_read_b32 v{NMq+j}, v{vQa} offset:{64 * j}" for j in range(5)]
        tab += [f"ds_read_b32 v{RSq+j}, v{vQa} offset:{576 + 64 * j}" for j in range(5)]
        tab += [f"ds_read_b32 v{CSV+ab}, v{vCv} offset:{512 + 64 * ab}" for ab in range(2)]
        tab += [f"ds_read_b32 v170, v{vOA}"]
        def reads(s):
            b = s & 1; u = s >> 1; sl = s % 6
            xr = [f"ds_read_b128 v[{xf(b,j)}:{xf(b,j)+3}], v{vXa + (s & 1)} offset:{(u % 3) * 18432 + j * 2048}" for j in range(5)]
            wr = []
            for seg in range(3):
                for ab in range(2):
                    r = wf(b, seg, ab); ad = vWa + 2 * (sl // 3) + ab; off = (sl % 3) * WSLOT + seg * 4096
                    wr.append(f"ds_read_b64_tr_b16 v[{r}:{r+1}], v{ad} offset:{off}")
                    wr.append(f"ds_read_b64_tr_b16 v[{r+2}:{r+3}], v{ad} offset:{off + 2048}")
            return wr[0:2] + xr[1:] + wr[2:6] + xr[0:1] + wr[6:]
        def mf(s):
            b = s & 1; m = []
            for ab in range(2):
                for j in range(1, 5): m.append(mfma(aq(j, ab), wf(b, 0, ab), xf(b, j)))
            for ab in range(2):
                for j in range(5): m.append(mfma(ak(j, ab), wf(b, 1, ab), xf(b, j)))
            for ab in range(2):
                for j in range(5): m.append(mfma(av(j, ab), xf(b, j), wf(b, 2, ab)))
            return m
        lq = self.lab("g1")
        e(f"s_cmp_eq_u32 s{sLAY}, 0"); e(f"s_cbranch_scc1 {lq}")
        e("s_waitcnt vmcnt(1)"); e("s_barrier")
        self.label(lq)
        self.ts(0)
        self.bar(P, ("G1", -1))
        self.ts(1); self.tsc(16)
        self.emit(reads(0))
        def fn(s, ex):
            extra = []
            if ex: extra.append((24, self.CNT))
            self.step(P, ("G1", s), mf(s), reads(s + 1) if s < 31 else tab, vmw=(0 if s == 2 else None), last=20, extra=extra)
        self.looped(P, 32, 6, fn)
        self.ts(2); self.tsc(17)
        def pk(op, d, srcs):
            ops = []; sel = []; selhi = []
            for kind, r in srcs:
                if kind == 'p': ops.append(f"v[{r}:{r+1}]"); sel.append(0); selhi.append(1)
                else: ops.append(f"v[{r & ~1}:{(r & ~1) + 1}]"); sel.append(r & 1); selhi.append(r & 1)
            e(f"{op} v[{d}:{d+1}], " + ", ".join(ops) + f" op_sel:[{','.join(map(str, sel))}] op_sel_hi:[{','.join(map(str, selhi))}]")
        e("s_waitcnt lgkmcnt(0)")
        self.al()
        for j in range(5):
            e(f"ds_read_b128 v[{NMv+4*j}:{NMv+4*j+3}], v{vVa} offset:{64 * j}")
            e(f"ds_read_b128 v[{RSv+4*j}:{RSv+4*j+3}], v{vVa} offset:{576 + 64 * j}")
        def pack4(b):
            for i in range(4): e(f"v_cvt_pk_bf16_f32 v{b+i}, v{b+2*i}, v{b+2*i+1}")
        for j in range(1, 5):
            b = aq(j, 0)
            for i in range(4): pk("v_pk_fma_f32", b + 2 * i, [('b', NMq + j), ('p', CS + 2 * i), ('p', b + 2 * i)])
        for j in range(5):
            b = ak(j, 0)
            for i in range(4): pk("v_pk_fma_f32", b + 2 * i, [('b', NMq + j), ('p', CS + 8 + 2 * i), ('p', b + 2 * i)])
        for j in range(1, 5): pack4(aq(j, 0))
        for j in range(5):
            b = ak(j, 0)
            for i in range(4): pk("v_pk_mul_f32", b + 2 * i, [('b', RSq + j), ('p', b + 2 * i)])
        for j in range(5): pack4(ak(j, 0))
        e(f"v_readfirstlane_b32 s{sMODE}, v170")
        e("s_waitcnt lgkmcnt(0)")
        def Sc(j): return aq(j, 1)
        def Sp(j): return ak(j, 1)
        for j in range(1, 5):
            e(mfma(Sc(j), ak(j, 0), aq(j, 0), "0"))
            e(mfma(Sp(j), ak(j - 1, 0), aq(j, 0), "0"))
        VP = [226, 152]
        for j in range(5):
            for ab in range(2):
                c = av(j, ab)
                for r in (0, 2): pk("v_pk_fma_f32", c + r, [('p', NMv + 4 * j + r), ('b', CSV + ab), ('p', c + r)])
        J = range(1, 5)
        for j in J:
            for r in range(4): e(f"v_cndmask_b32 v{Sp(j)+r}, v{Sp(j)+r}, v{Sc(j)+r}, s[{sM+2*r}:{sM+2*r+1}]")
        for j in J:
            e(f"v_cndmask_b32 v{Sp(j)}, v{Sp(j)}, v{Sp(j)+1}, s[{sOdd}:{sOdd+1}]")
            e(f"v_cndmask_b32 v{Sp(j)+1}, v{Sp(j)+2}, v{Sp(j)+3}, s[{sOdd}:{sOdd+1}]")
        e(f"v_mov_b32 v{vT0}, 0xf149f2ca")
        for k in range(2): e(f"v_cndmask_b32 v{Sp(1)+k}, v{Sp(1)+k}, v{vT0}, s[{sInv+2*k}:{sInv+2*k+1}]")
        MX = {j: Sp(j) + 2 for j in J}
        for j in J: e(f"v_max_f32 v{MX[j]}, v{Sp(j)}, v{Sp(j)+1}")
        fill = []
        for j in range(5):
            for ab in range(2):
                c = av(j, ab)
                for r in (0, 2): fill.append((c + r, RSv + 4 * j + r))
        def F(n):
            for _ in range(n):
                d, r = fill.pop(0); pk("v_pk_mul_f32", d, [('p', r), ('p', d)])
        F(2)
        e(f"v_permlane32_swap_b32 v{MX[1]}, v{MX[3]}"); e(f"v_permlane32_swap_b32 v{MX[2]}, v{MX[4]}")
        e(f"v_max_f32 v{MX[1]}, v{MX[1]}, v{MX[3]}"); e(f"v_max_f32 v{MX[2]}, v{MX[2]}, v{MX[4]}")
        F(2)
        e(f"v_permlane16_swap_b32 v{MX[1]}, v{MX[2]}")
        e(f"v_max_f32 v{MX[1]}, v{MX[1]}, v{MX[2]}")
        e(f"v_mov_b32 v{MX[2]}, v{MX[1]}")
        F(2)
        e(f"v_permlane16_swap_b32 v{MX[1]}, v{MX[2]}")
        e(f"v_mov_b32 v{MX[3]}, v{MX[1]}"); e(f"v_mov_b32 v{MX[4]}, v{MX[2]}")
        F(2)
        e(f"v_permlane32_swap_b32 v{MX[1]}, v{MX[3]}"); e(f"v_permlane32_swap_b32 v{MX[2]}, v{MX[4]}")
        sc = f32bits((32 ** -0.5) * 1.4426950408889634)
        for j in J: e(f"v_mul_f32 v{RSq+j}, 0x{sc:08x}, v{RSq+j}")
        for j in J:
            for k in range(2): e(f"v_sub_f32 v{Sp(j)+k}, v{Sp(j)+k}, v{MX[j]}")
        for j in J:
            for k in range(2): e(f"v_mul_f32 v{Sp(j)+k}, v{RSq+j}, v{Sp(j)+k}")
        for j in J:
            for k in range(2): e(f"v_exp_f32 v{Sp(j)+k}, v{Sp(j)+k}")
        self.al()
        F(len(fill))
        for j in J: e(f"v_cvt_pk_bf16_f32 v{Sp(j)}, v{Sp(j)}, v{Sp(j)+1}")
        for j in range(5):
            for ab in range(2):
                c = av(j, ab)
                e(f"v_cvt_pk_bf16_f32 v{VP[ab]+2*j}, v{c}, v{c+1}"); e(f"v_cvt_pk_bf16_f32 v{VP[ab]+2*j+1}, v{c+2}, v{c+3}")
        for j in J:
            for k in range(4): e(f"v_perm_b32 v{Sc(j)+k}, v{Sp(j)}, v{Sp(j)}, v{SEL+k}")
        def OO(j): return 72 + 8 * (j - 1)
        e(f"s_add_u32 s{sT}, s{sGb}, 4096")
        for j in J: e(mfma(aq(j, 0), ONES, Sc(j), "0"))
        for j in J:
            for ab in range(2): e(mfma(OO(j) + 4 * ab, VP[ab] + 2 * (j - 1), Sc(j), "0"))
        for j in J: e(f"v_rcp_f32 v{aq(j,0)}, v{aq(j,0)}")
        for j in J:
            if j == 4: e("s_nop 1")
            for i in range(4): pk("v_pk_mul_f32", OO(j) + 2 * i, [('b', aq(j, 0)), ('p', OO(j) + 2 * i)])
            pack4(OO(j))
            e(f"buffer_store_dwordx4 v[{OO(j)}:{OO(j)+3}], v{vL16}, s[{sWS}:{sWS+3}], s{sGb if j < 3 else sT} offen offset:{2048 * ((j - 1) & 1)} sc0 sc1")
        self.ts(3)

    def unpack(self, dst, src):
        return [f"v_lshlrev_b32 v{dst}, 16, v{src}", f"v_and_b32 v{dst+1}, 0xffff0000, v{src}"]

    def res_epilogue(self, acc, bar0, sX, sST, PK, T, sN):
        e = self.e
        e(f"s_lshl_b32 s{sT}, s{sN}, 14"); e(f"s_lshl_b32 s{sT2}, s{sWM}, 13"); e(f"s_add_u32 s{sT}, s{sT}, s{sT2}")
        e(f"s_lshl_b32 s{sT2}, s{sWN}, 10"); e(f"s_add_u32 s{sT}, s{sT}, s{sT2}"); e(f"s_add_u32 s{sD0}, s{sT}, s{sX}")
        e(f"s_add_u32 s{sD1}, s{sD0}, 4096")
        for rt in range(4):
            for t in range(2):
                c = acc(t, rt)
                e(f"v_cvt_pk_bf16_f32 v{PK+4*rt+2*t}, v{c}, v{c+1}"); e(f"v_cvt_pk_bf16_f32 v{PK+4*rt+2*t+1}, v{c+2}, v{c+3}")
            e(f"buffer_store_dwordx4 v[{PK+4*rt}:{PK+4*rt+3}], v{vL16}, s[{sWS}:{sWS+3}], s{sD0 + (rt >> 1)} offen offset:{2048 * (rt & 1)} sc0 sc1")
        if bar0: self.bar("X", bar0)
        S = T; Q = T + 4; ON = T + 8
        e(f"v_mov_b32 v{ON}, 0x3f803f80")
        for rt in range(4):
            e(f"v_mov_b32 v{S+rt}, 0"); e(f"v_mov_b32 v{Q+rt}, 0")
        for i in range(4):
            for rt in range(4):
                e(f"v_dot2_f32_bf16 v{S+rt}, v{PK+4*rt+i}, v{ON}, v{S+rt}")
                e(f"v_dot2_f32_bf16 v{Q+rt}, v{PK+4*rt+i}, v{PK+4*rt+i}, v{Q+rt}")
        e("s_nop 3")
        for B in (S, Q):
            e(f"v_permlane32_swap_b32 v{B}, v{B+2}"); e(f"v_permlane32_swap_b32 v{B+1}, v{B+3}")
        for B in (S, Q):
            e(f"v_add_f32 v{B}, v{B}, v{B+2}"); e(f"v_add_f32 v{B+1}, v{B+1}, v{B+3}")
        e("s_nop 1")
        for B in (S, Q): e(f"v_permlane16_swap_b32 v{B}, v{B+1}")
        e(f"v_add_f32 v{S}, v{S}, v{S+1}"); e(f"v_add_f32 v{S+1}, v{Q}, v{Q+1}")
        e(f"s_lshl_b32 s{sT}, s{sN}, 11"); e(f"s_lshl_b32 s{sT2}, s{sWN}, 10"); e(f"s_add_u32 s{sT}, s{sT}, s{sT2}")
        e(f"s_lshl_b32 s{sT2}, s{sWM}, 9"); e(f"s_add_u32 s{sT}, s{sT}, s{sT2}"); e(f"s_add_u32 s{sD0}, s{sT}, s{sST}")
        e(f"v_lshrrev_b32 v{Q}, 1, v{vL16}")
        e(f"buffer_store_dwordx2 v[{S}:{S+1}], v{Q}, s[{sWS}:{sWS+3}], s{sD0} offen sc0 sc1")

    def x_g2(self):
        e = self.e; P = "X"
        ACC, XF, WF, vXa, vWa = 0, 32, 96, 128, 129
        R, T0, T1, T2, vTo = 136, 152, 153, 154, 155
        def acc(t, rt): return ACC + (t * 4 + rt) * 4
        def xf(b, h, rt): return XF + b * 32 + h * 16 + rt * 4
        def wf(b, h, t): return WF + b * 16 + h * 8 + t * 4
        R = 236
        e(f"s_lshl_b32 s{sT}, s{sWM}, 13"); e(f"s_add_u32 s{sT}, s{sT}, {LA}")
        e(f"v_add_u32 v{vXa}, s{sT}, v{vL16}")
        self.waddr128(vWa, sWN, T0, T1, T2)
        for rt in range(4):
            for t in range(2):
                for k in range(2): self.emit(self.unpack(acc(t, rt) + 2 * k, R + 4 * rt + 2 * t + k))
        def reads(u):
            b = u & 1; o = []
            sl = (32 + (u >> 1)) % 6
            for h in range(2):
                wr = []
                for t in range(2):
                    r = wf(b, h, t); ad = vWa + 2 * (sl // 3) + t; off = (sl % 3) * WSLOT + ((u & 1) * 2 + h) * 4096
                    wr += [f"ds_read_b64_tr_b16 v[{r}:{r+1}], v{ad} offset:{off}", f"ds_read_b64_tr_b16 v[{r+2}:{r+3}], v{ad} offset:{off + 2048}"]
                xr = [f"ds_read_b128 v[{xf(b,h,rt)}:{xf(b,h,rt)+3}], v{vXa} offset:{(u % 3) * 16384 + rt * 2048 + h * 1024}" for rt in range(4)]
                o += wr[0:2] + xr + wr[2:]
            return o
        def mf(u):
            b = u & 1
            return [mfma(acc(t, rt), wf(b, h, t), xf(b, h, rt)) for h in range(2) for t in range(2) for rt in range(4)]
        self.ts(4)
        e("s_waitcnt vmcnt(0)")
        self.bar(P, ("G2", -2))
        self.ts(5)
        self.bar(P, ("G2", -1))
        self.ts(6); self.tsc(18)
        self.emit(reads(0))
        for u in range(16):
            self.step(P, ("G2", u), mf(u), reads(u + 1) if u < 15 else [], last=int(self.opt.get("g2last", 11)))
        self.ts(7); self.tsc(19)
        e("s_nop 7")
        self.res_epilogue(acc, None, sXm, sSTm, 136, 160, sN4)
        self.ts(8)

    def a3(self, mat, t, rt): return ((mat * 4 + t) * 4 + rt) * 4
    def a4(self, t, rt): return 128 + (t * 4 + rt) * 4
    V4X, V4W = 243, 244
    XP = {"g3b": [236, 237, 238], "g4": [239, 240, 241, 242]}

    def x_g3a(self):
        e = self.e; P = "X"
        XF, WF, vXa, vWa, T0, T1, vTo = 128, 160, 224, 225, 233, 234, 235
        def xf(b, rt): return XF + b * 16 + rt * 4
        def wf(b, mat, t): return WF + b * 32 + (mat * 4 + t) * 4
        e(f"s_lshl_b32 s{sT}, s{sWM}, 13"); e(f"s_add_u32 s{sT}, s{sT}, {LA}")
        e(f"v_add_u32 v{vXa}, s{sT}, v{vL16}")
        e(f"s_lshl_b32 s{sT2}, s{sWN}, 2")
        self.emit(self.waddr256(vWa, [0, 1, 2, 3], sT2, T0, T1))
        lw, lj = self.lab("x3"), self.lab("x3")
        e(f"s_cmp_ge_u32 s{sLW}, 2"); e(f"s_cbranch_scc1 {lw}")
        e(f"s_lshl_b32 s{sMb}, s{sWM}, 13"); e(f"s_add_u32 s{sGb}, s{sXm}, s{sMb}")
        e(f"s_and_b32 s{sT}, s{sN4}, 1"); e(f"s_mul_i32 s{sT}, s{sT}, {28 * 16384}"); e(f"s_add_u32 s{sGb2}, s{sHo}, s{sT}"); e(f"s_add_u32 s{sGb2}, s{sGb2}, s{sMb}")
        e(f"s_branch {lj}")
        self.label(lw)
        self.emit(self.pat_g3b(self.XP, T0, T1, vTo)); self.emit(self.pat_g4(self.XP, T0, T1, vTo))
        self.label(lj)
        e(f"v_mov_b32 v{self.V4X}, v{vXa}")
        e(f"s_and_b32 s{sT2}, s{sN4}, 1"); e(f"s_lshl_b32 s{sT2}, s{sT2}, 2"); e(f"s_lshl_b32 s{sT}, s{sWN}, 1"); e(f"s_add_u32 s{sT2}, s{sT2}, s{sT}")
        self.emit(self.waddr256(self.V4W, [0, 1, 4, 5], sT2, T0, T1))
        for i in range(128): e(f"v_mov_b32 v{i}, 0")
        e(f"s_lshr_b32 s{sT}, s{sNT}, 3"); e(f"s_mul_i32 s{sT}, s{sT}, 28"); e(f"s_and_b32 s{sT2}, s{sNT}, 7"); e(f"s_add_u32 s{sT}, s{sT}, s{sT2}")
        e(f"s_lshl_b32 s{sT}, s{sT}, 14"); e(f"s_lshl_b32 s{sT2}, s{sWM}, 13"); e(f"s_add_u32 s{sT}, s{sT}, s{sT2}")
        e(f"s_lshl_b32 s{sT2}, s{sWN}, 10"); e(f"s_add_u32 s{sT}, s{sT}, s{sT2}"); e(f"s_add_u32 s{sGh}, s{sT}, s{sHo}")
        def reads(s):
            b = s & 1; sl = (40 + s) % 6
            xr = [f"ds_read_b128 v[{xf(b,rt)}:{xf(b,rt)+3}], v{vXa} offset:{((s >> 1) % 3) * 16384 + rt * 2048 + (s & 1) * 1024}" for rt in range(4)]
            wr = []
            for t in range(4):
                for mat in range(2):
                    r = wf(b, mat, t); ad = vWa + 4 * (sl // 3) + t; off = (sl % 3) * WSLOT + mat * 8192
                    wr += [f"ds_read_b64_tr_b16 v[{r}:{r+1}], v{ad} offset:{off}", f"ds_read_b64_tr_b16 v[{r+2}:{r+3}], v{ad} offset:{off + 4096}"]
            return wr[0:2] + xr + wr[2:]
        def mf(s):
            b = s & 1
            return [mfma(self.a3(mat, t, rt), wf(b, mat, t), xf(b, rt)) for t in range(4) for mat in range(2) for rt in range(4)]
        e("s_waitcnt vmcnt(1)")
        self.bar(P, ("G3A", -2))
        self.ts(9)
        self.bar(P, ("G3A", -1))
        self.ts(10); self.tsc(20)
        self.emit(reads(0))
        def fn(s, ex):
            extra = []
            if ex: extra.append((28, self.CNT))
            self.step(P, ("G3A", s), mf(s), reads(s + 1) if s < 31 else [], vmw=(0 if s == 2 else None), last=23, extra=extra)
        self.looped(P, 32, 6, fn)
        self.ts(11); self.tsc(21)

    def silu_group(self, cg, cu, E, RL, I2, O, NM=None, sg=None, su=None):
        o = []
        if NM is not None: o += [f"v_fmac_f32 v{cg+r}, v{NM}, v{sg+r}" for r in range(4)]
        o += [f"v_mul_f32 v{E+r}, v{RL}, v{cg+r}" for r in range(4)]
        if NM is not None: o += [f"v_fmac_f32 v{cu+r}, v{NM}, v{su+r}" for r in range(4)]
        o += [f"v_exp_f32 v{E+r}, v{E+r}" for r in range(4)]
        o += [f"v_mul_f32 v{cg+r}, v{cg+r}, v{cu+r}" for r in range(4)]
        o += [f"v_fma_f32 v{E+r}, v{E+r}, v{I2}, v{I2}" for r in range(4)]
        o += [f"v_rcp_f32 v{E+r}, v{E+r}" for r in range(4)]
        o += [f"v_mul_f32 v{cg+r}, v{cg+r}, v{E+r}" for r in range(4)]
        o += [f"v_cvt_pk_bf16_f32 v{O}, v{cg}, v{cg+1}", f"v_cvt_pk_bf16_f32 v{O+1}, v{cg+2}, v{cg+3}"]
        return o

    def stat_regs(self, MR, NM, RL, I2, t0):
        o = [f"s_lshl_b32 s{sT}, s{sWM}, 9", f"s_add_u32 s{sT}, s{sT}, {L_ST}", f"v_and_b32 v{t0}, 0xf0, v{vL16}", f"v_lshrrev_b32 v{t0}, 1, v{t0}",
             f"v_add_u32 v{t0}, s{sT}, v{t0}"]
        o += [f"ds_read_b64 v[{MR+2*rt}:{MR+2*rt+1}], v{t0} offset:{128*rt}" for rt in range(4)]
        o += ["s_waitcnt lgkmcnt(0)"]
        for rt in range(4):
            o += [f"v_sub_f32 v{NM+rt}, 0, v{MR+2*rt}", f"v_mul_f32 v{RL+rt}, 0xbfb8aa3b, v{MR+2*rt+1}", f"v_mul_f32 v{I2+rt}, v{MR+2*rt+1}, v{MR+2*rt+1}"]
        o += [f"v_rcp_f32 v{I2+rt}, v{I2+rt}" for rt in range(4)] + ["s_nop 0"]
        return o

    def chunk(self, work, budget):
        out = []; c = 0
        while work and (c + work[0][0] <= budget or not out):
            k, it = work.pop(0); c += k; out.append(it)
        return out
    def atomize(self, instrs):
        tm = [f"s{sT}", f"s{sT2}", f"s{sT3}"]
        def toks(x): return re.findall(r"[a-z_0-9]+", x)
        n = len(instrs); end = list(range(n))
        for i, x in enumerate(instrs):
            if not isinstance(x, str) or not x.startswith("s_") or x.startswith(("s_waitcnt", "s_nop")): continue
            t = toks(x)
            if t[0].startswith("s_cmp"):
                for j in range(i + 1, n):
                    if isinstance(instrs[j], str) and instrs[j].startswith("s_cselect"): end[i] = j; break
                continue
            d = t[1]
            if d not in tm: continue
            for j in range(i + 1, n):
                y = instrs[j]
                if not isinstance(y, str): continue
                ty = toks(y)
                if d in ty[2:]: end[i] = j
                if ty[1:2] == [d] and y.startswith("s_"): break
        out = []; i = 0
        while i < n:
            k = end[i]; j = i
            while j < k:
                j += 1; k = max(k, end[j])
            out.append(instrs[i] if k == i else list(instrs[i:k + 1])); i = k + 1
        return out
    def costed(self, instrs):
        w = []
        for x in self.atomize(instrs):
            if isinstance(x, list) and all(isinstance(y, str) for y in x):
                w.append((sum(1 if y.startswith("v_") else 0.5 for y in x), x)); continue
            if isinstance(x, (list, tuple)): w.append((4, x))
            elif callable(x): w.append((4, x))
            elif x.startswith(("v_exp", "v_rcp", "v_sqrt")): w.append((2, x))
            elif x.startswith("v_"): w.append((1, x))
            else: w.append((0.5, x))
        return w
    def run_period(self, dmas, items):
        seq = self.mix(dmas, items)
        for x in seq:
            if callable(x): x()
            else: self.emit([x])

    class LVM(VM):
        pass

    def lazy(self, vm, fn):
        tmp = VM(); groups = fn(tmp); out = []
        for g, tag in zip(groups, tmp.ops):
            def mk(g=g, tag=tag):
                def f():
                    vm.issue(tag); self.emit(g)
                return f
            out.append(mk())
        return out

    def x_g3b(self, role):
        e = self.e; P = "X" + role; vm = VM()
        NM, RL, I2, CS, E, OUT = 192, 196, 200, 204, 220, 224
        PT = self.XP
        T0, T1, vCS = 232, 234, 235
        e("s_setprio 1")
        work = []
        work += self.stat_regs(E, NM, RL, I2, T0)
        work += [f"s_lshl_b32 s{sT}, s{sWN}, 8", f"s_add_u32 s{sT}, s{sT}, {L_CSA}", f"v_lshrrev_b32 v{vCS}, 8, v{vL16}", f"v_lshlrev_b32 v{vCS}, 4, v{vCS}", f"v_add_u32 v{vCS}, s{sT}, v{vCS}"]
        for b in range(2):
            for t in range(2):
                for mat in range(2):
                    c = CS + (t * 2 + mat) * 4
                    work.append(f"ds_read_b128 v[{c}:{c+3}], v{vCS} offset:{mat * 512 + (2 * b + t) * 64}")
            work.append("s_waitcnt lgkmcnt(0)")
            for rt in range(4):
                O = OUT + 4 * (rt & 1)
                for t in range(2):
                    work += self.silu_group(self.a3(0, 2 * b + t, rt), self.a3(1, 2 * b + t, rt), E, RL + rt, I2 + rt, O + 2 * t, NM + rt, CS + t * 8, CS + t * 8 + 4)
                def st(b=b, rt=rt, O=O):
                    vm.issue(("H", b))
                    e(f"s_add_u32 s{sT}, s{sGh}, {b * 8 * 16384 + rt * 2048}")
                    e(f"buffer_store_dwordx4 v[{O}:{O+3}], v{vL16}, s[{sWS}:{sWS+3}], s{sT} offen sc0 sc1")
                work.append(st)
            work.append(("FLAG", b))
        def resld():
            e(f"s_lshl_b32 s{sT}, s{sN4}, 14"); e(f"s_lshl_b32 s{sT2}, s{sWM}, 13"); e(f"s_add_u32 s{sT}, s{sT}, s{sT2}")
            e(f"s_lshl_b32 s{sT2}, s{sWN}, 10"); e(f"s_add_u32 s{sT}, s{sT}, s{sT2}"); e(f"s_add_u32 s{sT}, s{sT}, s{sXm}")
            for rt in range(4):
                vm.issue("res")
                e(f"buffer_load_dwordx4 v[{160+4*rt}:{163+4*rt}], v{vL16}, s[{sWS}:{sWS+3}], s{sT} offen offset:{2048 * (rt & 1)}")
                if rt == 1: e(f"s_add_u32 s{sT}, s{sT}, 4096")
        prep0 = [resld]
        prep2 = []
        for rt in range(4):
            for t in range(2):
                for k in range(2): prep2 += self.unpack(self.a4(t, rt) + 2 * k, 160 + 4 * rt + 2 * t + k)
        prep2 += [f"v_mov_b32 v{160+i}, 0" for i in range(32)]
        work = self.costed(prep0) + self.costed(work)
        tail = [(0, "RESWAIT")] + self.costed(prep2)
        budget = float(self.opt.get("budXW" if role == "W" else "budXA", 26 if role == "W" else 30))
        pend = []
        lag = 6 if role == "W" else 4
        for s in range(32):
            need = [("W", 72 + s + 1)] if role == "W" else ([("A", 16 + (s + 1) // 2)] if s & 1 else [])
            ready = [b for b, p in pend if p <= s]
            n = vm.need(*(need + [("H", b) for b in ready]))
            self.pb(P, ("G3B", s), n, 0)
            for b in ready:
                self.emit(self.flag_set(self.FL(1, 32 * b))); vm.issue("flag")
            pend = [(b, p) for b, p in pend if p > s]
            if role == "W":
                dm = self.lazy(vm, lambda v: self.w_issue(v, 72 + s + 6, PT))
            else:
                dm = []
                if s == 25:
                    self.apoll_issue(vm, self.FL(1, 0), 8, T0)
                if s == 27: self.apoll_check(vm, self.FL(1, 0), 8, T0)
                if s == 0: dm = self.lazy(vm, lambda v: self.a_issue(v, ("A", 18), 0, sGb, 2 * 16384))
                elif s <= 30:
                    idx = 16 + (s - 1) // 2 + 3; part = (s - 1) & 1
                    if idx < 32: dm = self.lazy(vm, lambda v: self.a_issue(v, ("A", idx), idx % 3, sGb, (idx - 16) * 16384, part))
                    else: dm = self.lazy(vm, lambda v: self.a_issue(v, ("A", idx), idx % 3, sGb2, (idx - 32) * 16384, part))
            src = work if work else tail
            its = self.chunk(src, budget if s < 31 else 1e9) if s > 0 or True else []
            if s == 31: its += self.chunk(tail, 1e9) if tail else []
            items = []
            for it in its:
                if isinstance(it, tuple) and it and it[0] == "FLAG":
                    pend.append((it[1], s + lag)); assert it[1] == 1 or s + lag < 27
                elif it == "RESWAIT":
                    def rw():
                        n = vm.need("res")
                        if n is not None: self.wait(n)
                    items.append(rw)
                else: items.append(it)
            if s == 0: e("s_nop 7")
            self.run_period(dm, items)
            if not work and not hasattr(self, "_done" + role): setattr(self, "_done" + role, s)
        assert not work and not tail
        if pend:
            n = vm.need(*[("H", b) for b, p in pend]); self.wait(n)
            for b, p in pend:
                self.emit(self.flag_set(self.FL(1, 32 * b))); vm.issue("flag")
        self.tr_flush(P)
        if role == "A": self.wait(0)
        e("s_setprio 0")
        self.info.append(f"G3B X{role}: epilogue work done in period {getattr(self, '_done' + role)}, late flags {pend}, vm left {len(vm.ops)}")

    def x_g4(self):
        e = self.e; P = "X"
        XF, WF = 0, 32
        vXa, vWa = self.V4X, self.V4W
        T0, T1, vTo, vTp = 192, 193, 194, 195
        def xf(b, rt): return XF + b * 16 + rt * 4
        def wf(b, t): return WF + b * 16 + t * 4
        def reads(s):
            b = s & 1; u = s >> 1; sl = (104 + u) % 6
            xr = [f"ds_read_b128 v[{xf(b,rt)}:{xf(b,rt)+3}], v{vXa} offset:{((32 + u) % 3) * 16384 + rt * 2048 + b * 1024}" for rt in range(4)]
            wr = []
            for t in range(4):
                r = wf(b, t); ad = vWa + 4 * (sl // 3) + t; off = (sl % 3) * WSLOT + b * 8192
                wr += [f"ds_read_b64_tr_b16 v[{r}:{r+1}], v{ad} offset:{off}", f"ds_read_b64_tr_b16 v[{r+2}:{r+3}], v{ad} offset:{off + 4096}"]
            return wr[0:2] + xr + wr[2:]
        def mf(s):
            b = s & 1
            return [mfma(self.a4(t, rt), wf(b, t), xf(b, rt)) for t in range(4) for rt in range(4)]
        self.emit(reads(0))
        e(f"s_lshl_b32 s{sT}, s{sN4}, 14"); e(f"s_lshl_b32 s{sT2}, s{sLW}, 12"); e(f"s_add_u32 s{sT}, s{sT}, s{sT2}")
        e(f"s_add_u32 s{sT}, s{sT}, s{sOo}"); e(f"s_add_u32 s{sGb}, s{sT}, {WS_P}")
        e(f"s_xor_b32 s{sGb2}, s{sGb}, {1 << 14}")
        self.ts(12); self.tsc(22)
        def fn(u, ex):
            extra = []
            self.step(P, None, mf(2 * u), reads(2 * u + 1), bar=False, last=11, extra=extra)
            extra = []
            if ex: extra.append((13, self.CNT))
            self.step(P, ("G4", u), mf(2 * u + 1), reads(2 * u + 2) if u < 27 else [], vmw=(8 * (4 - u) if u < 5 else None), last=11, extra=extra)
        self.looped(P, 28, 6, fn)
        self.ts(13); self.tsc(23)
        e("s_nop 7")
        SP, RP = 64, 80
        for rt in range(4):
            for t in range(2):
                c = self.a4(2 + t, rt); p = SP + 4 * rt + 2 * t
                e(f"v_cvt_pk_bf16_f32 v{p}, v{c}, v{c+1}"); e(f"v_cvt_pk_bf16_f32 v{p+1}, v{c+2}, v{c+3}")
            for i in range(4): e(f"v_min_u32 v{SP+4*rt+i}, -2, v{SP+4*rt+i}")
            e(f"buffer_store_dwordx4 v[{SP+4*rt}:{SP+4*rt+3}], v{vL16}, s[{sWS}:{sWS+3}], s{sGb} offen offset:{1024 * rt} sc0 sc1")
        lp, ld = self.lab("poll"), self.lab("pd")
        e(f"s_mov_b32 s{sT2}, {POLL}")
        self.label(lp)
        for rt in range(4):
            e(f"buffer_load_dwordx4 v[{RP+4*rt}:{RP+4*rt+3}], v{vL16}, s[{sWS}:{sWS+3}], s{sGb2} offen offset:{1024 * rt} sc0 sc1")
        e("s_waitcnt vmcnt(0)")
        e(f"v_max3_u32 v{T0}, v{RP}, v{RP+1}, v{RP+2}"); e(f"v_max3_u32 v{T1}, v{RP+3}, v{RP+4}, v{RP+5}")
        for k in range(6, 14, 4):
            e(f"v_max3_u32 v{T0}, v{T0}, v{RP+k}, v{RP+k+1}"); e(f"v_max3_u32 v{T1}, v{T1}, v{RP+k+2}, v{RP+k+3}")
        e(f"v_max3_u32 v{T0}, v{T0}, v{RP+14}, v{RP+15}"); e(f"v_max_u32 v{T0}, v{T0}, v{T1}")
        e(f"v_cmp_eq_u32 vcc, -1, v{T0}")
        e(f"s_cbranch_vccz {ld}")
        e(f"s_sub_u32 s{sT2}, s{sT2}, 1"); e(f"s_cmp_lg_u32 s{sT2}, 0"); e(f"s_cbranch_scc1 {lp}")
        self.label(ld)
        for rt in range(4):
            for t in range(2):
                for k in range(2):
                    self.emit(self.unpack(160 + 2 * k, RP + 4 * rt + 2 * t + k))
                c = self.a4(t, rt)
                for k in range(2): e(f"v_pk_add_f32 v[{c+2*k}:{c+2*k+1}], v[{c+2*k}:{c+2*k+1}], v[{160+2*k}:{161+2*k}]")
        self.ts(14)
        self.tr_dump("X")

    def x_final(self):
        e = self.e
        T0, T1, PK = 192, 193, 0
        e(f"v_and_b32 v{T0}, 0xf0, v{vL16}"); e(f"v_lshlrev_b32 v{T0}, 7, v{T0}")
        e(f"v_and_b32 v{T1}, 0x100, v{vL16}"); e(f"v_lshrrev_b32 v{T1}, 3, v{T1}"); e(f"v_add_u32 v{T0}, v{T0}, v{T1}")
        e(f"v_and_b32 v{T1}, 0x200, v{vL16}"); e(f"v_lshrrev_b32 v{T1}, 5, v{T1}"); e(f"v_add_u32 v{T0}, v{T0}, v{T1}")
        e(f"s_lshl_b32 s{sT}, s{sMT}, 18"); e(f"s_lshl_b32 s{sT2}, s{sWM}, 17"); e(f"s_add_u32 s{sT}, s{sT}, s{sT2}")
        e(f"s_lshl_b32 s{sT2}, s{sN4}, 7"); e(f"s_add_u32 s{sT}, s{sT}, s{sT2}")
        e(f"s_lshl_b32 s{sT2}, s{sWN}, 6"); e(f"s_add_u32 s{sT}, s{sT}, s{sT2}")
        for rt in range(4):
            for t in range(2):
                c = self.a4(t, rt)
                e(f"v_cvt_pk_bf16_f32 v{PK+4*rt+2*t}, v{c}, v{c+1}"); e(f"v_cvt_pk_bf16_f32 v{PK+4*rt+2*t+1}, v{c+2}, v{c+3}")
            e("s_nop 1")
            e(f"v_permlane16_swap_b32 v{PK+4*rt}, v{PK+4*rt+2}"); e(f"v_permlane16_swap_b32 v{PK+4*rt+1}, v{PK+4*rt+3}")
            e(f"buffer_store_dwordx4 v[{PK+4*rt}:{PK+4*rt+3}], v{T0}, s[{sOUT}:{sOUT+3}], s{sT} offen")
            e(f"s_add_u32 s{sT}, s{sT}, {16 * 2048}")

    YP = {"g1": [200, 201, 202, 203, 204, 205], "g2": [206, 207, 208, 209], "g3a": [210, 211, 212, 213], "g3b": [214, 215, 216], "g4": [217, 218, 219, 220]}
    YT = [224, 225, 226, 227]
    YAP = [200, 201, 202, 203]

    def read_mode(self, t):
        self.e(f"v_mov_b32 v{t}, {L_MODE}"); self.e(f"ds_read_b32 v{t}, v{t}"); self.e("s_waitcnt lgkmcnt(0)")
        self.e(f"v_readfirstlane_b32 s{sMODE}, v{t}")

    def g1a_setup(self, first, halo=False):
        e = self.e; T0, T1, T2, _ = self.YT; AP = self.YAP
        if first:
            e(f"v_lshrrev_b32 v{T0}, 7, v{vL16}"); e(f"v_and_b32 v{T1}, 0x70, v{vL16}")
            e(f"v_and_b32 v{T2}, 6, v{T0}"); e(f"v_lshlrev_b32 v{T2}, 4, v{T2}"); e(f"v_xor_b32 v{T1}, v{T1}, v{T2}")
            if halo:
                e(f"v_lshl_add_u32 v221, v{T0}, 11, v{T1}")
                e(f"s_lshl_b32 s{sGh}, s{sMT}, 18"); e(f"s_sub_u32 s{sGh}, s{sGh}, 32768"); e(f"s_lshl_b32 s{sT}, s{sWM}, 14"); e(f"s_add_u32 s{sGh}, s{sGh}, s{sT}")
                e(f"s_mov_b32 s{sSh}, 128")
            else:
                e(f"v_lshl_add_u32 v{AP[0]}, v{T0}, 11, v{T1}")
                for i in range(1, 4): e(f"v_add_u32 v{AP[i]}, {i * (16384 - 1024)}, v{AP[0]}")
                e(f"s_lshl_b32 s{sGb}, s{sMT}, 18")
                e(f"s_mov_b32 s{sGb2}, 65536"); e(f"s_mov_b32 s{sSu}, 128")
        else:
            for i in range(4): e(f"s_mov_b32 s{sA1+i}, s{sWS+i}")
            if halo:
                e(f"v_mov_b32 v221, v{vL16}")
                e(f"s_sub_u32 s{sGh}, s{sX2}, {ARENA - 14336}"); e(f"s_lshl_b32 s{sT}, s{sWM}, 10"); e(f"s_add_u32 s{sGh}, s{sGh}, s{sT}")
                e(f"s_mov_b32 s{sSh}, 16384")
            else:
                for i in range(4): e(f"v_mov_b32 v{AP[i]}, v{vL16}")
                e(f"s_mov_b32 s{sGb}, s{sX2}")
                e(f"s_mov_b32 s{sGb2}, 4096"); e(f"s_mov_b32 s{sSu}, 16384")
        if halo:
            e(f"s_cmp_eq_u32 s{sMT}, 0"); e(f"s_cselect_b32 s{sGh}, {OOB}, s{sGh}")
            e(f"s_lshl_b32 s{sSu}, s{sWM}, 10")
            e(f"s_mov_b32 s{sRh}, s{sN4}")
        else:
            e(f"s_mov_b32 s{sRi}, s{sN4}"); e(f"s_mul_i32 s{sCur}, s{sRi}, s{sSu}"); e(f"s_add_u32 s{sCur}, s{sCur}, s{sGb}")

    def g1a_skip(self, b, u=0):
        if b < 3: return [f"s_add_u32 s{sCur}, s{sCur}, s{sGb2}"]
        return [f"s_add_u32 s{sRi}, s{sRi}, {3 if u == 7 else 2}", f"s_and_b32 s{sRi}, s{sRi}, 15", f"s_mul_i32 s{sCur}, s{sRi}, s{sSu}", f"s_add_u32 s{sCur}, s{sCur}, s{sGb}"]
    def g1a_issue(self, vm, u, batches):
        g = []; AP = self.YAP; base = LA + (u % 3) * 18432
        for b in batches:
            for i in range(4):
                off = f" offset:{1024 * i}" if i else ""
                x = [f"buffer_load_dwordx4 v{AP[i]}, s[{sA1}:{sA1+3}], s{sCur} offen{off} lds"]
                if i == 0: x = [f"s_mov_b32 m0, {base + 2048 + 4096 * b}", "s_nop 0"] + x
                if i == 3: x += self.g1a_skip(b, u)
                g.append(x); vm.issue(("A", u))
        return g
    def g1h_issue(self, vm, u):
        vm.issue(("Ah", u))
        return [f"s_mul_i32 s{sCur}, s{sRh}, s{sSh}", f"s_add_u32 m0, s{sSu}, {LA + (u % 3) * 18432}", f"s_add_u32 s{sCur}, s{sCur}, s{sGh}",
                f"buffer_load_dwordx4 v221, s[{sA1}:{sA1+3}], s{sCur} offen lds", f"s_add_u32 s{sRh}, s{sRh}, {3 if u == 7 else 2}", f"s_and_b32 s{sRh}, s{sRh}, 15"]

    def g1_wait_inputs(self, halo, mid=None):
        e = self.e; T0, T1, T2, _ = self.YT
        l = self.lab("gw")
        e("s_barrier")
        if halo:
            self.wg_flags(self.FG(4), self.FL(0, 64))
            e(f"s_cmp_eq_u32 s{sMT}, 0"); e(f"s_cbranch_scc1 {l}")
            e(f"s_add_u32 s{sD0}, s{sFL}, {(64 - 128) & 0xffffffff}"); e(f"s_add_u32 s{sD1}, s{sFl}, {4 * 2048 - 128}")
            e(f"s_and_b32 s{sT}, s{sMT}, 3")
            e(f"s_cselect_b32 s{sD0}, s{sD0}, s{sD1}"); e(f"s_cselect_b32 s{sD1}, 28, 60")
            self.poll_flags((sD0, 0), ("s", sD1))
        else:
            e(f"v_lshlrev_b32 v{T0}, 3, v{vL16}"); e(f"s_lshl_b32 s{sT}, s{sWM}, 13"); e(f"s_add_u32 s{sT}, s{sT}, s{sCur}")
            e(f"buffer_load_dword v{T1}, v{T0}, s[{sWS}:{sWS+3}], s{sT} offen sc0 sc1")
            self.poll_flags(self.FL(0, 64), 8)
        self.label(l)

    def a0_first_units(self, vm):
        for u in range(2):
            self.emit(self.g1a_issue(vm, u, [0, 1])); self.emit(self.g1a_skip(2) + self.g1a_skip(3))
        self.emit(self.g1a_issue(vm, 2, [0, 1, 2, 3]))
    def side_first_units(self, vm):
        for u in range(2):
            self.emit(self.g1a_skip(0) + self.g1a_skip(1)); self.emit(self.g1a_issue(vm, u, [2, 3]))

    def y_g1_a0(self, vm):
        e = self.e; P = "YA0"
        self.pb(P, ("G1", -1), vm.need(("A", 0)))
        for s in range(32):
            self.pb(P, ("G1", s), vm.need(("A", (s + 1) // 2)) if s & 1 else None)
            if s == 8: self.apoll_issue(vm, self.FG(4), 16, 251)
            if s == 11: self.apoll_check(vm, self.FG(4), 16, 251, [(sLAY, 0)])
            if s >= 1:
                u = (s - 1) // 2 + 3
                if u < 16: self.emit(self.g1a_issue(vm, u, [0, 1] if s & 1 else [2, 3]))
        self.tr_flush(P)
        self.read_mode(self.YT[0])

    sJ, sJo, sXc = sAT, sAT + 4, sAT + 5
    def job_setup(self, vJ, row0):
        e = self.e; sJ, sJo = self.sJ, self.sJo; T0 = self.YT[0]
        e(f"s_lshr_b32 s{sT}, s2, 1")
        e(f"s_cmp_lt_u32 s{sT}, 56")
        e(f"s_cselect_b32 s{sJ}, s{sAT+8}, s{sAT+10}"); e(f"s_cselect_b32 s{sJ+1}, s{sAT+9}, s{sAT+11}")
        e(f"s_cselect_b32 s{sT2}, 0, 56"); e(f"s_sub_u32 s{sT}, s{sT}, s{sT2}")
        e(f"s_mov_b32 s{sJ+2}, {1024 * 7168}"); e(f"s_mov_b32 s{sJ+3}, 0x00020000")
        e(f"s_lshl_b32 s{sJo}, s{sT}, 7"); e(f"s_and_b32 s{sT}, s2, 1"); e(f"s_mul_i32 s{sT}, s{sT}, {512 * 7168}"); e(f"s_add_u32 s{sJo}, s{sJo}, s{sT}")
        if row0:
            e(f"s_mul_i32 s{sT}, s{sLW}, {128 * 7168}"); e(f"s_add_u32 s{sJo}, s{sJo}, s{sT}")
        e("s_cmp_lt_u32 s2, 224"); e(f"s_cselect_b32 s{sJo}, s{sJo}, {OOB}")
        if self.opt.get("nojob"): e(f"s_mov_b32 s{sJo}, {OOB}")
        e(f"v_lshrrev_b32 v{vJ}, 7, v{vL16}"); e(f"v_mul_u32_u24 v{vJ}, 7168, v{vJ}"); e(f"v_and_b32 v{T0}, 0x70, v{vL16}"); e(f"v_add_u32 v{vJ}, v{vJ}, v{T0}")
    def job_ld(self, vJ, b):
        return [f"buffer_load_dwordx4 v[{b}:{b+3}], v{vJ}, s[{self.sJ}:{self.sJ+3}], s{self.sJo} offen", f"s_add_u32 s{self.sJo}, s{self.sJo}, {8 * 7168}"]
    def selector(self, S, t0, t1):
        o = [f"v_lshrrev_b32 v{t0}, 4, v{vL16}", f"v_and_b32 v{t1}, 1, v{t0}", f"v_lshlrev_b32 v{t1}, 4, v{t1}", f"v_lshlrev_b32 v{t1}, v{t1}, v{S}",
             f"v_bfe_u32 v{t0}, v{t0}, 1, 3"]
        o = [f"v_mov_b32 v{S}, 0x3f80"] + o
        for d in range(4): o += [f"v_cmp_eq_u32 vcc, {d}, v{t0}", "s_nop 1", f"v_cndmask_b32 v{S+d}, 0, v{t1}, vcc"]
        return o
    def job_finish(self, n, B, AC, S):
        e = self.e; T0, T1 = self.YT[:2]
        self.emit(self.selector(S, T0, T1))
        e("s_nop 1")
        for i in range(n): e(mfma(AC, S, B + 4 * i, "0" if i == 0 else None))
        e(f"s_and_b32 s{sT2}, s2, 1"); e(f"s_mul_i32 s{sT2}, s{sT2}, 3"); e(f"s_add_u32 s{sT2}, s{sT2}, s{sLW}"); e(f"s_mul_i32 s{sT2}, s{sT2}, 28672")
        e(f"s_lshr_b32 s{sT}, s2, 1"); e(f"s_lshl_b32 s{sT}, s{sT}, 8")
        e(f"s_add_u32 s{sT}, s{sT}, s{sT2}"); e(f"s_add_u32 s{sT}, s{sT}, {WS_CS13 - 28672}")
        e("s_cmp_lt_u32 s2, 224"); e(f"s_cselect_b32 s{sT}, s{sT}, {OOB}")
        e(f"v_and_b32 v{T0}, 0x70, v{vL16}"); e(f"v_lshrrev_b32 v{T1}, 4, v{vL16}"); e(f"v_and_b32 v{T1}, 16, v{T1}"); e(f"v_lshl_add_u32 v{T0}, v{T0}, 1, v{T1}")
        e("s_nop 2")
        for r in range(4): e(f"v_add_f32_dpp v{AC+r}, v{AC+r}, v{AC+r} row_ror:8 row_mask:0xf bank_mask:0xf")
        e("s_mov_b64 exec, 0x00ff00ff")
        e(f"buffer_store_dwordx4 v[{AC}:{AC+3}], v{T0}, s[{sWS}:{sWS+3}], s{sT} offen sc0 sc1")
        e("s_mov_b64 exec, -1")
    def side_flag(self, which):
        e = self.e
        e(f"v_mov_b32 v{vF0}, 0"); e(f"v_mov_b32 v250, 1"); e(f"s_lshl_b32 s{sT}, s2, 2"); e(f"s_add_u32 s{sT}, s{sT}, {WS_SF + 1024 * which}")
        e("s_mov_b64 exec, 1")
        e(f"buffer_store_dword v250, v{vF0}, s[{sWS}:{sWS+3}], s{sT} offen sc0 sc1")
        e("s_mov_b64 exec, -1")
    def apoll4_issue(self, vm, which, G):
        self.e(f"s_mov_b32 s{sT}, {WS_SF + 1024 * which}")
        self.e(f"buffer_load_dwordx4 v[{G}:{G+3}], v{vL16}, s[{sWS}:{sWS+3}], s{sT} offen sc0 sc1"); vm.issue("p4")
    def apoll4_check(self, vm, which, G, skip=()):
        e = self.e; l = self.lab("a4")
        self.wait(vm.need("p4"))
        for r, v in skip:
            e(f"s_cmp_eq_u32 s{r}, {v}"); e(f"s_cbranch_scc1 {l}")
        e(f"v_and_b32 v{G}, v{G}, v{G+1}"); e(f"v_and_b32 v{G+2}, v{G+2}, v{G+3}"); e(f"v_and_b32 v{G}, v{G}, v{G+2}")
        e(f"v_cmp_ne_u32 vcc, 1, v{G}")
        e(f"s_cbranch_vccz {l}")
        self.poll4(WS_SF + 1024 * which, None, G)
        self.label(l)

    def side_first(self, P, vm):
        e = self.e; T0, T1, T2, T3 = self.YT
        AC, vJ, G = 128, 140, 144
        sXc = self.sXc
        e("s_setprio 1")
        e(f"v_mov_b32 v{T2}, 0"); e(f"v_mov_b32 v{T3}, 0")
        e(f"v_lshrrev_b32 v{T0}, 1, v{vL16}")
        e(f"s_lshl_b32 s{sT}, s2, 8"); e(f"s_add_u32 s{sT}, s{sT}, {WS_FL}")
        e("s_mov_b64 exec, 0xffffffff")
        e(f"buffer_store_dwordx2 v[{T2}:{T3}], v{T0}, s[{sWS}:{sWS+3}], s{sT} offen sc0 sc1"); vm.issue("z")
        e("s_mov_b64 exec, -1")
        e(f"v_lshlrev_b32 v{T0}, 6, v{vL16}")
        e(f"s_lshl_b32 s{sT}, s2, 2"); e(f"s_add_u32 s{sT}, s{sT}, {WS_SF}")
        e("s_mov_b64 exec, 3")
        e(f"buffer_store_dword v{T2}, v{T0}, s[{sWS}:{sWS+3}], s{sT} offen sc0 sc1"); vm.issue("z")
        e("s_mov_b64 exec, -1")
        self.job_setup(vJ, False)
        e(f"s_getreg_b32 s{sXc}, hwreg(HW_REG_XCC_ID, 0, 4)")
        if self.opt.get("slow"): e(f"s_lshr_b32 s{sXc}, s2, 7")
        e(f"s_mul_i32 s{sT}, s{sXc}, s{sXc}"); e(f"s_lshl_b32 s{sT}, s{sT}, 15"); e(f"s_lshl_b32 s{sXc}, s{sXc}, 6"); e(f"s_add_u32 s{sXc}, s{sXc}, s{sT}"); e(f"s_add_u32 s{sXc}, s{sXc}, 1")
        j0 = int(self.opt.get("j0", -1)); jn = int(self.opt.get("jn", 11)); nl = [0]
        def burst(s):
            if s == j0:
                e(f"v_lshlrev_b32 v{T0}, 3, v{vL16}"); e(f"s_lshl_b32 s{sT}, s2, 13")
                e(f"buffer_load_dword v{G}, v{T0}, s[{sWO}:{sWO+3}], s{sT} offen"); vm.issue("t")
            if s >= j0:
                for k in range(jn):
                    if nl[0] < 32:
                        self.emit(self.job_ld(vJ, 4 * nl[0])); vm.issue("J"); nl[0] += 1
        burst(-2)
        self.pb(P, ("G1", -1), vm.need(("A", 0)))
        burst(-1)
        g = int(self.opt.get("gat", 12))
        for s in range(32):
            self.pb(P, ("G1", s), vm.need(("A", 1), "z") if s == 1 else None, 0)
            if s == 1:
                e(f"v_mov_b32 v{T0}, s{sXc}"); e(f"s_and_b32 s{sT}, s2, 7"); e(f"s_lshl_b32 s{sT}, s{sT}, 5"); e(f"v_mov_b32 v{T1}, 0")
                e("s_mov_b64 exec, 1")
                e(f"buffer_atomic_add v{T0}, v{T1}, s[{sDBG}:{sDBG+3}], s{sT} offen sc1"); vm.issue("at")
                e("s_mov_b64 exec, -1")
            if s == 3:
                self.side_flag(0); vm.issue("f")
            burst(s)
            if s == g:
                e(f"v_lshlrev_b32 v{T3}, 1, v{vL16}"); e(f"v_and_b32 v{T3}, 0xff, v{T3}")
                e(f"buffer_load_dword v{T2}, v{T3}, s[{sDBG}:{sDBG+3}], 0 offen sc0 sc1"); vm.issue("hs")
            if s == g + 3:
                lp, ld_ = self.lab("hs"), self.lab("hs")
                self.wait(vm.need("hs"))
                e(f"s_mov_b32 s{sT2}, {POLL}")
                self.label(lp)
                e(f"v_and_b32 v{T1}, 63, v{T2}")
                e(f"v_cmp_ne_u32 vcc, 32, v{T1}")
                e(f"s_cbranch_vccz {ld_}")
                e(f"buffer_load_dword v{T2}, v{T3}, s[{sDBG}:{sDBG+3}], 0 offen sc0 sc1")
                e("s_waitcnt vmcnt(0)")
                e(f"s_sub_u32 s{sT2}, s{sT2}, 1"); e(f"s_cmp_lg_u32 s{sT2}, 0"); e(f"s_cbranch_scc1 {lp}")
                self.label(ld_)
                self.apoll4_issue(vm, 0, G)
                e(f"s_and_b32 s{sT}, s2, 7"); e("s_nop 3")
                e(f"v_readlane_b32 s{sT}, v{T2}, s{sT}")
                e(f"s_lshl_b32 s{sT2}, s{sXc}, 5")
                e("s_nop 3")
                e(f"s_cmp_lg_u32 s{sT}, s{sT2}"); e(f"s_cselect_b32 s{sT}, 1, 0")
                e(f"v_mov_b32 v{T0}, {L_MODE}"); e(f"v_mov_b32 v{T1}, s{sT}"); e(f"ds_write_b32 v{T0}, v{T1}")
            if s == g + 6:
                self.apoll4_check(vm, 0, G)
                e(f"v_lshrrev_b32 v{T0}, 1, v{vL16}")
                e(f"s_lshl_b32 s{sT}, s{sMT}, 10"); e(f"s_add_u32 s{sT}, s{sT}, {WS_ST0 - 128}")
                for k in range(3):
                    e(f"buffer_load_dwordx2 v[{G+2*k}:{G+2*k+1}], v{T0}, s[{sWS}:{sWS+3}], s{sT} offen offset:{512 * k} sc1"); vm.issue("g0")
                e(f"v_lshrrev_b32 v{T1}, 8, v{vL16}"); e(f"v_and_b32 v{T0}, 0xf0, v{vL16}"); e(f"v_lshl_add_u32 v{vJ+1}, v{T1}, 12, v{T0}")
                e(f"s_lshl_b32 s{sT}, s{sN4}, 8"); e(f"s_add_u32 s{sAT+6}, s{sT}, {WS_CSQ}")
            CQ = G + 8
            if g + 10 <= s < g + 14:
                q = s - g - 10
                self.wait(vm.need(("g1", q)))
                for k in range(4):
                    b = CQ + 4 + 16 * (q % 3) + 4 * k
                    for r in range(4): e(f"v_mov_b32 v{CQ+r}, v{b+r}" if q == 0 and k == 0 else f"v_add_f32 v{CQ+r}, v{CQ+r}, v{b+r}")
            if g + 7 <= s < g + 11:
                q = s - g - 7
                for k in range(4):
                    b = CQ + 4 + 16 * (q % 3) + 4 * k
                    e(f"buffer_load_dwordx4 v[{b}:{b+3}], v{vJ+1}, s[{sWS}:{sWS+3}], s{sAT+6} offen sc1"); vm.issue(("g1", q))
                    e(f"s_add_u32 s{sAT+6}, s{sAT+6}, 12288")
            if s == g + 14:
                e(f"v_add_u32 v{T0}, {L_CSQ}, v{vL16}")
                e(f"s_mov_b32 s{sEX}, -1"); e(f"s_mov_b32 s{sEX+1}, 0xffff"); e(f"s_mov_b64 exec, s[{sEX}:{sEX+1}]")
                e(f"ds_write_b128 v{T0}, v[{CQ}:{CQ+3}]")
                e("s_mov_b64 exec, -1")
                e(f"s_cmp_eq_u32 s{sMT}, 0"); e(f"s_cselect_b32 s{sEX}, 0xffff, 0"); e(f"s_mov_b32 s{sEX+1}, 0")
                e(f"v_cndmask_b32 v{G}, v{G}, 0, s[{sEX}:{sEX+1}]"); e(f"v_cndmask_b32 v{G+1}, v{G+1}, 0, s[{sEX}:{sEX+1}]")
                e(f"v_lshrrev_b32 v{T0}, 2, v{vL16}"); e(f"v_add_u32 v{T0}, {L_ST}, v{T0}")
            if g + 15 <= s < g + 18:
                k = s - g - 15
                self.emit(self.finish_stats(G + 2 * k, G + 2 * k + 1))
                e(f"v_sub_f32 v{G+2*k}, 0, v{G+2*k}")
                if k == 2: e("s_mov_b64 exec, 0xffff")
                e(f"ds_write_b32 v{T0}, v{G+2*k} offset:{256 * k}"); e(f"ds_write_b32 v{T0}, v{G+2*k+1} offset:{576 + 256 * k}")
                if k == 2: e("s_mov_b64 exec, -1")
        assert g + 17 <= 30 and nl[0] == 32
        self.tr_flush(P)
        self.wait(vm.need("J"))
        e("s_setprio 0")
        self.job_finish(32, 0, AC, AC + 4)

    def poll4(self, off, T0, G):
        e = self.e
        lp, ld = self.lab("p4"), self.lab("p4")
        e(f"s_mov_b32 s{sT}, {off}"); e(f"s_mov_b32 s{sT2}, {POLL}")
        self.label(lp)
        e(f"buffer_load_dwordx4 v[{G}:{G+3}], v{vL16}, s[{sWS}:{sWS+3}], s{sT} offen sc0 sc1")
        e("s_waitcnt vmcnt(0)")
        e(f"v_and_b32 v{G}, v{G}, v{G+1}"); e(f"v_and_b32 v{G+2}, v{G+2}, v{G+3}"); e(f"v_and_b32 v{G}, v{G}, v{G+2}")
        e(f"v_cmp_ne_u32 vcc, 1, v{G}")
        e(f"s_cbranch_vccz {ld}")
        e("s_sleep 1"); e(f"s_sub_u32 s{sT2}, s{sT2}, 1"); e(f"s_cmp_lg_u32 s{sT2}, 0"); e(f"s_cbranch_scc1 {lp}")
        self.label(ld)

    def side_second(self, P, vm):
        e = self.e; T0, T1, T2, T3 = self.YT
        R, AC, HB = 0, 128, 132
        e("s_setprio 1")
        self.pb(P, ("G1", -1), vm.need(("A", 0)))
        for s in range(32):
            self.pb(P, ("G1", s), vm.need(("A", 1)) if s == 1 else None, 0)
            if s == 2:
                self.wg_flag(self.FG(7)); vm.issue("f")
            s -= 4
            if s == 2: self.apoll_issue(vm, self.FG(7), 16, 251)
            if s == 5: self.apoll_check(vm, self.FG(7), 16, 251)
            if 5 <= s < 13:
                for k in range(4 * (s - 5), 4 * (s - 4)):
                    if k % 4 == 0: e(f"s_add_u32 s{sT}, s{sSTo}, {1024 * k}")
                    e(f"buffer_load_dwordx4 v[{R+4*k}:{R+4*k+3}], v{vL16}, s[{sWS}:{sWS+3}], s{sT} offen offset:{1024 * (k % 4)}"); vm.issue(("S", k))
            if s == 13:
                self.apoll_issue(vm, (sFl, 7 * 2048 - 128), 16, 251)
            if 9 <= s < 17:
                for k in range(4 * (s - 9), 4 * (s - 8)):
                    self.wait(vm.need(("S", k)))
                    for r in range(4):
                        e(f"v_mov_b32 v{AC+r}, v{R+r}" if k == 0 else f"v_add_f32 v{AC+r}, v{AC+r}, v{R+4*k+r}")
            if s == 17:
                self.apoll_check(vm, (sFl, 7 * 2048 - 128), 16, 251, [(sMT, 0)])
                e(f"s_sub_u32 s{sT}, s{sSTo}, {ARENA - 896}")
                e(f"s_cmp_eq_u32 s{sMT}, 0"); e(f"s_cselect_b32 s{sT}, {OOB}, s{sT}")
                e(f"v_lshrrev_b32 v{T0}, 7, v{vL16}"); e(f"v_and_b32 v{T1}, 0x70, v{vL16}"); e(f"v_lshl_add_u32 v{T0}, v{T0}, 10, v{T1}")
                for k in range(4):
                    e(f"buffer_load_dwordx4 v[{R+4*k}:{R+4*k+3}], v{T0}, s[{sWS}:{sWS+3}], s{sT} offen"); vm.issue("h")
                    e(f"s_add_u32 s{sT}, s{sT}, 8192")
            if s == 18:
                self.emit(self.finish_stats(AC, AC + 1)); self.emit(self.finish_stats(AC + 2, AC + 3))
                e(f"v_lshrrev_b32 v{T0}, 1, v{vL16}"); e(f"v_add_u32 v{T0}, {L_ST + 64}, v{T0}")
                e(f"v_sub_f32 v{AC}, 0, v{AC}"); e(f"v_sub_f32 v{AC+2}, 0, v{AC+2}")
                e(f"ds_write2_b32 v{T0}, v{AC}, v{AC+2} offset0:0 offset1:1"); e(f"ds_write2_b32 v{T0}, v{AC+1}, v{AC+3} offset0:144 offset1:145")
            if s == 22:
                self.wait(vm.need("h"))
                for r in range(4):
                    e(f"v_add_f32 v{R+r}, v{R+r}, v{R+4+r}"); e(f"v_add_f32 v{R+8+r}, v{R+8+r}, v{R+12+r}")
                for r in range(4): e(f"v_add_f32 v{R+r}, v{R+r}, v{R+8+r}")
                e("s_nop 1")
                for r in range(4): e(f"v_add_f32_dpp v{R+r}, v{R+r}, v{R+r} row_ror:8 row_mask:0xf bank_mask:0xf")
                self.emit(self.xred(list(range(R, R + 4)), list(range(R + 4, R + 8))))
            if s == 23:
                self.emit(self.finish_stats(R, R + 1)); self.emit(self.finish_stats(R + 2, R + 3))
                e(f"v_lshrrev_b32 v{T0}, 1, v{vL16}"); e(f"v_add_u32 v{T0}, {L_ST}, v{T0}")
                e(f"v_sub_f32 v{R}, 0, v{R}"); e(f"v_sub_f32 v{R+2}, 0, v{R+2}")
                e("s_mov_b64 exec, 0xff")
                e(f"ds_write2_b32 v{T0}, v{R}, v{R+2} offset0:0 offset1:1"); e(f"ds_write2_b32 v{T0}, v{R+1}, v{R+3} offset0:144 offset1:145")
                e("s_mov_b64 exec, -1")
        self.tr_flush(P)
        e("s_setprio 0")

    def y_w_g1g2g3a(self, vm):
        e = self.e; P = "YW"; T0, T1, T2, _ = self.YT; PT = self.YP
        self.wn = self.g4pre; self.wq = []; self.wlim = 38
        cu1 = [2, 5, 8, 11, 14, 17, 20, 23][:2 * (6 - self.g4pre)]
        jw = int(self.opt.get("jw", 28))
        e("s_setprio 1")
        for s in range(32):
            self.pb(P, ("G1", s), vm.need(("W", s + 1), ("Ah", (s + 1) // 2)) if s < 31 else None)
            if s == 6: self.apoll_issue(vm, (sFl, 4 * 2048 - 128), 16, 251)
            if s == 11: self.apoll_check(vm, (sFl, 4 * 2048 - 128), 16, 251, [(sLAY, 0), (sMT, 0)])
            if s & 1 and (s - 1) // 2 + 3 < 16: self.emit(self.g1h_issue(vm, (s - 1) // 2 + 3))
            self.run_period(self.w_take(vm, PT, 3 if s in cu1 else 2, s), [])
            if s == 8: self.emit(self.pat_g2(PT, T0, T1, T2))
            ks = [k for k in range(16) if jw + (k * (32 - jw)) // 16 == s]
            if ks:
                l = self.lab("jw")
                e(f"s_cmp_lg_u32 s{sLAY}, 0"); e(f"s_cbranch_scc1 {l}")
                for k in ks: self.emit(self.job_ld(222, 16 + 4 * k))
                self.label(l)
        assert self.wn == 38 and not self.wq, (self.wn, self.wq)
        e(f"v_lshlrev_b32 v{T0}, 7, v{vL16}")
        for k in range(2):
            e(f"s_add_u32 s{sT}, s{sRi}, {4 * k}"); e(f"s_and_b32 s{sT}, s{sT}, 15"); e(f"s_lshl_b32 s{sT}, s{sT}, 17"); e(f"s_add_u32 s{sT}, s{sT}, s{sGc}")
            e(f"buffer_load_dword v251, v{T0}, s[{sWO}:{sWO+3}], s{sT} offen"); vm.issue("t")
        self.read_mode(T0)
        for i in range(4): e(f"v_mov_b32 v{i}, -1")
        e(f"s_lshl_b32 s{sT}, s{sN4}, 14"); e(f"s_add_u32 s{sT}, s{sT}, s{sMb2}")
        e(f"s_add_u32 s{sT}, s{sT}, s{sOo}"); e(f"s_add_u32 s{sT}, s{sT}, {WS_P}")
        for i in range(8):
            if i == 4: e(f"s_add_u32 s{sT}, s{sT}, 4096")
            e(f"buffer_store_dwordx4 v[0:3], v{vL16}, s[{sWS}:{sWS+3}], s{sT} offen offset:{1024 * (i & 3)} sc0 sc1"); vm.issue("pf")
        self.emit(self.pat_g3a(PT, T0, T1, T2))
        self.emit(self.pat_g3b(PT, T0, T1, T2))
        npre = int(self.opt.get("g2pre", 3))
        sched = {1: [38], 3: [39]}
        for k in range(npre): sched.setdefault(min(int(self.opt.get("g2w", 13)) + k, 15), []).append(40 + k)
        self.wn = 40 + npre; self.wq = []; self.wlim = 78
        self.bar(P, ("G2", -2))
        self.wg_flags(self.FG(0), self.FL(0, 0))
        def spec():
            e(f"s_add_u32 s{sT}, s{sN4}, 1"); e(f"s_and_b32 s{sT}, s{sT}, 15"); e(f"s_lshl_b32 s{sT}, s{sT}, 14"); e(f"s_add_u32 s{sT}, s{sT}, s{sOo}"); e(f"s_add_u32 s{sT}, s{sT}, s{sMb2}")
            e(f"v_lshlrev_b32 v{T0}, 3, v{vL16}")
            e(f"buffer_load_dword v251, v{T0}, s[{sWS}:{sWS+3}], s{sT} offen sc0 sc1"); vm.issue("t")
        g2t = int(self.opt.get("g2t", 99))
        if g2t == -2: spec()
        self.pb(P, ("G2", -1), vm.need(("W", 32)))
        if g2t == -1: spec()
        for u in range(16):
            self.pb(P, ("G2", u), vm.need(("W", 32 + (u + 1) // 2)) if (u & 1 and u < 15) else None)
            for n in sched.get(u, []): self.emit(self.w_issue(vm, n, PT))
            if u == g2t: spec()
        l = self.lab("jw")
        e(f"s_cmp_lg_u32 s{sLAY}, 0"); e(f"s_cbranch_scc1 {l}")
        self.job_finish(16, 16, 8, 12)
        self.label(l)
        self.y_g3a("W", vm)

    def y_a_g2(self):
        e = self.e; P = "YA"; vm = VM(); T0, T1, T2, _ = self.YT
        e(f"s_lshl_b32 s{sMb}, s{sWM}, 13"); e(f"s_add_u32 s{sGb}, s{sOo}, s{sMb}")
        e(f"s_lshl_b32 s{sRi}, s{sN4}, 14")
        self.bar(P, ("G2", -2))
        self.emit(self.a_issue(vm, ("A", 0), 0, sGb, None))
        self.pb(P, ("G2", -1), 0)
        self.poll_flags(self.FL(0, 0), 8); vm.clear()
        for u in range(1, 3): self.emit(self.a_issue(vm, ("A", u), u, sGb, None))
        for u in range(16):
            self.pb(P, ("G2", u), vm.need(("A", u + 1)) if u < 15 else None)
            if u == 3: self.apoll_issue(vm, self.FG(0), 16, 251)
            if u == 5: self.apoll_check(vm, self.FG(0), 16, 251)
            if u + 3 < 16: self.emit(self.a_issue(vm, ("A", u + 3), u % 3, sGb, None))
        self.y_g3a("A", vm)

    def b3(self, mat, t, rt): return ((mat * 3 + t) * 4 + rt) * 4
    VBX, VBW, YRL, YI2 = 176, 177, 184, 188

    def y_g3a(self, role, vm):
        e = self.e; P = "Y" + role; T0, T1, T2, T3 = self.YT; PT = self.YP
        R = 96; AC = 192; NM = 196; CS = 96
        e("s_setprio 1")
        if role == "A":
            e(f"s_add_u32 s{sGb}, s{sXm}, s{sMb}")
            e(f"s_lshl_b32 s{sRi}, s{sN4}, 14")
        self.bar(P, ("G3A", -2))
        if role == "A":
            self.emit(self.a_issue(vm, ("A", 0), 0, sGb, None))
            self.pb(P, ("G3A", -1), 0); vm.clear()
            self.apoll_issue(vm, self.FL(0, 32), 8, 251)
        else:
            self.wg_flags(self.FG(1), self.FL(0, 32))
            self.pb(P, ("G3A", -1), vm.need(("W", 40)))
        work = self.stat_regs(R, NM, self.YRL, self.YI2, T0)
        work += [f"v_lshrrev_b32 v{T0}, 8, v{vL16}", f"v_lshlrev_b32 v{T0}, 4, v{T0}", f"v_add_u32 v{T0}, {L_CSB}, v{T0}",
                 f"s_lshl_b32 s{sT}, s{sWN}, 8", f"v_add_u32 v{T1}, s{sT}, v{T0}", f"s_lshl_b32 s{sT}, s{sWN}, 6", f"v_add_u32 v{T0}, s{sT}, v{T0}"]
        for mat in range(2):
            for t in range(3):
                c = CS + (mat * 3 + t) * 4
                work.append(f"ds_read_b128 v[{c}:{c+3}], v{T1 if t < 2 else T0} offset:{mat * 512 + 64 * t}")
        work.append("s_waitcnt lgkmcnt(0)")
        for mat in range(2):
            for t in range(3):
                for rt in range(4):
                    work += [f"v_mul_f32 v{self.b3(mat,t,rt)+r}, v{NM+rt}, v{CS+(mat*3+t)*4+r}" for r in range(4)]
        vW = self.VBW
        work += [f"s_lshl_b32 s{sT}, s{sWM}, 13", f"s_add_u32 s{sT}, s{sT}, {LA}", f"v_add_u32 v{self.VBX}, s{sT}, v{vL16}",
                 f"v_lshrrev_b32 v{T0}, 6, v{vL16}", f"v_mul_u32_u24 v{T0}, 192, v{T0}",
                 f"v_and_b32 v{T1}, 0x30, v{vL16}", f"v_lshrrev_b32 v{T1}, 1, v{T1}", f"v_add_u32 v{T0}, v{T0}, v{T1}",
                 f"v_lshrrev_b32 v{T1}, 8, v{vL16}", f"v_and_b32 v{T1}, 1, v{T1}",
                 f"s_lshl_b32 s{sT}, s{sWN}, 2", f"v_xor_b32 v{T2}, s{sT}, v{T1}", f"v_lshl_add_u32 v{vW}, v{T2}, 5, v{T0}",
                 f"v_xor_b32 v{T2}, 1, v{T2}", f"v_lshl_add_u32 v{vW+1}, v{T2}, 5, v{T0}",
                 f"s_add_u32 s{sT}, s{sWN}, 2", f"v_xor_b32 v{T2}, s{sT}, v{T1}", f"v_lshl_add_u32 v{vW+2}, v{T2}, 5, v{T0}"]
        work += [f"v_add_u32 v{vW+3+t}, {3 * WSLOT}, v{vW+t}" for t in range(3)]
        work = self.costed(work)
        c0 = 22; S0 = 8; C1 = 13
        for s in range(32):
            need = [("W", 40 + s + 1)] if role == "W" else ([("A", (s + 1) // 2)] if s & 1 else [])
            self.pb(P, ("G3A", s), vm.need(*need) if need else None, 0)
            items = []
            if role == "W":
                dm = self.w_take(vm, PT, 3 if s in (2, 5, 7, 14, 16, 18, 20, 21) else 2, 40 + s)
            else:
                dm = []
                if s == 0:
                    self.apoll_check(vm, self.FL(0, 32), 8, 251)
                    for u in range(1, 3): self.emit(self.a_issue(vm, ("A", u), u, sGb, None))
                if s == 2: self.wg_flag_if(0, self.FG(6))
                if s == S0 - 2: self.apoll_issue(vm, self.FG(6), 16, 251)
                if s == S0:
                    self.apoll_check(vm, self.FG(6), 16, 251)
                    e(f"v_and_b32 v{T2}, 0x1f0, v{vL16}"); e(f"v_and_b32 v{T3}, 0x200, v{vL16}"); e(f"v_lshl_add_u32 v{T3}, v{T3}, 1, v{T2}")
                    e(f"s_lshl_b32 s{sGc}, s{sWM}, 9"); e(f"s_add_u32 s{sGc}, s{sGc}, s{sSTm}")
                if 1 <= s <= 30:
                    idx = (s - 1) // 2 + 3; part = (s - 1) & 1
                    dm = self.lazy(vm, lambda v: self.a_issue(v, ("A", idx), idx % 3, sGb, None if idx < 16 else (idx % 16) * 16384, part))
                if S0 <= s < S0 + 4:
                    for k in range(4 * (s - S0), 4 * (s - S0 + 1)):
                        def ld(k=k):
                            if k % 2 == 0: e(f"s_add_u32 s{sT}, s{sGc}, {2048 * k}")
                            e(f"buffer_load_dwordx4 v[{R+4*k}:{R+4*k+3}], v{T3}, s[{sWS}:{sWS+3}], s{sT} offen offset:{2048 * (k % 2)}"); vm.issue(("S", k))
                        items.append(ld)
                if S0 + 4 <= s < S0 + 8:
                    self.wait(vm.need(("S", 4 * (s - S0 - 4) + 3)))
                    for k in range(4 * (s - S0 - 4), 4 * (s - S0 - 3)):
                        items += [f"v_mov_b32 v{AC+r}, v{R+r}" if k == 0 else f"v_add_f32 v{AC+r}, v{AC+r}, v{R+4*k+r}" for r in range(4)]
                if s == S0 + 8:
                    items += self.xred(list(range(AC, AC + 4)), list(range(R, R + 4)), steps=("v_permlane32_swap_b32",))
                if s == S0 + 9: items += self.finish_stats(AC, AC + 1)
                if s == S0 + 10:
                    items += self.finish_stats(AC + 2, AC + 3)
                    items += [[f"s_lshl_b32 s{sT}, s{sWM}, 9", f"s_add_u32 s{sT}, s{sT}, {L_ST}", f"v_add_u32 v{T2}, s{sT}, v{T2}", f"ds_write_b128 v{T2}, v[{AC}:{AC+3}]"]]
                CT = 160
                if s == C1: self.apoll4_issue(vm, 1, CT)
                if s == C1 + 2:
                    self.apoll4_check(vm, 1, CT, [(sLAY, 1)])
                    l = self.lab("cs")
                    e(f"s_cmp_lg_u32 s{sLAY}, 0"); e(f"s_cbranch_scc1 {l}")
                    e(f"s_and_b32 s{sT}, s{sNT}, 1"); e(f"s_mul_i32 s{sT2}, s{sT}, 384")
                    e(f"s_xor_b32 s{sT}, s{sT}, 1"); e(f"s_lshl_b32 s{sT}, s{sT}, 9")
                    e(f"s_cmp_eq_u32 s{sWM}, 0"); e(f"s_cselect_b32 s{sT}, s{sT2}, s{sT}")
                    e(f"s_mul_i32 s{sT2}, s{sNT}, 896"); e(f"s_add_u32 s{sT}, s{sT}, s{sT2}"); e(f"s_add_u32 s{sT}, s{sT}, {WS_CS13}")
                    e(f"v_lshrrev_b32 v{T0}, 9, v{vL16}"); e(f"v_mul_u32_u24 v{T0}, 14336, v{T0}"); e(f"v_and_b32 v{T1}, 0x1f0, v{vL16}"); e(f"v_add_u32 v{T0}, v{T0}, v{T1}")
                    for k in range(6):
                        e(f"buffer_load_dwordx4 v[{CT+4*k}:{CT+4*k+3}], v{T0}, s[{sWS}:{sWS+3}], s{sT} offen sc1")
                        e(f"s_add_u32 s{sT}, s{sT}, 28672")
                    self.label(l)
                    self.ct_after = ("A", (s - 1) // 2 + 3)
                if s == C1 + 6:
                    assert self.ct_after not in vm.ops
                    l = self.lab("cs")
                    e(f"s_cmp_lg_u32 s{sLAY}, 0"); e(f"s_cbranch_scc1 {l}")
                    for k in range(1, 6):
                        for r in range(4): e(f"v_add_f32 v{CT+r}, v{CT+r}, v{CT+4*k+r}")
                    e(f"s_lshl_b32 s{sT}, s{sWM}, 10"); e(f"s_add_u32 s{sT}, s{sT}, {L_CSA}"); e(f"v_add_u32 v{T0}, s{sT}, v{vL16}")
                    e(f"ds_write_b128 v{T0}, v[{CT}:{CT+3}]")
                    self.label(l)
            if role == "W" and s == 5:
                l = self.lab("cf")
                e(f"s_cmp_lg_u32 s{sLAY}, 0"); e(f"s_cbranch_scc1 {l}"); e(f"s_cmp_lg_u32 s{sLW}, 2"); e(f"s_cbranch_scc1 {l}")
                self.side_flag(1)
                self.label(l)
            if role == "W" and 6 <= s < 22 and s % 2 == 0:
                l = self.lab("w2")
                e(f"s_lshl_b32 s{sT}, s{sLAY}, 4"); e(f"s_lshr_b32 s{sT2}, s{sMT}, 1"); e(f"s_add_u32 s{sT}, s{sT}, s{sT2}")
                e(f"s_cmp_lg_u32 s{sT}, {(s - 6) // 2}"); e(f"s_cbranch_scc1 {l}")
                e(f"v_lshlrev_b32 v{T0}, 3, v{vL16}"); e(f"s_lshl_b32 s{sT}, s2, 1"); e(f"s_add_u32 s{sT}, s{sT}, s{sWM}"); e(f"s_lshl_b32 s{sT}, s{sT}, 14")
                e(f"buffer_load_dword v251, v{T0}, s[{sW2}:{sW2+3}], s{sT} offen")
                e(f"s_add_u32 s{sT}, s{sT}, 8192")
                e(f"buffer_load_dword v251, v{T0}, s[{sW2}:{sW2+3}], s{sT} offen")
                self.label(l)
            if s >= c0: items += self.chunk(work, float(self.opt.get("budC", 20)) if s < 30 else 1e9)
            self.run_period(dm, items)
        assert not work
        self.tr_flush(P)
        if role == "A": self.wait(0)
        else:
            assert self.wn == 78 and not self.wq and vm.ops == [("W", n) for n in range(73, 78) for _ in range(6)], vm.ops
        e("s_setprio 0")

    def y_g3b(self):
        e = self.e; P = "Y"
        XF, WF = 96, 128
        vXa, vWa = self.VBX, self.VBW
        T0, T1, vTo = 192, 193, 194
        def xf(b, rt): return XF + b * 16 + rt * 4
        def wf(b, mat, t): return WF + b * 24 + (mat * 3 + t) * 4
        def reads(s):
            b = s & 1; sl = (72 + s) % 6
            xr = [f"ds_read_b128 v[{xf(b,rt)}:{xf(b,rt)+3}], v{vXa} offset:{((16 + (s >> 1)) % 3) * 16384 + rt * 2048 + (s & 1) * 1024}" for rt in range(4)]
            wr = []
            for t in range(3):
                for mat in range(2):
                    r = wf(b, mat, t); ad = vWa + 3 * (sl // 3) + t; off = (sl % 3) * WSLOT + mat * 6144
                    wr += [f"ds_read_b64_tr_b16 v[{r}:{r+1}], v{ad} offset:{off}", f"ds_read_b64_tr_b16 v[{r+2}:{r+3}], v{ad} offset:{off + 3072}"]
            return wr[0:2] + xr + wr[2:]
        def mf(s):
            b = s & 1
            return [mfma(self.b3(mat, t, rt), wf(b, mat, t), xf(b, rt)) for t in range(3) for mat in range(2) for rt in range(4)]
        self.emit(reads(0))
        e(f"s_lshr_b32 s{sT}, s{sNT}, 3"); e(f"s_mul_i32 s{sT}, s{sT}, {28 * 16384}"); e(f"s_add_u32 s{sT}, s{sT}, s{sHo}")
        e(f"s_lshl_b32 s{sT2}, s{sWM}, 13"); e(f"s_add_u32 s{sT}, s{sT}, s{sT2}")
        e(f"s_and_b32 s{sT2}, s{sNT}, 7"); e(f"s_add_u32 s{sT2}, s{sT2}, 16"); e(f"s_lshl_b32 s{sT2}, s{sT2}, 14"); e(f"s_add_u32 s{sGh}, s{sT}, s{sT2}")
        e(f"s_lshl_b32 s{sT2}, s{sWN}, 10"); e(f"s_add_u32 s{sGh}, s{sGh}, s{sT2}")
        e(f"s_and_b32 s{sT2}, s{sNT}, 6"); e(f"s_add_u32 s{sT2}, s{sT2}, 48"); e(f"s_lshl_b32 s{sT2}, s{sT2}, 13"); e(f"s_add_u32 s{sSu}, s{sT}, s{sT2}")
        e(f"s_and_b32 s{sT2}, s{sNT}, 1"); e(f"s_lshl_b32 s{sT2}, s{sT2}, 10"); e(f"s_add_u32 s{sSu}, s{sSu}, s{sT2}")
        def fn(s, ex):
            extra = []
            if ex: extra.append((20, self.CNT))
            self.step(P, ("G3B", s), mf(s), reads(s + 1) if s < 31 else [], vmw=(6 * (4 - s) if s < 5 else None), last=17, extra=extra)
        self.looped(P, 32, 6, fn)

    def y_g4(self, role):
        e = self.e; P = "Y" + role; vm = VM(); T0, T1, T2, _ = self.YT; PT = self.YP
        E, OUT = 96, 100
        e("s_setprio 1")
        if role == "A":
            e(f"s_and_b32 s{sT}, s{sN4}, 1"); e(f"s_mul_i32 s{sT}, s{sT}, {28 * 16384}"); e(f"s_add_u32 s{sGb2}, s{sHo}, s{sT}"); e(f"s_add_u32 s{sGb2}, s{sGb2}, s{sMb}")
            self.emit(self.a_issue(vm, ("A", 2), 34 % 3, sGb2, 2 * 16384))
        else:
            self.emit(self.pat_g4(PT, T0, T1, T2))
        work = []
        for rt in range(4):
            O = OUT + 4 * (rt & 1)
            for t in range(2):
                work += self.silu_group(self.b3(0, t, rt), self.b3(1, t, rt), E, self.YRL + rt, self.YI2 + rt, O + 2 * t)
            def st(rt=rt, O=O):
                vm.issue(("H", 0))
                e(f"s_add_u32 s{sT}, s{sGh}, {rt * 2048}")
                e(f"buffer_store_dwordx4 v[{O}:{O+3}], v{vL16}, s[{sWS}:{sWS+3}], s{sT} offen sc0 sc1")
            work.append(st)
        work.append(("FLAG", 0))
        SND, KP, vX = 108, 112, 120
        send = (2, 3) if role == "A" else (0, 1); keep = (0, 1) if role == "A" else (2, 3); own = 0 if role == "A" else 2
        work += [f"v_lshrrev_b32 v{vX}, 1, v{vL16}", f"s_lshl_b32 s{sT}, s{sWM}, 11", f"s_add_u32 s{sT}, s{sT}, {L_TR}", f"v_add_u32 v{vX}, s{sT}, v{vX}"]
        for k, rt in enumerate(send):
            work += self.silu_group(self.b3(0, 2, rt), self.b3(1, 2, rt), E, self.YRL + rt, self.YI2 + rt, SND + 2 * k)
            work.append(f"ds_write_b64 v{vX}, v[{SND+2*k}:{SND+2*k+1}] offset:{512 * rt}")
        work.append("s_waitcnt lgkmcnt(0)")
        work.append(("MARK", 0))
        for k, rt in enumerate(keep):
            work += self.silu_group(self.b3(0, 2, rt), self.b3(1, 2, rt), E, self.YRL + rt, self.YI2 + rt, KP + 4 * k + own)
        work.append(("GATE", 0))
        for k, rt in enumerate(keep):
            work.append(f"ds_read_b64 v[{KP+4*k+2-own}:{KP+4*k+3-own}], v{vX} offset:{512 * rt}")
        work.append("s_waitcnt lgkmcnt(0)")
        for k, rt in enumerate(keep):
            def st(rt=rt, O=KP + 4 * k):
                vm.issue(("H", 1))
                e(f"s_add_u32 s{sT}, s{sSu}, {rt * 2048}")
                e(f"buffer_store_dwordx4 v[{O}:{O+3}], v{vL16}, s[{sWS}:{sWS+3}], s{sT} offen sc0 sc1")
            work.append(st)
        work.append(("FLAG", 1))
        work = self.costed(work)
        if role == "W":
            work += self.costed(self.pat_g1(PT, T0, T1, T2, False) + [[f"s_cmp_eq_u32 s{sLAY}, 0", f"s_cselect_b32 s{sGb}, s{sGb}, {OOB}"]])
        budget = float(self.opt.get("budY", 34))
        lag = int(self.opt.get("lagYW", 3)) if role == "W" else int(self.opt.get("lagYA", 3))
        e("s_nop 7")
        self.run_period([], self.chunk(work, float(self.opt.get("budY0", 16))))
        pend = []; done = None
        for u in range(28):
            need = [("W", 104 + u + 1)] if role == "W" else [("A", u + 1)]
            if u == 27: need = []
            ready = [b for b, p in pend if p <= u]
            n = vm.need(*(need + [("H", b) for b in ready]))
            self.pb(P, ("G4", u), n)
            for b in ready:
                self.emit(self.flag_set(self.FL(1, 64 + 32 * b))); vm.issue("flag")
            pend = [(b, p) for b, p in pend if p > u]
            if role == "W":
                if u == 22: assert not work
                dm = self.lazy(vm, lambda v: self.w_issue(v, 104 + u + 6, PT)) if u < 22 else []
                if u >= 28 - self.g4pre: dm = self.lazy(vm, lambda v: self.w_issue(v, 132 + u - (28 - self.g4pre), PT))
            else:
                dm = []
                if u + 4 in (8, 16, 24):
                    self.apoll_issue(vm, self.FL(1, 4 * (u + 4)), 8, 251)
                if u + 3 in (8, 16, 24):
                    self.apoll_check(vm, self.FL(1, 4 * (u + 3)), 8, 251)
                if u + 3 < 28: dm = self.lazy(vm, lambda v: self.a_issue(v, ("A", u + 3), (32 + u + 3) % 3, sGb2, (u + 3) * 16384))
            items = []
            gate = int(self.opt.get("gate", 13))
            its = self.chunk(work, budget) if work and not (work[0][1] == ("GATE", 0) and u < gate) else []
            if ("GATE", 0) in its[1:] and u < gate:
                k = its.index(("GATE", 0)); work[0:0] = self.costed(its[k:]); its = its[:k]
            for it in its:
                if it == ("GATE", 0): continue
                if it == ("MARK", 0):
                    assert u < gate, u
                    continue
                if isinstance(it, tuple) and it and it[0] == "FLAG":
                    assert u + lag <= (13, 21)[it[1]]
                    pend.append((it[1], u + lag)); self.info.append(f"G4 Y{role}: flag {it[1]} work done in period {u}")
                else: items.append(it)
            self.run_period(dm, items)
        assert not work and not pend
        self.tr_flush(P); self.tr_dump("Y")
        e("s_setprio 0")
        return vm

    def next_layer(self):
        e = self.e
        e(f"s_mov_b32 s{sLAY}, 1")
        e(f"s_add_u32 s{sOo}, s{sOo}, {256 * KB}"); e(f"s_add_u32 s{sXm}, s{sXm}, {512 * KB}"); e(f"s_add_u32 s{sHo}, s{sHo}, {896 * KB}")
        e(f"s_add_u32 s{sSTm}, s{sSTm}, {64 * KB}"); e(f"s_add_u32 s{sFl}, s{sFl}, {32 * KB}"); e(f"s_add_u32 s{sFL}, s{sFL}, {32 * KB}")

    def far(self, target):
        self.e(f"s_branch {target}")

    def gen(self, name):
        e = self.e; a = self.a; self.info = []
        kernel_header(a, name)
        e("s_cmp_ge_u32 s2, 256"); e("s_cbranch_scc0 K_go"); e("s_endpgm")
        self.label("K_go")
        K = sAT
        e(f"s_load_dwordx4 s[{K}:{K+3}], s[0:1], 0")
        e(f"s_load_dwordx2 s[{K+4}:{K+5}], s[0:1], 16")
        e(f"s_load_dwordx8 s[{K+8}:{K+15}], s[0:1], 32")
        e(f"s_load_dwordx4 s[{K+16}:{K+19}], s[0:1], 64")
        e("v_lshrrev_b32 v1, 6, v0"); e(f"v_and_b32 v{vL16}, 63, v0")
        e(f"v_readfirstlane_b32 s{sWAVE}, v1")
        e(f"v_lshlrev_b32 v{vL16}, 4, v{vL16}")
        e(f"v_mov_b32 v{vTS}, 0")
        e(f"s_and_b32 s{sT}, s2, 6"); e(f"s_lshl_b32 s{sT}, s{sT}, 1"); e(f"s_lshr_b32 s{sT2}, s2, 3"); e(f"s_and_b32 s{sT2}, s{sT2}, 3")
        e(f"s_add_u32 s{sMT}, s{sT}, s{sT2}")
        e(f"s_and_b32 s{sT}, s2, 1"); e(f"s_lshr_b32 s{sT2}, s2, 5")
        e(f"s_lshl_b32 s{sNT}, s{sT}, 3"); e(f"s_add_u32 s{sNT}, s{sNT}, s{sT2}")
        e(f"s_lshl_b32 s{sN4}, s{sT2}, 1"); e(f"s_add_u32 s{sN4}, s{sN4}, s{sT}")
        e(f"s_and_b32 s{sLW}, s{sWAVE}, 3"); e(f"s_and_b32 s{sWM}, s{sWAVE}, 1"); e(f"s_lshr_b32 s{sWN}, s{sLW}, 1")
        e(f"s_mov_b32 s{sMODE}, 1"); e(f"s_mov_b32 s{sLAY}, 0")
        e(f"s_lshl_b32 s{sOo}, s{sMT}, 22"); e(f"s_add_u32 s{sXm}, s{sOo}, {WS_X1}"); e(f"s_add_u32 s{sX2}, s{sOo}, {WS_X1 + 256 * KB}")
        e(f"s_add_u32 s{sHo}, s{sOo}, {WS_H}")
        e(f"s_add_u32 s{sSTm}, s{sOo}, {WS_ST}"); e(f"s_add_u32 s{sSTo}, s{sSTm}, {32 * KB}")
        e(f"s_lshl_b32 s{sFl}, s{sMT}, 7"); e(f"s_add_u32 s{sFl}, s{sFl}, {WS_FL}")
        e("s_waitcnt lgkmcnt(0)")
        make_srd(a, sWS, K + 18, K + 19, 256 * MB)
        make_srd(a, sQKV, K + 2, K + 3, 1024 * 6144)
        make_srd(a, sX0, K, K + 1, 4 * MB)
        make_srd(a, sWO, K + 4, K + 5, 1024 * 2048)
        e(f"s_cmp_eq_u32 s{sWM}, 0")
        e(f"s_cselect_b32 s{sW13}, s{K+8}, s{K+10}"); e(f"s_cselect_b32 s{sW13+1}, s{K+9}, s{K+11}")
        e(f"s_mov_b32 s{sW13+2}, {1024 * 7168}"); e(f"s_mov_b32 s{sW13+3}, 0x00020000")
        make_srd(a, sW2, K + 12, K + 13, 3584 * 2048)
        make_srd(a, sOUT, K + 14, K + 15, 4 * MB)
        make_srd(a, sDBG, K + 16, K + 17, 256)
        make_srd(a, sA1, K, K + 1, 4 * MB)
        e(f"s_and_b32 s{sT}, s2, 1"); e(f"s_lshl_b32 s{sT}, s{sT}, 13"); e(f"s_add_u32 s{sT}, s{sT}, {16 * KB}"); e(f"s_add_u32 s{sFL}, s{sFl}, s{sT}")
        self.ts(15)
        e(f"s_cmp_lt_u32 s{sWAVE}, 4"); e("s_cbranch_scc1 X_start")
        e(f"s_cmp_lt_u32 s{sLW}, 2"); e("s_cbranch_scc1 YA_start")
        vmW = VM()
        self.emit(self.pat_g1(self.YP, *self.YT[:3], True))
        self.emit(self.w_issue(vmW, 0, self.YP))
        self.g1a_setup(True, True)
        for n in range(self.g4pre):
            if n: self.emit(self.w_issue(vmW, n, self.YP))
            if n < 3: self.emit(self.g1h_issue(vmW, n))
        self.job_setup(222, True)
        self.wait(vmW.need(("W", 0), ("Ah", 0)))
        e("s_branch YW_b")
        self.label("YA_start")
        self.g1a_setup(True)
        e(f"s_cmp_eq_u32 s{sLW}, 1"); e("s_cbranch_scc1 YS_start")
        vmA = VM(); self.a0_first_units(vmA); e("s_branch YA0_b")
        self.label("YS_start")
        vmS = VM(); self.side_first_units(vmS); e("s_branch YS_first")
        self.label("X_start")
        self.x_prep()
        self.label("X_layer")
        self.x_g1(); self.x_g2(); self.x_g3a()
        e(f"s_cmp_ge_u32 s{sLW}, 2"); e("s_cbranch_scc1 X_w")
        self.x_g3b("A"); e("s_branch X_g4")
        self.label("X_w"); self.x_g3b("W")
        self.label("X_g4"); self.x_g4()
        e(f"s_cmp_lg_u32 s{sLAY}, 0"); e("s_cbranch_scc1 X_fin")
        self.res_epilogue(self.a4, None, sX2, sSTo, 236, 226, sN4); self.bars["X"].append(("G4", 99))
        self.next_layer()
        e("s_branch X_layer")
        self.label("X_fin")
        self.x_final()
        if self.opt.get("ts"):
            e("s_waitcnt vmcnt(0)")
            self.ts(24)
            e(f"s_lshl_b32 s{sT}, s2, 2"); e(f"s_add_u32 s{sT}, s{sT}, s{sLW}"); e(f"s_lshl_b32 s{sT}, s{sT}, 8"); e(f"s_add_u32 s{sT}, s{sT}, {WS_TS}")
            e(f"v_lshrrev_b32 v1, 2, v{vL16}")
            e(f"buffer_store_dword v{vTS}, v1, s[{sWS}:{sWS+3}], s{sT} offen")
        e("s_endpgm")
        self.label("YS_first")
        self.side_first("YS", vmS); self.read_mode(self.YT[0]); e("s_branch YA_g2")
        self.label("YA_layer")
        self.g1a_setup(False); self.g1_wait_inputs(False)
        e(f"s_cmp_eq_u32 s{sLW}, 1"); e("s_cbranch_scc1 YS_g1")
        self.a0_first_units(VM())
        self.label("YA0_b")
        self.y_g1_a0(vmA); e("s_branch YA_g2")
        self.label("YS_g1")
        vm = VM(); self.side_first_units(vm); self.side_second("YS2", vm)
        assert self.bars["YS"] == self.bars["YS2"]
        self.label("YA_g2"); self.y_a_g2()
        e("s_branch Y_g3b")
        self.label("YW_layer")
        self.g1a_setup(False, True); self.g1_wait_inputs(True)
        for u in range(3): self.emit(self.g1h_issue(VM(), u))
        e("s_waitcnt vmcnt(0)")
        self.label("YW_b")
        self.pb("YW", ("G1", -1))
        self.y_w_g1g2g3a(vmW)
        self.label("Y_g3b"); self.y_g3b()
        e(f"s_cmp_ge_u32 s{sLW}, 2"); e("s_cbranch_scc1 YW_g4")
        self.y_g4("A")
        e(f"s_cmp_lg_u32 s{sLAY}, 0"); e("s_cbranch_scc1 K_end")
        self.next_layer(); self.bars["YA"].append(("G4", 99)); e("s_branch YA_layer")
        self.label("YW_g4")
        vm = self.y_g4("W")
        e(f"s_cmp_lg_u32 s{sLAY}, 0"); e("s_cbranch_scc1 K_end")
        self.next_layer(); self.bars["YW"].append(("G4", 99)); e("s_branch YW_layer")
        self.label("K_end")
        e("s_endpgm")
        B = self.bars
        def ph(p, *names): return [x for x in B[p] if x[0] in names]
        ref = ph("X", "G1", "G2", "G3A") + ph("XA", "G3B") + ph("X", "G4")
        assert B["XA"] == B["XW"] == B["Y"], "G3B barriers"
        for seq in (B["YA0"] + ph("YA", "G2", "G3A") + B["Y"] + ph("YA", "G4"), B["YS"] + ph("YA", "G2", "G3A") + B["Y"] + ph("YA", "G4"),
                    ph("YW", "G1", "G2", "G3A") + B["Y"] + ph("YW", "G4")):
            assert seq == ref, (seq, ref)
        kernels.append((name, 256, 102))
        return a.text()


def full(opt):
    kernels.clear()
    g = Gen(opt)
    if opt.get("list"):
        t = build([("mega_kernel", 256, 512, 163840)], [g.gen("mega_kernel")])
    else:
        KN = NAME + "_kernel"
        t = build([(KN, 256, 512, 163840)], [g.gen(KN)], single=True)
    for x in g.info: print(x, file=sys.stderr)
    return t

if __name__ == "__main__":
    opt = parse_opts(sys.argv[2:])
    open(sys.argv[1], "w").write(full(opt))
```

```python
import sys, re
from common import *

KB = 1024
ARENA = 4 * MB
WS_O = 0
WS_X1 = 512 * KB
WS_P = 1280 * KB
WS_ST = 1792 * KB
WS_H = 2 * MB
WS_RT = 64 * MB
WS_ST0 = 67 * MB
WS_CSQ = 67 * MB + 256 * KB
WS_CS13 = 67 * MB + 512 * KB
WS_FL = 68 * MB
WS_SF = 68 * MB + 256 * KB
WS_TS = 69 * MB
OOB = 0x7f000000
POLL = 0x40000
WSLOT = 16384
LA = 98304
L_SG = LA + 49152
L_SS = L_SG + 8192
L_ST = 159744
L_CSQ = L_ST + 1152
L_CSA = L_CSQ + 768
L_CSB = L_CSA + 1024
L_MODE = L_CSB + 1024
sFL = 0
sTile = 1
sWAVE = 3
sWS, sQKV, sWO, sW13, sW2, sX0, sOUT, sDBG, sA1 = 4, 8, 12, 16, 20, 24, 28, 32, 36
sMT, sNT, sLW, sWM, sWN, sMODE, sLAY = 40, 41, 42, 43, 44, 45, 46
sOo, sX2, sXm, sHo, sN4, sSTm, sSTo, sFl = 47, 48, 49, 50, 51, 52, 53, 54
sT, sT2, sT3, sCnt = 55, 56, 57, 58
sD0, sD1 = 59, 60
sM3, sM4 = 61, 62
sB1, sB2, sB3, sB4, sB5, sB6, sB7 = 63, 64, 65, 66, 67, 68, 69
sEX = 70
sAT = 72
sGa, sGh, sGs, sSu, sDa, sRw, sRa, sHx = 88, 89, 90, 91, 92, 93, 94, 95
sTS = 96
vL16, vTS = 254, 255
vF0, vF1 = 252, 253
EPS_BITS = 0x3727c5ac

def uord(t):
    return 2 * t if t < 8 else 2 * (t - 8) + 1
BORD = [13, 14, 15] + list(range(13))

class VM:
    def __init__(self): self.ops = []
    def issue(self, tag): self.ops.append(tag)
    def need(self, *tags):
        last = -1
        for i, t in enumerate(self.ops):
            if t in tags: last = i
        n = len(self.ops) - 1 - last
        if last < 0: return None
        self.ops = self.ops[last + 1:]
        return n
    def clear(self): self.ops = []


class Gen:
    def __init__(self, opt):
        self.opt = opt
        self.a = Asm()
        self.nlab = 0
        self.bars = {}
        self.trp = {}
    def e(self, s): self.a.e(s)
    def lab(self, p="L"):
        self.nlab += 1
        return f"{p}_{self.nlab}"
    def label(self, l): self.a.label(l)
    def al(self): self.a.raw("    .p2align 3")
    def bar(self, path, name):
        self.bars.setdefault(path, []).append(name)
        self.e("s_barrier")
    PH0 = {"G1": 1, "G2": 34, "G3A": 51, "G3B": 83, "G4": 115}
    def tr_flush(self, path):
        p = self.trp.pop(path[0], None)
        if p is None: return
        l = self.lab("tr")
        self.e("s_waitcnt lgkmcnt(0)")
        self.e(f"s_cmp_lg_u32 s{sLAY}, {int(self.opt['trace'])}"); self.e(f"s_cbranch_scc1 {l}")
        for k in range(3):
            if path[0] == "X": i = p[1] * 3 + k; reg = 233 + i // 64
            else: i = (self.PH0[p[0]] + p[1]) * 3 + k; reg = 228 + i // 64
            self.e(f"v_writelane_b32 v{reg}, s{96 + 2 * k}, {i % 64}")
        self.label(l)
    def pb(self, path, name, vm=None, lgkm=None):
        tr = self.opt.get("trace") is not None
        if tr:
            if path[0] not in self.trp: self.e("s_waitcnt lgkmcnt(0)")
            self.tr_flush(path)
            self.e("s_memtime s[96:97]")
            lgkm = None
        self.wait(vm, lgkm)
        if tr: self.e("s_memtime s[98:99]")
        self.bar(path, name)
        if tr:
            self.e("s_memtime s[100:101]")
            self.trp[path[0]] = name
    def tr_dump(self, grp):
        if self.opt.get("trace") is None: return
        e = self.e; l = self.lab("td")
        e(f"s_cmp_lg_u32 s{sLAY}, {int(self.opt['trace'])}"); e(f"s_cbranch_scc1 {l}")
        e(f"s_lshl_b32 s{sT}, s2, 3"); e(f"s_add_u32 s{sT}, s{sT}, s{sWAVE}"); e(f"s_lshl_b32 s{sT}, s{sT}, 11"); e(f"s_add_u32 s{sT}, s{sT}, {WS_TS + MB}")
        e(f"v_lshrrev_b32 v{vF0}, 2, v{vL16}")
        for k in range(2 if grp == "X" else 7):
            e(f"buffer_store_dword v{(233 if grp == 'X' else 228) + k}, v{vF0}, s[{sWS}:{sWS+3}], s{sT} offen offset:{256 * k}")
        self.label(l)
    def wait(self, vm=None, lgkm=None):
        p = []
        if vm is not None:
            assert vm <= 63
            p.append(f"vmcnt({vm})")
        if lgkm is not None: p.append(f"lgkmcnt({lgkm})")
        if p: self.e("s_waitcnt " + " ".join(p))
    def ts(self, k):
        if self.opt.get("ts"):
            self.e(f"s_memrealtime s[{sTS}:{sTS+1}]")
            self.e(f"s_lshl_b32 s{sT3}, s{sLAY}, 5")
            self.e(f"s_add_u32 m0, s{sT3}, {k}")
            self.e("s_waitcnt lgkmcnt(0)")
            self.e(f"v_writelane_b32 v{vTS}, s{sTS}, m0")
    def tsc(self, k):
        if self.opt.get("ts"):
            self.e(f"s_memtime s[{sTS}:{sTS+1}]")
            self.e(f"s_lshl_b32 s{sT3}, s{sLAY}, 5")
            self.e(f"s_add_u32 m0, s{sT3}, {k}")
            self.e("s_waitcnt lgkmcnt(0)")
            self.e(f"v_writelane_b32 v{vTS}, s{sTS}, m0")

    def lanes(self, vL, vG=None, vI=None):
        self.e(f"v_lshrrev_b32 v{vL}, 4, v{vL16}")
        if vG is not None: self.e(f"v_lshrrev_b32 v{vG}, 8, v{vL16}")
        if vI is not None: self.e(f"v_and_b32 v{vI}, 15, v{vL}")

    def store(self, instr):
        l1, l2 = self.lab("st"), self.lab("st")
        return [f"s_cmp_eq_u32 s{sMODE}, 0", f"s_cbranch_scc1 {l1}", instr + " sc0 sc1", f"s_branch {l2}", f"@{l1}", instr, f"@{l2}"]

    def emit(self, seq):
        for x in seq:
            if isinstance(x, (list, tuple)): self.emit(x)
            elif x.startswith("@"): self.label(x[1:])
            elif x.startswith("."): self.a.raw("    " + x)
            elif x.startswith("#"): self.a.raw(x)
            else: self.e(x)

    @staticmethod
    def FG(kind): return (sFl, kind * 2048)
    @staticmethod
    def FL(line, off): return (sFL, line * 2048 + off)
    def wg_flag(self, fa):
        e = self.e; loc = fa[0] == sFL
        if loc: e(f"s_lshr_b32 s{sT}, s2, 5"); e(f"s_lshl_b32 s{sT}, s{sT}, 2")
        else: e(f"s_lshl_b32 s{sT}, s{sN4}, 2")
        e(f"s_add_u32 s{sT}, s{sT}, s{fa[0]}")
        e(f"v_mov_b32 v{vF0}, {fa[1]}"); e(f"v_mov_b32 v{vF1}, 0x01010101")
        e("s_mov_b64 exec, 1")
        ins = f"buffer_store_dword v{vF1}, v{vF0}, s[{sWS}:{sWS+3}], s{sT} offen"
        self.emit(self.store(ins) if loc else [ins + " sc0 sc1"])
        e("s_mov_b64 exec, -1")
    def wg_flags(self, fg, fl):
        self.wg_flag_if(2, fl)
        if fg is not None: self.wg_flag_if(3, fg)
    def wg_flag_if(self, lw, fa):
        l = self.lab("wf")
        self.e(f"s_cmp_lg_u32 s{sLW}, {lw}"); self.e(f"s_cbranch_scc1 {l}")
        self.wg_flag(fa)
        self.label(l)
    def fl_addr(self, fa, nl):
        lim = f"s{nl[1]}" if isinstance(nl, tuple) else str(4 * (nl - 1))
        return [f"v_lshrrev_b32 v{vF0}, 2, v{vL16}", f"v_min_u32 v{vF0}, {lim}, v{vF0}", f"s_add_u32 s{sT}, s{fa[0]}, {fa[1] & 0xffffffff}"]
    def poll_flags(self, fa, nl):
        lp, ld = self.lab("poll"), self.lab("pd")
        self.emit(self.fl_addr(fa, nl))
        self.e(f"s_mov_b32 s{sT2}, {POLL}")
        self.label(lp)
        self.e(f"buffer_load_dword v{vF1}, v{vF0}, s[{sWS}:{sWS+3}], s{sT} offen sc0 sc1")
        self.e("s_waitcnt vmcnt(0)")
        self.e(f"v_cmp_ne_u32 vcc, 0x01010101, v{vF1}")
        self.e(f"s_cbranch_vccz {ld}")
        if self.opt.get("psleep", 1): self.e(f"s_sleep {int(self.opt.get('psleep', 1))}")
        self.e(f"s_sub_u32 s{sT2}, s{sT2}, 1")
        self.e(f"s_cmp_lg_u32 s{sT2}, 0")
        self.e(f"s_cbranch_scc1 {lp}")
        self.label(ld)
    def apoll_issue(self, vm, fa, nl, vP):
        self.emit(self.fl_addr(fa, nl))
        self.e(f"buffer_load_dword v{vP}, v{vF0}, s[{sWS}:{sWS+3}], s{sT} offen sc0 sc1"); vm.issue("ap")
    def apoll_check(self, vm, fa, nl, vP, skip=()):
        e = self.e; l = self.lab("ap")
        self.wait(vm.need("ap"))
        e(f"v_cmp_ne_u32 vcc, 0x01010101, v{vP}")
        e(f"s_cbranch_vccz {l}")
        for r, v in skip:
            e(f"s_cmp_eq_u32 s{r}, {v}"); e(f"s_cbranch_scc1 {l}")
        self.poll_flags(fa, nl)
        self.label(l)
    def round_bf16(self, v): return [f"v_cvt_pk_bf16_f32 v{v}, v{v}, v{v}", f"v_lshlrev_b32 v{v}, 16, v{v}"]
    def finish_stats(self, vs, vq):
        o = [f"v_mul_f32 v{vs}, 0x3a800000, v{vs}", f"v_mul_f32 v{vq}, 0x3a800000, v{vq}",
             f"v_fma_f32 v{vq}, -v{vs}, v{vs}, v{vq}", f"v_max_f32 v{vq}, 0, v{vq}"]
        o += self.round_bf16(vs) + self.round_bf16(vq)
        o += [f"v_add_f32 v{vq}, 0x{EPS_BITS:08x}, v{vq}"] + self.round_bf16(vq)
        o += [f"v_sqrt_f32 v{vq}, v{vq}", "s_nop 0"] + self.round_bf16(vq)
        o += [f"v_rcp_f32 v{vq}, v{vq}", "s_nop 0"]
        return o
    def xred(self, regs, tmps, op="v_add_f32", steps=("v_permlane16_swap_b32", "v_permlane32_swap_b32")):
        o = []
        for sw in steps:
            o += [f"v_mov_b32 v{t}, v{v}" for v, t in zip(regs, tmps)]
            o += ["s_nop 1"]
            o += [f"{sw} v{v}, v{t}" for v, t in zip(regs, tmps)]
            o += [f"{op} v{v}, v{v}, v{t}" for v, t in zip(regs, tmps)]
        return o

    def mix(self, dmas, side):
        if not dmas: return list(side)
        out = []; n = len(dmas); k = 0
        for i, d in enumerate(dmas):
            out.append(d)
            want = (len(side) * (i + 1)) // n
            out += side[k:want]; k = want
        return out

    def chunk(self, work, budget):
        out = []; c = 0
        while work and (c + work[0][0] <= budget or not out):
            k, it = work.pop(0); c += k; out.append(it)
        return out
    def atomize(self, instrs):
        tm = [f"s{sT}", f"s{sT2}", f"s{sT3}"]
        def toks(x): return re.findall(r"[a-z_0-9]+", x)
        n = len(instrs); end = list(range(n))
        for i, x in enumerate(instrs):
            if not isinstance(x, str) or not x.startswith("s_") or x.startswith(("s_waitcnt", "s_nop")): continue
            t = toks(x)
            if t[0].startswith("s_cmp"):
                for j in range(i + 1, n):
                    if isinstance(instrs[j], str) and instrs[j].startswith("s_cselect"): end[i] = j; break
                continue
            d = t[1]
            if d not in tm: continue
            for j in range(i + 1, n):
                y = instrs[j]
                if not isinstance(y, str): continue
                ty = toks(y)
                if d in ty[2:]: end[i] = j
                if ty[1:2] == [d] and y.startswith("s_"): break
        out = []; i = 0
        while i < n:
            k = end[i]; j = i
            while j < k:
                j += 1; k = max(k, end[j])
            out.append(instrs[i] if k == i else list(instrs[i:k + 1])); i = k + 1
        return out
    def costed(self, instrs):
        w = []
        for x in self.atomize(instrs):
            if isinstance(x, list) and all(isinstance(y, str) for y in x):
                w.append((sum(1 if y.startswith("v_") else 0.5 for y in x), x)); continue
            if isinstance(x, (list, tuple)): w.append((4, x))
            elif callable(x): w.append((4, x))
            elif x.startswith(("v_exp", "v_rcp", "v_sqrt")): w.append((2, x))
            elif x.startswith("v_"): w.append((1, x))
            else: w.append((0.5, x))
        return w
    def run_period(self, dmas, items):
        seq = self.mix(dmas, items)
        for x in seq:
            if callable(x): x()
            else: self.emit([x])

    def selector(self, S, t0, t1):
        o = [f"v_lshrrev_b32 v{t0}, 4, v{vL16}", f"v_and_b32 v{t1}, 1, v{t0}", f"v_lshlrev_b32 v{t1}, 4, v{t1}", f"v_lshlrev_b32 v{t1}, v{t1}, v{S}",
             f"v_bfe_u32 v{t0}, v{t0}, 1, 3"]
        o = [f"v_mov_b32 v{S}, 0x3f80"] + o
        for d in range(4): o += [f"v_cmp_eq_u32 vcc, {d}, v{t0}", "s_nop 1", f"v_cndmask_b32 v{S+d}, 0, v{t1}, vcc"]
        return o
    def side_flag(self, which):
        e = self.e
        e(f"v_mov_b32 v{vF0}, 0"); e(f"v_mov_b32 v{vF1}, 1"); e(f"s_lshl_b32 s{sT}, s2, 2"); e(f"s_add_u32 s{sT}, s{sT}, {WS_SF + 1024 * which}")
        e("s_mov_b64 exec, 1")
        e(f"buffer_store_dword v{vF1}, v{vF0}, s[{sWS}:{sWS+3}], s{sT} offen sc0 sc1")
        e("s_mov_b64 exec, -1")
    def apoll4_issue(self, vm, which, G):
        self.e(f"s_mov_b32 s{sT}, {WS_SF + 1024 * which}")
        self.e(f"buffer_load_dwordx4 v[{G}:{G+3}], v{vL16}, s[{sWS}:{sWS+3}], s{sT} offen sc0 sc1"); vm.issue("p4")
    def apoll4_check(self, vm, which, G, skip=()):
        e = self.e; l = self.lab("a4")
        self.wait(vm.need("p4"))
        for r, v in skip:
            e(f"s_cmp_eq_u32 s{r}, {v}"); e(f"s_cbranch_scc1 {l}")
        e(f"v_and_b32 v{G}, v{G}, v{G+1}"); e(f"v_and_b32 v{G+2}, v{G+2}, v{G+3}"); e(f"v_and_b32 v{G}, v{G}, v{G+2}")
        e(f"v_cmp_ne_u32 vcc, 1, v{G}")
        e(f"s_cbranch_vccz {l}")
        self.poll4(WS_SF + 1024 * which, None, G)
        self.label(l)

    def poll4(self, off, T0, G):
        e = self.e
        lp, ld = self.lab("p4"), self.lab("p4")
        e(f"s_mov_b32 s{sT}, {off}"); e(f"s_mov_b32 s{sT2}, {POLL}")
        self.label(lp)
        e(f"buffer_load_dwordx4 v[{G}:{G+3}], v{vL16}, s[{sWS}:{sWS+3}], s{sT} offen sc0 sc1")
        e("s_waitcnt vmcnt(0)")
        e(f"v_and_b32 v{G}, v{G}, v{G+1}"); e(f"v_and_b32 v{G+2}, v{G+2}, v{G+3}"); e(f"v_and_b32 v{G}, v{G}, v{G+2}")
        e(f"v_cmp_ne_u32 vcc, 1, v{G}")
        e(f"s_cbranch_vccz {ld}")
        e("s_sleep 1"); e(f"s_sub_u32 s{sT2}, s{sT2}, 1"); e(f"s_cmp_lg_u32 s{sT2}, 0"); e(f"s_cbranch_scc1 {lp}")
        self.label(ld)

    def grp(self, vm, tag, pre, ins, post=()):
        def f():
            vm.issue(tag); self.emit(list(pre) + [ins] + list(post))
        return f

    def w_unit(self, n, P):
        n = n % 132; slot = (n % 6) * WSLOT; tag = ("W", n)
        def lds(srd, pats, so): return [f"buffer_load_dwordx4 v{p}, s[{srd}:{srd+3}], s{so} offen{f' offset:{1024 * i}' if i else ''} lds" for i, p in enumerate(pats)]
        def adv(inc, msk): return [f"s_add_u32 s{sRw}, s{sRw}, {inc}", f"s_and_b32 s{sRw}, s{sRw}, {msk}"]
        def sinc(order, st):
            if st == 31: return []
            d = 1 if st % 2 == 0 else (2 * (uord(order[st // 2 + 1]) - uord(order[st // 2])) - 1) % 32
            return adv(d * 2048, 0xffff)
        ident = list(range(16))
        if n < 32:
            init = [f"s_lshl_b32 s{sRw}, s{sN4}, 12"] if n == 0 else []
            return tag, f"s_add_u32 m0, s{sM3}, {slot}", init + [f"s_mul_i32 s{sD0}, s{sRw}, 96"], lds(sQKV, P["g1"], sD0), sinc(ident, n)
        if n < 40:
            init = [f"s_lshl_b32 s{sRw}, s{sWM}, 1", f"s_add_u32 s{sRw}, s{sN4}, s{sRw}", f"s_and_b32 s{sRw}, s{sRw}, 15", f"s_lshl_b32 s{sRw}, s{sRw}, 17"] if n == 32 else []
            return tag, f"s_add_u32 m0, s{sM4}, {slot}", init, lds(sWO, P["g2"], sRw), adv((5 if n == 35 else 4) << 17, (16 << 17) - 1)
        if n < 72:
            init = [f"s_lshl_b32 s{sRw}, s{sN4}, 12"] if n == 40 else []
            return tag, f"s_add_u32 m0, s{sM4}, {slot}", init + [f"s_mul_i32 s{sD0}, s{sRw}, 112"], lds(sW13, P["g3a"], sD0), sinc(ident, n - 40)
        if n < 104:
            st = n - 72; init = []
            if st in (0, self.xw0):
                assert st % 2 == 0
                init = [f"s_add_u32 s{sRw}, s{sN4}, {uord(BORD[st // 2])}", f"s_and_b32 s{sRw}, s{sRw}, 15", f"s_lshl_b32 s{sRw}, s{sRw}, 12"]
            ld = lds(sW13, P["g3b"][:2], sD0) + [f"buffer_load_dwordx4 v{P['g3b'][2]}, s[{sWS}:{sWS+3}], s{sRw} offen offset:2048 lds"]
            return tag, f"s_add_u32 m0, s{sM3}, {slot}", init + [f"s_mul_i32 s{sD0}, s{sRw}, 112"], ld, sinc(BORD, st)
        u = n - 104
        if u < 24:
            p = u & 7; c = u >> 3
            colA = 224 * p + (96 if p & 1 else 0); colF = 224 * p + (32 if p & 1 else 128)
            row = [colA, colA + 32, colF][c]; base = sB6 if c < 2 else sB7
        else:
            row = 448 * (u - 24) + 192; base = sB7
        return tag, f"s_add_u32 m0, s{sM4}, {slot}", [f"s_add_u32 s{sD0}, s{base}, {row * 2048}"], lds(sW2, P["g4"], sD0), []

    def w_start(self, n, lim): self.wn = n; self.wlim = lim; self.wi = 0
    def w_take(self, vm, P, units, freed, extra=0):
        out = []; fresh = True; left = None
        while True:
            if self.wn - 6 > freed or self.wn >= self.wlim: break
            tag, m0, setup, ld, adv = self.w_unit(self.wn, P)
            if left is None: left = units * len(ld) + extra
            if left == 0: break
            i = self.wi; pre = []
            if i == 0: pre = (setup[:-1] + [m0, setup[-1]]) if setup else [m0, "s_nop 0"]
            elif fresh: pre = [m0, "s_nop 0"]
            out.append(self.grp(vm, tag if i == len(ld) - 1 else (tag, i), pre, ld[i], adv if i == len(ld) - 1 else ()))
            fresh = False; left -= 1; self.wi += 1
            if self.wi == len(ld): self.wi = 0; self.wn += 1
        return out
    def wneed(self, n):
        assert n < self.wn, (n, self.wn)
        return ("W", n % 132)

    def a_issue(self, vm, tag, slot, vA, glit=None, inc=None, part=None, srd=sWS, pats=None, lbase=None):
        pats = pats or [vA] * 4
        lb = LA + slot * 16384 if lbase is None else lbase
        so = sRa if glit is None else sDa
        g = []
        for i in (range(4) if part is None else (2 * part, 2 * part + 1)):
            pre = []
            if i == 0 or (part == 1 and i == 2):
                pre = [f"s_add_u32 m0, s{sM4}, {lb}", f"s_mov_b32 s{sDa}, {glit}" if glit is not None else "s_nop 0"]
            off = f" offset:{1024 * i}" if i else ""
            g.append(self.grp(vm, tag, pre, f"buffer_load_dwordx4 v{pats[i]}, s[{srd}:{srd+3}], s{so} offen{off} lds", inc if (i == 3 and inc) else ()))
        return g
    def ainc(self, d, stride=16384):
        return [f"s_add_u32 s{sRa}, s{sRa}, {(d % 16) * stride}", f"s_and_b32 s{sRa}, s{sRa}, {16 * stride - 1}"]

    def swz128(self, t0, t1, t2):
        return [f"v_lshrrev_b32 v{t0}, 7, v{vL16}", f"v_and_b32 v{t1}, 0x70, v{vL16}",
                f"v_and_b32 v{t2}, 6, v{t0}", f"v_lshlrev_b32 v{t2}, 4, v{t2}", f"v_xor_b32 v{t1}, v{t1}, v{t2}"]
    def pat_g1(self, P, t0, t1, t2, first):
        o = self.swz128(t0, t1, t2)
        if first: o += [f"v_and_b32 v{t2}, 4, v{t0}", f"v_add_u32 v{t0}, v{t0}, v{t2}"]
        o += [f"v_mul_u32_u24 v{t0}, 6144, v{t0}", f"v_add3_u32 v{t0}, v{t0}, v{t1}, s{sB1}"]
        for i in range(3):
            o += [f"s_lshr_b32 s{sT}, s{sM3}, 10", f"s_add_u32 s{sT}, s{sT}, {i}", f"s_and_b32 s{sT2}, s{sT}, 3"]
            if first: o += [f"s_and_b32 s{sT3}, s{sT2}, 1", f"s_lshl_b32 s{sT3}, s{sT3}, 4", f"s_and_b32 s{sT2}, s{sT2}, 2", f"s_lshl_b32 s{sT2}, s{sT2}, 1", f"s_add_u32 s{sT2}, s{sT2}, s{sT3}"]
            else: o += [f"s_lshl_b32 s{sT2}, s{sT2}, 3"]
            o += [f"s_mul_i32 s{sT2}, s{sT2}, 6144", f"s_lshr_b32 s{sT}, s{sT}, 2", f"s_lshl_b32 s{sT}, s{sT}, 11", f"s_add_u32 s{sT}, s{sT}, s{sT2}",
                  f"s_sub_u32 s{sT}, s{sT}, {1024 * i}", f"v_add_u32 v{P['g1'][i]}, s{sT}, v{t0}"]
        return o
    def pat_128(self, regs, pitch, t0, t1, t2, sb):
        o = self.swz128(t0, t1, t2) + [f"v_mul_u32_u24 v{t0}, {pitch}, v{t0}", f"v_add3_u32 v{regs[0]}, v{t0}, v{t1}, s{sb}"]
        for i in range(1, len(regs)): o.append(f"v_add_u32 v{regs[i]}, {i * (8 * pitch - 1024)}, v{regs[0]}")
        return o
    def pat_g3b(self, regs, t0, t1, t2):
        return self.pat_128(regs[:2], 7168, t0, t1, t2, sB4) + [f"v_add_u32 v{regs[2]}, s{sB5}, v{vL16}"]
    def pat_256(self, regs, pitch, t0, t1, t2, sb=None):
        o = [f"v_and_b32 v{t1}, 0xf0, v{vL16}", f"v_lshrrev_b32 v{t0}, 8, v{vL16}", f"v_lshlrev_b32 v{t2}, 5, v{t0}", f"v_xor_b32 v{t1}, v{t1}, v{t2}",
             f"v_mul_u32_u24 v{t0}, {pitch}, v{t0}"] + ([f"v_add_u32 v{t0}, s{sb}, v{t0}"] if sb else []) + [f"v_add_u32 v{regs[0]}, v{t0}, v{t1}",
             f"v_xor_b32 v{t1}, 0x80, v{t1}", f"v_add_u32 v{t0}, v{t0}, v{t1}", f"v_add_u32 v{regs[1]}, {4 * pitch - 1024}, v{t0}"]
        for i in (2, 3): o.append(f"v_add_u32 v{regs[i]}, {8 * pitch - 2048}, v{regs[i-2]}")
        return o
    def bases(self):
        e = self.e
        e(f"s_lshl_b32 s{sB1}, s{sN4}, 7")
        e(f"s_lshl_b32 s{sT}, s{sWN}, 16"); e(f"s_add_u32 s{sB2}, s{sB1}, s{sT}")
        e(f"s_mul_i32 s{sT}, s{sWN}, {16 * 7168}"); e(f"s_mul_i32 s{sT2}, s{sNT}, 448"); e(f"s_add_u32 s{sT}, s{sT}, s{sT2}")
        e(f"s_and_b32 s{sT2}, s{sNT}, 1"); e(f"s_mul_i32 s{sT2}, s{sT2}, 192")
        e(f"s_add_u32 s{sB3}, s{sT}, s{sT2}"); e(f"s_sub_u32 s{sB4}, s{sT}, s{sT2}"); e(f"s_add_u32 s{sB4}, s{sB4}, 256")
        e(f"s_lshl_b32 s{sT}, s{sWM}, 4"); e(f"s_add_u32 s{sT}, s{sT}, s{sNT}"); e(f"s_lshl_b32 s{sT}, s{sT}, 6"); e(f"s_add_u32 s{sT}, s{sT}, s{sWN}")
        e(f"s_lshl_b32 s{sT}, s{sT}, 10"); e(f"s_add_u32 s{sB5}, s{sT}, {WS_RT - 2048}")
        e(f"s_and_b32 s{sT}, s{sN4}, 1"); e(f"s_mul_i32 s{sT}, s{sT}, {1792 * 2048}"); e(f"s_lshr_b32 s{sT2}, s{sN4}, 1"); e(f"s_lshl_b32 s{sT2}, s{sT2}, 8")
        e(f"s_add_u32 s{sT}, s{sT}, s{sT2}"); e(f"s_lshl_b32 s{sT2}, s{sWN}, 15"); e(f"s_add_u32 s{sT}, s{sT}, s{sT2}")
        e(f"s_lshl_b32 s{sT2}, s{sWM}, 16"); e(f"s_add_u32 s{sB7}, s{sT}, s{sT2}"); e(f"s_add_u32 s{sB6}, s{sB7}, s{sT2}")

    def step(self, path, name, mf, reads, vmw=None, bar=True, last=None, extra=None):
        self.wait(vmw, 0)
        if bar: self.bar(path, name)
        self.al()
        oth = [[r] for r in reads]
        if last is None: last = len(reads) - 1
        sl = spread(len(reads), 0, last)
        if extra:
            for s, x in extra:
                oth.append(x + [".p2align 3"]); sl.append(s)
        self.emit(place(mf, oth, sl))

    def looped(self, path, nsteps, body, fn, pre=1):
        trips = (nsteps - pre - 1) // body
        l = self.lab("loop")
        self.e(f"s_mov_b32 s{sCnt}, {trips}")
        for s in range(pre): fn(s, None)
        self.emit([".p2align 3", "#LOOP"])
        self.label(l)
        nb0 = len(self.bars.get(path, []))
        for s in range(pre, pre + body): fn(s, "cnt" if s == pre + body - 1 else None)
        self.e(f"s_cbranch_scc1 {l}")
        self.emit(["#ENDLOOP"])
        names = self.bars[path][nb0:]
        for t in range(1, trips):
            for nm in names: self.bars[path].append((nm[0], nm[1] + t * len(names)))
        for s in range(pre + trips * body, nsteps): fn(s, None)

    CNT = [f"s_sub_u32 s{sCnt}, s{sCnt}, 1", f"s_cmp_lg_u32 s{sCnt}, 0"]

    def xcc_word(self, r):
        return [f"s_getreg_b32 s{r}, hwreg(HW_REG_XCC_ID, 0, 4)"] + ([f"s_lshr_b32 s{r}, s2, 7"] if self.opt.get("slow") else []) + \
               [f"s_mul_i32 s{sT}, s{r}, s{r}", f"s_lshl_b32 s{sT}, s{sT}, 15", f"s_lshl_b32 s{r}, s{r}, 6", f"s_add_u32 s{r}, s{r}, s{sT}", f"s_add_u32 s{r}, s{r}, 1"]

    def x_prep(self):
        e = self.e
        l3, ld = self.lab("xp"), self.lab("xp")
        D = 0; AC = 64; T = 80
        vO, vS0, vS1, vS2 = 100, 101, 102, 103
        lz = self.lab("xz")
        e(f"s_cmp_lg_u32 s{sLW}, 0"); e(f"s_cbranch_scc1 {lz}")
        e(f"v_mov_b32 v{vS2}, 0"); e(f"v_lshrrev_b32 v{vO}, 2, v{vL16}")
        e(f"s_lshl_b32 s{sT}, s2, 8"); e(f"s_add_u32 s{sT}, s{sT}, {WS_FL}")
        e(f"buffer_store_dword v{vS2}, v{vO}, s[{sWS}:{sWS+3}], s{sT} offen sc0 sc1")
        e(f"v_lshlrev_b32 v{vO}, 6, v{vL16}")
        e(f"s_lshl_b32 s{sT}, s2, 2"); e(f"s_add_u32 s{sT}, s{sT}, {WS_SF}")
        e("s_mov_b64 exec, 3")
        e(f"buffer_store_dword v{vS2}, v{vO}, s[{sWS}:{sWS+3}], s{sT} offen sc0 sc1")
        e("s_mov_b64 exec, -1")
        self.label(lz)
        e(f"s_getpc_b64 s[{sAT}:{sAT+1}]")
        self.label("K_pc")
        e(f"s_mov_b32 s{sAT+2}, K_end-K_pc")
        e(f"s_mov_b32 s{sAT+3}, 0x00020000")
        e(f"s_lshr_b32 s{sT}, s2, 3"); e(f"s_lshl_b32 s{sT}, s{sT}, 2"); e(f"s_add_u32 s{sT}, s{sT}, s{sLW}"); e(f"s_lshl_b32 s{sT}, s{sT}, 10")
        e(f"v_lshlrev_b32 v{vO}, 3, v{vL16}")
        e("s_mov_b64 exec, 0xff")
        e(f"buffer_load_dword v{vS0}, v{vO}, s[{sAT}:{sAT+3}], s{sT} offen")
        e("s_mov_b64 exec, -1")
        e(f"v_lshrrev_b32 v{vO}, 7, v{vL16}")
        e(f"v_and_b32 v{vS1}, 0x70, v{vL16}")
        e(f"s_cmp_eq_u32 s{sLW}, 3"); e(f"s_cbranch_scc1 {l3}")
        e(f"v_mul_u32_u24 v{vO}, 6144, v{vO}"); e(f"v_add_u32 v{vO}, v{vO}, v{vS1}")
        e(f"s_mul_i32 s{sT2}, s2, 3"); e(f"s_add_u32 s{sT2}, s{sT2}, s{sLW}")
        e(f"s_and_b32 s{sT}, s{sT2}, 15"); e(f"s_mul_i32 s{sT}, s{sT}, {64 * 6144}")
        e(f"s_lshr_b32 s{sT3}, s{sT2}, 4"); e(f"s_lshl_b32 s{sT3}, s{sT3}, 7"); e(f"s_add_u32 s{sT}, s{sT}, s{sT3}")
        for i in range(8):
            e(f"buffer_load_dwordx4 v[{D+4*i}:{D+4*i+3}], v{vO}, s[{sQKV}:{sQKV+3}], s{sT} offen")
            e(f"s_add_u32 s{sT}, s{sT}, {8 * 6144}")
        for i in range(8): e(f"v_mov_b32 v{AC+i}, 0")
        e(f"v_mov_b32 v{vS1}, 0x00003f80"); e(f"v_mov_b32 v{vS2}, 0x3f800000")
        for i in range(8):
            e(f"s_waitcnt vmcnt({7 - i})")
            for j in range(4):
                e(f"v_dot2_f32_bf16 v{AC+2*j}, v{D+4*i+j}, v{vS1}, v{AC+2*j}")
                e(f"v_dot2_f32_bf16 v{AC+2*j+1}, v{D+4*i+j}, v{vS2}, v{AC+2*j+1}")
        lz = self.lab("xz")
        e(f"s_cmp_lg_u32 s{sLW}, 0"); e(f"s_cbranch_scc1 {lz}")
        self.emit(self.xcc_word(sD0))
        e(f"v_mov_b32 v{vF1}, s{sD0}"); e(f"s_and_b32 s{sT}, s2, 7"); e(f"s_lshl_b32 s{sT}, s{sT}, 5"); e(f"v_mov_b32 v{vF0}, 0")
        e("s_mov_b64 exec, 1")
        e(f"buffer_atomic_add v{vF1}, v{vF0}, s[{sDBG}:{sDBG+3}], s{sT} offen sc1")
        e("s_mov_b64 exec, -1")
        self.label(lz)
        e("s_nop 3")
        for i in range(8): e(f"v_add_f32_dpp v{AC+i}, v{AC+i}, v{AC+i} row_ror:8 row_mask:0xf bank_mask:0xf")
        self.emit(self.xred(list(range(AC, AC + 8)), list(range(T, T + 8))))
        e(f"s_and_b32 s{sT}, s{sT2}, 15"); e(f"s_mul_i32 s{sT}, s{sT}, 12288")
        e(f"s_lshl_b32 s{sT3}, s{sT3}, 1"); e(f"s_add_u32 s{sT}, s{sT}, s{sT3}"); e(f"s_add_u32 s{sT}, s{sT}, {WS_CSQ}")
        e(f"v_lshlrev_b32 v{vO}, 1, v{vL16}")
        e("s_mov_b64 exec, 0xff")
        e(f"buffer_store_dwordx4 v[{AC}:{AC+3}], v{vO}, s[{sWS}:{sWS+3}], s{sT} offen sc0 sc1")
        e(f"buffer_store_dwordx4 v[{AC+4}:{AC+7}], v{vO}, s[{sWS}:{sWS+3}], s{sT} offen offset:16 sc0 sc1")
        e("s_mov_b64 exec, -1")
        e(f"s_branch {ld}")
        self.label(l3)
        e(f"v_lshl_add_u32 v{vO}, v{vO}, 11, v{vS1}")
        e(f"s_lshl_b32 s{sT}, s2, 14")
        for i in range(16):
            e(f"buffer_load_dwordx4 v[{D+4*i}:{D+4*i+3}], v{vO}, s[{sX0}:{sX0+3}], s{sT} offen offset:{128 * i}")
        for i in range(4): e(f"v_mov_b32 v{AC+i}, 0")
        e(f"v_mov_b32 v{vS1}, 0x3f803f80")
        for i in range(16):
            e(f"s_waitcnt vmcnt({15 - i})")
            for j in range(4):
                e(f"v_dot2_f32_bf16 v{AC+2*(j&1)}, v{D+4*i+j}, v{vS1}, v{AC+2*(j&1)}")
                e(f"v_dot2_f32_bf16 v{AC+2*(j&1)+1}, v{D+4*i+j}, v{D+4*i+j}, v{AC+2*(j&1)+1}")
        e("s_nop 3")
        e(f"v_add_f32 v{AC}, v{AC}, v{AC+2}"); e(f"v_add_f32 v{AC+1}, v{AC+1}, v{AC+3}")
        for m in ("quad_perm:[1,0,3,2]", "quad_perm:[2,3,0,1]", "row_half_mirror"):
            e("s_nop 1")
            for i in range(2): e(f"v_add_f32_dpp v{AC+i}, v{AC+i}, v{AC+i} {m} row_mask:0xf bank_mask:0xf")
        e(f"v_lshrrev_b32 v{vO}, 4, v{vL16}")
        e(f"s_lshl_b32 s{sT}, s2, 6"); e(f"s_add_u32 s{sT}, s{sT}, {WS_ST0}")
        e(f"s_mov_b32 s{sEX}, 0x01010101"); e(f"s_mov_b32 s{sEX+1}, 0x01010101")
        e(f"s_mov_b64 exec, s[{sEX}:{sEX+1}]")
        e(f"buffer_store_dwordx2 v[{AC}:{AC+1}], v{vO}, s[{sWS}:{sWS+3}], s{sT} offen sc0 sc1")
        e("s_mov_b64 exec, -1")
        self.label(ld)
        R = 236
        e(f"v_and_b32 v{vO}, 0xf0, v{vL16}"); e(f"v_lshlrev_b32 v{vO}, 7, v{vO}")
        e(f"v_lshrrev_b32 v{vS1}, 8, v{vL16}"); e(f"v_lshl_add_u32 v{vO}, v{vS1}, 3, v{vO}")
        e(f"s_lshl_b32 s{sT}, s{sMT}, 18"); e(f"s_lshl_b32 s{sT2}, s{sWM}, 17"); e(f"s_add_u32 s{sT}, s{sT}, s{sT2}")
        e(f"s_lshl_b32 s{sT2}, s{sN4}, 7"); e(f"s_add_u32 s{sT}, s{sT}, s{sT2}")
        e(f"s_lshl_b32 s{sT2}, s{sWN}, 6"); e(f"s_add_u32 s{sT}, s{sT}, s{sT2}")
        for rt in range(4):
            for t in range(2):
                e(f"buffer_load_dwordx2 v[{R+4*rt+2*t}:{R+4*rt+2*t+1}], v{vO}, s[{sX0}:{sX0+3}], s{sT} offen offset:{32 * t}")
            e(f"s_add_u32 s{sT}, s{sT}, {16 * 2048}")

    def waddr128(self, dst, sel, t0, t1, t2, nt=2):
        e = self.e
        e(f"v_lshrrev_b32 v{t0}, 6, v{vL16}")
        e(f"v_lshrrev_b32 v{t1}, 1, v{t0}"); e(f"v_and_b32 v{t1}, 3, v{t1}")
        e(f"s_lshl_b32 s{sT}, s{sel}, 1")
        e(f"v_xor_b32 v{t1}, s{sT}, v{t1}")
        e(f"v_lshlrev_b32 v{t0}, 7, v{t0}")
        e(f"v_lshl_add_u32 v{t0}, v{t1}, 5, v{t0}")
        e(f"v_and_b32 v{t1}, 0x30, v{vL16}"); e(f"v_lshrrev_b32 v{t1}, 1, v{t1}")
        e(f"v_add_u32 v{dst}, v{t0}, v{t1}")
        e(f"v_xor_b32 v{dst+1}, 32, v{dst}")
        for t in range(2): e(f"v_add_u32 v{dst+2+t}, {3 * WSLOT}, v{dst+t}")

    def waddr256(self, dst, xs, sbase, t0, t1):
        o = [f"v_lshrrev_b32 v{t0}, 6, v{vL16}", f"v_and_b32 v{t1}, 7, v{t0}", f"v_xor_b32 v{t1}, s{sbase}, v{t1}",
             f"v_lshlrev_b32 v{t0}, 8, v{t0}", f"v_lshl_add_u32 v{t0}, v{t1}, 5, v{t0}",
             f"v_and_b32 v{t1}, 0x30, v{vL16}", f"v_lshrrev_b32 v{t1}, 1, v{t1}", f"v_add_u32 v{t0}, v{t0}, v{t1}"]
        for t in range(4): o.append(f"v_xor_b32 v{dst+t}, {xs[t] << 5}, v{t0}")
        for t in range(4): o.append(f"v_add_u32 v{dst+4+t}, {3 * WSLOT}, v{dst+t}")
        return o

    def x_g1(self):
        e = self.e; P = "X"
        ACCQ, ACCK, ACCV, XF, WF = 0, 32, 72, 112, 152
        vXa, vWa = 200, 202
        vL, vG, vI, vT0, vT1, vT2, vT3, vOA = 206, 207, 208, 209, 210, 211, 212, 213
        def aq(j, ab): return ACCQ + ((j - 1) * 2 + ab) * 4
        def ak(j, ab): return ACCK + (j * 2 + ab) * 4
        def av(j, ab): return ACCV + (j * 2 + ab) * 4
        def xf(b, j): return XF + b * 20 + j * 4
        def wf(b, seg, ab): return WF + b * 24 + (seg * 2 + ab) * 4
        self.lanes(vL, vG, vI)
        l2, l3 = self.lab("g1"), self.lab("g1")
        e(f"s_lshl_b32 s{sT}, s{sWM}, 13"); e(f"s_add_u32 s{sT}, s{sT}, {LA}")
        e(f"s_cmp_lg_u32 s{sLAY}, 0"); e(f"s_cbranch_scc1 {l2}")
        e(f"v_and_b32 v{vT1}, 6, v{vI}"); e(f"v_xor_b32 v{vT1}, v{vT1}, v{vG}"); e(f"v_lshlrev_b32 v{vT1}, 4, v{vT1}")
        e(f"v_lshl_add_u32 v{vXa}, v{vI}, 7, v{vT1}"); e(f"v_xor_b32 v{vXa+1}, 64, v{vXa}")
        e(f"s_branch {l3}")
        self.label(l2)
        e(f"v_mov_b32 v{vXa}, v{vL16}"); e(f"v_add_u32 v{vXa+1}, 1024, v{vL16}")
        self.label(l3)
        e(f"v_add_u32 v{vXa}, s{sT}, v{vXa}"); e(f"v_add_u32 v{vXa+1}, s{sT}, v{vXa+1}")
        self.waddr128(vWa, sWN, vT0, vT1, vT2)
        e(f"s_add_u32 s{sGa}, s{sTile}, s{sOo}")
        SEL, vQa, vVa, vCq, vCv, ONES = 214, 218, 219, 220, 221, 222
        sM = sAT; sOdd = sAT + 8; sInv = sAT + 10
        e(f"v_lshlrev_b32 v{vT0}, 2, v{vG}"); e(f"v_sub_u32 v{vT0}, v{vI}, v{vT0}")
        for r in range(4): e(f"v_cmp_le_i32 s[{sM+2*r}:{sM+2*r+1}], {r}, v{vT0}")
        e(f"v_and_b32 v{vT1}, 1, v{vI}"); e(f"v_cmp_eq_u32 s[{sOdd}:{sOdd+1}], 1, v{vT1}")
        e(f"v_sub_u32 v{vT0}, v{vT0}, v{vT1}")
        e(f"v_mov_b32 v{vT3}, 0x0c0c0c0c")
        for k in range(2):
            e(f"v_mov_b32 v{vT1}, {hex([0x0c0c0100, 0x0c0c0302][k])}"); e(f"v_mov_b32 v{vT2}, {hex([0x01000c0c, 0x03020c0c][k])}")
            e(f"v_cmp_le_i32 vcc, {2 * k}, v{vT0}")
            e(f"v_cndmask_b32 v{vT1}, v{vT1}, v{vT2}, s[{sOdd}:{sOdd+1}]")
            e(f"s_not_b64 s[{sInv+2*k}:{sInv+2*k+1}], vcc")
            e(f"v_cndmask_b32 v{SEL+k}, v{vT1}, v{vT3}, vcc")
            e(f"v_cndmask_b32 v{SEL+2+k}, v{vT3}, v{vT1}, vcc")
        e(f"s_or_b32 s{sT}, s{sMT}, s{sWM}"); e(f"s_cmp_eq_u32 s{sT}, 0")
        for k in range(2): e(f"s_cselect_b64 s[{sInv+2*k}:{sInv+2*k+1}], s[{sInv+2*k}:{sInv+2*k+1}], 0")
        e(f"s_lshl_b32 s{sT}, s{sWM}, 8"); e(f"s_add_u32 s{sT}, s{sT}, {L_ST}")
        e(f"v_lshlrev_b32 v{vQa}, 2, v{vI}"); e(f"v_add_u32 v{vQa}, s{sT}, v{vQa}")
        e(f"v_lshlrev_b32 v{vVa}, 4, v{vG}"); e(f"v_add_u32 v{vVa}, s{sT}, v{vVa}")
        e(f"s_lshl_b32 s{sT}, s{sWN}, 7"); e(f"s_add_u32 s{sT}, s{sT}, {L_CSQ}")
        e(f"v_lshlrev_b32 v{vCq}, 4, v{vG}"); e(f"v_add_u32 v{vCq}, s{sT}, v{vCq}")
        e(f"v_lshlrev_b32 v{vCv}, 2, v{vI}"); e(f"v_add_u32 v{vCv}, s{sT}, v{vCv}")
        for i in range(4): e(f"v_mov_b32 v{ONES+i}, 0x3f803f80")
        e(f"v_mov_b32 v{vOA}, {L_MODE}")
        CS, CSV, NMq, RSq, NMv, RSv = 152, 168, 112, 118, 132, 176
        tab = [f"ds_read_b128 v[{CS+4*k}:{CS+4*k+3}], v{vCq} offset:{256 * (k >> 1) + 64 * (k & 1)}" for k in range(4)]
        tab += [f"ds_read_b32 v{NMq+j}, v{vQa} offset:{64 * j}" for j in range(5)]
        tab += [f"ds_read_b32 v{RSq+j}, v{vQa} offset:{576 + 64 * j}" for j in range(5)]
        tab += [f"ds_read_b32 v{CSV+ab}, v{vCv} offset:{512 + 64 * ab}" for ab in range(2)]
        tab += [f"ds_read_b32 v170, v{vOA}"]
        def reads(s):
            b = s & 1; u = s >> 1; sl = s % 6
            xr = [f"ds_read_b128 v[{xf(b,j)}:{xf(b,j)+3}], v{vXa + (s & 1)} offset:{(u % 3) * 18432 + j * 2048}" for j in range(5)]
            wr = []
            for seg in range(3):
                for ab in range(2):
                    r = wf(b, seg, ab); ad = vWa + 2 * (sl // 3) + ab; off = (sl % 3) * WSLOT + seg * 4096
                    wr.append(f"ds_read_b64_tr_b16 v[{r}:{r+1}], v{ad} offset:{off}")
                    wr.append(f"ds_read_b64_tr_b16 v[{r+2}:{r+3}], v{ad} offset:{off + 2048}")
            return wr[0:2] + xr[1:] + wr[2:6] + xr[0:1] + wr[6:]
        def mf(s):
            b = s & 1; m = []; c = "0" if s == 0 else None
            for ab in range(2):
                for j in range(1, 5): m.append(mfma(aq(j, ab), wf(b, 0, ab), xf(b, j), c))
            for ab in range(2):
                for j in range(5): m.append(mfma(ak(j, ab), wf(b, 1, ab), xf(b, j), c))
            for ab in range(2):
                for j in range(5): m.append(mfma(av(j, ab), xf(b, j), wf(b, 2, ab), c))
            return m
        lq = self.lab("g1")
        e(f"s_cmp_eq_u32 s{sLAY}, 0"); e(f"s_cbranch_scc1 {lq}")
        e("s_waitcnt vmcnt(0) lgkmcnt(0)"); e("s_barrier")
        self.wg_flags(self.FG(4), self.FL(0, 64))
        self.stats_out(sSTo, 226)
        self.label(lq)
        self.ts(0)
        self.bar(P, ("G1", -1))
        self.ts(1); self.tsc(16)
        self.emit(reads(0))
        def fn(s, ex):
            extra = []
            if ex: extra.append((24, self.CNT))
            self.step(P, ("G1", s), mf(s), reads(s + 1) if s < 31 else tab, vmw=(0 if s == 2 else None), last=20, extra=extra)
        self.looped(P, 32, 6, fn)
        self.ts(2); self.tsc(17)
        def pk(op, d, srcs):
            ops = []; sel = []; selhi = []
            for kind, r in srcs:
                if kind == 'p': ops.append(f"v[{r}:{r+1}]"); sel.append(0); selhi.append(1)
                else: ops.append(f"v[{r & ~1}:{(r & ~1) + 1}]"); sel.append(r & 1); selhi.append(r & 1)
            e(f"{op} v[{d}:{d+1}], " + ", ".join(ops) + f" op_sel:[{','.join(map(str, sel))}] op_sel_hi:[{','.join(map(str, selhi))}]")
        e("s_waitcnt lgkmcnt(0)")
        self.al()
        for j in range(5):
            e(f"ds_read_b128 v[{NMv+4*j}:{NMv+4*j+3}], v{vVa} offset:{64 * j}")
            e(f"ds_read_b128 v[{RSv+4*j}:{RSv+4*j+3}], v{vVa} offset:{576 + 64 * j}")
        def pack4(b):
            for i in range(4): e(f"v_cvt_pk_bf16_f32 v{b+i}, v{b+2*i}, v{b+2*i+1}")
        for j in range(1, 5):
            b = aq(j, 0)
            for i in range(4): pk("v_pk_fma_f32", b + 2 * i, [('b', NMq + j), ('p', CS + 2 * i), ('p', b + 2 * i)])
        for j in range(5):
            b = ak(j, 0)
            for i in range(4): pk("v_pk_fma_f32", b + 2 * i, [('b', NMq + j), ('p', CS + 8 + 2 * i), ('p', b + 2 * i)])
        for j in range(1, 5): pack4(aq(j, 0))
        for j in range(5):
            b = ak(j, 0)
            for i in range(4): pk("v_pk_mul_f32", b + 2 * i, [('b', RSq + j), ('p', b + 2 * i)])
        for j in range(5): pack4(ak(j, 0))
        e(f"v_readfirstlane_b32 s{sMODE}, v170")
        e("s_waitcnt lgkmcnt(0)")
        def Sc(j): return aq(j, 1)
        def Sp(j): return ak(j, 1)
        for j in range(1, 5):
            e(mfma(Sc(j), ak(j, 0), aq(j, 0), "0"))
            e(mfma(Sp(j), ak(j - 1, 0), aq(j, 0), "0"))
        VP = [226, 152]
        for j in range(5):
            for ab in range(2):
                c = av(j, ab)
                for r in (0, 2): pk("v_pk_fma_f32", c + r, [('p', NMv + 4 * j + r), ('b', CSV + ab), ('p', c + r)])
        J = range(1, 5)
        for j in J:
            for r in range(4): e(f"v_cndmask_b32 v{Sp(j)+r}, v{Sp(j)+r}, v{Sc(j)+r}, s[{sM+2*r}:{sM+2*r+1}]")
        for j in J:
            e(f"v_cndmask_b32 v{Sp(j)}, v{Sp(j)}, v{Sp(j)+1}, s[{sOdd}:{sOdd+1}]")
            e(f"v_cndmask_b32 v{Sp(j)+1}, v{Sp(j)+2}, v{Sp(j)+3}, s[{sOdd}:{sOdd+1}]")
        e(f"v_mov_b32 v{vT0}, 0xf149f2ca")
        for k in range(2): e(f"v_cndmask_b32 v{Sp(1)+k}, v{Sp(1)+k}, v{vT0}, s[{sInv+2*k}:{sInv+2*k+1}]")
        MX = {j: Sp(j) + 2 for j in J}
        for j in J: e(f"v_max_f32 v{MX[j]}, v{Sp(j)}, v{Sp(j)+1}")
        fill = []
        for j in range(5):
            for ab in range(2):
                c = av(j, ab)
                for r in (0, 2): fill.append((c + r, RSv + 4 * j + r))
        def F(n):
            for _ in range(n):
                d, r = fill.pop(0); pk("v_pk_mul_f32", d, [('p', r), ('p', d)])
        F(2)
        e(f"v_permlane32_swap_b32 v{MX[1]}, v{MX[3]}"); e(f"v_permlane32_swap_b32 v{MX[2]}, v{MX[4]}")
        e(f"v_max_f32 v{MX[1]}, v{MX[1]}, v{MX[3]}"); e(f"v_max_f32 v{MX[2]}, v{MX[2]}, v{MX[4]}")
        F(2)
        e(f"v_permlane16_swap_b32 v{MX[1]}, v{MX[2]}")
        e(f"v_max_f32 v{MX[1]}, v{MX[1]}, v{MX[2]}")
        e(f"v_mov_b32 v{MX[2]}, v{MX[1]}")
        F(2)
        e(f"v_permlane16_swap_b32 v{MX[1]}, v{MX[2]}")
        e(f"v_mov_b32 v{MX[3]}, v{MX[1]}"); e(f"v_mov_b32 v{MX[4]}, v{MX[2]}")
        F(2)
        e(f"v_permlane32_swap_b32 v{MX[1]}, v{MX[3]}"); e(f"v_permlane32_swap_b32 v{MX[2]}, v{MX[4]}")
        sc = f32bits((32 ** -0.5) * 1.4426950408889634)
        for j in J: e(f"v_mul_f32 v{RSq+j}, 0x{sc:08x}, v{RSq+j}")
        for j in J:
            for k in range(2): e(f"v_sub_f32 v{Sp(j)+k}, v{Sp(j)+k}, v{MX[j]}")
        for j in J:
            for k in range(2): e(f"v_mul_f32 v{Sp(j)+k}, v{RSq+j}, v{Sp(j)+k}")
        for j in J:
            for k in range(2): e(f"v_exp_f32 v{Sp(j)+k}, v{Sp(j)+k}")
        self.al()
        F(len(fill))
        for j in J: e(f"v_cvt_pk_bf16_f32 v{Sp(j)}, v{Sp(j)}, v{Sp(j)+1}")
        for j in range(5):
            for ab in range(2):
                c = av(j, ab)
                e(f"v_cvt_pk_bf16_f32 v{VP[ab]+2*j}, v{c}, v{c+1}"); e(f"v_cvt_pk_bf16_f32 v{VP[ab]+2*j+1}, v{c+2}, v{c+3}")
        for j in J:
            for k in range(4): e(f"v_perm_b32 v{Sc(j)+k}, v{Sp(j)}, v{Sp(j)}, v{SEL+k}")
        def OO(j): return 72 + 8 * (j - 1)
        e(f"s_add_u32 s{sT}, s{sGa}, 4096")
        for j in J: e(mfma(aq(j, 0), ONES, Sc(j), "0"))
        for j in J:
            for ab in range(2): e(mfma(OO(j) + 4 * ab, VP[ab] + 2 * (j - 1), Sc(j), "0"))
        for j in J: e(f"v_rcp_f32 v{aq(j,0)}, v{aq(j,0)}")
        for j in J:
            if j == 4: e("s_nop 1")
            for i in range(4): pk("v_pk_mul_f32", OO(j) + 2 * i, [('b', aq(j, 0)), ('p', OO(j) + 2 * i)])
            pack4(OO(j))
            e(f"buffer_store_dwordx4 v[{OO(j)}:{OO(j)+3}], v{vL16}, s[{sWS}:{sWS+3}], s{sGa if j < 3 else sT} offen offset:{2048 * ((j - 1) & 1)} sc0 sc1")
        self.ts(3)

    def silu_group(self, cg, cu, E, RL, I2, O, NM=None, sg=None, su=None):
        o = []
        if NM is not None: o += [f"v_fmac_f32 v{cg+r}, v{NM}, v{sg+r}" for r in range(4)]
        o += [f"v_mul_f32 v{E+r}, v{RL}, v{cg+r}" for r in range(4)]
        if NM is not None: o += [f"v_fmac_f32 v{cu+r}, v{NM}, v{su+r}" for r in range(4)]
        o += [f"v_exp_f32 v{E+r}, v{E+r}" for r in range(4)]
        o += [f"v_mul_f32 v{cg+r}, v{cg+r}, v{cu+r}" for r in range(4)]
        o += [f"v_fma_f32 v{E+r}, v{E+r}, v{I2}, v{I2}" for r in range(4)]
        o += [f"v_rcp_f32 v{E+r}, v{E+r}" for r in range(4)]
        o += [f"v_mul_f32 v{cg+r}, v{cg+r}, v{E+r}" for r in range(4)]
        o += [f"v_cvt_pk_bf16_f32 v{O}, v{cg}, v{cg+1}", f"v_cvt_pk_bf16_f32 v{O+1}, v{cg+2}, v{cg+3}"]
        return o

    def stat_regs(self, MR, NM, RL, I2, t0):
        o = [f"s_lshl_b32 s{sT}, s{sWM}, 9", f"s_add_u32 s{sT}, s{sT}, {L_ST}", f"v_and_b32 v{t0}, 0xf0, v{vL16}", f"v_lshrrev_b32 v{t0}, 1, v{t0}",
             f"v_add_u32 v{t0}, s{sT}, v{t0}"]
        o += [f"ds_read_b64 v[{MR+2*rt}:{MR+2*rt+1}], v{t0} offset:{128*rt}" for rt in range(4)]
        o += ["s_waitcnt lgkmcnt(0)"]
        for rt in range(4):
            o += [f"v_sub_f32 v{NM+rt}, 0, v{MR+2*rt}", f"v_mul_f32 v{RL+rt}, 0xbfb8aa3b, v{MR+2*rt+1}", f"v_mul_f32 v{I2+rt}, v{MR+2*rt+1}, v{MR+2*rt+1}"]
        o += [f"v_rcp_f32 v{I2+rt}, v{I2+rt}" for rt in range(4)] + ["s_nop 0"]
        return o

    def unpack(self, dst, src):
        return [f"v_lshlrev_b32 v{dst}, 16, v{src}", f"v_and_b32 v{dst+1}, 0xffff0000, v{src}"]

    def res_epilogue(self, acc, sX, PK, T):
        e = self.e
        e(f"s_add_u32 s{sD0}, s{sTile}, s{sX}"); e(f"s_add_u32 s{sD1}, s{sD0}, 4096")
        for rt in range(4):
            for t in range(2):
                c = acc(t, rt)
                e(f"v_cvt_pk_bf16_f32 v{PK+4*rt+2*t}, v{c}, v{c+1}"); e(f"v_cvt_pk_bf16_f32 v{PK+4*rt+2*t+1}, v{c+2}, v{c+3}")
            e(f"buffer_store_dwordx4 v[{PK+4*rt}:{PK+4*rt+3}], v{vL16}, s[{sWS}:{sWS+3}], s{sD0 + (rt >> 1)} offen offset:{2048 * (rt & 1)} sc0 sc1")
        S = T; Q = T + 4; ON = T + 8
        e(f"v_mov_b32 v{ON}, 0x3f803f80")
        for i in range(4):
            for rt in range(4):
                e(f"v_dot2_f32_bf16 v{S+rt}, v{PK+4*rt+i}, v{ON}, {f'v{S+rt}' if i else 0}")
                e(f"v_dot2_f32_bf16 v{Q+rt}, v{PK+4*rt+i}, v{PK+4*rt+i}, {f'v{Q+rt}' if i else 0}")
        e(f"s_lshl_b32 s{sT}, s{sLW}, 9"); e(f"s_add_u32 s{sT}, s{sT}, {L_SS}")
        e("s_nop 1")
        for B in (S, Q):
            e(f"v_permlane32_swap_b32 v{B}, v{B+2}"); e(f"v_permlane32_swap_b32 v{B+1}, v{B+3}")
        for B in (S, Q):
            e(f"v_add_f32 v{B}, v{B}, v{B+2}"); e(f"v_add_f32 v{B+1}, v{B+1}, v{B+3}")
        e(f"v_lshrrev_b32 v{ON}, 1, v{vL16}"); e(f"v_add_u32 v{ON}, s{sT}, v{ON}")
        for B in (S, Q): e(f"v_permlane16_swap_b32 v{B}, v{B+1}")
        e(f"v_add_f32 v{S}, v{S}, v{S+1}"); e(f"v_add_f32 v{S+1}, v{Q}, v{Q+1}")
        e(f"ds_write_b64 v{ON}, v[{S}:{S+1}]")

    def stats_out(self, sST, T):
        e = self.e; l = self.lab("so")
        e(f"s_cmp_lg_u32 s{sLW}, 0"); e(f"s_cbranch_scc1 {l}")
        e(f"v_add_u32 v{T+8}, {L_SS}, v{vL16}")
        e(f"ds_read_b128 v[{T}:{T+3}], v{T+8}"); e(f"ds_read_b128 v[{T+4}:{T+7}], v{T+8} offset:1024")
        e(f"s_lshl_b32 s{sT}, s{sN4}, 10"); e(f"s_add_u32 s{sT}, s{sT}, s{sST}")
        e("s_waitcnt lgkmcnt(0)")
        for r in range(4): e(f"v_add_f32 v{T+r}, v{T+r}, v{T+4+r}")
        e(f"buffer_store_dwordx4 v[{T}:{T+3}], v{vL16}, s[{sWS}:{sWS+3}], s{sT} offen sc0 sc1")
        self.label(l)

    def x_g2(self):
        e = self.e; P = "X"
        ACC, XF, WF, vXa, vWa = 0, 32, 104, 136, 137
        R, T0, T1, T2 = 236, 152, 153, 154
        def acc(t, rt): return ACC + (t * 4 + rt) * 4
        def xf(b, h, rt): return XF + b * 32 + h * 16 + rt * 4
        def wf(b, h, t): return WF + b * 16 + h * 8 + t * 4
        e(f"s_lshl_b32 s{sT}, s{sWM}, 13"); e(f"s_add_u32 s{sT}, s{sT}, {LA}")
        e(f"v_add_u32 v{vXa}, s{sT}, v{vL16}")
        self.waddr128(vWa, sWN, T0, T1, T2)
        for rt in range(4):
            for t in range(2):
                for k in range(2): self.emit(self.unpack(acc(t, rt) + 2 * k, R + 4 * rt + 2 * t + k))
        def reads(u):
            b = u & 1; o = []
            sl = (32 + (u >> 1)) % 6
            for h in range(2):
                wr = []
                for t in range(2):
                    r = wf(b, h, t); ad = vWa + 2 * (sl // 3) + t; off = (sl % 3) * WSLOT + ((u & 1) * 2 + h) * 4096
                    wr += [f"ds_read_b64_tr_b16 v[{r}:{r+1}], v{ad} offset:{off}", f"ds_read_b64_tr_b16 v[{r+2}:{r+3}], v{ad} offset:{off + 2048}"]
                xr = [f"ds_read_b128 v[{xf(b,h,rt)}:{xf(b,h,rt)+3}], v{vXa} offset:{(u % 3) * 16384 + rt * 2048 + h * 1024}" for rt in range(4)]
                o += wr[0:2] + xr + wr[2:]
            return o
        def mf(u):
            b = u & 1
            return [mfma(acc(t, rt), wf(b, h, t), xf(b, h, rt)) for h in range(2) for t in range(2) for rt in range(4)]
        self.ts(4)
        e("s_waitcnt vmcnt(0)")
        self.bar(P, ("G2", -2))
        self.wg_flags(self.FG(0), self.FL(0, 0))
        self.ts(5)
        self.bar(P, ("G2", -1))
        self.ts(6); self.tsc(18)
        self.emit(reads(0))
        for u in range(16):
            self.step(P, ("G2", u), mf(u), reads(u + 1) if u < 15 else [], last=int(self.opt.get("g2last", 11)))
        self.ts(7); self.tsc(19)
        e("s_nop 7")
        self.res_epilogue(acc, sXm, 32, 48)
        self.ts(8)

    def a3(self, mat, t, rt): return ((mat * 4 + t) * 4 + rt) * 4
    def a4(self, t, rt): return 128 + (t * 4 + rt) * 4
    V4X, V4W = 243, 244
    XP = {"g3b": [236, 237, 242], "g4": [238, 239, 240, 241]}
    vXA = 191

    def x_g3a(self):
        e = self.e; P = "X"
        XF, WF, vXa, vWa, T0, T1, T2 = 128, 160, 224, 225, 233, 234, 235
        def xf(b, rt): return XF + b * 16 + rt * 4
        def wf(b, mat, t): return WF + b * 32 + (mat * 4 + t) * 4
        e(f"s_lshl_b32 s{sT}, s{sWM}, 13"); e(f"s_add_u32 s{sT}, s{sT}, {LA}")
        e(f"v_add_u32 v{vXa}, s{sT}, v{vL16}")
        e(f"s_lshl_b32 s{sT2}, s{sWN}, 2")
        self.emit(self.waddr256(vWa, [0, 1, 2, 3], sT2, T0, T1))
        self.emit(self.pat_g3b(self.XP["g3b"], T0, T1, T2)); self.emit(self.pat_256(self.XP["g4"], 2048, T0, T1, T2))
        e(f"v_mov_b32 v{self.V4X}, v{vXa}")
        e(f"s_and_b32 s{sT2}, s{sN4}, 1"); e(f"s_lshl_b32 s{sT2}, s{sT2}, 2"); e(f"s_lshl_b32 s{sT}, s{sWN}, 1"); e(f"s_add_u32 s{sT2}, s{sT2}, s{sT}")
        self.emit(self.waddr256(self.V4W, [0, 1, 4, 5], sT2, T0, T1))
        self.h_bases()
        e(f"s_add_u32 s{sGa}, s{sXm}, s{sM4}")
        e(f"s_lshl_b32 s{sRa}, s{sN4}, 14")
        def reads(s):
            b = s & 1; sl = (40 + s) % 6
            xr = [f"ds_read_b128 v[{xf(b,rt)}:{xf(b,rt)+3}], v{vXa} offset:{((s >> 1) % 3) * 16384 + rt * 2048 + (s & 1) * 1024}" for rt in range(4)]
            wr = []
            for t in range(4):
                for mat in range(2):
                    r = wf(b, mat, t); ad = vWa + 4 * (sl // 3) + t; off = (sl % 3) * WSLOT + mat * 8192
                    wr += [f"ds_read_b64_tr_b16 v[{r}:{r+1}], v{ad} offset:{off}", f"ds_read_b64_tr_b16 v[{r+2}:{r+3}], v{ad} offset:{off + 4096}"]
            return wr[0:2] + xr + wr[2:]
        def mf(s):
            b = s & 1
            return [mfma(self.a3(mat, t, rt), wf(b, mat, t), xf(b, rt), "0" if s == 0 else None) for t in range(4) for mat in range(2) for rt in range(4)]
        e("s_waitcnt vmcnt(0) lgkmcnt(0)")
        self.bar(P, ("G3A", -2))
        self.wg_flags(None, self.FL(0, 32))
        self.stats_out(sSTm, 208)
        self.ts(9)
        self.bar(P, ("G3A", -1))
        self.ts(10); self.tsc(20)
        self.emit(reads(0))
        def fn(s, ex):
            extra = []
            if ex: extra.append((28, self.CNT))
            self.step(P, ("G3A", s), mf(s), reads(s + 1) if s < 31 else [], vmw=(0 if s == 2 else None), last=23, extra=extra)
        self.looped(P, 32, 6, fn)
        self.ts(11); self.tsc(21)

    def h_bases(self):
        e = self.e
        e(f"s_and_b32 s{sT}, s{sN4}, 1"); e(f"s_mul_i32 s{sT}, s{sT}, {28 * 16384}"); e(f"s_add_u32 s{sHx}, s{sHo}, s{sT}")
        e(f"s_and_b32 s{sT}, s{sNT}, 7"); e(f"s_lshl_b32 s{sT}, s{sT}, 14"); e(f"s_and_b32 s{sT2}, s{sTile}, 0x3fff")
        e(f"s_add_u32 s{sT}, s{sT}, s{sT2}"); e(f"s_add_u32 s{sGh}, s{sT}, s{sHx}")
        e(f"s_and_b32 s{sT}, s{sNT}, 6"); e(f"s_add_u32 s{sT}, s{sT}, 48"); e(f"s_lshl_b32 s{sT}, s{sT}, 13")
        e(f"s_and_b32 s{sT2}, s{sNT}, 1"); e(f"s_lshl_b32 s{sT2}, s{sT2}, 10"); e(f"s_add_u32 s{sT}, s{sT}, s{sT2}")
        e(f"s_add_u32 s{sT}, s{sT}, s{sM4}"); e(f"s_add_u32 s{sGs}, s{sT}, s{sHx}")

    def epi_loop(self, P, ph, n, vm, work, budget, lag, need, dmas, flags, dead, hook=None):
        pend = []
        for s in range(n):
            ready = [b for b, p in pend if p <= s]
            gate = bool(work) and work[0][1] == ("GATE",)
            self.pb(P, (ph, s), vm.need(*(need(s) + [("H", b) for b in ready])), 0 if gate else None)
            for b in ready: self.wg_flag_if(b & 3, flags[b])
            pend = [(b, p) for b, p in pend if p > s]
            if hook: hook(s)
            dm = dmas(s)
            its = []
            if work and work[0][1] == ("GATE",): work.pop(0)
            if work:
                its = self.chunk(work, budget(s))
                if ("GATE",) in its:
                    k = its.index(("GATE",)); work[0:0] = self.costed(its[k:]); its = its[:k]
            items = []
            for it in its:
                if isinstance(it, tuple) and it[0] == "FLAG":
                    assert s + lag <= dead[it[1]], (ph, it, s)
                    pend.append((it[1], s + lag)); self.info.append(f"{ph}: flag {it[1]} work done in period {s}")
                else: items.append(it)
            self.run_period(dm, items)
        assert not work and not pend, (ph, len(work), pend)
        self.tr_flush(P)

    def x_g3b(self):
        e = self.e; P = "XL"; vm = VM()
        NM, RL, I2, CS, E, OUT = 192, 196, 200, 204, 220, 224
        PT = self.XP
        T0, vCS = 232, 235
        e("s_setprio 1")
        vA = self.vXA
        e(f"v_add_u32 v{vA}, s{sGa}, v{vL16}")
        work = ["s_nop 7"] + self.stat_regs(E, NM, RL, I2, T0)
        work += [f"s_lshl_b32 s{sT}, s{sWN}, 8", f"s_add_u32 s{sT}, s{sT}, {L_CSA}", f"v_lshrrev_b32 v{vCS}, 8, v{vL16}", f"v_lshlrev_b32 v{vCS}, 4, v{vCS}", f"v_add_u32 v{vCS}, s{sT}, v{vCS}"]
        for b in range(2):
            for t in range(2):
                for mat in range(2):
                    c = CS + (t * 2 + mat) * 4
                    work.append(f"ds_read_b128 v[{c}:{c+3}], v{vCS} offset:{mat * 512 + (2 * b + t) * 64}")
            work.append("s_waitcnt lgkmcnt(0)")
            for rt in range(4):
                O = OUT + 4 * (rt & 1)
                for t in range(2):
                    work += self.silu_group(self.a3(0, 2 * b + t, rt), self.a3(1, 2 * b + t, rt), E, RL + rt, I2 + rt, O + 2 * t, NM + rt, CS + t * 8, CS + t * 8 + 4)
                work.append(self.grp(vm, ("H", b), [f"s_add_u32 s{sT}, s{sGh}, {b * 8 * 16384 + rt * 2048}"],
                                     f"buffer_store_dwordx4 v[{O}:{O+3}], v{vL16}, s[{sWS}:{sWS+3}], s{sT} offen sc0 sc1"))
            work.append(("FLAG", b))
        self.w_start(72 + self.xw0, 110)
        def need(s): return [self.wneed(72 + s + 1)] + ([("A", 16 + (s + 1) // 2)] if s & 1 else [])
        def hook(s):
            if s == 25: self.apoll_issue(vm, self.FL(1, 0), 8, T0)
            if s == 27:
                self.apoll_check(vm, self.FL(1, 0), 8, T0)
                e(f"s_add_u32 s{sGa}, s{sHx}, s{sM4}"); e(f"v_add_u32 v{vA}, s{sGa}, v{vL16}")
        def dmas(s):
            dm = []
            if s >= 1:
                idx = 16 + (s - 1) // 2 + 3; part = (s - 1) & 1
                if idx < 32:
                    t = idx - 16
                    dm = self.a_issue(vm, ("A", idx), idx % 3, vA, None, self.ainc(uord(BORD[t + 1]) - uord(BORD[t])) if t < 15 else None, part)
                elif s < 31: dm = self.a_issue(vm, ("A", idx), idx % 3, vA, (idx - 32) * 16384, None, part)
                else: dm = self.a_issue(vm, ("A", idx), idx % 3, vA, (idx - 32) * 16384)
            return dm + self.w_take(vm, PT, 1, 72 + s)
        bud = float(self.opt.get("budX", 28))
        self.epi_loop(P, "G3B", 32, vm, self.costed(work), lambda s: bud, int(self.opt.get("lagX", 4)), need, dmas,
                      [self.FL(1, 0), self.FL(1, 32)], [25, 31], hook)
        assert self.wn == 110
        e("s_setprio 0")
        self.g4w = [vm.need(("W", 104 + u + 1), ("A", 32 + u + 1)) for u in range(7)]

    def x_g4(self):
        e = self.e; P = "X"
        XF, WF = 0, 32
        vXa, vWa = self.V4X, self.V4W
        T0, T1 = 192, 193
        SP, RP, RS = 64, 80, 96
        def xf(b, rt): return XF + b * 16 + rt * 4
        def wf(b, t): return WF + b * 16 + t * 4
        def reads(s):
            b = s & 1; u = s >> 1; sl = (104 + u) % 6
            xr = [f"ds_read_b128 v[{xf(b,rt)}:{xf(b,rt)+3}], v{vXa} offset:{((32 + u) % 3) * 16384 + rt * 2048 + b * 1024}" for rt in range(4)]
            wr = []
            for t in range(4):
                r = wf(b, t); ad = vWa + 4 * (sl // 3) + t; off = (sl % 3) * WSLOT + b * 8192
                wr += [f"ds_read_b64_tr_b16 v[{r}:{r+1}], v{ad} offset:{off}", f"ds_read_b64_tr_b16 v[{r+2}:{r+3}], v{ad} offset:{off + 4096}"]
            return wr[0:2] + xr + wr[2:]
        def mf(s):
            b = s & 1
            return [mfma(self.a4(t, rt), wf(b, t), xf(b, rt), "0" if s == 0 else None) for t in range(4) for rt in range(4)]
        self.emit(reads(0))
        e(f"s_lshl_b32 s{sT}, s{sN4}, 14"); e(f"s_add_u32 s{sT}, s{sT}, s{sM4}")
        e(f"s_add_u32 s{sT}, s{sT}, s{sOo}"); e(f"s_add_u32 s{sGa}, s{sT}, {WS_P}")
        e(f"s_xor_b32 s{sGh}, s{sGa}, {1 << 14}")
        e(f"s_add_u32 s{sD0}, s{sTile}, s{sXm}"); e(f"s_add_u32 s{sD1}, s{sD0}, 4096")
        self.ts(12); self.tsc(22)
        def res(rt): return [f"buffer_load_dwordx4 v[{RS+4*rt}:{RS+4*rt+3}], v{vL16}, s[{sWS}:{sWS+3}], s{sD0 + (rt >> 1)} offen offset:{2048 * (rt & 1)}"]
        def fn(u, ex):
            self.step(P, None, mf(2 * u), reads(2 * u + 1), bar=False, last=11, extra=[(13, res(2 * u - 52))] if u >= 26 else [])
            extra = []
            if ex: extra.append((13, self.CNT))
            if u >= 26: extra.append((13, res(2 * u - 51)))
            self.step(P, ("G4", u), mf(2 * u + 1), reads(2 * u + 2) if u < 27 else [], vmw=(self.g4w[u] if u < 7 else None), last=11, extra=extra)
        self.looped(P, 28, 6, fn)
        self.ts(13); self.tsc(23)
        e("s_nop 7")
        for rt in range(4):
            for t in range(2):
                c = self.a4(2 + t, rt); p = SP + 4 * rt + 2 * t
                e(f"v_cvt_pk_bf16_f32 v{p}, v{c}, v{c+1}"); e(f"v_cvt_pk_bf16_f32 v{p+1}, v{c+2}, v{c+3}")
            for i in range(4): e(f"v_min_u32 v{SP+4*rt+i}, -2, v{SP+4*rt+i}")
            e(f"buffer_store_dwordx4 v[{SP+4*rt}:{SP+4*rt+3}], v{vL16}, s[{sWS}:{sWS+3}], s{sGa} offen offset:{1024 * rt} sc0 sc1")
        def addin(R):
            for rt in range(4):
                for t in range(2):
                    U = 160 + 4 * (t + 2 * (rt & 1))
                    for k in range(2): self.emit(self.unpack(U + 2 * k, R + 4 * rt + 2 * t + k))
                    c = self.a4(t, rt)
                    for k in range(2): e(f"v_pk_add_f32 v[{c+2*k}:{c+2*k+1}], v[{c+2*k}:{c+2*k+1}], v[{U+2*k}:{U+2*k+1}]")
        e("s_waitcnt vmcnt(4)")
        addin(RS)
        lp, ld = self.lab("poll"), self.lab("pd")
        e(f"s_mov_b32 s{sT2}, {POLL}")
        self.label(lp)
        for rt in range(4):
            e(f"buffer_load_dwordx4 v[{RP+4*rt}:{RP+4*rt+3}], v{vL16}, s[{sWS}:{sWS+3}], s{sGh} offen offset:{1024 * rt} sc0 sc1")
        e("s_waitcnt vmcnt(0)")
        e(f"v_max3_u32 v{T0}, v{RP}, v{RP+1}, v{RP+2}"); e(f"v_max3_u32 v{T1}, v{RP+3}, v{RP+4}, v{RP+5}")
        for k in range(6, 14, 4):
            e(f"v_max3_u32 v{T0}, v{T0}, v{RP+k}, v{RP+k+1}"); e(f"v_max3_u32 v{T1}, v{T1}, v{RP+k+2}, v{RP+k+3}")
        e(f"v_max3_u32 v{T0}, v{T0}, v{RP+14}, v{RP+15}"); e(f"v_max_u32 v{T0}, v{T0}, v{T1}")
        e(f"v_cmp_eq_u32 vcc, -1, v{T0}")
        e(f"s_cbranch_vccz {ld}")
        e(f"s_sub_u32 s{sT2}, s{sT2}, 1"); e(f"s_cmp_lg_u32 s{sT2}, 0"); e(f"s_cbranch_scc1 {lp}")
        self.label(ld)
        addin(RP)
        self.ts(14)
        self.tr_dump("X")

    def x_final(self):
        e = self.e
        T0, T1, PK = 192, 193, 0
        e(f"v_and_b32 v{T0}, 0xf0, v{vL16}"); e(f"v_lshlrev_b32 v{T0}, 7, v{T0}")
        e(f"v_and_b32 v{T1}, 0x100, v{vL16}"); e(f"v_lshrrev_b32 v{T1}, 3, v{T1}"); e(f"v_add_u32 v{T0}, v{T0}, v{T1}")
        e(f"v_and_b32 v{T1}, 0x200, v{vL16}"); e(f"v_lshrrev_b32 v{T1}, 5, v{T1}"); e(f"v_add_u32 v{T0}, v{T0}, v{T1}")
        e(f"s_lshl_b32 s{sT}, s{sMT}, 18"); e(f"s_lshl_b32 s{sT2}, s{sWM}, 17"); e(f"s_add_u32 s{sT}, s{sT}, s{sT2}")
        e(f"s_lshl_b32 s{sT2}, s{sN4}, 7"); e(f"s_add_u32 s{sT}, s{sT}, s{sT2}")
        e(f"s_lshl_b32 s{sT2}, s{sWN}, 6"); e(f"s_add_u32 s{sT}, s{sT}, s{sT2}")
        for rt in range(4):
            for t in range(2):
                c = self.a4(t, rt)
                e(f"v_cvt_pk_bf16_f32 v{PK+4*rt+2*t}, v{c}, v{c+1}"); e(f"v_cvt_pk_bf16_f32 v{PK+4*rt+2*t+1}, v{c+2}, v{c+3}")
            e("s_nop 1")
            e(f"v_permlane16_swap_b32 v{PK+4*rt}, v{PK+4*rt+2}"); e(f"v_permlane16_swap_b32 v{PK+4*rt+1}, v{PK+4*rt+3}")
            e(f"buffer_store_dwordx4 v[{PK+4*rt}:{PK+4*rt+3}], v{T0}, s[{sOUT}:{sOUT+3}], s{sT} offen{self.opt.get('osc', '').replace('_', ' ')}")
            e(f"s_add_u32 s{sT}, s{sT}, {16 * 2048}")

    YP = {"g1": [200, 201, 202], "g2": [203, 204, 205, 206], "g3a": [207, 208, 209, 210], "g3b": [211, 212, 222], "g4": [213, 214, 215, 216]}
    YAP = [217, 218, 219, 220]
    YT = [224, 225, 226, 227]
    vHP, vPL = 221, 251
    sJ, sJo, sXc, sRt = sAT, sAT + 4, sAT + 5, sAT + 6
    sHm = sAT + 12

    def g1_src(self, first):
        e = self.e; T0, T1, T2, _ = self.YT; AP = self.YAP
        if first:
            e(f"s_lshl_b32 s{sT}, s{sMT}, 18"); e(f"s_lshl_b32 s{sT2}, s{sM4}, 4"); e(f"s_add_u32 s{sGa}, s{sT}, s{sT2}")
            e(f"s_lshl_b32 s{sT2}, s{sWM}, 14"); e(f"s_add_u32 s{sGh}, s{sT}, s{sT2}"); e(f"s_sub_u32 s{sGh}, s{sGh}, 32768")
            self.emit(self.pat_128(AP, 2048, T0, T1, T2, sGa))
            e(f"s_lshl_b32 s{sRa}, s{sN4}, 7")
        else:
            for i in range(4): e(f"s_mov_b32 s{sA1+i}, s{sWS+i}")
            e(f"s_add_u32 s{sGa}, s{sX2}, s{sM4}")
            e(f"s_lshl_b32 s{sT2}, s{sWM}, 10"); e(f"s_add_u32 s{sGh}, s{sX2}, s{sT2}"); e(f"s_sub_u32 s{sGh}, s{sGh}, {ARENA - 14336}")
            e(f"v_add_u32 v{AP[0]}, s{sGa}, v{vL16}")
            e(f"s_lshl_b32 s{sRa}, s{sN4}, 14")
        e(f"s_cmp_eq_u32 s{sMT}, 0"); e(f"s_cselect_b32 s{sGh}, {OOB}, s{sGh}")
        e(f"s_sub_u32 s{sGh}, s{sGh}, s{sGa}"); e(f"v_add_u32 v{self.vHP}, s{sGh}, v{AP[0]}")
        e(f"s_lshl_b32 s{sSu}, s{sWM}, 10")
        e(f"s_cmp_eq_u32 s{sWN}, 0"); e(f"s_cselect_b32 s{self.sHm}, -1, 0"); e(f"s_not_b32 s{self.sHm+1}, s{self.sHm}")

    def g1_a(self, vm, first, u, part=None):
        g = []; base = LA + (u % 3) * 18432
        if part in (None, 0):
            g.append(self.grp(vm, ("A", u), [f"s_add_u32 m0, s{sSu}, {base}", f"s_mov_b64 exec, s[{self.sHm}:{self.sHm+1}]"],
                              f"buffer_load_dwordx4 v{self.vHP}, s[{sA1}:{sA1+3}], s{sRa} offen lds", ["s_mov_b64 exec, -1"]))
        inc = self.ainc(uord(u + 1) - uord(u), 128 if first else 16384) if u < 15 else None
        return g + self.a_issue(vm, ("A", u), 0, self.YAP[0], None, inc, part, sA1, self.YAP if first else None, base + 2048)

    def stats_gather(self, vm, s, s0, sST, R, AC, fin):
        e = self.e; T0, T1, T2, T3 = self.YT; it = []
        if s == s0:
            it.append([f"v_and_b32 v{T2}, 0xf0, v{vL16}", f"v_and_b32 v{T3}, 0x300, v{vL16}", f"v_lshl_add_u32 v{T3}, v{T3}, 2, v{T2}",
                       f"s_lshl_b32 s{self.sRt}, s{sLW}, 8", f"s_add_u32 s{self.sRt}, s{self.sRt}, s{sST}"])
        if s0 <= s < s0 + 4:
            k = s - s0
            it.append(self.grp(vm, "S", [], f"buffer_load_dwordx4 v[{R+4*k}:{R+4*k+3}], v{T3}, s[{sWS}:{sWS+3}], s{self.sRt} offen", [f"s_add_u32 s{self.sRt}, s{self.sRt}, 4096"]))
        if s == s0 + 6:
            self.wait(vm.need("S"))
            it += [f"v_add_f32 v{R+r}, v{R+r}, v{R+4+r}" for r in range(4)] + [f"v_add_f32 v{R+8+r}, v{R+8+r}, v{R+12+r}" for r in range(4)]
            it += [f"v_add_f32 v{AC+r}, v{R+r}, v{R+8+r}" for r in range(4)]
            it += self.xred(list(range(AC, AC + 4)), list(range(R, R + 4)), steps=("v_permlane16_swap_b32",))
        if s == s0 + 7:
            it += self.xred(list(range(AC, AC + 4)), list(range(R, R + 4)), steps=("v_permlane32_swap_b32",))
        if s == s0 + 8: it += self.finish_stats(AC, AC + 1)
        if s == s0 + 9: it += self.finish_stats(AC + 2, AC + 3) + fin
        return it

    def y_start(self, vm):
        e = self.e; T0, T1, T2, T3 = self.YT; PT = self.YP
        self.emit(self.pat_g1(PT, T0, T1, T2, True))
        self.w_start(0, 38)
        self.run_period(self.w_take(vm, PT, 1, 0), [])
        self.g1_src(True)
        tpos = int(self.opt.get("tpos", 1))
        for n in range(6):
            if n: self.run_period(self.w_take(vm, PT, 1, 0), [])
            if n == tpos: self.y_touch(vm)
            if n < 3: self.run_period(self.g1_a(vm, True, n), [])
        if tpos > 5: self.y_touch(vm)

    def y_touch(self, vm):
        e = self.e; T0 = self.YT[3]
        sJ = self.sJ
        e("s_cmp_lt_u32 s2, 128")
        e(f"s_cselect_b32 s{sJ}, s{sAT+8}, s{sAT+10}"); e(f"s_cselect_b32 s{sJ+1}, s{sAT+9}, s{sAT+11}")
        e(f"s_mov_b32 s{sJ+2}, {1024 * 7168}"); e(f"s_mov_b32 s{sJ+3}, 0x00020000")
        e(f"s_and_b32 s{sT}, s2, 127"); e(f"s_mul_i32 s{sT}, s{sT}, {448 * 128}"); e(f"s_lshl_b32 s{sT2}, s{sLW}, 14"); e(f"s_add_u32 s{sT}, s{sT}, s{sT2}")
        e(f"v_lshlrev_b32 v{T0}, 3, v{vL16}")
        e(f"buffer_load_dword v{self.vPL}, v{T0}, s[{sJ}:{sJ+3}], s{sT} offen"); vm.issue("t")
        l, l2 = self.lab("t"), self.lab("t")
        e(f"s_cmp_eq_u32 s{sLW}, 3"); e(f"s_cbranch_scc1 {l}")
        e(f"s_add_u32 s{sT}, s{sT}, 8192")
        e(f"buffer_load_dword v{self.vPL}, v{T0}, s[{sJ}:{sJ+3}], s{sT} offen"); e(f"s_branch {l2}")
        self.label(l)
        e(f"s_lshl_b32 s{sT}, s2, 13")
        e(f"buffer_load_dword v{self.vPL}, v{T0}, s[{sWO}:{sWO+3}], s{sT} offen")
        self.label(l2); vm.issue("t")

    def y_g1(self, vm, first):
        e = self.e; P = "Y1" if first else "Y"; T0, T1, T2, T3 = self.YT; PT = self.YP; vPL = self.vPL
        sJ, sJo, sXc, sRt = self.sJ, self.sJo, self.sXc, self.sRt
        JB, RB, G, CQ, vJ, vR, vHs = 0, 64, 72, 76, 96, 97, 98
        if not first:
            self.g1_src(False)
            e(f"s_add_u32 s{sD0}, s{sFL}, {(64 - 128) & 0xffffffff}"); e(f"s_add_u32 s{sD1}, s{sFl}, {4 * 2048 - 128}")
            e(f"s_and_b32 s{sT}, s{sMT}, 3")
            e(f"s_cselect_b32 s{sD0}, s{sD0}, s{sD1}"); e(f"s_cselect_b32 s{sD1}, 28, 60")
            e(f"s_add_u32 s{sT}, s{sFL}, 64")
            e(f"s_cmp_eq_u32 s{sMT}, 0"); e(f"s_cselect_b32 s{sD0}, s{sT}, s{sD0}"); e(f"s_cselect_b32 s{sD1}, 28, s{sD1}")
            e(f"v_lshrrev_b32 v{T0}, 2, v{vL16}"); e(f"v_and_b32 v{T0}, 60, v{T0}")
            e(f"v_min_u32 v{T1}, s{sD1}, v{T0}"); e(f"v_add_u32 v{T1}, s{sD0}, v{T1}")
            e(f"v_min_u32 v{T0}, 28, v{T0}"); e(f"v_add_u32 v{T0}, s{sT}, v{T0}")
            e(f"v_cmp_gt_u32 vcc, 256, v{vL16}"); e(f"v_lshlrev_b32 v{T2}, 3, v{vL16}"); e(f"v_and_b32 v{T2}, 0xfff, v{T2}")
            e(f"v_cndmask_b32 v{T0}, v{T1}, v{T0}, vcc")
            e(f"s_add_u32 s{sDa}, s{sGa}, s{sRa}")
            e("s_barrier")
            e(f"buffer_load_dword v{vPL}, v{T2}, s[{sWS}:{sWS+3}], s{sDa} offen sc0 sc1")
            lp, ld = self.lab("poll"), self.lab("pd")
            e(f"s_mov_b32 s{sT2}, {POLL}")
            self.label(lp)
            e(f"buffer_load_dword v{T1}, v{T0}, s[{sWS}:{sWS+3}], 0 offen sc0 sc1")
            e("s_waitcnt vmcnt(0)")
            e(f"v_cmp_ne_u32 vcc, 0x01010101, v{T1}"); e(f"s_cbranch_vccz {ld}")
            e("s_sleep 1"); e(f"s_sub_u32 s{sT2}, s{sT2}, 1"); e(f"s_cmp_lg_u32 s{sT2}, 0"); e(f"s_cbranch_scc1 {lp}")
            self.label(ld)
            vm.clear()
            for u in range(3): self.run_period(self.g1_a(vm, False, u), [])
        e("s_setprio 1")
        self.pb(P, ("G1", -1), vm.need(("W", 0), ("A", 0)))
        self.w_start(6, 38)
        j0 = int(self.opt.get("j0", 10)); jn = int(self.opt.get("jn", 1)); g = int(self.opt.get("gat", 13)); r0 = int(self.opt.get("r0", 8))
        for s in range(32):
            need = ([self.wneed(s + 1)] if s < 31 else []) + ([("A", (s + 1) // 2)] if s & 1 else [])
            self.pb(P, ("G1", s), vm.need(*need), 0 if s == 31 else None)
            it = []; post = []
            if first:
                if s == 0:
                    it += self.atomize(self.pat_128(PT["g2"], 2048, T0, T1, T2, sB2) + self.pat_256(PT["g3a"], 7168, T0, T1, T2, sB3))
                if s == 1:
                    it += self.atomize(self.pat_g3b(PT["g3b"], T0, T1, T2) + self.pat_256(PT["g4"], 2048, T0, T1, T2))
                if s == 2:
                    it.append([f"s_lshr_b32 s{sT}, s2, 1", f"s_cmp_lt_u32 s{sT}, 56",
                               f"s_cselect_b32 s{sJ}, s{sAT+8}, s{sAT+10}", f"s_cselect_b32 s{sJ+1}, s{sAT+9}, s{sAT+11}",
                               f"s_cselect_b32 s{sT2}, 0, 56", f"s_sub_u32 s{sT}, s{sT}, s{sT2}", f"s_lshl_b32 s{sJo}, s{sT}, 7",
                               f"s_and_b32 s{sT}, s2, 1", f"s_lshl_b32 s{sT}, s{sT}, 2", f"s_add_u32 s{sT}, s{sT}, s{sLW}", f"s_mul_i32 s{sT}, s{sT}, {128 * 7168}",
                               f"s_add_u32 s{sJo}, s{sJo}, s{sT}", "s_cmp_lt_u32 s2, 224", f"s_cselect_b32 s{sJo}, s{sJo}, {OOB}"])
                    it += [f"v_lshrrev_b32 v{vJ}, 7, v{vL16}", f"v_mul_u32_u24 v{vJ}, 7168, v{vJ}", f"v_and_b32 v{T0}, 0x70, v{vL16}", f"v_add_u32 v{vJ}, v{vJ}, v{T0}"]
                    it += [f"v_lshrrev_b32 v{vR}, 6, v{vL16}", f"v_mul_u32_u24 v{vR}, 7168, v{vR}", f"v_lshrrev_b32 v{T0}, 3, v{vL16}", f"v_and_b32 v{T0}, 0x20, v{T0}",
                           f"v_and_b32 v{T1}, 0x30, v{vL16}", f"v_xor_b32 v{T0}, v{T0}, v{T1}", f"v_add_u32 v{vR}, v{vR}, v{T0}"]
                if s == 3: it.append(self.xcc_word(sXc))
                if s == int(self.opt.get("pf", 2)):
                    def hs():
                        l = self.lab("hs")
                        e(f"s_cmp_lg_u32 s{sLW}, 1"); e(f"s_cbranch_scc1 {l}")
                        self.side_flag(0)
                        self.label(l)
                    post.append(hs)
                if s == r0:
                    it.append([f"s_lshr_b32 s{sT}, s2, 3", f"s_lshl_b32 s{sT}, s{sT}, 1", f"s_add_u32 s{sT}, s{sT}, s{sWN}", f"s_and_b32 s{sT2}, s2, 7",
                               f"s_lshl_b32 s{sRt}, s{sWM}, 3", f"s_add_u32 s{sRt}, s{sRt}, s{sT2}", f"s_lshl_b32 s{sRt}, s{sRt}, 7", f"s_add_u32 s{sRt}, s{sRt}, s{sT}",
                               f"s_lshl_b32 s{sRt}, s{sRt}, 10", f"s_add_u32 s{sRt}, s{sRt}, {WS_RT}",
                               f"s_mul_i32 s{sT}, s{sT}, {16 * 7168}", f"s_mul_i32 s{sT2}, s{sT2}, 896", f"s_add_u32 s{sEX}, s{sT}, s{sT2}"])
                    for h in range(2):
                        it.append(self.grp(vm, "R", [], f"buffer_load_dwordx4 v[{RB+4*h}:{RB+4*h+3}], v{vR}, s[{sW13}:{sW13+3}], s{sEX} offen offset:{384 + 64 * h}"))
                if s == r0 + 4:
                    self.wait(vm.need("R"))
                    for h in range(2):
                        it.append(self.grp(vm, "r", [], f"buffer_store_dwordx4 v[{RB+4*h}:{RB+4*h+3}], v{vL16}, s[{sWS}:{sWS+3}], s{sRt} offen sc0 sc1", [f"s_add_u32 s{sRt}, s{sRt}, 65536"]))
                for k in range(16):
                    if min(j0 + k // jn, 31) != s: continue
                    b = JB + 4 * k
                    post.append(self.grp(vm, "J", [], f"buffer_load_dwordx4 v[{b}:{b+3}], v{vJ}, s[{sJ}:{sJ+3}], s{sJo} offen", [f"s_add_u32 s{sJo}, s{sJo}, {8 * 7168}"]))
                if s == g:
                    e(f"v_lshlrev_b32 v{T3}, 1, v{vL16}"); e(f"v_and_b32 v{T3}, 0xff, v{T3}")
                    e(f"buffer_load_dword v{vHs}, v{T3}, s[{sDBG}:{sDBG+3}], 0 offen sc0 sc1"); vm.issue("hs")
                if s == g + 3:
                    lp, ld_ = self.lab("hs"), self.lab("hs")
                    self.wait(vm.need("hs"))
                    e(f"s_mov_b32 s{sT2}, {POLL}")
                    self.label(lp)
                    e(f"v_and_b32 v{T1}, 63, v{vHs}")
                    e(f"v_cmp_ne_u32 vcc, 32, v{T1}")
                    e(f"s_cbranch_vccz {ld_}")
                    e(f"buffer_load_dword v{vHs}, v{T3}, s[{sDBG}:{sDBG+3}], 0 offen sc0 sc1")
                    e("s_waitcnt vmcnt(0)")
                    e(f"s_sub_u32 s{sT2}, s{sT2}, 1"); e(f"s_cmp_lg_u32 s{sT2}, 0"); e(f"s_cbranch_scc1 {lp}")
                    self.label(ld_)
                    self.apoll4_issue(vm, 0, G)
                    it.append([f"s_and_b32 s{sT}, s2, 7", f"s_lshl_b32 s{sT2}, s{sXc}, 5", f"v_readlane_b32 s{sT}, v{vHs}, s{sT}", "s_nop 3",
                               f"s_cmp_lg_u32 s{sT}, s{sT2}", f"s_cselect_b32 s{sMODE}, 1, 0",
                               f"v_mov_b32 v{T0}, {L_MODE}", f"v_mov_b32 v{T1}, s{sMODE}", f"ds_write_b32 v{T0}, v{T1}"])
                if s == g + 4:
                    it += self.atomize([f"v_and_b32 v{T2}, 0xf0, v{vL16}", f"v_min_u32 v{T2}, 0xb0, v{T2}", f"s_mul_i32 s{sT}, s{sLW}, 192", f"v_add_u32 v{T2}, s{sT}, v{T2}",
                                        f"v_lshrrev_b32 v{T0}, 8, v{T2}", f"v_and_b32 v{T1}, 0xff, v{T2}", f"v_lshl_add_u32 v{T0}, v{T0}, 12, v{T1}",
                                        f"v_lshrrev_b32 v{T1}, 8, v{vL16}", f"v_mul_u32_u24 v{T1}, 12288, v{T1}", f"v_add_u32 v{T3}, v{T0}, v{T1}"])
                if s == g + 6:
                    self.apoll4_check(vm, 0, G)
                    it.append(self.grp(vm, "g0", [f"v_lshrrev_b32 v{T0}, 1, v{vL16}", f"s_lshl_b32 s{sT}, s{sMT}, 10", f"s_mul_i32 s{sT2}, s{sLW}, 288", f"s_add_u32 s{sT}, s{sT}, s{sT2}",
                                                  f"s_add_u32 s{sT}, s{sT}, {WS_ST0 - 128}"],
                                       f"buffer_load_dwordx2 v[{G}:{G+1}], v{T0}, s[{sWS}:{sWS+3}], s{sT} offen sc1",
                                       [f"s_lshl_b32 s{sEX}, s{sN4}, 8", f"s_add_u32 s{sEX}, s{sEX}, {WS_CSQ}"]))
                if g + 6 <= s < g + 8:
                    for k in (2 * (s - g - 6), 2 * (s - g - 6) + 1):
                        it.append(self.grp(vm, "g1", [], f"buffer_load_dwordx4 v[{CQ+4*k}:{CQ+4*k+3}], v{T3}, s[{sWS}:{sWS+3}], s{sEX} offen sc1", [f"s_add_u32 s{sEX}, s{sEX}, 49152"]))
                if s == g + 10:
                    self.wait(vm.need("g0"))
                    it.append([f"s_or_b32 s{sT}, s{sMT}, s{sLW}", f"s_cmp_eq_u32 s{sT}, 0", f"s_cselect_b32 s{sEX}, 0xffff, 0", f"s_mov_b32 s{sEX+1}, 0",
                               f"v_cndmask_b32 v{G}, v{G}, 0, s[{sEX}:{sEX+1}]", f"v_cndmask_b32 v{G+1}, v{G+1}, 0, s[{sEX}:{sEX+1}]"])
                    it += self.finish_stats(G, G + 1)
                if s == g + 11:
                    self.wait(vm.need("g1"))
                    it.append([f"v_lshrrev_b32 v{T0}, 2, v{vL16}", f"s_mul_i32 s{sT}, s{sLW}, 144", f"s_add_u32 s{sT}, s{sT}, {L_ST}", f"v_add_u32 v{T0}, s{sT}, v{T0}",
                               f"v_sub_f32 v{G}, 0, v{G}", f"s_mov_b32 s{sEX}, -1", f"s_mov_b32 s{sEX+1}, 0xf", f"s_mov_b64 exec, s[{sEX}:{sEX+1}]",
                               f"ds_write_b32 v{T0}, v{G}", f"ds_write_b32 v{T0}, v{G+1} offset:576", "s_mov_b64 exec, -1"])
                    it += [f"v_add_f32 v{CQ+r}, v{CQ+r}, v{CQ+4+r}" for r in range(4)] + [f"v_add_f32 v{CQ+8+r}, v{CQ+8+r}, v{CQ+12+r}" for r in range(4)]
                    it += [f"v_add_f32 v{CQ+r}, v{CQ+r}, v{CQ+8+r}" for r in range(4)]
                if s == g + 12:
                    it += self.xred(list(range(CQ, CQ + 4)), list(range(CQ + 4, CQ + 8)))
                    it += [f"v_add_u32 v{T2}, {L_CSQ}, v{T2}", f"ds_write_b128 v{T2}, v[{CQ}:{CQ+3}]"]
                if s == int(self.opt.get("w2at", 99)):
                    it.append(self.grp(vm, "t", [f"v_lshlrev_b32 v{T0}, 3, v{vL16}", f"s_lshl_b32 s{sT}, s2, 2", f"s_add_u32 s{sT}, s{sT}, s{sLW}", f"s_lshl_b32 s{sT}, s{sT}, 13"],
                                       f"buffer_load_dword v{vPL}, v{T0}, s[{sW2}:{sW2+3}], s{sT} offen"))
            else:
                if s == 2: post.append(lambda: self.wg_flag_if(0, self.FG(7)))
                if s == 7:
                    e(f"v_lshrrev_b32 v{T0}, 2, v{vL16}"); e(f"v_and_b32 v{T1}, 64, v{T0}"); e(f"v_and_b32 v{T0}, 60, v{T0}")
                    e(f"s_cmp_eq_u32 s{sMT}, 0"); e(f"s_cselect_b32 s{sT}, 0, 2")
                    e(f"v_mul_lo_u32 v{T1}, v{T1}, s{sT}"); e(f"v_sub_u32 v{vHs}, v{T0}, v{T1}"); e(f"v_add_u32 v{vHs}, {7 * 2048}, v{vHs}")
                    e(f"buffer_load_dword v{vPL}, v{vHs}, s[{sWS}:{sWS+3}], s{sFl} offen sc0 sc1"); vm.issue("ap")
                if s == 10:
                    lp, ld = self.lab("poll"), self.lab("pd")
                    self.wait(vm.need("ap"))
                    e(f"s_mov_b32 s{sT2}, {POLL}")
                    self.label(lp)
                    e(f"v_cmp_ne_u32 vcc, 0x01010101, v{vPL}"); e(f"s_cbranch_vccz {ld}")
                    e(f"buffer_load_dword v{vPL}, v{vHs}, s[{sWS}:{sWS+3}], s{sFl} offen sc0 sc1"); e("s_waitcnt vmcnt(0)")
                    e(f"s_sub_u32 s{sT2}, s{sT2}, 1"); e(f"s_cmp_lg_u32 s{sT2}, 0"); e(f"s_cbranch_scc1 {lp}")
                    self.label(ld)
                AC = 16
                fin = [[f"v_lshrrev_b32 v{T2}, 1, v{T2}", f"s_lshl_b32 s{sT}, s{sLW}, 7", f"s_add_u32 s{sT}, s{sT}, {L_ST + 64}", f"v_add_u32 v{T2}, s{sT}, v{T2}",
                        f"v_sub_f32 v{AC}, 0, v{AC}", f"v_sub_f32 v{AC+2}, 0, v{AC+2}",
                        f"ds_write2_b32 v{T2}, v{AC}, v{AC+2} offset0:0 offset1:1", f"ds_write2_b32 v{T2}, v{AC+1}, v{AC+3} offset0:144 offset1:145"]]
                it += self.stats_gather(vm, s, 11, sSTo, 0, AC, fin)
                H = 24
                if s == 16:
                    it.append([f"v_lshrrev_b32 v{T0}, 7, v{vL16}", f"v_and_b32 v{vR}, 0x70, v{vL16}", f"v_lshl_add_u32 v{T0}, v{T0}, 10, v{vR}",
                               f"s_sub_u32 s{sEX}, s{sSTo}, {ARENA - 896}", f"s_cmp_eq_u32 s{sMT}, 0", f"s_cselect_b32 s{sEX}, {OOB}, s{sEX}"])
                    for k in range(2):
                        it.append(self.grp(vm, "h", [], f"buffer_load_dwordx4 v[{H+4*k}:{H+4*k+3}], v{T0}, s[{sWS}:{sWS+3}], s{sEX} offen", [f"s_add_u32 s{sEX}, s{sEX}, 8192"]))
                if s == 21:
                    self.wait(vm.need("h"))
                    it += [f"v_add_f32 v{H+r}, v{H+r}, v{H+4+r}" for r in range(4)] + ["s_nop 1"]
                    it += [f"v_add_f32_dpp v{H+r}, v{H+r}, v{H+r} row_ror:8 row_mask:0xf bank_mask:0xf" for r in range(4)]
                    it += self.xred(list(range(H, H + 4)), list(range(H + 4, H + 8)), steps=("v_permlane16_swap_b32",))
                if s == 22: it += self.xred(list(range(H, H + 4)), list(range(H + 4, H + 8)), steps=("v_permlane32_swap_b32",))
                if s == 23: it += self.finish_stats(H, H + 1)
                if s == 24:
                    it += self.finish_stats(H + 2, H + 3)
                    it += [f"v_lshrrev_b32 v{vR}, 1, v{vR}", f"v_add_u32 v{vR}, {L_ST}, v{vR}", f"v_sub_f32 v{H}, 0, v{H}", f"v_sub_f32 v{H+2}, 0, v{H+2}",
                           f"ds_write2_b32 v{vR}, v{H}, v{H+2} offset0:0 offset1:1", f"ds_write2_b32 v{vR}, v{H+1}, v{H+3} offset0:144 offset1:145"]
            dm = []
            if s >= 1 and (s - 1) // 2 + 3 < 16: dm = self.g1_a(vm, first, (s - 1) // 2 + 3, (s - 1) & 1)
            self.run_period(dm + self.w_take(vm, PT, 1, s), it)
            self.run_period([], post)
        assert self.wn == 38 and g + 12 <= 30
        self.tr_flush(P)
        e("s_setprio 0")

    def job_finish(self):
        e = self.e; T0, T1 = self.YT[:2]; JB = 0
        l = self.lab("jf")
        e(f"s_cmp_lg_u32 s{sLAY}, 0"); e(f"s_cbranch_scc1 {l}")
        if True:
            AC, S = 100, 104
            self.emit(self.selector(S, T0, T1)); e("s_nop 1")
            for i in range(16): e(mfma(AC, S, JB + 4 * i, "0" if i == 0 else None))
            e(f"s_and_b32 s{sT2}, s2, 1"); e(f"s_lshl_b32 s{sT2}, s{sT2}, 2"); e(f"s_add_u32 s{sT2}, s{sT2}, s{sLW}"); e(f"s_mul_i32 s{sT2}, s{sT2}, 28672")
            e(f"s_lshr_b32 s{sT}, s2, 1"); e(f"s_lshl_b32 s{sT}, s{sT}, 8")
            e(f"s_add_u32 s{sT}, s{sT}, s{sT2}"); e(f"s_add_u32 s{sT}, s{sT}, {WS_CS13}")
            e("s_cmp_lt_u32 s2, 224"); e(f"s_cselect_b32 s{sT}, s{sT}, {OOB}")
            e(f"v_and_b32 v{T0}, 0x70, v{vL16}"); e(f"v_lshrrev_b32 v{T1}, 4, v{vL16}"); e(f"v_and_b32 v{T1}, 16, v{T1}"); e(f"v_lshl_add_u32 v{T0}, v{T0}, 1, v{T1}")
            e("s_nop 2")
            for r in range(4): e(f"v_add_f32_dpp v{AC+r}, v{AC+r}, v{AC+r} row_ror:8 row_mask:0xf bank_mask:0xf")
            e("s_mov_b64 exec, 0x00ff00ff")
            e(f"buffer_store_dwordx4 v[{AC}:{AC+3}], v{T0}, s[{sWS}:{sWS+3}], s{sT} offen sc0 sc1")
            e("s_mov_b64 exec, -1")
        self.label(l)

    def y_g2(self):
        e = self.e; P = "Y"; vm = VM(); T0, T1, T2, _ = self.YT; PT = self.YP; vPL = self.vPL
        e(f"v_lshlrev_b32 v{T0}, 7, v{vL16}")
        e(f"s_lshl_b32 s{sT}, s{sWN}, 19"); e(f"s_add_u32 s{sT}, s{sT}, s{sRw}"); e(f"s_and_b32 s{sT}, s{sT}, {(16 << 17) - 1}"); e(f"s_add_u32 s{sT}, s{sT}, s{sB1}")
        e(f"buffer_load_dword v{vPL}, v{T0}, s[{sWO}:{sWO+3}], s{sT} offen")
        for i in range(4): e(f"v_mov_b32 v{112+i}, -1")
        e(f"s_lshl_b32 s{sRa}, s{sN4}, 14")
        vA = self.YAP[0]
        e(f"s_add_u32 s{sGa}, s{sOo}, s{sM4}"); e(f"v_add_u32 v{vA}, s{sGa}, v{vL16}")
        e(f"s_add_u32 s{sT}, s{sGa}, s{sRa}"); e(f"s_add_u32 s{sT}, s{sT}, {WS_P}")
        for i in range(4): e(f"buffer_store_dwordx4 v[112:115], v{vL16}, s[{sWS}:{sWS+3}], s{sT} offen offset:{1024 * i} sc0 sc1")
        self.warm("A")
        def A(u): return self.a_issue(vm, ("A", u), u % 3, vA, None, self.ainc(uord(u + 1) - uord(u)) if u < 15 else None)
        self.bar(P, ("G2", -2))
        self.run_period(A(0), [])
        self.pb(P, ("G2", -1), 0)
        self.poll_flags(self.FL(0, 0), 8); vm.clear()
        self.run_period(A(1) + A(2), [])
        npre = int(self.opt.get("g2pre", 3)); g2w = int(self.opt.get("g2w", 13))
        sched = {1: 1, 3: 1}
        for k in range(npre): sched[min(g2w + k, 15)] = sched.get(min(g2w + k, 15), 0) + 1
        self.w_start(38, 72 + self.xw0)
        for u in range(16):
            need = ([("A", u + 1)] if u < 15 else []) + ([self.wneed(32 + (u + 1) // 2)] if (u & 1 and u < 15) else [])
            self.pb(P, ("G2", u), vm.need(*need))
            if u == 3: self.apoll_issue(vm, self.FG(0), 16, vPL)
            if u == 5: self.apoll_check(vm, self.FG(0), 16, vPL)
            self.run_period((A(u + 3) if u + 3 < 16 else []) + self.w_take(vm, PT, sched.get(u, 0), 32 + (u - 1) // 2), [])
        self.job_finish()
        return vm

    def b3(self, mat, t, rt): return ((mat * 3 + t) * 4 + rt) * 4
    VBX, VBW, YRL, YI2 = 176, 177, 184, 188

    def y_g3a(self, vm):
        e = self.e; P = "Y"; T0, T1, T2, T3 = self.YT; PT = self.YP; vPL = self.vPL
        R = 96; AC = 192; NM = 196; CS = 96; CT = 128
        vA = self.YAP[0]
        e(f"s_add_u32 s{sGa}, s{sXm}, s{sM4}"); e(f"s_lshl_b32 s{sRa}, s{sN4}, 14"); e(f"v_add_u32 v{vA}, s{sGa}, v{vL16}")
        self.h_bases()
        def A(u, part=None): return self.a_issue(vm, ("A", u), u % 3, vA, None, self.ainc(uord(u + 1) - uord(u)) if u < 15 else None, part)
        self.bar(P, ("G3A", -2))
        self.run_period(A(0), [])
        self.pb(P, ("G3A", -1), 0); vm.clear()
        self.apoll_issue(vm, self.FL(0, 32), 8, vPL)
        e("s_setprio 1")
        work = self.stat_regs(R, NM, self.YRL, self.YI2, T0)
        work += [f"v_lshrrev_b32 v{T0}, 8, v{vL16}", f"v_lshlrev_b32 v{T0}, 4, v{T0}", f"v_add_u32 v{T0}, {L_CSB}, v{T0}",
                 f"s_and_b32 s{sT2}, s{sNT}, 1", f"s_add_u32 s{sT}, s{sT2}, s{sWN}", f"s_lshl_b32 s{sT}, s{sT}, 7", f"v_add_u32 v{T1}, s{sT}, v{T0}",
                 f"s_xor_b32 s{sT2}, s{sT2}, 1", f"s_lshl_b32 s{sT2}, s{sT2}, 2", f"s_add_u32 s{sT2}, s{sT2}, s{sWN}", f"s_lshl_b32 s{sT2}, s{sT2}, 6", f"v_add_u32 v{T0}, s{sT2}, v{T0}"]
        for mat in range(2):
            for t in range(3):
                c = CS + (mat * 3 + t) * 4
                work.append(f"ds_read_b128 v[{c}:{c+3}], v{T1 if t < 2 else T0} offset:{mat * 512 + (64 * t if t < 2 else 0)}")
        work.append("s_waitcnt lgkmcnt(0)")
        for mat in range(2):
            for t in range(3):
                for rt in range(4):
                    work += [f"v_mul_f32 v{self.b3(mat,t,rt)+r}, v{NM+rt}, v{CS+(mat*3+t)*4+r}" for r in range(4)]
        work = self.costed(work)
        vW = self.VBW
        addr = [f"s_lshl_b32 s{sT}, s{sWM}, 13", f"s_add_u32 s{sT}, s{sT}, {LA}", f"v_add_u32 v{self.VBX}, s{sT}, v{vL16}",
                f"v_lshrrev_b32 v{T0}, 6, v{vL16}", f"v_lshrrev_b32 v{T1}, 1, v{T0}", f"v_and_b32 v{T1}, 3, v{T1}",
                f"s_lshl_b32 s{sT}, s{sWN}, 1", f"v_xor_b32 v{T1}, s{sT}, v{T1}", f"v_lshlrev_b32 v{T1}, 5, v{T1}", f"v_lshl_add_u32 v{T1}, v{T0}, 7, v{T1}",
                f"v_and_b32 v{vW+3}, 0x30, v{vL16}", f"v_lshrrev_b32 v{vW+3}, 1, v{vW+3}",
                f"v_add_u32 v{vW}, v{T1}, v{vW+3}", f"v_xor_b32 v{vW+1}, 32, v{vW}",
                f"v_lshrrev_b32 v{T1}, 2, v{T0}", f"v_and_b32 v{T1}, 1, v{T1}", f"v_xor_b32 v{T1}, s{sWN}, v{T1}", f"v_lshlrev_b32 v{T1}, 5, v{T1}",
                f"v_lshl_add_u32 v{T1}, v{T0}, 6, v{T1}", f"v_add_u32 v{T1}, v{T1}, v{vW+3}", f"v_add_u32 v{vW+2}, 2048, v{T1}"]
        addr += [f"v_add_u32 v{vW+3+t}, {3 * WSLOT}, v{vW+t}" for t in range(3)]
        c0 = 22; S0 = 9; C1 = 10
        cu0 = int(self.opt.get("cu0", 1))
        for s in range(32):
            need = [self.wneed(40 + s + 1)] + ([("A", (s + 1) // 2)] if s & 1 else [])
            self.pb(P, ("G3A", s), vm.need(*need), 0 if s == c0 else None)
            it = []; dm = []; post = []
            if s == 0:
                self.apoll_check(vm, self.FL(0, 32), 8, vPL)
                dm = A(1) + A(2)
            if s == 2: post.append(lambda: self.wg_flag_if(0, self.FG(6)))
            if s == 2:
                def cf():
                    l = self.lab("cf")
                    e(f"s_xor_b32 s{sT}, s{sLW}, 1"); e(f"s_or_b32 s{sT}, s{sLAY}, s{sT}"); e(f"s_cbranch_scc1 {l}")
                    self.side_flag(1)
                    self.label(l)
                post.append(cf)
            if s == S0 - 3: self.apoll_issue(vm, self.FG(6), 16, vPL)
            if s == S0: self.apoll_check(vm, self.FG(6), 16, vPL)
            fin = [[f"s_lshl_b32 s{sT}, s{sLW}, 8", f"s_add_u32 s{sT}, s{sT}, {L_ST}", f"v_add_u32 v{T2}, s{sT}, v{T2}", f"ds_write_b128 v{T2}, v[{AC}:{AC+3}]"]]
            it += self.stats_gather(vm, s, S0, sSTm, R, AC, fin)
            if s == C1: self.apoll4_issue(vm, 1, CT)
            if s == C1 + 3:
                self.apoll4_check(vm, 1, CT, [(sLAY, 1)])
                l = self.lab("cs")
                e(f"s_cmp_lg_u32 s{sLAY}, 0"); e(f"s_cbranch_scc1 {l}")
                e(f"s_and_b32 s{sT}, s{sNT}, 1"); e(f"s_mul_i32 s{sT2}, s{sT}, 384")
                e(f"s_xor_b32 s{sT}, s{sT}, 1"); e(f"s_lshl_b32 s{sT}, s{sT}, 9")
                e(f"s_cmp_eq_u32 s{sWN}, 0"); e(f"s_cselect_b32 s{sT}, s{sT2}, s{sT}")
                e(f"s_mul_i32 s{sT2}, s{sNT}, 896"); e(f"s_add_u32 s{sT}, s{sT}, s{sT2}")
                e(f"s_mul_i32 s{sT2}, s{sWM}, 14336"); e(f"s_add_u32 s{sT}, s{sT}, s{sT2}"); e(f"s_add_u32 s{sT}, s{sT}, {WS_CS13}")
                e(f"v_lshrrev_b32 v{T0}, 9, v{vL16}"); e(f"v_mul_u32_u24 v{T0}, 28672, v{T0}"); e(f"v_and_b32 v{T1}, 0x1f0, v{vL16}"); e(f"v_add_u32 v{T0}, v{T0}, v{T1}")
                for k in range(4):
                    e(f"buffer_load_dwordx4 v[{CT+4*k}:{CT+4*k+3}], v{T0}, s[{sWS}:{sWS+3}], s{sT} offen sc1")
                    e(f"s_add_u32 s{sT}, s{sT}, 57344")
                self.label(l)
                ct_after = ("A", (s - 1) // 2 + 3)
            if s == C1 + 7:
                assert ct_after not in vm.ops
                l = self.lab("cs")
                e(f"s_cmp_lg_u32 s{sLAY}, 0"); e(f"s_cbranch_scc1 {l}")
                for r in range(4): e(f"v_add_f32 v{CT+r}, v{CT+r}, v{CT+4+r}"); e(f"v_add_f32 v{CT+8+r}, v{CT+8+r}, v{CT+12+r}")
                for r in range(4): e(f"v_add_f32 v{CT+r}, v{CT+r}, v{CT+8+r}")
                self.emit(self.xred(list(range(CT, CT + 4)), list(range(CT + 4, CT + 8)), steps=("v_permlane32_swap_b32",)))
                e(f"s_lshl_b32 s{sT}, s{sLW}, 9"); e(f"s_add_u32 s{sT}, s{sT}, {L_CSA}"); e(f"v_and_b32 v{T1}, 0x1f0, v{vL16}"); e(f"v_add_u32 v{T0}, s{sT}, v{T1}")
                e(f"ds_write_b128 v{T0}, v[{CT}:{CT+3}]")
                self.label(l)
            if 4 <= s < 20 and s % 2 == 0 and self.opt.get("w2at") is None:
                def w2(s=s):
                    l = self.lab("w2")
                    e(f"s_lshl_b32 s{sT}, s{sLAY}, 4"); e(f"s_lshr_b32 s{sT2}, s{sMT}, 1"); e(f"s_add_u32 s{sT}, s{sT}, s{sT2}")
                    e(f"s_cmp_lg_u32 s{sT}, {(s - 4) // 2}"); e(f"s_cbranch_scc1 {l}")
                    e(f"v_lshlrev_b32 v{vF0}, 3, v{vL16}"); e(f"s_lshl_b32 s{sT}, s2, 2"); e(f"s_add_u32 s{sT}, s{sT}, s{sLW}"); e(f"s_lshl_b32 s{sT}, s{sT}, 13")
                    e(f"buffer_load_dword v250, v{vF0}, s[{sW2}:{sW2+3}], s{sT} offen")
                    self.label(l)
                post.append(w2)
            if s == 20: it += self.atomize(addr)
            if s >= c0: it += self.chunk(work, float(self.opt.get("budC", 24)) if s < 30 else 1e9) if work else []
            if s >= 1 and (s - 1) // 2 + 3 < 16: dm = A((s - 1) // 2 + 3, (s - 1) & 1)
            self.run_period(dm + self.w_take(vm, PT, 1, 40 + s, 4 if s >= 27 else (1 if s >= cu0 and not S0 <= s < S0 + 4 else 0)), it)
            self.run_period([], post)
        assert not work and self.wn == 72 + self.xw0, self.wn
        self.tr_flush(P)
        e("s_setprio 0")
        self.g3bw = [vm.need(("W", 72 + s + 1)) for s in range(7)]

    def y_g3b(self):
        e = self.e; P = "YC"
        XF, WF = 96, 128
        vXa, vWa = self.VBX, self.VBW
        def xf(b, rt): return XF + b * 16 + rt * 4
        def wf(b, mat, t): return WF + b * 24 + (mat * 3 + t) * 4
        def reads(s):
            b = s & 1; sl = (72 + s) % 6
            xr = [f"ds_read_b128 v[{xf(b,rt)}:{xf(b,rt)+3}], v{vXa} offset:{((16 + (s >> 1)) % 3) * 16384 + rt * 2048 + (s & 1) * 1024}" for rt in range(4)]
            wr = []
            for t in range(3):
                for mat in range(2):
                    r = wf(b, mat, t); ad = vWa + 3 * (sl // 3) + t; off = (sl % 3) * WSLOT + mat * 6144
                    wr += [f"ds_read_b64_tr_b16 v[{r}:{r+1}], v{ad} offset:{off}", f"ds_read_b64_tr_b16 v[{r+2}:{r+3}], v{ad} offset:{off + 3072}"]
            return wr[0:2] + xr + wr[2:]
        def mf(s):
            b = s & 1
            return [mfma(self.b3(mat, t, rt), wf(b, mat, t), xf(b, rt)) for t in range(3) for mat in range(2) for rt in range(4)]
        self.emit(reads(0))
        e(f"s_add_u32 s{sGa}, s{sHx}, s{sM4}"); e(f"v_add_u32 v{self.YAP[0]}, s{sGa}, v{vL16}")
        def fn(s, ex):
            extra = []
            if ex: extra.append((20, self.CNT))
            self.step(P, ("G3B", s), mf(s), reads(s + 1) if s < 31 else [], vmw=(self.g3bw[s] if s < 7 else None), last=17, extra=extra)
        self.looped(P, 32, 6, fn)

    def y_g4(self):
        e = self.e; P = "Y"; vm = VM(); T0, T1, T2, _ = self.YT; PT = self.YP; vPL = self.vPL
        E, OUT, vX = 96, 100, 120
        e("s_setprio 1")
        work = ["s_nop 7"]
        for rt in range(4):
            O = OUT + 4 * (rt & 1)
            for t in range(2):
                work += self.silu_group(self.b3(0, t, rt), self.b3(1, t, rt), E, self.YRL + rt, self.YI2 + rt, O + 2 * t)
            work.append(self.grp(vm, ("H", 0), [f"s_add_u32 s{sT}, s{sGh}, {16 * 16384 + rt * 2048}"],
                                 f"buffer_store_dwordx4 v[{O}:{O+3}], v{vL16}, s[{sWS}:{sWS+3}], s{sT} offen sc0 sc1"))
        work.append(("FLAG", 0))
        work += [f"s_lshl_b32 s{sT}, s{sWM}, 12", f"s_lshl_b32 s{sT2}, s{sWN}, 3", f"s_add_u32 s{sT}, s{sT}, s{sT2}", f"s_add_u32 s{sT}, s{sT}, {L_SG}", f"v_add_u32 v{vX}, s{sT}, v{vL16}"]
        for rt in range(4):
            O = 108 + 2 * rt
            work += self.silu_group(self.b3(0, 2, rt), self.b3(1, 2, rt), E, self.YRL + rt, self.YI2 + rt, O)
            work.append(f"ds_write_b64 v{vX}, v[{O}:{O+1}] offset:{1024 * rt}")
        work += [f"s_lshr_b32 s{sT}, s{sM4}, 1", f"s_add_u32 s{sT}, s{sT}, {L_SG}", f"v_add_u32 v{vX+1}, s{sT}, v{vL16}"]
        work.append(("GATE",))
        for k in range(2): work.append(f"ds_read_b128 v[{OUT+4*k}:{OUT+4*k+3}], v{vX+1} offset:{1024 * k}")
        work.append("s_waitcnt lgkmcnt(0)")
        for k in range(2):
            work.append(self.grp(vm, ("H", 1), [], f"buffer_store_dwordx4 v[{OUT+4*k}:{OUT+4*k+3}], v{vL16}, s[{sWS}:{sWS+3}], s{sGs} offen offset:{2048 * k} sc0 sc1"))
        work.append(("FLAG", 1))
        work += [f"s_cmp_eq_u32 s{sLAY}, 0", f"s_cselect_b32 s{sB1}, s{sB1}, {OOB}"] + self.pat_g1(PT, T0, T1, T2, False)
        work = self.costed(work)
        self.run_period([], self.chunk(work, float(self.opt.get("budY0", 24))))
        self.w_start(110, 138)
        def need(u): return [self.wneed(104 + u + 1), ("A", u + 1)] if u < 27 else []
        def hook(u):
            if u + 5 in (8, 16, 24): self.apoll_issue(vm, self.FL(1, 4 * (u + 5)), 8, vPL)
            if u + 3 in (8, 16, 24): self.apoll_check(vm, self.FL(1, 4 * (u + 3)), 8, vPL)
            if u == 22: assert not work
        def dmas(u):
            return (self.a_issue(vm, ("A", u + 3), (32 + u + 3) % 3, self.YAP[0], (u + 3) * 16384) if u + 3 < 28 else []) + self.w_take(vm, PT, 1, 104 + u)
        bud = float(self.opt.get("budY", 36))
        self.epi_loop(P, "G4", 28, vm, work, lambda s: bud, int(self.opt.get("lagY", 3)), need, dmas, [self.FL(1, 64), self.FL(1, 96)], [13, 21], hook)
        self.tr_dump("Y")
        e("s_setprio 0")

    def next_layer(self):
        e = self.e
        e(f"s_mov_b32 s{sLAY}, 1")
        e(f"s_add_u32 s{sOo}, s{sOo}, {256 * KB}"); e(f"s_add_u32 s{sXm}, s{sXm}, {512 * KB}"); e(f"s_add_u32 s{sHo}, s{sHo}, {896 * KB}")
        e(f"s_add_u32 s{sSTm}, s{sSTm}, {64 * KB}"); e(f"s_add_u32 s{sFl}, s{sFl}, {32 * KB}"); e(f"s_add_u32 s{sFL}, s{sFL}, {32 * KB}")

    def warm(self, which):
        self.emit([f"#WARM {which}"])

    def gen(self, name):
        e = self.e; a = self.a; self.info = []; self.xw0 = 6
        kernel_header(a, name)
        e("s_cmp_ge_u32 s2, 256"); e("s_cbranch_scc0 K_go"); e("s_endpgm")
        self.label("K_go")
        K = sAT
        e(f"s_load_dwordx4 s[{K}:{K+3}], s[0:1], 0")
        e(f"s_load_dwordx2 s[{K+4}:{K+5}], s[0:1], 16")
        e(f"s_load_dwordx8 s[{K+8}:{K+15}], s[0:1], 32")
        e(f"s_load_dwordx4 s[{K+16}:{K+19}], s[0:1], 64")
        e("v_lshrrev_b32 v1, 6, v0"); e(f"v_and_b32 v{vL16}, 63, v0")
        e(f"v_readfirstlane_b32 s{sWAVE}, v1")
        e(f"v_lshlrev_b32 v{vL16}, 4, v{vL16}")
        if self.opt.get("ts"): e(f"v_mov_b32 v{vTS}, 0")
        e(f"s_and_b32 s{sT}, s2, 6"); e(f"s_lshl_b32 s{sT}, s{sT}, 1"); e(f"s_lshr_b32 s{sT2}, s2, 3"); e(f"s_and_b32 s{sT2}, s{sT2}, 3")
        e(f"s_add_u32 s{sMT}, s{sT}, s{sT2}")
        e(f"s_and_b32 s{sT}, s2, 1"); e(f"s_lshr_b32 s{sT2}, s2, 5")
        e(f"s_lshl_b32 s{sNT}, s{sT}, 3"); e(f"s_add_u32 s{sNT}, s{sNT}, s{sT2}")
        e(f"s_lshl_b32 s{sN4}, s{sT2}, 1"); e(f"s_add_u32 s{sN4}, s{sN4}, s{sT}")
        e(f"s_and_b32 s{sLW}, s{sWAVE}, 3"); e(f"s_and_b32 s{sWM}, s{sWAVE}, 1"); e(f"s_lshr_b32 s{sWN}, s{sLW}, 1")
        e(f"s_lshl_b32 s{sT}, s{sWM}, 1"); e(f"s_add_u32 s{sT}, s{sT}, s{sWN}"); e(f"s_mul_i32 s{sM3}, s{sT}, 3072"); e(f"s_lshl_b32 s{sM4}, s{sT}, 12")
        e(f"s_mov_b32 s{sMODE}, 1"); e(f"s_mov_b32 s{sLAY}, 0")
        e(f"s_lshl_b32 s{sOo}, s{sMT}, 22"); e(f"s_add_u32 s{sXm}, s{sOo}, {WS_X1}"); e(f"s_add_u32 s{sX2}, s{sOo}, {WS_X1 + 256 * KB}")
        e(f"s_add_u32 s{sHo}, s{sOo}, {WS_H}")
        e(f"s_add_u32 s{sSTm}, s{sOo}, {WS_ST}"); e(f"s_add_u32 s{sSTo}, s{sSTm}, {32 * KB}")
        e(f"s_lshl_b32 s{sFl}, s{sMT}, 7"); e(f"s_add_u32 s{sFl}, s{sFl}, {WS_FL}")
        self.bases()
        e("s_waitcnt lgkmcnt(0)")
        make_srd(a, sQKV, K + 2, K + 3, 1024 * 6144)
        make_srd(a, sA1, K, K + 1, 4 * MB)
        make_srd(a, sWS, K + 18, K + 19, 256 * MB)
        make_srd(a, sX0, K, K + 1, 4 * MB)
        make_srd(a, sWO, K + 4, K + 5, 1024 * 2048)
        e(f"s_cmp_eq_u32 s{sWM}, 0")
        e(f"s_cselect_b32 s{sW13}, s{K+8}, s{K+10}"); e(f"s_cselect_b32 s{sW13+1}, s{K+9}, s{K+11}")
        e(f"s_mov_b32 s{sW13+2}, {1024 * 7168}"); e(f"s_mov_b32 s{sW13+3}, 0x00020000")
        make_srd(a, sW2, K + 12, K + 13, 3584 * 2048)
        make_srd(a, sOUT, K + 14, K + 15, 4 * MB)
        make_srd(a, sDBG, K + 16, K + 17, 256)
        e(f"s_and_b32 s{sT}, s2, 1"); e(f"s_lshl_b32 s{sT}, s{sT}, 13"); e(f"s_add_u32 s{sT}, s{sT}, {16 * KB}"); e(f"s_add_u32 s{sFL}, s{sFl}, s{sT}")
        e(f"s_lshl_b32 s{sT}, s{sN4}, 14"); e(f"s_lshl_b32 s{sT2}, s{sWM}, 13"); e(f"s_add_u32 s{sT}, s{sT}, s{sT2}")
        e(f"s_lshl_b32 s{sT2}, s{sWN}, 10"); e(f"s_add_u32 s{sTile}, s{sT}, s{sT2}")
        self.ts(15)
        e(f"s_cmp_lt_u32 s{sWAVE}, 4"); e("s_cbranch_scc1 X_start")
        vm1 = VM(); self.y_start(vm1); e("s_branch Y_first")
        self.label("X_start")
        self.x_prep()
        self.label("X_layer")
        self.x_g1(); self.x_g2(); self.x_g3a(); self.x_g3b(); self.x_g4()
        e(f"s_cmp_lg_u32 s{sLAY}, 0"); e("s_cbranch_scc1 X_fin")
        self.res_epilogue(self.a4, sX2, 236, 226); self.bars["X"].append(("G4", 99))
        self.next_layer()
        e("s_branch X_layer")
        self.label("X_fin")
        self.x_final()
        if self.opt.get("ts"):
            e("s_waitcnt vmcnt(0)")
            self.ts(24)
            e(f"s_lshl_b32 s{sT}, s2, 2"); e(f"s_add_u32 s{sT}, s{sT}, s{sLW}"); e(f"s_lshl_b32 s{sT}, s{sT}, 8"); e(f"s_add_u32 s{sT}, s{sT}, {WS_TS}")
            e(f"v_lshrrev_b32 v1, 2, v{vL16}")
            e(f"buffer_store_dword v{vTS}, v1, s[{sWS}:{sWS+3}], s{sT} offen")
        e("s_endpgm")
        self.label("Y_first")
        self.y_g1(vm1, True); e("s_branch Y_g2")
        self.label("Y_layer")
        self.y_g1(VM(), False)
        self.label("Y_g2")
        vm = self.y_g2(); self.y_g3a(vm); self.y_g3b(); self.y_g4()
        e(f"s_cmp_lg_u32 s{sLAY}, 0"); e("s_cbranch_scc1 K_end")
        self.next_layer(); self.bars["Y"].append(("G4", 99)); self.warm("B"); e("s_branch Y_layer")
        self.label("K_end")
        e("s_endpgm")
        B = self.bars
        def ph(p, *names): return [x for x in B[p] if x[0] in names]
        assert B["XL"] == B["YC"] and B["X"] == B["Y"] and B["Y1"] == ph("Y", "G1"), "barrier mismatch"
        kernels.append((name, 256, 102))
        return a.text()


def full(opt):
    kernels.clear()
    g = Gen(opt)
    KN = "mega_kernel" if opt.get("list") else NAME + "_kernel"
    body = g.gen(KN)
    body = "\n".join(x for x in body.split("\n") if not x.startswith("#")) + "\n"
    t = build([(KN, 256, 512, 163840)], [body], single=not opt.get("list"))
    for x in g.info: print(x, file=sys.stderr)
    return t

if __name__ == "__main__":
    opt = parse_opts(sys.argv[2:])
    open(sys.argv[1], "w").write(full(opt))
```

```python
import sys, re
from common import *

KB = 1024
ARENA = 4 * MB
WS_O = 0
WS_X1 = 512 * KB
WS_P = 1280 * KB
WS_ST = 1792 * KB
WS_H = 2 * MB
WS_RT = 64 * MB
WS_ST0 = 67 * MB
WS_CSQ = 67 * MB + 256 * KB
WS_CS13 = 67 * MB + 512 * KB
WS_FL = 68 * MB
WS_SF = 68 * MB + 256 * KB
WS_TS = 69 * MB
OOB = 0x7f000000
POLL = 0x40000
WSLOT = 16384
LA = 98304
L_SG = LA + 49152
L_SS = L_SG + 8192
L_ST = 159744
L_CSQ = L_ST + 1152
L_CSA = L_CSQ + 768
L_CSB = L_CSA + 1024
L_MODE = L_CSB + 1024
sFL = 0
sTile = 1
sWAVE = 3
sWS, sQKV, sWO, sW13, sW2, sX0, sOUT, sDBG, sA1 = 4, 8, 12, 16, 20, 24, 28, 32, 36
sMT, sNT, sLW, sWM, sWN, sMODE, sLAY = 40, 41, 42, 43, 44, 45, 46
sOo, sX2, sXm, sHo, sN4, sSTm, sSTo, sFl = 47, 48, 49, 50, 51, 52, 53, 54
sT, sT2, sT3, sCnt = 55, 56, 57, 58
sD0, sD1 = 59, 60
sM3, sM4 = 61, 62
sB1, sB2, sB3, sB4, sB5, sB6, sB7 = 63, 64, 65, 66, 67, 68, 69
sEX = 70
sAT = 72
sGa, sGh, sGs, sSu, sDa, sRw, sRa, sHx = 88, 89, 90, 91, 92, 93, 94, 95
sTS = 96
vL16, vTS = 254, 255
vF0, vF1 = 252, 253
EPS_BITS = 0x3727c5ac

def uord(t):
    return 2 * t if t < 8 else 2 * (t - 8) + 1
BORD = [13, 14, 15] + list(range(13))

class VM:
    def __init__(self): self.ops = []
    def issue(self, tag): self.ops.append(tag)
    def need(self, *tags):
        last = -1
        for i, t in enumerate(self.ops):
            if t in tags: last = i
        n = len(self.ops) - 1 - last
        if last < 0: return None
        self.ops = self.ops[last + 1:]
        return n
    def clear(self): self.ops = []


class Gen:
    def __init__(self, opt):
        self.opt = opt
        self.a = Asm()
        self.nlab = 0
        self.bars = {}
        self.trp = {}
    def e(self, s): self.a.e(s)
    def lab(self, p="L"):
        self.nlab += 1
        return f"{p}_{self.nlab}"
    def label(self, l): self.a.label(l)
    def al(self): self.a.raw("    .p2align 3")
    def bar(self, path, name):
        self.bars.setdefault(path, []).append(name)
        self.e("s_barrier")
    PH0 = {"G1": 1, "G2": 34, "G3A": 51, "G3B": 83, "G4": 115}
    def tr_flush(self, path):
        p = self.trp.pop(path[0], None)
        if p is None: return
        l = self.lab("tr")
        self.e("s_waitcnt lgkmcnt(0)")
        self.e(f"s_cmp_lg_u32 s{sLAY}, {int(self.opt['trace'])}"); self.e(f"s_cbranch_scc1 {l}")
        for k in range(3):
            if path[0] == "X": i = p[1] * 3 + k; reg = 233 + i // 64
            else: i = (self.PH0[p[0]] + p[1]) * 3 + k; reg = 228 + i // 64
            self.e(f"v_writelane_b32 v{reg}, s{96 + 2 * k}, {i % 64}")
        self.label(l)
    def pb(self, path, name, vm=None, lgkm=None):
        tr = self.opt.get("trace") is not None
        if tr:
            if path[0] not in self.trp: self.e("s_waitcnt lgkmcnt(0)")
            self.tr_flush(path)
            self.e("s_memtime s[96:97]")
            lgkm = None
        self.wait(vm, lgkm)
        if tr: self.e("s_memtime s[98:99]")
        self.bar(path, name)
        if tr:
            self.e("s_memtime s[100:101]")
            self.trp[path[0]] = name
    def tr_dump(self, grp):
        if self.opt.get("trace") is None: return
        e = self.e; l = self.lab("td")
        e(f"s_cmp_lg_u32 s{sLAY}, {int(self.opt['trace'])}"); e(f"s_cbranch_scc1 {l}")
        e(f"s_lshl_b32 s{sT}, s2, 3"); e(f"s_add_u32 s{sT}, s{sT}, s{sWAVE}"); e(f"s_lshl_b32 s{sT}, s{sT}, 11"); e(f"s_add_u32 s{sT}, s{sT}, {WS_TS + MB}")
        e(f"v_lshrrev_b32 v{vF0}, 2, v{vL16}")
        for k in range(2 if grp == "X" else 7):
            e(f"buffer_store_dword v{(233 if grp == 'X' else 228) + k}, v{vF0}, s[{sWS}:{sWS+3}], s{sT} offen offset:{256 * k}")
        self.label(l)
    def wait(self, vm=None, lgkm=None):
        p = []
        if vm is not None:
            assert vm <= 63
            p.append(f"vmcnt({vm})")
        if lgkm is not None: p.append(f"lgkmcnt({lgkm})")
        if p: self.e("s_waitcnt " + " ".join(p))
    def ts(self, k):
        if self.opt.get("ts"):
            self.e(f"s_memrealtime s[{sTS}:{sTS+1}]")
            self.e(f"s_lshl_b32 s{sT3}, s{sLAY}, 5")
            self.e(f"s_add_u32 m0, s{sT3}, {k}")
            self.e("s_waitcnt lgkmcnt(0)")
            self.e(f"v_writelane_b32 v{vTS}, s{sTS}, m0")
    def tsc(self, k):
        if self.opt.get("ts"):
            self.e(f"s_memtime s[{sTS}:{sTS+1}]")
            self.e(f"s_lshl_b32 s{sT3}, s{sLAY}, 5")
            self.e(f"s_add_u32 m0, s{sT3}, {k}")
            self.e("s_waitcnt lgkmcnt(0)")
            self.e(f"v_writelane_b32 v{vTS}, s{sTS}, m0")

    def lanes(self, vL, vG=None, vI=None):
        self.e(f"v_lshrrev_b32 v{vL}, 4, v{vL16}")
        if vG is not None: self.e(f"v_lshrrev_b32 v{vG}, 8, v{vL16}")
        if vI is not None: self.e(f"v_and_b32 v{vI}, 15, v{vL}")

    def store(self, instr):
        l1, l2 = self.lab("st"), self.lab("st")
        return [f"s_cmp_eq_u32 s{sMODE}, 0", f"s_cbranch_scc1 {l1}", instr + " sc0 sc1", f"s_branch {l2}", f"@{l1}", instr, f"@{l2}"]

    def emit(self, seq):
        for x in seq:
            if isinstance(x, (list, tuple)): self.emit(x)
            elif x.startswith("@"): self.label(x[1:])
            elif x.startswith("."): self.a.raw("    " + x)
            elif x.startswith("#"): self.a.raw(x)
            else: self.e(x)

    @staticmethod
    def FG(kind): return (sFl, kind * 2048)
    @staticmethod
    def FL(line, off): return (sFL, line * 2048 + off)
    def wg_flag(self, fa):
        e = self.e; loc = fa[0] == sFL
        if loc: e(f"s_lshr_b32 s{sT}, s2, 5"); e(f"s_lshl_b32 s{sT}, s{sT}, 2")
        else: e(f"s_lshl_b32 s{sT}, s{sN4}, 2")
        e(f"s_add_u32 s{sT}, s{sT}, s{fa[0]}")
        e(f"v_mov_b32 v{vF0}, {fa[1]}"); e(f"v_mov_b32 v{vF1}, 0x01010101")
        e("s_mov_b64 exec, 1")
        ins = f"buffer_store_dword v{vF1}, v{vF0}, s[{sWS}:{sWS+3}], s{sT} offen"
        self.emit(self.store(ins) if loc else [ins + " sc0 sc1"])
        e("s_mov_b64 exec, -1")
    def wg_flags(self, fg, fl):
        self.wg_flag_if(2, fl)
        if fg is not None: self.wg_flag_if(3, fg)
    def wg_flag_if(self, lw, fa):
        l = self.lab("wf")
        self.e(f"s_cmp_lg_u32 s{sLW}, {lw}"); self.e(f"s_cbranch_scc1 {l}")
        self.wg_flag(fa)
        self.label(l)
    def fl_addr(self, fa, nl):
        lim = f"s{nl[1]}" if isinstance(nl, tuple) else str(4 * (nl - 1))
        return [f"v_lshrrev_b32 v{vF0}, 2, v{vL16}", f"v_min_u32 v{vF0}, {lim}, v{vF0}", f"s_add_u32 s{sT}, s{fa[0]}, {fa[1] & 0xffffffff}"]
    def poll_flags(self, fa, nl):
        lp, ld = self.lab("poll"), self.lab("pd")
        self.emit(self.fl_addr(fa, nl))
        self.e(f"s_mov_b32 s{sT2}, {POLL}")
        self.label(lp)
        self.e(f"buffer_load_dword v{vF1}, v{vF0}, s[{sWS}:{sWS+3}], s{sT} offen sc0 sc1")
        self.e("s_waitcnt vmcnt(0)")
        self.e(f"v_cmp_ne_u32 vcc, 0x01010101, v{vF1}")
        self.e(f"s_cbranch_vccz {ld}")
        if self.opt.get("psleep", 1): self.e(f"s_sleep {int(self.opt.get('psleep', 1))}")
        self.e(f"s_sub_u32 s{sT2}, s{sT2}, 1")
        self.e(f"s_cmp_lg_u32 s{sT2}, 0")
        self.e(f"s_cbranch_scc1 {lp}")
        self.label(ld)
    def apoll_issue(self, vm, fa, nl, vP):
        self.emit(self.fl_addr(fa, nl))
        self.e(f"buffer_load_dword v{vP}, v{vF0}, s[{sWS}:{sWS+3}], s{sT} offen sc0 sc1"); vm.issue("ap")
    def apoll_check(self, vm, fa, nl, vP, skip=()):
        e = self.e; l = self.lab("ap")
        self.wait(vm.need("ap"))
        e(f"v_cmp_ne_u32 vcc, 0x01010101, v{vP}")
        e(f"s_cbranch_vccz {l}")
        for r, v in skip:
            e(f"s_cmp_eq_u32 s{r}, {v}"); e(f"s_cbranch_scc1 {l}")
        self.poll_flags(fa, nl)
        self.label(l)
    def round_bf16(self, v): return [f"v_cvt_pk_bf16_f32 v{v}, v{v}, v{v}", f"v_lshlrev_b32 v{v}, 16, v{v}"]
    def finish_stats(self, vs, vq):
        o = [f"v_mul_f32 v{vs}, 0x3a800000, v{vs}", f"v_mul_f32 v{vq}, 0x3a800000, v{vq}",
             f"v_fma_f32 v{vq}, -v{vs}, v{vs}, v{vq}", f"v_max_f32 v{vq}, 0, v{vq}"]
        o += self.round_bf16(vs) + self.round_bf16(vq)
        o += [f"v_add_f32 v{vq}, 0x{EPS_BITS:08x}, v{vq}"] + self.round_bf16(vq)
        o += [f"v_sqrt_f32 v{vq}, v{vq}", "s_nop 0"] + self.round_bf16(vq)
        o += [f"v_rcp_f32 v{vq}, v{vq}", "s_nop 0"]
        return o
    def xred(self, regs, tmps, op="v_add_f32", steps=("v_permlane16_swap_b32", "v_permlane32_swap_b32")):
        o = []
        for sw in steps:
            o += [f"v_mov_b32 v{t}, v{v}" for v, t in zip(regs, tmps)]
            o += ["s_nop 1"]
            o += [f"{sw} v{v}, v{t}" for v, t in zip(regs, tmps)]
            o += [f"{op} v{v}, v{v}, v{t}" for v, t in zip(regs, tmps)]
        return o

    def mix(self, dmas, side):
        if not dmas: return list(side)
        out = []; n = len(dmas); k = 0
        for i, d in enumerate(dmas):
            out.append(d)
            want = (len(side) * (i + 1)) // n
            out += side[k:want]; k = want
        return out

    def chunk(self, work, budget):
        out = []; c = 0
        while work and (c + work[0][0] <= budget or not out):
            k, it = work.pop(0); c += k; out.append(it)
        return out
    def atomize(self, instrs):
        tm = [f"s{sT}", f"s{sT2}", f"s{sT3}"]
        def toks(x): return re.findall(r"[a-z_0-9]+", x)
        n = len(instrs); end = list(range(n))
        for i, x in enumerate(instrs):
            if not isinstance(x, str) or not x.startswith("s_") or x.startswith(("s_waitcnt", "s_nop")): continue
            t = toks(x)
            if t[0].startswith("s_cmp"):
                for j in range(i + 1, n):
                    if isinstance(instrs[j], str) and instrs[j].startswith("s_cselect"): end[i] = j; break
                continue
            d = t[1]
            if d not in tm: continue
            for j in range(i + 1, n):
                y = instrs[j]
                if not isinstance(y, str): continue
                ty = toks(y)
                if d in ty[2:]: end[i] = j
                if ty[1:2] == [d] and y.startswith("s_"): break
        out = []; i = 0
        while i < n:
            k = end[i]; j = i
            while j < k:
                j += 1; k = max(k, end[j])
            out.append(instrs[i] if k == i else list(instrs[i:k + 1])); i = k + 1
        return out
    def costed(self, instrs):
        w = []
        for x in self.atomize(instrs):
            if isinstance(x, list) and all(isinstance(y, str) for y in x):
                w.append((sum(1 if y.startswith("v_") else 0.5 for y in x), x)); continue
            if isinstance(x, (list, tuple)): w.append((4, x))
            elif callable(x): w.append((4, x))
            elif x.startswith(("v_exp", "v_rcp", "v_sqrt")): w.append((2, x))
            elif x.startswith("v_"): w.append((1, x))
            else: w.append((0.5, x))
        return w
    def run_period(self, dmas, items):
        seq = self.mix(dmas, items)
        for x in seq:
            if callable(x): x()
            else: self.emit([x])

    def selector(self, S, t0, t1):
        o = [f"v_lshrrev_b32 v{t0}, 4, v{vL16}", f"v_and_b32 v{t1}, 1, v{t0}", f"v_lshlrev_b32 v{t1}, 4, v{t1}", f"v_lshlrev_b32 v{t1}, v{t1}, v{S}",
             f"v_bfe_u32 v{t0}, v{t0}, 1, 3"]
        o = [f"v_mov_b32 v{S}, 0x3f80"] + o
        for d in range(4): o += [f"v_cmp_eq_u32 vcc, {d}, v{t0}", "s_nop 1", f"v_cndmask_b32 v{S+d}, 0, v{t1}, vcc"]
        return o
    def side_flag(self, which):
        e = self.e
        e(f"v_mov_b32 v{vF0}, 0"); e(f"v_mov_b32 v{vF1}, 1"); e(f"s_lshl_b32 s{sT}, s2, 2"); e(f"s_add_u32 s{sT}, s{sT}, {WS_SF + 1024 * which}")
        e("s_mov_b64 exec, 1")
        e(f"buffer_store_dword v{vF1}, v{vF0}, s[{sWS}:{sWS+3}], s{sT} offen sc0 sc1")
        e("s_mov_b64 exec, -1")
    def apoll4_issue(self, vm, which, G):
        self.e(f"s_mov_b32 s{sT}, {WS_SF + 1024 * which}")
        self.e(f"buffer_load_dwordx4 v[{G}:{G+3}], v{vL16}, s[{sWS}:{sWS+3}], s{sT} offen sc0 sc1"); vm.issue("p4")
    def apoll4_check(self, vm, which, G, skip=()):
        e = self.e; l = self.lab("a4")
        self.wait(vm.need("p4"))
        for r, v in skip:
            e(f"s_cmp_eq_u32 s{r}, {v}"); e(f"s_cbranch_scc1 {l}")
        e(f"v_and_b32 v{G}, v{G}, v{G+1}"); e(f"v_and_b32 v{G+2}, v{G+2}, v{G+3}"); e(f"v_and_b32 v{G}, v{G}, v{G+2}")
        e(f"v_cmp_ne_u32 vcc, 1, v{G}")
        e(f"s_cbranch_vccz {l}")
        self.poll4(WS_SF + 1024 * which, None, G)
        self.label(l)

    def poll4(self, off, T0, G):
        e = self.e
        lp, ld = self.lab("p4"), self.lab("p4")
        e(f"s_mov_b32 s{sT}, {off}"); e(f"s_mov_b32 s{sT2}, {POLL}")
        self.label(lp)
        e(f"buffer_load_dwordx4 v[{G}:{G+3}], v{vL16}, s[{sWS}:{sWS+3}], s{sT} offen sc0 sc1")
        e("s_waitcnt vmcnt(0)")
        e(f"v_and_b32 v{G}, v{G}, v{G+1}"); e(f"v_and_b32 v{G+2}, v{G+2}, v{G+3}"); e(f"v_and_b32 v{G}, v{G}, v{G+2}")
        e(f"v_cmp_ne_u32 vcc, 1, v{G}")
        e(f"s_cbranch_vccz {ld}")
        e("s_sleep 1"); e(f"s_sub_u32 s{sT2}, s{sT2}, 1"); e(f"s_cmp_lg_u32 s{sT2}, 0"); e(f"s_cbranch_scc1 {lp}")
        self.label(ld)

    def grp(self, vm, tag, pre, ins, post=()):
        def f():
            vm.issue(tag); self.emit(list(pre) + [ins] + list(post))
        return f

    def w_unit(self, n, P):
        n = n % 132; slot = (n % 6) * WSLOT; tag = ("W", n)
        def lds(srd, pats, so): return [f"buffer_load_dwordx4 v{p}, s[{srd}:{srd+3}], s{so} offen{f' offset:{1024 * i}' if i else ''} lds" for i, p in enumerate(pats)]
        def adv(inc, msk): return [f"s_add_u32 s{sRw}, s{sRw}, {inc}", f"s_and_b32 s{sRw}, s{sRw}, {msk}"]
        def sinc(order, st):
            if st == 31: return []
            d = 1 if st % 2 == 0 else (2 * (uord(order[st // 2 + 1]) - uord(order[st // 2])) - 1) % 32
            return adv(d * 2048, 0xffff)
        ident = list(range(16))
        if n < 32:
            init = [f"s_lshl_b32 s{sRw}, s{sN4}, 12"] if n == 0 else []
            return tag, f"s_add_u32 m0, s{sM3}, {slot}", init + [f"s_mul_i32 s{sD0}, s{sRw}, 96"], lds(sQKV, P["g1"], sD0), sinc(ident, n)
        if n < 40:
            init = [f"s_lshl_b32 s{sRw}, s{sWM}, 1", f"s_add_u32 s{sRw}, s{sN4}, s{sRw}", f"s_and_b32 s{sRw}, s{sRw}, 15", f"s_lshl_b32 s{sRw}, s{sRw}, 17"] if n == 32 else []
            return tag, f"s_add_u32 m0, s{sM4}, {slot}", init, lds(sWO, P["g2"], sRw), adv((5 if n == 35 else 4) << 17, (16 << 17) - 1)
        if n < 72:
            init = [f"s_lshl_b32 s{sRw}, s{sN4}, 12"] if n == 40 else []
            return tag, f"s_add_u32 m0, s{sM4}, {slot}", init + [f"s_mul_i32 s{sD0}, s{sRw}, 112"], lds(sW13, P["g3a"], sD0), sinc(ident, n - 40)
        if n < 104:
            st = n - 72; init = []
            if st in (0, self.xw0):
                assert st % 2 == 0
                init = [f"s_add_u32 s{sRw}, s{sN4}, {uord(BORD[st // 2])}", f"s_and_b32 s{sRw}, s{sRw}, 15", f"s_lshl_b32 s{sRw}, s{sRw}, 12"]
            ld = lds(sW13, P["g3b"][:2], sD0) + [f"buffer_load_dwordx4 v{P['g3b'][2]}, s[{sWS}:{sWS+3}], s{sRw} offen offset:2048 lds"]
            return tag, f"s_add_u32 m0, s{sM3}, {slot}", init + [f"s_mul_i32 s{sD0}, s{sRw}, 112"], ld, sinc(BORD, st)
        u = n - 104
        if u < 24:
            p = u & 7; c = u >> 3
            colA = 224 * p + (96 if p & 1 else 0); colF = 224 * p + (32 if p & 1 else 128)
            row = [colA, colA + 32, colF][c]; base = sB6 if c < 2 else sB7
        else:
            row = 448 * (u - 24) + 192; base = sB7
        return tag, f"s_add_u32 m0, s{sM4}, {slot}", [f"s_add_u32 s{sD0}, s{base}, {row * 2048}"], lds(sW2, P["g4"], sD0), []

    def w_start(self, n, lim): self.wn = n; self.wlim = lim; self.wi = 0
    def w_take(self, vm, P, units, freed, extra=0):
        out = []; fresh = True; left = None
        while True:
            if self.wn - 6 > freed or self.wn >= self.wlim: break
            tag, m0, setup, ld, adv = self.w_unit(self.wn, P)
            if left is None: left = units * len(ld) + extra
            if left == 0: break
            i = self.wi; pre = []
            if i == 0: pre = (setup[:-1] + [m0, setup[-1]]) if setup else [m0, "s_nop 0"]
            elif fresh: pre = [m0, "s_nop 0"]
            out.append(self.grp(vm, tag if i == len(ld) - 1 else (tag, i), pre, ld[i], adv if i == len(ld) - 1 else ()))
            fresh = False; left -= 1; self.wi += 1
            if self.wi == len(ld): self.wi = 0; self.wn += 1
        return out
    def wneed(self, n):
        assert n < self.wn, (n, self.wn)
        return ("W", n % 132)

    def a_issue(self, vm, tag, slot, vA, glit=None, inc=None, part=None, srd=sWS, pats=None, lbase=None):
        pats = pats or [vA] * 4
        lb = LA + slot * 16384 if lbase is None else lbase
        so = sRa if glit is None else sDa
        g = []
        for i in (range(4) if part is None else (2 * part, 2 * part + 1)):
            pre = []
            if i == 0 or (part == 1 and i == 2):
                pre = [f"s_add_u32 m0, s{sM4}, {lb}", f"s_mov_b32 s{sDa}, {glit}" if glit is not None else "s_nop 0"]
            off = f" offset:{1024 * i}" if i else ""
            g.append(self.grp(vm, tag, pre, f"buffer_load_dwordx4 v{pats[i]}, s[{srd}:{srd+3}], s{so} offen{off} lds", inc if (i == 3 and inc) else ()))
        return g
    def ainc(self, d, stride=16384):
        return [f"s_add_u32 s{sRa}, s{sRa}, {(d % 16) * stride}", f"s_and_b32 s{sRa}, s{sRa}, {16 * stride - 1}"]

    def swz128(self, t0, t1, t2):
        return [f"v_lshrrev_b32 v{t0}, 7, v{vL16}", f"v_and_b32 v{t1}, 0x70, v{vL16}",
                f"v_and_b32 v{t2}, 6, v{t0}", f"v_lshlrev_b32 v{t2}, 4, v{t2}", f"v_xor_b32 v{t1}, v{t1}, v{t2}"]
    def pat_g1(self, P, t0, t1, t2, first):
        o = self.swz128(t0, t1, t2)
        if first: o += [f"v_and_b32 v{t2}, 4, v{t0}", f"v_add_u32 v{t0}, v{t0}, v{t2}"]
        o += [f"v_mul_u32_u24 v{t0}, 6144, v{t0}", f"v_add3_u32 v{t0}, v{t0}, v{t1}, s{sB1}"]
        for i in range(3):
            o += [f"s_lshr_b32 s{sT}, s{sM3}, 10", f"s_add_u32 s{sT}, s{sT}, {i}", f"s_and_b32 s{sT2}, s{sT}, 3"]
            if first: o += [f"s_and_b32 s{sT3}, s{sT2}, 1", f"s_lshl_b32 s{sT3}, s{sT3}, 4", f"s_and_b32 s{sT2}, s{sT2}, 2", f"s_lshl_b32 s{sT2}, s{sT2}, 1", f"s_add_u32 s{sT2}, s{sT2}, s{sT3}"]
            else: o += [f"s_lshl_b32 s{sT2}, s{sT2}, 3"]
            o += [f"s_mul_i32 s{sT2}, s{sT2}, 6144", f"s_lshr_b32 s{sT}, s{sT}, 2", f"s_lshl_b32 s{sT}, s{sT}, 11", f"s_add_u32 s{sT}, s{sT}, s{sT2}",
                  f"s_sub_u32 s{sT}, s{sT}, {1024 * i}", f"v_add_u32 v{P['g1'][i]}, s{sT}, v{t0}"]
        return o
    def pat_128(self, regs, pitch, t0, t1, t2, sb):
        o = self.swz128(t0, t1, t2) + [f"v_mul_u32_u24 v{t0}, {pitch}, v{t0}", f"v_add3_u32 v{regs[0]}, v{t0}, v{t1}, s{sb}"]
        for i in range(1, len(regs)): o.append(f"v_add_u32 v{regs[i]}, {i * (8 * pitch - 1024)}, v{regs[0]}")
        return o
    def pat_g3b(self, regs, t0, t1, t2):
        return self.pat_128(regs[:2], 7168, t0, t1, t2, sB4) + [f"v_add_u32 v{regs[2]}, s{sB5}, v{vL16}"]
    def pat_256(self, regs, pitch, t0, t1, t2, sb=None):
        o = [f"v_and_b32 v{t1}, 0xf0, v{vL16}", f"v_lshrrev_b32 v{t0}, 8, v{vL16}", f"v_lshlrev_b32 v{t2}, 5, v{t0}", f"v_xor_b32 v{t1}, v{t1}, v{t2}",
             f"v_mul_u32_u24 v{t0}, {pitch}, v{t0}"] + ([f"v_add_u32 v{t0}, s{sb}, v{t0}"] if sb else []) + [f"v_add_u32 v{regs[0]}, v{t0}, v{t1}",
             f"v_xor_b32 v{t1}, 0x80, v{t1}", f"v_add_u32 v{t0}, v{t0}, v{t1}", f"v_add_u32 v{regs[1]}, {4 * pitch - 1024}, v{t0}"]
        for i in (2, 3): o.append(f"v_add_u32 v{regs[i]}, {8 * pitch - 2048}, v{regs[i-2]}")
        return o
    def bases(self):
        e = self.e
        e(f"s_lshl_b32 s{sB1}, s{sN4}, 7")
        e(f"s_lshl_b32 s{sT}, s{sWN}, 16"); e(f"s_add_u32 s{sB2}, s{sB1}, s{sT}")
        e(f"s_mul_i32 s{sT}, s{sWN}, {16 * 7168}"); e(f"s_mul_i32 s{sT2}, s{sNT}, 448"); e(f"s_add_u32 s{sT}, s{sT}, s{sT2}")
        e(f"s_and_b32 s{sT2}, s{sNT}, 1"); e(f"s_mul_i32 s{sT2}, s{sT2}, 192")
        e(f"s_add_u32 s{sB3}, s{sT}, s{sT2}"); e(f"s_sub_u32 s{sB4}, s{sT}, s{sT2}"); e(f"s_add_u32 s{sB4}, s{sB4}, 256")
        e(f"s_lshl_b32 s{sT}, s{sWM}, 4"); e(f"s_add_u32 s{sT}, s{sT}, s{sNT}"); e(f"s_lshl_b32 s{sT}, s{sT}, 6"); e(f"s_add_u32 s{sT}, s{sT}, s{sWN}")
        e(f"s_lshl_b32 s{sT}, s{sT}, 10"); e(f"s_add_u32 s{sB5}, s{sT}, {WS_RT - 2048}")
        e(f"s_and_b32 s{sT}, s{sN4}, 1"); e(f"s_mul_i32 s{sT}, s{sT}, {1792 * 2048}"); e(f"s_lshr_b32 s{sT2}, s{sN4}, 1"); e(f"s_lshl_b32 s{sT2}, s{sT2}, 8")
        e(f"s_add_u32 s{sT}, s{sT}, s{sT2}"); e(f"s_lshl_b32 s{sT2}, s{sWN}, 15"); e(f"s_add_u32 s{sT}, s{sT}, s{sT2}")
        e(f"s_lshl_b32 s{sT2}, s{sWM}, 16"); e(f"s_add_u32 s{sB7}, s{sT}, s{sT2}"); e(f"s_add_u32 s{sB6}, s{sB7}, s{sT2}")

    def step(self, path, name, mf, reads, vmw=None, bar=True, last=None, extra=None):
        self.wait(vmw, 0)
        if bar: self.bar(path, name)
        self.al()
        oth = [[r] for r in reads]
        if last is None: last = len(reads) - 1
        sl = spread(len(reads), 0, last)
        if extra:
            for s, x in extra:
                oth.append(x + [".p2align 3"]); sl.append(s)
        self.emit(place(mf, oth, sl))

    def looped(self, path, nsteps, body, fn, pre=1):
        trips = (nsteps - pre - 1) // body
        l = self.lab("loop")
        self.e(f"s_mov_b32 s{sCnt}, {trips}")
        for s in range(pre): fn(s, None)
        self.emit([".p2align 3", "#LOOP"])
        self.label(l)
        nb0 = len(self.bars.get(path, []))
        for s in range(pre, pre + body): fn(s, "cnt" if s == pre + body - 1 else None)
        self.e(f"s_cbranch_scc1 {l}")
        self.emit(["#ENDLOOP"])
        names = self.bars[path][nb0:]
        for t in range(1, trips):
            for nm in names: self.bars[path].append((nm[0], nm[1] + t * len(names)))
        for s in range(pre + trips * body, nsteps): fn(s, None)

    CNT = [f"s_sub_u32 s{sCnt}, s{sCnt}, 1", f"s_cmp_lg_u32 s{sCnt}, 0"]

    def xcc_word(self, r):
        return [f"s_getreg_b32 s{r}, hwreg(HW_REG_XCC_ID, 0, 4)"] + ([f"s_lshr_b32 s{r}, s2, 7"] if self.opt.get("slow") else []) + \
               [f"s_mul_i32 s{sT}, s{r}, s{r}", f"s_lshl_b32 s{sT}, s{sT}, 15", f"s_lshl_b32 s{r}, s{r}, 6", f"s_add_u32 s{r}, s{r}, s{sT}", f"s_add_u32 s{r}, s{r}, 1"]

    def x_prep(self):
        e = self.e
        l3, ld = self.lab("xp"), self.lab("xp")
        D = 0; AC = 64; T = 80
        vO, vS0, vS1, vS2 = 100, 101, 102, 103
        lz = self.lab("xz")
        e(f"s_cmp_lg_u32 s{sLW}, 0"); e(f"s_cbranch_scc1 {lz}")
        e(f"v_mov_b32 v{vS2}, 0"); e(f"v_lshrrev_b32 v{vO}, 2, v{vL16}")
        e(f"s_lshl_b32 s{sT}, s2, 8"); e(f"s_add_u32 s{sT}, s{sT}, {WS_FL}")
        e(f"buffer_store_dword v{vS2}, v{vO}, s[{sWS}:{sWS+3}], s{sT} offen sc0 sc1")
        e(f"v_lshlrev_b32 v{vO}, 6, v{vL16}")
        e(f"s_lshl_b32 s{sT}, s2, 2"); e(f"s_add_u32 s{sT}, s{sT}, {WS_SF}")
        e("s_mov_b64 exec, 3")
        e(f"buffer_store_dword v{vS2}, v{vO}, s[{sWS}:{sWS+3}], s{sT} offen sc0 sc1")
        e("s_mov_b64 exec, -1")
        self.label(lz)
        e(f"s_getpc_b64 s[{sAT}:{sAT+1}]")
        self.label("K_pc")
        e(f"s_mov_b32 s{sAT+2}, K_end-K_pc")
        e(f"s_mov_b32 s{sAT+3}, 0x00020000")
        e(f"s_lshr_b32 s{sT}, s2, 3"); e(f"s_lshl_b32 s{sT}, s{sT}, 2"); e(f"s_add_u32 s{sT}, s{sT}, s{sLW}"); e(f"s_lshl_b32 s{sT}, s{sT}, 10")
        e(f"v_lshlrev_b32 v{vO}, 3, v{vL16}")
        e("s_mov_b64 exec, 0xff")
        e(f"buffer_load_dword v{vS0}, v{vO}, s[{sAT}:{sAT+3}], s{sT} offen")
        e("s_mov_b64 exec, -1")
        e(f"v_lshrrev_b32 v{vO}, 7, v{vL16}")
        e(f"v_and_b32 v{vS1}, 0x70, v{vL16}")
        e(f"s_cmp_eq_u32 s{sLW}, 3"); e(f"s_cbranch_scc1 {l3}")
        e(f"v_mul_u32_u24 v{vO}, 6144, v{vO}"); e(f"v_add_u32 v{vO}, v{vO}, v{vS1}")
        e(f"s_mul_i32 s{sT2}, s2, 3"); e(f"s_add_u32 s{sT2}, s{sT2}, s{sLW}")
        e(f"s_and_b32 s{sT}, s{sT2}, 15"); e(f"s_mul_i32 s{sT}, s{sT}, {64 * 6144}")
        e(f"s_lshr_b32 s{sT3}, s{sT2}, 4"); e(f"s_lshl_b32 s{sT3}, s{sT3}, 7"); e(f"s_add_u32 s{sT}, s{sT}, s{sT3}")
        for i in range(8):
            e(f"buffer_load_dwordx4 v[{D+4*i}:{D+4*i+3}], v{vO}, s[{sQKV}:{sQKV+3}], s{sT} offen")
            e(f"s_add_u32 s{sT}, s{sT}, {8 * 6144}")
        for i in range(8): e(f"v_mov_b32 v{AC+i}, 0")
        e(f"v_mov_b32 v{vS1}, 0x00003f80"); e(f"v_mov_b32 v{vS2}, 0x3f800000")
        for i in range(8):
            e(f"s_waitcnt vmcnt({7 - i})")
            for j in range(4):
                e(f"v_dot2_f32_bf16 v{AC+2*j}, v{D+4*i+j}, v{vS1}, v{AC+2*j}")
                e(f"v_dot2_f32_bf16 v{AC+2*j+1}, v{D+4*i+j}, v{vS2}, v{AC+2*j+1}")
        lz = self.lab("xz")
        e(f"s_cmp_lg_u32 s{sLW}, 0"); e(f"s_cbranch_scc1 {lz}")
        self.emit(self.xcc_word(sD0))
        e(f"v_mov_b32 v{vF1}, s{sD0}"); e(f"s_and_b32 s{sT}, s2, 7"); e(f"s_lshl_b32 s{sT}, s{sT}, 5"); e(f"v_mov_b32 v{vF0}, 0")
        e("s_mov_b64 exec, 1")
        e(f"buffer_atomic_add v{vF1}, v{vF0}, s[{sDBG}:{sDBG+3}], s{sT} offen sc1")
        e("s_mov_b64 exec, -1")
        self.label(lz)
        e("s_nop 3")
        for i in range(8): e(f"v_add_f32_dpp v{AC+i}, v{AC+i}, v{AC+i} row_ror:8 row_mask:0xf bank_mask:0xf")
        self.emit(self.xred(list(range(AC, AC + 8)), list(range(T, T + 8))))
        e(f"s_and_b32 s{sT}, s{sT2}, 15"); e(f"s_mul_i32 s{sT}, s{sT}, 12288")
        e(f"s_lshl_b32 s{sT3}, s{sT3}, 1"); e(f"s_add_u32 s{sT}, s{sT}, s{sT3}"); e(f"s_add_u32 s{sT}, s{sT}, {WS_CSQ}")
        e(f"v_lshlrev_b32 v{vO}, 1, v{vL16}")
        e("s_mov_b64 exec, 0xff")
        e(f"buffer_store_dwordx4 v[{AC}:{AC+3}], v{vO}, s[{sWS}:{sWS+3}], s{sT} offen sc0 sc1")
        e(f"buffer_store_dwordx4 v[{AC+4}:{AC+7}], v{vO}, s[{sWS}:{sWS+3}], s{sT} offen offset:16 sc0 sc1")
        e("s_mov_b64 exec, -1")
        e(f"s_branch {ld}")
        self.label(l3)
        e(f"v_lshl_add_u32 v{vO}, v{vO}, 11, v{vS1}")
        e(f"s_lshl_b32 s{sT}, s2, 14")
        for i in range(16):
            e(f"buffer_load_dwordx4 v[{D+4*i}:{D+4*i+3}], v{vO}, s[{sX0}:{sX0+3}], s{sT} offen offset:{128 * i}")
        for i in range(4): e(f"v_mov_b32 v{AC+i}, 0")
        e(f"v_mov_b32 v{vS1}, 0x3f803f80")
        for i in range(16):
            e(f"s_waitcnt vmcnt({15 - i})")
            for j in range(4):
                e(f"v_dot2_f32_bf16 v{AC+2*(j&1)}, v{D+4*i+j}, v{vS1}, v{AC+2*(j&1)}")
                e(f"v_dot2_f32_bf16 v{AC+2*(j&1)+1}, v{D+4*i+j}, v{D+4*i+j}, v{AC+2*(j&1)+1}")
        e("s_nop 3")
        e(f"v_add_f32 v{AC}, v{AC}, v{AC+2}"); e(f"v_add_f32 v{AC+1}, v{AC+1}, v{AC+3}")
        for m in ("quad_perm:[1,0,3,2]", "quad_perm:[2,3,0,1]", "row_half_mirror"):
            e("s_nop 1")
            for i in range(2): e(f"v_add_f32_dpp v{AC+i}, v{AC+i}, v{AC+i} {m} row_mask:0xf bank_mask:0xf")
        e(f"v_lshrrev_b32 v{vO}, 4, v{vL16}")
        e(f"s_lshl_b32 s{sT}, s2, 6"); e(f"s_add_u32 s{sT}, s{sT}, {WS_ST0}")
        e(f"s_mov_b32 s{sEX}, 0x01010101"); e(f"s_mov_b32 s{sEX+1}, 0x01010101")
        e(f"s_mov_b64 exec, s[{sEX}:{sEX+1}]")
        e(f"buffer_store_dwordx2 v[{AC}:{AC+1}], v{vO}, s[{sWS}:{sWS+3}], s{sT} offen sc0 sc1")
        e("s_mov_b64 exec, -1")
        self.label(ld)
        R = 236
        e(f"v_and_b32 v{vO}, 0xf0, v{vL16}"); e(f"v_lshlrev_b32 v{vO}, 7, v{vO}")
        e(f"v_lshrrev_b32 v{vS1}, 8, v{vL16}"); e(f"v_lshl_add_u32 v{vO}, v{vS1}, 3, v{vO}")
        e(f"s_lshl_b32 s{sT}, s{sMT}, 18"); e(f"s_lshl_b32 s{sT2}, s{sWM}, 17"); e(f"s_add_u32 s{sT}, s{sT}, s{sT2}")
        e(f"s_lshl_b32 s{sT2}, s{sN4}, 7"); e(f"s_add_u32 s{sT}, s{sT}, s{sT2}")
        e(f"s_lshl_b32 s{sT2}, s{sWN}, 6"); e(f"s_add_u32 s{sT}, s{sT}, s{sT2}")
        for rt in range(4):
            for t in range(2):
                e(f"buffer_load_dwordx2 v[{R+4*rt+2*t}:{R+4*rt+2*t+1}], v{vO}, s[{sX0}:{sX0+3}], s{sT} offen offset:{32 * t}")
            e(f"s_add_u32 s{sT}, s{sT}, {16 * 2048}")

    def waddr128(self, dst, sel, t0, t1, t2, nt=2):
        e = self.e
        e(f"v_lshrrev_b32 v{t0}, 6, v{vL16}")
        e(f"v_lshrrev_b32 v{t1}, 1, v{t0}"); e(f"v_and_b32 v{t1}, 3, v{t1}")
        e(f"s_lshl_b32 s{sT}, s{sel}, 1")
        e(f"v_xor_b32 v{t1}, s{sT}, v{t1}")
        e(f"v_lshlrev_b32 v{t0}, 7, v{t0}")
        e(f"v_lshl_add_u32 v{t0}, v{t1}, 5, v{t0}")
        e(f"v_and_b32 v{t1}, 0x30, v{vL16}"); e(f"v_lshrrev_b32 v{t1}, 1, v{t1}")
        e(f"v_add_u32 v{dst}, v{t0}, v{t1}")
        e(f"v_xor_b32 v{dst+1}, 32, v{dst}")
        for t in range(2): e(f"v_add_u32 v{dst+2+t}, {3 * WSLOT}, v{dst+t}")

    def waddr256(self, dst, xs, sbase, t0, t1):
        o = [f"v_lshrrev_b32 v{t0}, 6, v{vL16}", f"v_and_b32 v{t1}, 7, v{t0}", f"v_xor_b32 v{t1}, s{sbase}, v{t1}",
             f"v_lshlrev_b32 v{t0}, 8, v{t0}", f"v_lshl_add_u32 v{t0}, v{t1}, 5, v{t0}",
             f"v_and_b32 v{t1}, 0x30, v{vL16}", f"v_lshrrev_b32 v{t1}, 1, v{t1}", f"v_add_u32 v{t0}, v{t0}, v{t1}"]
        for t in range(4): o.append(f"v_xor_b32 v{dst+t}, {xs[t] << 5}, v{t0}")
        for t in range(4): o.append(f"v_add_u32 v{dst+4+t}, {3 * WSLOT}, v{dst+t}")
        return o

    def x_g1(self):
        e = self.e; P = "X"
        ACCQ, ACCK, ACCV, XF, WF = 0, 32, 72, 112, 152
        vXa, vWa = 200, 202
        vL, vG, vI, vT0, vT1, vT2, vT3, vOA = 206, 207, 208, 209, 210, 211, 212, 213
        def aq(j, ab): return ACCQ + ((j - 1) * 2 + ab) * 4
        def ak(j, ab): return ACCK + (j * 2 + ab) * 4
        def av(j, ab): return ACCV + (j * 2 + ab) * 4
        def xf(b, j): return XF + b * 20 + j * 4
        def wf(b, seg, ab): return WF + b * 24 + (seg * 2 + ab) * 4
        self.lanes(vL, vG, vI)
        l2, l3 = self.lab("g1"), self.lab("g1")
        e(f"s_lshl_b32 s{sT}, s{sWM}, 13"); e(f"s_add_u32 s{sT}, s{sT}, {LA}")
        e(f"s_cmp_lg_u32 s{sLAY}, 0"); e(f"s_cbranch_scc1 {l2}")
        e(f"v_and_b32 v{vT1}, 6, v{vI}"); e(f"v_xor_b32 v{vT1}, v{vT1}, v{vG}"); e(f"v_lshlrev_b32 v{vT1}, 4, v{vT1}")
        e(f"v_lshl_add_u32 v{vXa}, v{vI}, 7, v{vT1}"); e(f"v_xor_b32 v{vXa+1}, 64, v{vXa}")
        e(f"s_branch {l3}")
        self.label(l2)
        e(f"v_mov_b32 v{vXa}, v{vL16}"); e(f"v_add_u32 v{vXa+1}, 1024, v{vL16}")
        self.label(l3)
        e(f"v_add_u32 v{vXa}, s{sT}, v{vXa}"); e(f"v_add_u32 v{vXa+1}, s{sT}, v{vXa+1}")
        self.waddr128(vWa, sWN, vT0, vT1, vT2)
        e(f"s_add_u32 s{sGa}, s{sTile}, s{sOo}")
        SEL, vQa, vVa, vCq, vCv, ONES = 214, 218, 219, 220, 221, 222
        sM = sAT; sOdd = sAT + 8; sInv = sAT + 10
        e(f"v_lshlrev_b32 v{vT0}, 2, v{vG}"); e(f"v_sub_u32 v{vT0}, v{vI}, v{vT0}")
        for r in range(4): e(f"v_cmp_le_i32 s[{sM+2*r}:{sM+2*r+1}], {r}, v{vT0}")
        e(f"v_and_b32 v{vT1}, 1, v{vI}"); e(f"v_cmp_eq_u32 s[{sOdd}:{sOdd+1}], 1, v{vT1}")
        e(f"v_sub_u32 v{vT0}, v{vT0}, v{vT1}")
        e(f"v_mov_b32 v{vT3}, 0x0c0c0c0c")
        for k in range(2):
            e(f"v_mov_b32 v{vT1}, {hex([0x0c0c0100, 0x0c0c0302][k])}"); e(f"v_mov_b32 v{vT2}, {hex([0x01000c0c, 0x03020c0c][k])}")
            e(f"v_cmp_le_i32 vcc, {2 * k}, v{vT0}")
            e(f"v_cndmask_b32 v{vT1}, v{vT1}, v{vT2}, s[{sOdd}:{sOdd+1}]")
            e(f"s_not_b64 s[{sInv+2*k}:{sInv+2*k+1}], vcc")
            e(f"v_cndmask_b32 v{SEL+k}, v{vT1}, v{vT3}, vcc")
            e(f"v_cndmask_b32 v{SEL+2+k}, v{vT3}, v{vT1}, vcc")
        e(f"s_or_b32 s{sT}, s{sMT}, s{sWM}"); e(f"s_cmp_eq_u32 s{sT}, 0")
        for k in range(2): e(f"s_cselect_b64 s[{sInv+2*k}:{sInv+2*k+1}], s[{sInv+2*k}:{sInv+2*k+1}], 0")
        e(f"s_lshl_b32 s{sT}, s{sWM}, 8"); e(f"s_add_u32 s{sT}, s{sT}, {L_ST}")
        e(f"v_lshlrev_b32 v{vQa}, 2, v{vI}"); e(f"v_add_u32 v{vQa}, s{sT}, v{vQa}")
        e(f"v_lshlrev_b32 v{vVa}, 4, v{vG}"); e(f"v_add_u32 v{vVa}, s{sT}, v{vVa}")
        e(f"s_lshl_b32 s{sT}, s{sWN}, 7"); e(f"s_add_u32 s{sT}, s{sT}, {L_CSQ}")
        e(f"v_lshlrev_b32 v{vCq}, 4, v{vG}"); e(f"v_add_u32 v{vCq}, s{sT}, v{vCq}")
        e(f"v_lshlrev_b32 v{vCv}, 2, v{vI}"); e(f"v_add_u32 v{vCv}, s{sT}, v{vCv}")
        for i in range(4): e(f"v_mov_b32 v{ONES+i}, 0x3f803f80")
        e(f"v_mov_b32 v{vOA}, {L_MODE}")
        CS, CSV, NMq, RSq, NMv, RSv = 152, 168, 112, 118, 132, 176
        tab = [f"ds_read_b128 v[{CS+4*k}:{CS+4*k+3}], v{vCq} offset:{256 * (k >> 1) + 64 * (k & 1)}" for k in range(4)]
        tab += [f"ds_read_b32 v{NMq+j}, v{vQa} offset:{64 * j}" for j in range(5)]
        tab += [f"ds_read_b32 v{RSq+j}, v{vQa} offset:{576 + 64 * j}" for j in range(5)]
        tab += [f"ds_read_b32 v{CSV+ab}, v{vCv} offset:{512 + 64 * ab}" for ab in range(2)]
        tab += [f"ds_read_b32 v170, v{vOA}"]
        def reads(s):
            b = s & 1; u = s >> 1; sl = s % 6
            xr = [f"ds_read_b128 v[{xf(b,j)}:{xf(b,j)+3}], v{vXa + (s & 1)} offset:{(u % 3) * 18432 + j * 2048}" for j in range(5)]
            wr = []
            for seg in range(3):
                for ab in range(2):
                    r = wf(b, seg, ab); ad = vWa + 2 * (sl // 3) + ab; off = (sl % 3) * WSLOT + seg * 4096
                    wr.append(f"ds_read_b64_tr_b16 v[{r}:{r+1}], v{ad} offset:{off}")
                    wr.append(f"ds_read_b64_tr_b16 v[{r+2}:{r+3}], v{ad} offset:{off + 2048}")
            return wr[0:2] + xr[1:] + wr[2:6] + xr[0:1] + wr[6:]
        def mf(s):
            b = s & 1; m = []; c = "0" if s == 0 else None
            for ab in range(2):
                for j in range(1, 5): m.append(mfma(aq(j, ab), wf(b, 0, ab), xf(b, j), c))
            for ab in range(2):
                for j in range(5): m.append(mfma(ak(j, ab), wf(b, 1, ab), xf(b, j), c))
            for ab in range(2):
                for j in range(5): m.append(mfma(av(j, ab), xf(b, j), wf(b, 2, ab), c))
            return m
        lq = self.lab("g1")
        e(f"s_cmp_eq_u32 s{sLAY}, 0"); e(f"s_cbranch_scc1 {lq}")
        e("s_waitcnt vmcnt(0) lgkmcnt(0)"); e("s_barrier")
        self.wg_flags(self.FG(4), self.FL(0, 64))
        self.stats_out(sSTo, 226)
        self.label(lq)
        self.ts(0)
        self.bar(P, ("G1", -1))
        self.ts(1); self.tsc(16)
        self.emit(reads(0))
        def fn(s, ex):
            extra = []
            if ex: extra.append((24, self.CNT))
            self.step(P, ("G1", s), mf(s), reads(s + 1) if s < 31 else tab, vmw=(0 if s == 2 else None), last=20, extra=extra)
        self.looped(P, 32, 6, fn)
        self.ts(2); self.tsc(17)
        def pk(op, d, srcs):
            ops = []; sel = []; selhi = []
            for kind, r in srcs:
                if kind == 'p': ops.append(f"v[{r}:{r+1}]"); sel.append(0); selhi.append(1)
                else: ops.append(f"v[{r & ~1}:{(r & ~1) + 1}]"); sel.append(r & 1); selhi.append(r & 1)
            e(f"{op} v[{d}:{d+1}], " + ", ".join(ops) + f" op_sel:[{','.join(map(str, sel))}] op_sel_hi:[{','.join(map(str, selhi))}]")
        e("s_waitcnt lgkmcnt(0)")
        self.al()
        for j in range(5):
            e(f"ds_read_b128 v[{NMv+4*j}:{NMv+4*j+3}], v{vVa} offset:{64 * j}")
            e(f"ds_read_b128 v[{RSv+4*j}:{RSv+4*j+3}], v{vVa} offset:{576 + 64 * j}")
        def pack4(b):
            for i in range(4): e(f"v_cvt_pk_bf16_f32 v{b+i}, v{b+2*i}, v{b+2*i+1}")
        for j in range(1, 5):
            b = aq(j, 0)
            for i in range(4): pk("v_pk_fma_f32", b + 2 * i, [('b', NMq + j), ('p', CS + 2 * i), ('p', b + 2 * i)])
        for j in range(5):
            b = ak(j, 0)
            for i in range(4): pk("v_pk_fma_f32", b + 2 * i, [('b', NMq + j), ('p', CS + 8 + 2 * i), ('p', b + 2 * i)])
        for j in range(1, 5): pack4(aq(j, 0))
        for j in range(5):
            b = ak(j, 0)
            for i in range(4): pk("v_pk_mul_f32", b + 2 * i, [('b', RSq + j), ('p', b + 2 * i)])
        for j in range(5): pack4(ak(j, 0))
        e(f"v_readfirstlane_b32 s{sMODE}, v170")
        e("s_waitcnt lgkmcnt(0)")
        def Sc(j): return aq(j, 1)
        def Sp(j): return ak(j, 1)
        for j in range(1, 5):
            e(mfma(Sc(j), ak(j, 0), aq(j, 0), "0"))
            e(mfma(Sp(j), ak(j - 1, 0), aq(j, 0), "0"))
        VP = [226, 152]
        for j in range(5):
            for ab in range(2):
                c = av(j, ab)
                for r in (0, 2): pk("v_pk_fma_f32", c + r, [('p', NMv + 4 * j + r), ('b', CSV + ab), ('p', c + r)])
        J = range(1, 5)
        for j in J:
            for r in range(4): e(f"v_cndmask_b32 v{Sp(j)+r}, v{Sp(j)+r}, v{Sc(j)+r}, s[{sM+2*r}:{sM+2*r+1}]")
        for j in J:
            e(f"v_cndmask_b32 v{Sp(j)}, v{Sp(j)}, v{Sp(j)+1}, s[{sOdd}:{sOdd+1}]")
            e(f"v_cndmask_b32 v{Sp(j)+1}, v{Sp(j)+2}, v{Sp(j)+3}, s[{sOdd}:{sOdd+1}]")
        e(f"v_mov_b32 v{vT0}, 0xf149f2ca")
        for k in range(2): e(f"v_cndmask_b32 v{Sp(1)+k}, v{Sp(1)+k}, v{vT0}, s[{sInv+2*k}:{sInv+2*k+1}]")
        MX = {j: Sp(j) + 2 for j in J}
        for j in J: e(f"v_max_f32 v{MX[j]}, v{Sp(j)}, v{Sp(j)+1}")
        fill = []
        for j in range(5):
            for ab in range(2):
                c = av(j, ab)
                for r in (0, 2): fill.append((c + r, RSv + 4 * j + r))
        def F(n):
            for _ in range(n):
                d, r = fill.pop(0); pk("v_pk_mul_f32", d, [('p', r), ('p', d)])
        F(2)
        e(f"v_permlane32_swap_b32 v{MX[1]}, v{MX[3]}"); e(f"v_permlane32_swap_b32 v{MX[2]}, v{MX[4]}")
        e(f"v_max_f32 v{MX[1]}, v{MX[1]}, v{MX[3]}"); e(f"v_max_f32 v{MX[2]}, v{MX[2]}, v{MX[4]}")
        F(2)
        e(f"v_permlane16_swap_b32 v{MX[1]}, v{MX[2]}")
        e(f"v_max_f32 v{MX[1]}, v{MX[1]}, v{MX[2]}")
        e(f"v_mov_b32 v{MX[2]}, v{MX[1]}")
        F(2)
        e(f"v_permlane16_swap_b32 v{MX[1]}, v{MX[2]}")
        e(f"v_mov_b32 v{MX[3]}, v{MX[1]}"); e(f"v_mov_b32 v{MX[4]}, v{MX[2]}")
        F(2)
        e(f"v_permlane32_swap_b32 v{MX[1]}, v{MX[3]}"); e(f"v_permlane32_swap_b32 v{MX[2]}, v{MX[4]}")
        sc = f32bits((32 ** -0.5) * 1.4426950408889634)
        for j in J: e(f"v_mul_f32 v{RSq+j}, 0x{sc:08x}, v{RSq+j}")
        for j in J:
            for k in range(2): e(f"v_sub_f32 v{Sp(j)+k}, v{Sp(j)+k}, v{MX[j]}")
        for j in J:
            for k in range(2): e(f"v_mul_f32 v{Sp(j)+k}, v{RSq+j}, v{Sp(j)+k}")
        for j in J:
            for k in range(2): e(f"v_exp_f32 v{Sp(j)+k}, v{Sp(j)+k}")
        self.al()
        F(len(fill))
        for j in J: e(f"v_cvt_pk_bf16_f32 v{Sp(j)}, v{Sp(j)}, v{Sp(j)+1}")
        for j in range(5):
            for ab in range(2):
                c = av(j, ab)
                e(f"v_cvt_pk_bf16_f32 v{VP[ab]+2*j}, v{c}, v{c+1}"); e(f"v_cvt_pk_bf16_f32 v{VP[ab]+2*j+1}, v{c+2}, v{c+3}")
        for j in J:
            for k in range(4): e(f"v_perm_b32 v{Sc(j)+k}, v{Sp(j)}, v{Sp(j)}, v{SEL+k}")
        def OO(j): return 72 + 8 * (j - 1)
        e(f"s_add_u32 s{sT}, s{sGa}, 4096")
        for j in J: e(mfma(aq(j, 0), ONES, Sc(j), "0"))
        for j in J:
            for ab in range(2): e(mfma(OO(j) + 4 * ab, VP[ab] + 2 * (j - 1), Sc(j), "0"))
        for j in J: e(f"v_rcp_f32 v{aq(j,0)}, v{aq(j,0)}")
        for j in J:
            if j == 4: e("s_nop 1")
            for i in range(4): pk("v_pk_mul_f32", OO(j) + 2 * i, [('b', aq(j, 0)), ('p', OO(j) + 2 * i)])
            pack4(OO(j))
            e(f"buffer_store_dwordx4 v[{OO(j)}:{OO(j)+3}], v{vL16}, s[{sWS}:{sWS+3}], s{sGa if j < 3 else sT} offen offset:{2048 * ((j - 1) & 1)} sc0 sc1")
        self.ts(3)

    def silu_group(self, cg, cu, E, RL, I2, O, NM=None, sg=None, su=None):
        o = []
        if NM is not None: o += [f"v_fmac_f32 v{cg+r}, v{NM}, v{sg+r}" for r in range(4)]
        o += [f"v_mul_f32 v{E+r}, v{RL}, v{cg+r}" for r in range(4)]
        if NM is not None: o += [f"v_fmac_f32 v{cu+r}, v{NM}, v{su+r}" for r in range(4)]
        o += [f"v_exp_f32 v{E+r}, v{E+r}" for r in range(4)]
        o += [f"v_mul_f32 v{cg+r}, v{cg+r}, v{cu+r}" for r in range(4)]
        o += [f"v_fma_f32 v{E+r}, v{E+r}, v{I2}, v{I2}" for r in range(4)]
        o += [f"v_rcp_f32 v{E+r}, v{E+r}" for r in range(4)]
        o += [f"v_mul_f32 v{cg+r}, v{cg+r}, v{E+r}" for r in range(4)]
        o += [f"v_cvt_pk_bf16_f32 v{O}, v{cg}, v{cg+1}", f"v_cvt_pk_bf16_f32 v{O+1}, v{cg+2}, v{cg+3}"]
        return o

    def stat_regs(self, MR, NM, RL, I2, t0):
        o = [f"s_lshl_b32 s{sT}, s{sWM}, 9", f"s_add_u32 s{sT}, s{sT}, {L_ST}", f"v_and_b32 v{t0}, 0xf0, v{vL16}", f"v_lshrrev_b32 v{t0}, 1, v{t0}",
             f"v_add_u32 v{t0}, s{sT}, v{t0}"]
        o += [f"ds_read_b64 v[{MR+2*rt}:{MR+2*rt+1}], v{t0} offset:{128*rt}" for rt in range(4)]
        o += ["s_waitcnt lgkmcnt(0)"]
        for rt in range(4):
            o += [f"v_sub_f32 v{NM+rt}, 0, v{MR+2*rt}", f"v_mul_f32 v{RL+rt}, 0xbfb8aa3b, v{MR+2*rt+1}", f"v_mul_f32 v{I2+rt}, v{MR+2*rt+1}, v{MR+2*rt+1}"]
        o += [f"v_rcp_f32 v{I2+rt}, v{I2+rt}" for rt in range(4)] + ["s_nop 0"]
        return o

    def unpack(self, dst, src):
        return [f"v_lshlrev_b32 v{dst}, 16, v{src}", f"v_and_b32 v{dst+1}, 0xffff0000, v{src}"]

    def res_epilogue(self, acc, sX, PK, T):
        e = self.e
        e(f"s_add_u32 s{sD0}, s{sTile}, s{sX}"); e(f"s_add_u32 s{sD1}, s{sD0}, 4096")
        for rt in range(4):
            for t in range(2):
                c = acc(t, rt)
                e(f"v_cvt_pk_bf16_f32 v{PK+4*rt+2*t}, v{c}, v{c+1}"); e(f"v_cvt_pk_bf16_f32 v{PK+4*rt+2*t+1}, v{c+2}, v{c+3}")
            e(f"buffer_store_dwordx4 v[{PK+4*rt}:{PK+4*rt+3}], v{vL16}, s[{sWS}:{sWS+3}], s{sD0 + (rt >> 1)} offen offset:{2048 * (rt & 1)} sc0 sc1")
        S = T; Q = T + 4; ON = T + 8
        e(f"v_mov_b32 v{ON}, 0x3f803f80")
        for i in range(4):
            for rt in range(4):
                e(f"v_dot2_f32_bf16 v{S+rt}, v{PK+4*rt+i}, v{ON}, {f'v{S+rt}' if i else 0}")
                e(f"v_dot2_f32_bf16 v{Q+rt}, v{PK+4*rt+i}, v{PK+4*rt+i}, {f'v{Q+rt}' if i else 0}")
        e(f"s_lshl_b32 s{sT}, s{sLW}, 9"); e(f"s_add_u32 s{sT}, s{sT}, {L_SS}")
        e("s_nop 1")
        for B in (S, Q):
            e(f"v_permlane32_swap_b32 v{B}, v{B+2}"); e(f"v_permlane32_swap_b32 v{B+1}, v{B+3}")
        for B in (S, Q):
            e(f"v_add_f32 v{B}, v{B}, v{B+2}"); e(f"v_add_f32 v{B+1}, v{B+1}, v{B+3}")
        e(f"v_lshrrev_b32 v{ON}, 1, v{vL16}"); e(f"v_add_u32 v{ON}, s{sT}, v{ON}")
        for B in (S, Q): e(f"v_permlane16_swap_b32 v{B}, v{B+1}")
        e(f"v_add_f32 v{S}, v{S}, v{S+1}"); e(f"v_add_f32 v{S+1}, v{Q}, v{Q+1}")
        e(f"ds_write_b64 v{ON}, v[{S}:{S+1}]")

    def stats_out(self, sST, T):
        e = self.e; l = self.lab("so")
        e(f"s_cmp_lg_u32 s{sLW}, 0"); e(f"s_cbranch_scc1 {l}")
        e(f"v_add_u32 v{T+8}, {L_SS}, v{vL16}")
        e(f"ds_read_b128 v[{T}:{T+3}], v{T+8}"); e(f"ds_read_b128 v[{T+4}:{T+7}], v{T+8} offset:1024")
        e(f"s_lshl_b32 s{sT}, s{sN4}, 10"); e(f"s_add_u32 s{sT}, s{sT}, s{sST}")
        e("s_waitcnt lgkmcnt(0)")
        for r in range(4): e(f"v_add_f32 v{T+r}, v{T+r}, v{T+4+r}")
        e(f"buffer_store_dwordx4 v[{T}:{T+3}], v{vL16}, s[{sWS}:{sWS+3}], s{sT} offen sc0 sc1")
        self.label(l)

    def x_g2(self):
        e = self.e; P = "X"
        ACC, XF, WF, vXa, vWa = 0, 32, 104, 136, 137
        R, T0, T1, T2 = 236, 152, 153, 154
        def acc(t, rt): return ACC + (t * 4 + rt) * 4
        def xf(b, h, rt): return XF + b * 32 + h * 16 + rt * 4
        def wf(b, h, t): return WF + b * 16 + h * 8 + t * 4
        e(f"s_lshl_b32 s{sT}, s{sWM}, 13"); e(f"s_add_u32 s{sT}, s{sT}, {LA}")
        e(f"v_add_u32 v{vXa}, s{sT}, v{vL16}")
        self.waddr128(vWa, sWN, T0, T1, T2)
        for rt in range(4):
            for t in range(2):
                for k in range(2): self.emit(self.unpack(acc(t, rt) + 2 * k, R + 4 * rt + 2 * t + k))
        def reads(u):
            b = u & 1; o = []
            sl = (32 + (u >> 1)) % 6
            for h in range(2):
                wr = []
                for t in range(2):
                    r = wf(b, h, t); ad = vWa + 2 * (sl // 3) + t; off = (sl % 3) * WSLOT + ((u & 1) * 2 + h) * 4096
                    wr += [f"ds_read_b64_tr_b16 v[{r}:{r+1}], v{ad} offset:{off}", f"ds_read_b64_tr_b16 v[{r+2}:{r+3}], v{ad} offset:{off + 2048}"]
                xr = [f"ds_read_b128 v[{xf(b,h,rt)}:{xf(b,h,rt)+3}], v{vXa} offset:{(u % 3) * 16384 + rt * 2048 + h * 1024}" for rt in range(4)]
                o += wr[0:2] + xr + wr[2:]
            return o
        def mf(u):
            b = u & 1
            return [mfma(acc(t, rt), wf(b, h, t), xf(b, h, rt)) for h in range(2) for t in range(2) for rt in range(4)]
        self.ts(4)
        e("s_waitcnt vmcnt(0)")
        self.bar(P, ("G2", -2))
        self.wg_flags(self.FG(0), self.FL(0, 0))
        self.ts(5)
        self.bar(P, ("G2", -1))
        self.ts(6); self.tsc(18)
        self.emit(reads(0))
        for u in range(16):
            self.step(P, ("G2", u), mf(u), reads(u + 1) if u < 15 else [], last=int(self.opt.get("g2last", 11)))
        self.ts(7); self.tsc(19)
        e("s_nop 7")
        self.res_epilogue(acc, sXm, 32, 48)
        self.ts(8)

    def a3(self, mat, t, rt): return ((mat * 4 + t) * 4 + rt) * 4
    def a4(self, t, rt): return 128 + (t * 4 + rt) * 4
    V4X, V4W = 243, 244
    XP = {"g3b": [236, 237, 242], "g4": [238, 239, 240, 241]}
    vXA = 191

    def x_g3a(self):
        e = self.e; P = "X"
        XF, WF, vXa, vWa, T0, T1, T2 = 128, 160, 224, 225, 233, 234, 235
        def xf(b, rt): return XF + b * 16 + rt * 4
        def wf(b, mat, t): return WF + b * 32 + (mat * 4 + t) * 4
        e(f"s_lshl_b32 s{sT}, s{sWM}, 13"); e(f"s_add_u32 s{sT}, s{sT}, {LA}")
        e(f"v_add_u32 v{vXa}, s{sT}, v{vL16}")
        e(f"s_lshl_b32 s{sT2}, s{sWN}, 2")
        self.emit(self.waddr256(vWa, [0, 1, 2, 3], sT2, T0, T1))
        self.emit(self.pat_g3b(self.XP["g3b"], T0, T1, T2)); self.emit(self.pat_256(self.XP["g4"], 2048, T0, T1, T2))
        e(f"v_mov_b32 v{self.V4X}, v{vXa}")
        e(f"s_and_b32 s{sT2}, s{sN4}, 1"); e(f"s_lshl_b32 s{sT2}, s{sT2}, 2"); e(f"s_lshl_b32 s{sT}, s{sWN}, 1"); e(f"s_add_u32 s{sT2}, s{sT2}, s{sT}")
        self.emit(self.waddr256(self.V4W, [0, 1, 4, 5], sT2, T0, T1))
        self.h_bases()
        e(f"s_add_u32 s{sGa}, s{sXm}, s{sM4}")
        e(f"s_lshl_b32 s{sRa}, s{sN4}, 14")
        def reads(s):
            b = s & 1; sl = (40 + s) % 6
            xr = [f"ds_read_b128 v[{xf(b,rt)}:{xf(b,rt)+3}], v{vXa} offset:{((s >> 1) % 3) * 16384 + rt * 2048 + (s & 1) * 1024}" for rt in range(4)]
            wr = []
            for t in range(4):
                for mat in range(2):
                    r = wf(b, mat, t); ad = vWa + 4 * (sl // 3) + t; off = (sl % 3) * WSLOT + mat * 8192
                    wr += [f"ds_read_b64_tr_b16 v[{r}:{r+1}], v{ad} offset:{off}", f"ds_read_b64_tr_b16 v[{r+2}:{r+3}], v{ad} offset:{off + 4096}"]
            return wr[0:2] + xr + wr[2:]
        def mf(s):
            b = s & 1
            return [mfma(self.a3(mat, t, rt), wf(b, mat, t), xf(b, rt), "0" if s == 0 else None) for t in range(4) for mat in range(2) for rt in range(4)]
        e("s_waitcnt vmcnt(0) lgkmcnt(0)")
        self.bar(P, ("G3A", -2))
        self.wg_flags(None, self.FL(0, 32))
        self.stats_out(sSTm, 208)
        self.ts(9)
        self.bar(P, ("G3A", -1))
        self.ts(10); self.tsc(20)
        self.emit(reads(0))
        def fn(s, ex):
            extra = []
            if ex: extra.append((28, self.CNT))
            self.step(P, ("G3A", s), mf(s), reads(s + 1) if s < 31 else [], vmw=(0 if s == 2 else None), last=23, extra=extra)
        self.looped(P, 32, 6, fn)
        self.ts(11); self.tsc(21)

    def h_bases(self):
        e = self.e
        e(f"s_and_b32 s{sT}, s{sN4}, 1"); e(f"s_mul_i32 s{sT}, s{sT}, {28 * 16384}"); e(f"s_add_u32 s{sHx}, s{sHo}, s{sT}")
        e(f"s_and_b32 s{sT}, s{sNT}, 7"); e(f"s_lshl_b32 s{sT}, s{sT}, 14"); e(f"s_and_b32 s{sT2}, s{sTile}, 0x3fff")
        e(f"s_add_u32 s{sT}, s{sT}, s{sT2}"); e(f"s_add_u32 s{sGh}, s{sT}, s{sHx}")
        e(f"s_and_b32 s{sT}, s{sNT}, 6"); e(f"s_add_u32 s{sT}, s{sT}, 48"); e(f"s_lshl_b32 s{sT}, s{sT}, 13")
        e(f"s_and_b32 s{sT2}, s{sNT}, 1"); e(f"s_lshl_b32 s{sT2}, s{sT2}, 10"); e(f"s_add_u32 s{sT}, s{sT}, s{sT2}")
        e(f"s_add_u32 s{sT}, s{sT}, s{sM4}"); e(f"s_add_u32 s{sGs}, s{sT}, s{sHx}")

    def epi_loop(self, P, ph, n, vm, work, budget, lag, need, dmas, flags, dead, hook=None):
        pend = []
        for s in range(n):
            ready = [b for b, p in pend if p <= s]
            gate = bool(work) and work[0][1] == ("GATE",)
            self.pb(P, (ph, s), vm.need(*(need(s) + [("H", b) for b in ready])), 0 if gate else None)
            for b in ready: self.wg_flag_if(b & 3, flags[b])
            pend = [(b, p) for b, p in pend if p > s]
            if hook: hook(s)
            dm = dmas(s)
            its = []
            if work and work[0][1] == ("GATE",): work.pop(0)
            if work:
                its = self.chunk(work, budget(s))
                if ("GATE",) in its:
                    k = its.index(("GATE",)); work[0:0] = self.costed(its[k:]); its = its[:k]
            items = []
            for it in its:
                if isinstance(it, tuple) and it[0] == "FLAG":
                    assert s + lag <= dead[it[1]], (ph, it, s)
                    pend.append((it[1], s + lag)); self.info.append(f"{ph}: flag {it[1]} work done in period {s}")
                else: items.append(it)
            self.run_period(dm, items)
        assert not work and not pend, (ph, len(work), pend)
        self.tr_flush(P)

    def x_g3b(self):
        e = self.e; P = "XL"; vm = VM()
        NM, RL, I2, CS, E, OUT = 192, 196, 200, 204, 220, 224
        PT = self.XP
        T0, vCS = 232, 235
        e("s_setprio 1")
        vA = self.vXA
        e(f"v_add_u32 v{vA}, s{sGa}, v{vL16}")
        work = ["s_nop 7"] + self.stat_regs(E, NM, RL, I2, T0)
        work += [f"s_lshl_b32 s{sT}, s{sWN}, 8", f"s_add_u32 s{sT}, s{sT}, {L_CSA}", f"v_lshrrev_b32 v{vCS}, 8, v{vL16}", f"v_lshlrev_b32 v{vCS}, 4, v{vCS}", f"v_add_u32 v{vCS}, s{sT}, v{vCS}"]
        for b in range(2):
            for t in range(2):
                for mat in range(2):
                    c = CS + (t * 2 + mat) * 4
                    work.append(f"ds_read_b128 v[{c}:{c+3}], v{vCS} offset:{mat * 512 + (2 * b + t) * 64}")
            work.append("s_waitcnt lgkmcnt(0)")
            for rt in range(4):
                O = OUT + 4 * (rt & 1)
                for t in range(2):
                    work += self.silu_group(self.a3(0, 2 * b + t, rt), self.a3(1, 2 * b + t, rt), E, RL + rt, I2 + rt, O + 2 * t, NM + rt, CS + t * 8, CS + t * 8 + 4)
                work.append(self.grp(vm, ("H", b), [f"s_add_u32 s{sT}, s{sGh}, {b * 8 * 16384 + rt * 2048}"],
                                     f"buffer_store_dwordx4 v[{O}:{O+3}], v{vL16}, s[{sWS}:{sWS+3}], s{sT} offen sc0 sc1"))
            work.append(("FLAG", b))
        self.w_start(72 + self.xw0, 110)
        def need(s): return [self.wneed(72 + s + 1)] + ([("A", 16 + (s + 1) // 2)] if s & 1 else [])
        def hook(s):
            if s == 25: self.apoll_issue(vm, self.FL(1, 0), 8, T0)
            if s == 27:
                self.apoll_check(vm, self.FL(1, 0), 8, T0)
                e(f"s_add_u32 s{sGa}, s{sHx}, s{sM4}"); e(f"v_add_u32 v{vA}, s{sGa}, v{vL16}")
        def dmas(s):
            dm = []
            if s >= 1:
                idx = 16 + (s - 1) // 2 + 3; part = (s - 1) & 1
                if idx < 32:
                    t = idx - 16
                    dm = self.a_issue(vm, ("A", idx), idx % 3, vA, None, self.ainc(uord(BORD[t + 1]) - uord(BORD[t])) if t < 15 else None, part)
                elif s < 31: dm = self.a_issue(vm, ("A", idx), idx % 3, vA, (idx - 32) * 16384, None, part)
                else: dm = self.a_issue(vm, ("A", idx), idx % 3, vA, (idx - 32) * 16384)
            return dm + self.w_take(vm, PT, 1, 72 + s)
        bud = float(self.opt.get("budX", 28))
        self.epi_loop(P, "G3B", 32, vm, self.costed(work), lambda s: bud, int(self.opt.get("lagX", 4)), need, dmas,
                      [self.FL(1, 0), self.FL(1, 32)], [25, 31], hook)
        assert self.wn == 110
        e("s_setprio 0")
        self.g4w = [vm.need(("W", 104 + u + 1), ("A", 32 + u + 1)) for u in range(7)]

    def x_g4(self):
        e = self.e; P = "X"
        XF, WF = 0, 32
        vXa, vWa = self.V4X, self.V4W
        T0, T1 = 192, 193
        SP, RP, RS = 64, 80, 96
        def xf(b, rt): return XF + b * 16 + rt * 4
        def wf(b, t): return WF + b * 16 + t * 4
        def reads(s):
            b = s & 1; u = s >> 1; sl = (104 + u) % 6
            xr = [f"ds_read_b128 v[{xf(b,rt)}:{xf(b,rt)+3}], v{vXa} offset:{((32 + u) % 3) * 16384 + rt * 2048 + b * 1024}" for rt in range(4)]
            wr = []
            for t in range(4):
                r = wf(b, t); ad = vWa + 4 * (sl // 3) + t; off = (sl % 3) * WSLOT + b * 8192
                wr += [f"ds_read_b64_tr_b16 v[{r}:{r+1}], v{ad} offset:{off}", f"ds_read_b64_tr_b16 v[{r+2}:{r+3}], v{ad} offset:{off + 4096}"]
            return wr[0:2] + xr + wr[2:]
        def mf(s):
            b = s & 1
            return [mfma(self.a4(t, rt), wf(b, t), xf(b, rt), "0" if s == 0 else None) for t in range(4) for rt in range(4)]
        self.emit(reads(0))
        e(f"s_lshl_b32 s{sT}, s{sN4}, 14"); e(f"s_add_u32 s{sT}, s{sT}, s{sM4}")
        e(f"s_add_u32 s{sT}, s{sT}, s{sOo}"); e(f"s_add_u32 s{sGa}, s{sT}, {WS_P}")
        e(f"s_xor_b32 s{sGh}, s{sGa}, {1 << 14}")
        e(f"s_add_u32 s{sD0}, s{sTile}, s{sXm}"); e(f"s_add_u32 s{sD1}, s{sD0}, 4096")
        self.ts(12); self.tsc(22)
        def res(rt): return [f"buffer_load_dwordx4 v[{RS+4*rt}:{RS+4*rt+3}], v{vL16}, s[{sWS}:{sWS+3}], s{sD0 + (rt >> 1)} offen offset:{2048 * (rt & 1)}"]
        def fn(u, ex):
            self.step(P, None, mf(2 * u), reads(2 * u + 1), bar=False, last=11, extra=[(13, res(2 * u - 52))] if u >= 26 else [])
            extra = []
            if ex: extra.append((13, self.CNT))
            if u >= 26: extra.append((13, res(2 * u - 51)))
            self.step(P, ("G4", u), mf(2 * u + 1), reads(2 * u + 2) if u < 27 else [], vmw=(self.g4w[u] if u < 7 else None), last=11, extra=extra)
        self.looped(P, 28, 6, fn)
        self.ts(13); self.tsc(23)
        e("s_nop 7")
        for rt in range(4):
            for t in range(2):
                c = self.a4(2 + t, rt); p = SP + 4 * rt + 2 * t
                e(f"v_cvt_pk_bf16_f32 v{p}, v{c}, v{c+1}"); e(f"v_cvt_pk_bf16_f32 v{p+1}, v{c+2}, v{c+3}")
            for i in range(4): e(f"v_min_u32 v{SP+4*rt+i}, -2, v{SP+4*rt+i}")
            e(f"buffer_store_dwordx4 v[{SP+4*rt}:{SP+4*rt+3}], v{vL16}, s[{sWS}:{sWS+3}], s{sGa} offen offset:{1024 * rt} sc0 sc1")
        def addin(R):
            for rt in range(4):
                for t in range(2):
                    U = 160 + 4 * (t + 2 * (rt & 1))
                    for k in range(2): self.emit(self.unpack(U + 2 * k, R + 4 * rt + 2 * t + k))
                    c = self.a4(t, rt)
                    for k in range(2): e(f"v_pk_add_f32 v[{c+2*k}:{c+2*k+1}], v[{c+2*k}:{c+2*k+1}], v[{U+2*k}:{U+2*k+1}]")
        e("s_waitcnt vmcnt(4)")
        addin(RS)
        lp, ld = self.lab("poll"), self.lab("pd")
        e(f"s_mov_b32 s{sT2}, {POLL}")
        self.label(lp)
        for rt in range(4):
            e(f"buffer_load_dwordx4 v[{RP+4*rt}:{RP+4*rt+3}], v{vL16}, s[{sWS}:{sWS+3}], s{sGh} offen offset:{1024 * rt} sc0 sc1")
        e("s_waitcnt vmcnt(0)")
        e(f"v_max3_u32 v{T0}, v{RP}, v{RP+1}, v{RP+2}"); e(f"v_max3_u32 v{T1}, v{RP+3}, v{RP+4}, v{RP+5}")
        for k in range(6, 14, 4):
            e(f"v_max3_u32 v{T0}, v{T0}, v{RP+k}, v{RP+k+1}"); e(f"v_max3_u32 v{T1}, v{T1}, v{RP+k+2}, v{RP+k+3}")
        e(f"v_max3_u32 v{T0}, v{T0}, v{RP+14}, v{RP+15}"); e(f"v_max_u32 v{T0}, v{T0}, v{T1}")
        e(f"v_cmp_eq_u32 vcc, -1, v{T0}")
        e(f"s_cbranch_vccz {ld}")
        e(f"s_sub_u32 s{sT2}, s{sT2}, 1"); e(f"s_cmp_lg_u32 s{sT2}, 0"); e(f"s_cbranch_scc1 {lp}")
        self.label(ld)
        addin(RP)
        self.ts(14)
        self.tr_dump("X")

    def x_final(self):
        e = self.e
        T0, T1, PK = 192, 193, 0
        e(f"v_and_b32 v{T0}, 0xf0, v{vL16}"); e(f"v_lshlrev_b32 v{T0}, 7, v{T0}")
        e(f"v_and_b32 v{T1}, 0x100, v{vL16}"); e(f"v_lshrrev_b32 v{T1}, 3, v{T1}"); e(f"v_add_u32 v{T0}, v{T0}, v{T1}")
        e(f"v_and_b32 v{T1}, 0x200, v{vL16}"); e(f"v_lshrrev_b32 v{T1}, 5, v{T1}"); e(f"v_add_u32 v{T0}, v{T0}, v{T1}")
        e(f"s_lshl_b32 s{sT}, s{sMT}, 18"); e(f"s_lshl_b32 s{sT2}, s{sWM}, 17"); e(f"s_add_u32 s{sT}, s{sT}, s{sT2}")
        e(f"s_lshl_b32 s{sT2}, s{sN4}, 7"); e(f"s_add_u32 s{sT}, s{sT}, s{sT2}")
        e(f"s_lshl_b32 s{sT2}, s{sWN}, 6"); e(f"s_add_u32 s{sT}, s{sT}, s{sT2}")
        for rt in range(4):
            for t in range(2):
                c = self.a4(t, rt)
                e(f"v_cvt_pk_bf16_f32 v{PK+4*rt+2*t}, v{c}, v{c+1}"); e(f"v_cvt_pk_bf16_f32 v{PK+4*rt+2*t+1}, v{c+2}, v{c+3}")
            e("s_nop 1")
            e(f"v_permlane16_swap_b32 v{PK+4*rt}, v{PK+4*rt+2}"); e(f"v_permlane16_swap_b32 v{PK+4*rt+1}, v{PK+4*rt+3}")
            e(f"buffer_store_dwordx4 v[{PK+4*rt}:{PK+4*rt+3}], v{T0}, s[{sOUT}:{sOUT+3}], s{sT} offen{self.opt.get('osc', '_sc0_sc1').replace('_', ' ')}")
            e(f"s_add_u32 s{sT}, s{sT}, {16 * 2048}")

    YP = {"g1": [200, 201, 202], "g2": [203, 204, 205, 206], "g3a": [207, 208, 209, 210], "g3b": [211, 212, 222], "g4": [213, 214, 215, 216]}
    YAP = [217, 218, 219, 220]
    YT = [224, 225, 226, 227]
    vHP, vPL = 221, 251
    sJ, sJo, sXc, sRt = sAT, sAT + 4, sAT + 5, sAT + 6
    sHm = sAT + 12

    def g1_src(self, first):
        e = self.e; T0, T1, T2, _ = self.YT; AP = self.YAP
        if first:
            e(f"s_lshl_b32 s{sT}, s{sMT}, 18"); e(f"s_lshl_b32 s{sT2}, s{sM4}, 4"); e(f"s_add_u32 s{sGa}, s{sT}, s{sT2}")
            e(f"s_lshl_b32 s{sT2}, s{sWM}, 14"); e(f"s_add_u32 s{sGh}, s{sT}, s{sT2}"); e(f"s_sub_u32 s{sGh}, s{sGh}, 32768")
            self.emit(self.pat_128(AP, 2048, T0, T1, T2, sGa))
            e(f"s_lshl_b32 s{sRa}, s{sN4}, 7")
        else:
            for i in range(4): e(f"s_mov_b32 s{sA1+i}, s{sWS+i}")
            e(f"s_add_u32 s{sGa}, s{sX2}, s{sM4}")
            e(f"s_lshl_b32 s{sT2}, s{sWM}, 10"); e(f"s_add_u32 s{sGh}, s{sX2}, s{sT2}"); e(f"s_sub_u32 s{sGh}, s{sGh}, {ARENA - 14336}")
            e(f"v_add_u32 v{AP[0]}, s{sGa}, v{vL16}")
            e(f"s_lshl_b32 s{sRa}, s{sN4}, 14")
        e(f"s_cmp_eq_u32 s{sMT}, 0"); e(f"s_cselect_b32 s{sGh}, {OOB}, s{sGh}")
        e(f"s_sub_u32 s{sGh}, s{sGh}, s{sGa}"); e(f"v_add_u32 v{self.vHP}, s{sGh}, v{AP[0]}")
        e(f"s_lshl_b32 s{sSu}, s{sWM}, 10")
        e(f"s_cmp_eq_u32 s{sWN}, 0"); e(f"s_cselect_b32 s{self.sHm}, -1, 0"); e(f"s_not_b32 s{self.sHm+1}, s{self.sHm}")

    def g1_a(self, vm, first, u, part=None):
        g = []; base = LA + (u % 3) * 18432
        if part in (None, 0):
            g.append(self.grp(vm, ("A", u), [f"s_add_u32 m0, s{sSu}, {base}", f"s_mov_b64 exec, s[{self.sHm}:{self.sHm+1}]"],
                              f"buffer_load_dwordx4 v{self.vHP}, s[{sA1}:{sA1+3}], s{sRa} offen lds", ["s_mov_b64 exec, -1"]))
        inc = self.ainc(uord(u + 1) - uord(u), 128 if first else 16384) if u < 15 else None
        return g + self.a_issue(vm, ("A", u), 0, self.YAP[0], None, inc, part, sA1, self.YAP if first else None, base + 2048)

    def stats_gather(self, vm, s, s0, sST, R, AC, fin):
        e = self.e; T0, T1, T2, T3 = self.YT; it = []
        if s == s0:
            it.append([f"v_and_b32 v{T2}, 0xf0, v{vL16}", f"v_and_b32 v{T3}, 0x300, v{vL16}", f"v_lshl_add_u32 v{T3}, v{T3}, 2, v{T2}",
                       f"s_lshl_b32 s{self.sRt}, s{sLW}, 8", f"s_add_u32 s{self.sRt}, s{self.sRt}, s{sST}"])
        if s0 <= s < s0 + 4:
            k = s - s0
            it.append(self.grp(vm, "S", [], f"buffer_load_dwordx4 v[{R+4*k}:{R+4*k+3}], v{T3}, s[{sWS}:{sWS+3}], s{self.sRt} offen", [f"s_add_u32 s{self.sRt}, s{self.sRt}, 4096"]))
        if s == s0 + 6:
            self.wait(vm.need("S"))
            it += [f"v_add_f32 v{R+r}, v{R+r}, v{R+4+r}" for r in range(4)] + [f"v_add_f32 v{R+8+r}, v{R+8+r}, v{R+12+r}" for r in range(4)]
            it += [f"v_add_f32 v{AC+r}, v{R+r}, v{R+8+r}" for r in range(4)]
            it += self.xred(list(range(AC, AC + 4)), list(range(R, R + 4)), steps=("v_permlane16_swap_b32",))
        if s == s0 + 7:
            it += self.xred(list(range(AC, AC + 4)), list(range(R, R + 4)), steps=("v_permlane32_swap_b32",))
        if s == s0 + 8: it += self.finish_stats(AC, AC + 1)
        if s == s0 + 9: it += self.finish_stats(AC + 2, AC + 3) + fin
        return it

    def y_start(self, vm):
        e = self.e; T0, T1, T2, T3 = self.YT; PT = self.YP
        self.emit(self.pat_g1(PT, T0, T1, T2, True))
        self.w_start(0, 38)
        self.run_period(self.w_take(vm, PT, 1, 0), [])
        self.g1_src(True)
        tpos = int(self.opt.get("tpos", 1))
        for n in range(6):
            if n: self.run_period(self.w_take(vm, PT, 1, 0), [])
            if n == tpos: self.y_touch(vm)
            if n < 3: self.run_period(self.g1_a(vm, True, n), [])
        if tpos > 5: self.y_touch(vm)

    def y_touch(self, vm):
        e = self.e; T0 = self.YT[3]
        sJ = self.sJ
        e("s_cmp_lt_u32 s2, 128")
        e(f"s_cselect_b32 s{sJ}, s{sAT+8}, s{sAT+10}"); e(f"s_cselect_b32 s{sJ+1}, s{sAT+9}, s{sAT+11}")
        e(f"s_mov_b32 s{sJ+2}, {1024 * 7168}"); e(f"s_mov_b32 s{sJ+3}, 0x00020000")
        e(f"s_and_b32 s{sT}, s2, 127"); e(f"s_mul_i32 s{sT}, s{sT}, {448 * 128}"); e(f"s_lshl_b32 s{sT2}, s{sLW}, 14"); e(f"s_add_u32 s{sT}, s{sT}, s{sT2}")
        e(f"v_lshlrev_b32 v{T0}, 3, v{vL16}")
        e(f"buffer_load_dword v{self.vPL}, v{T0}, s[{sJ}:{sJ+3}], s{sT} offen"); vm.issue("t")
        l, l2 = self.lab("t"), self.lab("t")
        e(f"s_cmp_eq_u32 s{sLW}, 3"); e(f"s_cbranch_scc1 {l}")
        e(f"s_add_u32 s{sT}, s{sT}, 8192")
        e(f"buffer_load_dword v{self.vPL}, v{T0}, s[{sJ}:{sJ+3}], s{sT} offen"); e(f"s_branch {l2}")
        self.label(l)
        e(f"s_lshl_b32 s{sT}, s2, 13")
        e(f"buffer_load_dword v{self.vPL}, v{T0}, s[{sWO}:{sWO+3}], s{sT} offen")
        self.label(l2); vm.issue("t")

    def y_g1(self, vm, first):
        e = self.e; P = "Y1" if first else "Y"; T0, T1, T2, T3 = self.YT; PT = self.YP; vPL = self.vPL
        sJ, sJo, sXc, sRt = self.sJ, self.sJo, self.sXc, self.sRt
        JB, RB, G, CQ, vJ, vR, vHs = 0, 64, 72, 76, 96, 97, 98
        if not first:
            self.g1_src(False)
            e(f"s_add_u32 s{sD0}, s{sFL}, {(64 - 128) & 0xffffffff}"); e(f"s_add_u32 s{sD1}, s{sFl}, {4 * 2048 - 128}")
            e(f"s_and_b32 s{sT}, s{sMT}, 3")
            e(f"s_cselect_b32 s{sD0}, s{sD0}, s{sD1}"); e(f"s_cselect_b32 s{sD1}, 28, 60")
            e(f"s_add_u32 s{sT}, s{sFL}, 64")
            e(f"s_cmp_eq_u32 s{sMT}, 0"); e(f"s_cselect_b32 s{sD0}, s{sT}, s{sD0}"); e(f"s_cselect_b32 s{sD1}, 28, s{sD1}")
            e(f"v_lshrrev_b32 v{T0}, 2, v{vL16}"); e(f"v_and_b32 v{T0}, 60, v{T0}")
            e(f"v_min_u32 v{T1}, s{sD1}, v{T0}"); e(f"v_add_u32 v{T1}, s{sD0}, v{T1}")
            e(f"v_min_u32 v{T0}, 28, v{T0}"); e(f"v_add_u32 v{T0}, s{sT}, v{T0}")
            e(f"v_cmp_gt_u32 vcc, 256, v{vL16}"); e(f"v_lshlrev_b32 v{T2}, 3, v{vL16}"); e(f"v_and_b32 v{T2}, 0xfff, v{T2}")
            e(f"v_cndmask_b32 v{T0}, v{T1}, v{T0}, vcc")
            e(f"s_add_u32 s{sDa}, s{sGa}, s{sRa}")
            e("s_barrier")
            e(f"buffer_load_dword v{vPL}, v{T2}, s[{sWS}:{sWS+3}], s{sDa} offen sc0 sc1")
            lp, ld = self.lab("poll"), self.lab("pd")
            e(f"s_mov_b32 s{sT2}, {POLL}")
            self.label(lp)
            e(f"buffer_load_dword v{T1}, v{T0}, s[{sWS}:{sWS+3}], 0 offen sc0 sc1")
            e("s_waitcnt vmcnt(0)")
            e(f"v_cmp_ne_u32 vcc, 0x01010101, v{T1}"); e(f"s_cbranch_vccz {ld}")
            e("s_sleep 1"); e(f"s_sub_u32 s{sT2}, s{sT2}, 1"); e(f"s_cmp_lg_u32 s{sT2}, 0"); e(f"s_cbranch_scc1 {lp}")
            self.label(ld)
            vm.clear()
            for u in range(3): self.run_period(self.g1_a(vm, False, u), [])
        e("s_setprio 1")
        self.pb(P, ("G1", -1), vm.need(("W", 0), ("A", 0)))
        self.w_start(6, 38)
        j0 = int(self.opt.get("j0", 10)); jn = int(self.opt.get("jn", 1)); g = int(self.opt.get("gat", 13)); r0 = int(self.opt.get("r0", 8))
        for s in range(32):
            need = ([self.wneed(s + 1)] if s < 31 else []) + ([("A", (s + 1) // 2)] if s & 1 else [])
            self.pb(P, ("G1", s), vm.need(*need), 0 if s == 31 else None)
            it = []; post = []
            if first:
                if s == 0:
                    it += self.atomize(self.pat_128(PT["g2"], 2048, T0, T1, T2, sB2) + self.pat_256(PT["g3a"], 7168, T0, T1, T2, sB3))
                if s == 1:
                    it += self.atomize(self.pat_g3b(PT["g3b"], T0, T1, T2) + self.pat_256(PT["g4"], 2048, T0, T1, T2))
                if s == 2:
                    it.append([f"s_lshr_b32 s{sT}, s2, 1", f"s_cmp_lt_u32 s{sT}, 56",
                               f"s_cselect_b32 s{sJ}, s{sAT+8}, s{sAT+10}", f"s_cselect_b32 s{sJ+1}, s{sAT+9}, s{sAT+11}",
                               f"s_cselect_b32 s{sT2}, 0, 56", f"s_sub_u32 s{sT}, s{sT}, s{sT2}", f"s_lshl_b32 s{sJo}, s{sT}, 7",
                               f"s_and_b32 s{sT}, s2, 1", f"s_lshl_b32 s{sT}, s{sT}, 2", f"s_add_u32 s{sT}, s{sT}, s{sLW}", f"s_mul_i32 s{sT}, s{sT}, {128 * 7168}",
                               f"s_add_u32 s{sJo}, s{sJo}, s{sT}", "s_cmp_lt_u32 s2, 224", f"s_cselect_b32 s{sJo}, s{sJo}, {OOB}"])
                    it += [f"v_lshrrev_b32 v{vJ}, 7, v{vL16}", f"v_mul_u32_u24 v{vJ}, 7168, v{vJ}", f"v_and_b32 v{T0}, 0x70, v{vL16}", f"v_add_u32 v{vJ}, v{vJ}, v{T0}"]
                    it += [f"v_lshrrev_b32 v{vR}, 6, v{vL16}", f"v_mul_u32_u24 v{vR}, 7168, v{vR}", f"v_lshrrev_b32 v{T0}, 3, v{vL16}", f"v_and_b32 v{T0}, 0x20, v{T0}",
                           f"v_and_b32 v{T1}, 0x30, v{vL16}", f"v_xor_b32 v{T0}, v{T0}, v{T1}", f"v_add_u32 v{vR}, v{vR}, v{T0}"]
                if s == 3: it.append(self.xcc_word(sXc))
                if s == int(self.opt.get("pf", 2)):
                    def hs():
                        l = self.lab("hs")
                        e(f"s_cmp_lg_u32 s{sLW}, 1"); e(f"s_cbranch_scc1 {l}")
                        self.side_flag(0)
                        self.label(l)
                    post.append(hs)
                if s == r0:
                    it.append([f"s_lshr_b32 s{sT}, s2, 3", f"s_lshl_b32 s{sT}, s{sT}, 1", f"s_add_u32 s{sT}, s{sT}, s{sWN}", f"s_and_b32 s{sT2}, s2, 7",
                               f"s_lshl_b32 s{sRt}, s{sWM}, 3", f"s_add_u32 s{sRt}, s{sRt}, s{sT2}", f"s_lshl_b32 s{sRt}, s{sRt}, 7", f"s_add_u32 s{sRt}, s{sRt}, s{sT}",
                               f"s_lshl_b32 s{sRt}, s{sRt}, 10", f"s_add_u32 s{sRt}, s{sRt}, {WS_RT}",
                               f"s_mul_i32 s{sT}, s{sT}, {16 * 7168}", f"s_mul_i32 s{sT2}, s{sT2}, 896", f"s_add_u32 s{sEX}, s{sT}, s{sT2}"])
                    for h in range(2):
                        it.append(self.grp(vm, "R", [], f"buffer_load_dwordx4 v[{RB+4*h}:{RB+4*h+3}], v{vR}, s[{sW13}:{sW13+3}], s{sEX} offen offset:{384 + 64 * h}"))
                if s == r0 + 4:
                    self.wait(vm.need("R"))
                    for h in range(2):
                        it.append(self.grp(vm, "r", [], f"buffer_store_dwordx4 v[{RB+4*h}:{RB+4*h+3}], v{vL16}, s[{sWS}:{sWS+3}], s{sRt} offen sc0 sc1", [f"s_add_u32 s{sRt}, s{sRt}, 65536"]))
                for k in range(16):
                    if min(j0 + k // jn, 31) != s: continue
                    b = JB + 4 * k
                    post.append(self.grp(vm, "J", [], f"buffer_load_dwordx4 v[{b}:{b+3}], v{vJ}, s[{sJ}:{sJ+3}], s{sJo} offen", [f"s_add_u32 s{sJo}, s{sJo}, {8 * 7168}"]))
                if s == g:
                    e(f"v_lshlrev_b32 v{T3}, 1, v{vL16}"); e(f"v_and_b32 v{T3}, 0xff, v{T3}")
                    e(f"buffer_load_dword v{vHs}, v{T3}, s[{sDBG}:{sDBG+3}], 0 offen sc0 sc1"); vm.issue("hs")
                if s == g + 3:
                    lp, ld_ = self.lab("hs"), self.lab("hs")
                    self.wait(vm.need("hs"))
                    e(f"s_mov_b32 s{sT2}, {POLL}")
                    self.label(lp)
                    e(f"v_and_b32 v{T1}, 63, v{vHs}")
                    e(f"v_cmp_ne_u32 vcc, 32, v{T1}")
                    e(f"s_cbranch_vccz {ld_}")
                    e(f"buffer_load_dword v{vHs}, v{T3}, s[{sDBG}:{sDBG+3}], 0 offen sc0 sc1")
                    e("s_waitcnt vmcnt(0)")
                    e(f"s_sub_u32 s{sT2}, s{sT2}, 1"); e(f"s_cmp_lg_u32 s{sT2}, 0"); e(f"s_cbranch_scc1 {lp}")
                    self.label(ld_)
                    self.apoll4_issue(vm, 0, G)
                    it.append([f"s_and_b32 s{sT}, s2, 7", f"s_lshl_b32 s{sT2}, s{sXc}, 5", f"v_readlane_b32 s{sT}, v{vHs}, s{sT}", "s_nop 3",
                               f"s_cmp_lg_u32 s{sT}, s{sT2}", f"s_cselect_b32 s{sMODE}, 1, 0",
                               f"v_mov_b32 v{T0}, {L_MODE}", f"v_mov_b32 v{T1}, s{sMODE}", f"ds_write_b32 v{T0}, v{T1}"])
                if s == g + 4:
                    it += self.atomize([f"v_and_b32 v{T2}, 0xf0, v{vL16}", f"v_min_u32 v{T2}, 0xb0, v{T2}", f"s_mul_i32 s{sT}, s{sLW}, 192", f"v_add_u32 v{T2}, s{sT}, v{T2}",
                                        f"v_lshrrev_b32 v{T0}, 8, v{T2}", f"v_and_b32 v{T1}, 0xff, v{T2}", f"v_lshl_add_u32 v{T0}, v{T0}, 12, v{T1}",
                                        f"v_lshrrev_b32 v{T1}, 8, v{vL16}", f"v_mul_u32_u24 v{T1}, 12288, v{T1}", f"v_add_u32 v{T3}, v{T0}, v{T1}"])
                if s == g + 6:
                    self.apoll4_check(vm, 0, G)
                    it.append(self.grp(vm, "g0", [f"v_lshrrev_b32 v{T0}, 1, v{vL16}", f"s_lshl_b32 s{sT}, s{sMT}, 10", f"s_mul_i32 s{sT2}, s{sLW}, 288", f"s_add_u32 s{sT}, s{sT}, s{sT2}",
                                                  f"s_add_u32 s{sT}, s{sT}, {WS_ST0 - 128}"],
                                       f"buffer_load_dwordx2 v[{G}:{G+1}], v{T0}, s[{sWS}:{sWS+3}], s{sT} offen sc1",
                                       [f"s_lshl_b32 s{sEX}, s{sN4}, 8", f"s_add_u32 s{sEX}, s{sEX}, {WS_CSQ}"]))
                if g + 6 <= s < g + 8:
                    for k in (2 * (s - g - 6), 2 * (s - g - 6) + 1):
                        it.append(self.grp(vm, "g1", [], f"buffer_load_dwordx4 v[{CQ+4*k}:{CQ+4*k+3}], v{T3}, s[{sWS}:{sWS+3}], s{sEX} offen sc1", [f"s_add_u32 s{sEX}, s{sEX}, 49152"]))
                if s == g + 10:
                    self.wait(vm.need("g0"))
                    it.append([f"s_or_b32 s{sT}, s{sMT}, s{sLW}", f"s_cmp_eq_u32 s{sT}, 0", f"s_cselect_b32 s{sEX}, 0xffff, 0", f"s_mov_b32 s{sEX+1}, 0",
                               f"v_cndmask_b32 v{G}, v{G}, 0, s[{sEX}:{sEX+1}]", f"v_cndmask_b32 v{G+1}, v{G+1}, 0, s[{sEX}:{sEX+1}]"])
                    it += self.finish_stats(G, G + 1)
                if s == g + 11:
                    self.wait(vm.need("g1"))
                    it.append([f"v_lshrrev_b32 v{T0}, 2, v{vL16}", f"s_mul_i32 s{sT}, s{sLW}, 144", f"s_add_u32 s{sT}, s{sT}, {L_ST}", f"v_add_u32 v{T0}, s{sT}, v{T0}",
                               f"v_sub_f32 v{G}, 0, v{G}", f"s_mov_b32 s{sEX}, -1", f"s_mov_b32 s{sEX+1}, 0xf", f"s_mov_b64 exec, s[{sEX}:{sEX+1}]",
                               f"ds_write_b32 v{T0}, v{G}", f"ds_write_b32 v{T0}, v{G+1} offset:576", "s_mov_b64 exec, -1"])
                    it += [f"v_add_f32 v{CQ+r}, v{CQ+r}, v{CQ+4+r}" for r in range(4)] + [f"v_add_f32 v{CQ+8+r}, v{CQ+8+r}, v{CQ+12+r}" for r in range(4)]
                    it += [f"v_add_f32 v{CQ+r}, v{CQ+r}, v{CQ+8+r}" for r in range(4)]
                if s == g + 12:
                    it += self.xred(list(range(CQ, CQ + 4)), list(range(CQ + 4, CQ + 8)))
                    it += [f"v_add_u32 v{T2}, {L_CSQ}, v{T2}", f"ds_write_b128 v{T2}, v[{CQ}:{CQ+3}]"]
                if s == int(self.opt.get("w2at", 99)):
                    it.append(self.grp(vm, "t", [f"v_lshlrev_b32 v{T0}, 3, v{vL16}", f"s_lshl_b32 s{sT}, s2, 2", f"s_add_u32 s{sT}, s{sT}, s{sLW}", f"s_lshl_b32 s{sT}, s{sT}, 13"],
                                       f"buffer_load_dword v{vPL}, v{T0}, s[{sW2}:{sW2+3}], s{sT} offen"))
            else:
                if s == 2: post.append(lambda: self.wg_flag_if(0, self.FG(7)))
                if s == 7:
                    e(f"v_lshrrev_b32 v{T0}, 2, v{vL16}"); e(f"v_and_b32 v{T1}, 64, v{T0}"); e(f"v_and_b32 v{T0}, 60, v{T0}")
                    e(f"s_cmp_eq_u32 s{sMT}, 0"); e(f"s_cselect_b32 s{sT}, 0, 2")
                    e(f"v_mul_lo_u32 v{T1}, v{T1}, s{sT}"); e(f"v_sub_u32 v{vHs}, v{T0}, v{T1}"); e(f"v_add_u32 v{vHs}, {7 * 2048}, v{vHs}")
                    e(f"buffer_load_dword v{vPL}, v{vHs}, s[{sWS}:{sWS+3}], s{sFl} offen sc0 sc1"); vm.issue("ap")
                if s == 10:
                    lp, ld = self.lab("poll"), self.lab("pd")
                    self.wait(vm.need("ap"))
                    e(f"s_mov_b32 s{sT2}, {POLL}")
                    self.label(lp)
                    e(f"v_cmp_ne_u32 vcc, 0x01010101, v{vPL}"); e(f"s_cbranch_vccz {ld}")
                    e(f"buffer_load_dword v{vPL}, v{vHs}, s[{sWS}:{sWS+3}], s{sFl} offen sc0 sc1"); e("s_waitcnt vmcnt(0)")
                    e(f"s_sub_u32 s{sT2}, s{sT2}, 1"); e(f"s_cmp_lg_u32 s{sT2}, 0"); e(f"s_cbranch_scc1 {lp}")
                    self.label(ld)
                AC = 16
                fin = [[f"v_lshrrev_b32 v{T2}, 1, v{T2}", f"s_lshl_b32 s{sT}, s{sLW}, 7", f"s_add_u32 s{sT}, s{sT}, {L_ST + 64}", f"v_add_u32 v{T2}, s{sT}, v{T2}",
                        f"v_sub_f32 v{AC}, 0, v{AC}", f"v_sub_f32 v{AC+2}, 0, v{AC+2}",
                        f"ds_write2_b32 v{T2}, v{AC}, v{AC+2} offset0:0 offset1:1", f"ds_write2_b32 v{T2}, v{AC+1}, v{AC+3} offset0:144 offset1:145"]]
                it += self.stats_gather(vm, s, 11, sSTo, 0, AC, fin)
                H = 24
                if s == 16:
                    it.append([f"v_lshrrev_b32 v{T0}, 7, v{vL16}", f"v_and_b32 v{vR}, 0x70, v{vL16}", f"v_lshl_add_u32 v{T0}, v{T0}, 10, v{vR}",
                               f"s_sub_u32 s{sEX}, s{sSTo}, {ARENA - 896}", f"s_cmp_eq_u32 s{sMT}, 0", f"s_cselect_b32 s{sEX}, {OOB}, s{sEX}"])
                    for k in range(2):
                        it.append(self.grp(vm, "h", [], f"buffer_load_dwordx4 v[{H+4*k}:{H+4*k+3}], v{T0}, s[{sWS}:{sWS+3}], s{sEX} offen", [f"s_add_u32 s{sEX}, s{sEX}, 8192"]))
                if s == 21:
                    self.wait(vm.need("h"))
                    it += [f"v_add_f32 v{H+r}, v{H+r}, v{H+4+r}" for r in range(4)] + ["s_nop 1"]
                    it += [f"v_add_f32_dpp v{H+r}, v{H+r}, v{H+r} row_ror:8 row_mask:0xf bank_mask:0xf" for r in range(4)]
                    it += self.xred(list(range(H, H + 4)), list(range(H + 4, H + 8)), steps=("v_permlane16_swap_b32",))
                if s == 22: it += self.xred(list(range(H, H + 4)), list(range(H + 4, H + 8)), steps=("v_permlane32_swap_b32",))
                if s == 23: it += self.finish_stats(H, H + 1)
                if s == 24:
                    it += self.finish_stats(H + 2, H + 3)
                    it += [f"v_lshrrev_b32 v{vR}, 1, v{vR}", f"v_add_u32 v{vR}, {L_ST}, v{vR}", f"v_sub_f32 v{H}, 0, v{H}", f"v_sub_f32 v{H+2}, 0, v{H+2}",
                           f"ds_write2_b32 v{vR}, v{H}, v{H+2} offset0:0 offset1:1", f"ds_write2_b32 v{vR}, v{H+1}, v{H+3} offset0:144 offset1:145"]
            dm = []
            if s >= 1 and (s - 1) // 2 + 3 < 16: dm = self.g1_a(vm, first, (s - 1) // 2 + 3, (s - 1) & 1)
            self.run_period(dm + self.w_take(vm, PT, 1, s), it)
            self.run_period([], post)
        assert self.wn == 38 and g + 12 <= 30
        self.tr_flush(P)
        e("s_setprio 0")

    def job_finish(self):
        e = self.e; T0, T1 = self.YT[:2]; JB = 0
        l = self.lab("jf")
        e(f"s_cmp_lg_u32 s{sLAY}, 0"); e(f"s_cbranch_scc1 {l}")
        if True:
            AC, S = 100, 104
            self.emit(self.selector(S, T0, T1)); e("s_nop 1")
            for i in range(16): e(mfma(AC, S, JB + 4 * i, "0" if i == 0 else None))
            e(f"s_and_b32 s{sT2}, s2, 1"); e(f"s_lshl_b32 s{sT2}, s{sT2}, 2"); e(f"s_add_u32 s{sT2}, s{sT2}, s{sLW}"); e(f"s_mul_i32 s{sT2}, s{sT2}, 28672")
            e(f"s_lshr_b32 s{sT}, s2, 1"); e(f"s_lshl_b32 s{sT}, s{sT}, 8")
            e(f"s_add_u32 s{sT}, s{sT}, s{sT2}"); e(f"s_add_u32 s{sT}, s{sT}, {WS_CS13}")
            e("s_cmp_lt_u32 s2, 224"); e(f"s_cselect_b32 s{sT}, s{sT}, {OOB}")
            e(f"v_and_b32 v{T0}, 0x70, v{vL16}"); e(f"v_lshrrev_b32 v{T1}, 4, v{vL16}"); e(f"v_and_b32 v{T1}, 16, v{T1}"); e(f"v_lshl_add_u32 v{T0}, v{T0}, 1, v{T1}")
            e("s_nop 2")
            for r in range(4): e(f"v_add_f32_dpp v{AC+r}, v{AC+r}, v{AC+r} row_ror:8 row_mask:0xf bank_mask:0xf")
            e("s_mov_b64 exec, 0x00ff00ff")
            e(f"buffer_store_dwordx4 v[{AC}:{AC+3}], v{T0}, s[{sWS}:{sWS+3}], s{sT} offen sc0 sc1")
            e("s_mov_b64 exec, -1")
        self.label(l)

    def y_g2(self):
        e = self.e; P = "Y"; vm = VM(); T0, T1, T2, _ = self.YT; PT = self.YP; vPL = self.vPL
        e(f"v_lshlrev_b32 v{T0}, 7, v{vL16}")
        e(f"s_lshl_b32 s{sT}, s{sWN}, 19"); e(f"s_add_u32 s{sT}, s{sT}, s{sRw}"); e(f"s_and_b32 s{sT}, s{sT}, {(16 << 17) - 1}"); e(f"s_add_u32 s{sT}, s{sT}, s{sB1}")
        e(f"buffer_load_dword v{vPL}, v{T0}, s[{sWO}:{sWO+3}], s{sT} offen")
        for i in range(4): e(f"v_mov_b32 v{112+i}, -1")
        e(f"s_lshl_b32 s{sRa}, s{sN4}, 14")
        vA = self.YAP[0]
        e(f"s_add_u32 s{sGa}, s{sOo}, s{sM4}"); e(f"v_add_u32 v{vA}, s{sGa}, v{vL16}")
        e(f"s_add_u32 s{sT}, s{sGa}, s{sRa}"); e(f"s_add_u32 s{sT}, s{sT}, {WS_P}")
        for i in range(4): e(f"buffer_store_dwordx4 v[112:115], v{vL16}, s[{sWS}:{sWS+3}], s{sT} offen offset:{1024 * i} sc0 sc1")
        self.warm("A")
        def A(u): return self.a_issue(vm, ("A", u), u % 3, vA, None, self.ainc(uord(u + 1) - uord(u)) if u < 15 else None)
        self.bar(P, ("G2", -2))
        self.run_period(A(0), [])
        self.pb(P, ("G2", -1), 0)
        self.poll_flags(self.FL(0, 0), 8); vm.clear()
        self.run_period(A(1) + A(2), [])
        npre = int(self.opt.get("g2pre", 3)); g2w = int(self.opt.get("g2w", 13))
        sched = {1: 1, 3: 1}
        for k in range(npre): sched[min(g2w + k, 15)] = sched.get(min(g2w + k, 15), 0) + 1
        self.w_start(38, 72 + self.xw0)
        for u in range(16):
            need = ([("A", u + 1)] if u < 15 else []) + ([self.wneed(32 + (u + 1) // 2)] if (u & 1 and u < 15) else [])
            self.pb(P, ("G2", u), vm.need(*need))
            if u == 3: self.apoll_issue(vm, self.FG(0), 16, vPL)
            if u == 5: self.apoll_check(vm, self.FG(0), 16, vPL)
            self.run_period((A(u + 3) if u + 3 < 16 else []) + self.w_take(vm, PT, sched.get(u, 0), 32 + (u - 1) // 2), [])
        self.job_finish()
        return vm

    def b3(self, mat, t, rt): return ((mat * 3 + t) * 4 + rt) * 4
    VBX, VBW, YRL, YI2 = 176, 177, 184, 188

    def y_g3a(self, vm):
        e = self.e; P = "Y"; T0, T1, T2, T3 = self.YT; PT = self.YP; vPL = self.vPL
        R = 96; AC = 192; NM = 196; CS = 96; CT = 128
        vA = self.YAP[0]
        e(f"s_add_u32 s{sGa}, s{sXm}, s{sM4}"); e(f"s_lshl_b32 s{sRa}, s{sN4}, 14"); e(f"v_add_u32 v{vA}, s{sGa}, v{vL16}")
        self.h_bases()
        def A(u, part=None): return self.a_issue(vm, ("A", u), u % 3, vA, None, self.ainc(uord(u + 1) - uord(u)) if u < 15 else None, part)
        self.bar(P, ("G3A", -2))
        self.run_period(A(0), [])
        self.pb(P, ("G3A", -1), 0); vm.clear()
        self.apoll_issue(vm, self.FL(0, 32), 8, vPL)
        e("s_setprio 1")
        work = self.stat_regs(R, NM, self.YRL, self.YI2, T0)
        work += [f"v_lshrrev_b32 v{T0}, 8, v{vL16}", f"v_lshlrev_b32 v{T0}, 4, v{T0}", f"v_add_u32 v{T0}, {L_CSB}, v{T0}",
                 f"s_and_b32 s{sT2}, s{sNT}, 1", f"s_add_u32 s{sT}, s{sT2}, s{sWN}", f"s_lshl_b32 s{sT}, s{sT}, 7", f"v_add_u32 v{T1}, s{sT}, v{T0}",
                 f"s_xor_b32 s{sT2}, s{sT2}, 1", f"s_lshl_b32 s{sT2}, s{sT2}, 2", f"s_add_u32 s{sT2}, s{sT2}, s{sWN}", f"s_lshl_b32 s{sT2}, s{sT2}, 6", f"v_add_u32 v{T0}, s{sT2}, v{T0}"]
        for mat in range(2):
            for t in range(3):
                c = CS + (mat * 3 + t) * 4
                work.append(f"ds_read_b128 v[{c}:{c+3}], v{T1 if t < 2 else T0} offset:{mat * 512 + (64 * t if t < 2 else 0)}")
        work.append("s_waitcnt lgkmcnt(0)")
        for mat in range(2):
            for t in range(3):
                for rt in range(4):
                    work += [f"v_mul_f32 v{self.b3(mat,t,rt)+r}, v{NM+rt}, v{CS+(mat*3+t)*4+r}" for r in range(4)]
        work = self.costed(work)
        vW = self.VBW
        addr = [f"s_lshl_b32 s{sT}, s{sWM}, 13", f"s_add_u32 s{sT}, s{sT}, {LA}", f"v_add_u32 v{self.VBX}, s{sT}, v{vL16}",
                f"v_lshrrev_b32 v{T0}, 6, v{vL16}", f"v_lshrrev_b32 v{T1}, 1, v{T0}", f"v_and_b32 v{T1}, 3, v{T1}",
                f"s_lshl_b32 s{sT}, s{sWN}, 1", f"v_xor_b32 v{T1}, s{sT}, v{T1}", f"v_lshlrev_b32 v{T1}, 5, v{T1}", f"v_lshl_add_u32 v{T1}, v{T0}, 7, v{T1}",
                f"v_and_b32 v{vW+3}, 0x30, v{vL16}", f"v_lshrrev_b32 v{vW+3}, 1, v{vW+3}",
                f"v_add_u32 v{vW}, v{T1}, v{vW+3}", f"v_xor_b32 v{vW+1}, 32, v{vW}",
                f"v_lshrrev_b32 v{T1}, 2, v{T0}", f"v_and_b32 v{T1}, 1, v{T1}", f"v_xor_b32 v{T1}, s{sWN}, v{T1}", f"v_lshlrev_b32 v{T1}, 5, v{T1}",
                f"v_lshl_add_u32 v{T1}, v{T0}, 6, v{T1}", f"v_add_u32 v{T1}, v{T1}, v{vW+3}", f"v_add_u32 v{vW+2}, 2048, v{T1}"]
        addr += [f"v_add_u32 v{vW+3+t}, {3 * WSLOT}, v{vW+t}" for t in range(3)]
        c0 = 22; S0 = 9; C1 = 10
        cu0 = int(self.opt.get("cu0", 1))
        for s in range(32):
            need = [self.wneed(40 + s + 1)] + ([("A", (s + 1) // 2)] if s & 1 else [])
            self.pb(P, ("G3A", s), vm.need(*need), 0 if s == c0 else None)
            it = []; dm = []; post = []
            if s == 0:
                self.apoll_check(vm, self.FL(0, 32), 8, vPL)
                dm = A(1) + A(2)
            if s == 2: post.append(lambda: self.wg_flag_if(0, self.FG(6)))
            if s == 2:
                def cf():
                    l = self.lab("cf")
                    e(f"s_xor_b32 s{sT}, s{sLW}, 1"); e(f"s_or_b32 s{sT}, s{sLAY}, s{sT}"); e(f"s_cbranch_scc1 {l}")
                    self.side_flag(1)
                    self.label(l)
                post.append(cf)
            if s == S0 - 3: self.apoll_issue(vm, self.FG(6), 16, vPL)
            if s == S0: self.apoll_check(vm, self.FG(6), 16, vPL)
            fin = [[f"s_lshl_b32 s{sT}, s{sLW}, 8", f"s_add_u32 s{sT}, s{sT}, {L_ST}", f"v_add_u32 v{T2}, s{sT}, v{T2}", f"ds_write_b128 v{T2}, v[{AC}:{AC+3}]"]]
            it += self.stats_gather(vm, s, S0, sSTm, R, AC, fin)
            if s == C1: self.apoll4_issue(vm, 1, CT)
            if s == C1 + 3:
                self.apoll4_check(vm, 1, CT, [(sLAY, 1)])
                l = self.lab("cs")
                e(f"s_cmp_lg_u32 s{sLAY}, 0"); e(f"s_cbranch_scc1 {l}")
                e(f"s_and_b32 s{sT}, s{sNT}, 1"); e(f"s_mul_i32 s{sT2}, s{sT}, 384")
                e(f"s_xor_b32 s{sT}, s{sT}, 1"); e(f"s_lshl_b32 s{sT}, s{sT}, 9")
                e(f"s_cmp_eq_u32 s{sWN}, 0"); e(f"s_cselect_b32 s{sT}, s{sT2}, s{sT}")
                e(f"s_mul_i32 s{sT2}, s{sNT}, 896"); e(f"s_add_u32 s{sT}, s{sT}, s{sT2}")
                e(f"s_mul_i32 s{sT2}, s{sWM}, 14336"); e(f"s_add_u32 s{sT}, s{sT}, s{sT2}"); e(f"s_add_u32 s{sT}, s{sT}, {WS_CS13}")
                e(f"v_lshrrev_b32 v{T0}, 9, v{vL16}"); e(f"v_mul_u32_u24 v{T0}, 28672, v{T0}"); e(f"v_and_b32 v{T1}, 0x1f0, v{vL16}"); e(f"v_add_u32 v{T0}, v{T0}, v{T1}")
                for k in range(4):
                    e(f"buffer_load_dwordx4 v[{CT+4*k}:{CT+4*k+3}], v{T0}, s[{sWS}:{sWS+3}], s{sT} offen sc1")
                    e(f"s_add_u32 s{sT}, s{sT}, 57344")
                self.label(l)
                ct_after = ("A", (s - 1) // 2 + 3)
            if s == C1 + 7:
                assert ct_after not in vm.ops
                l = self.lab("cs")
                e(f"s_cmp_lg_u32 s{sLAY}, 0"); e(f"s_cbranch_scc1 {l}")
                for r in range(4): e(f"v_add_f32 v{CT+r}, v{CT+r}, v{CT+4+r}"); e(f"v_add_f32 v{CT+8+r}, v{CT+8+r}, v{CT+12+r}")
                for r in range(4): e(f"v_add_f32 v{CT+r}, v{CT+r}, v{CT+8+r}")
                self.emit(self.xred(list(range(CT, CT + 4)), list(range(CT + 4, CT + 8)), steps=("v_permlane32_swap_b32",)))
                e(f"s_lshl_b32 s{sT}, s{sLW}, 9"); e(f"s_add_u32 s{sT}, s{sT}, {L_CSA}"); e(f"v_and_b32 v{T1}, 0x1f0, v{vL16}"); e(f"v_add_u32 v{T0}, s{sT}, v{T1}")
                e(f"ds_write_b128 v{T0}, v[{CT}:{CT+3}]")
                self.label(l)
            if 4 <= s < 20 and s % 2 == 0 and self.opt.get("w2at") is None:
                def w2(s=s):
                    l = self.lab("w2")
                    e(f"s_lshl_b32 s{sT}, s{sLAY}, 4"); e(f"s_lshr_b32 s{sT2}, s{sMT}, 1"); e(f"s_add_u32 s{sT}, s{sT}, s{sT2}")
                    e(f"s_cmp_lg_u32 s{sT}, {(s - 4) // 2}"); e(f"s_cbranch_scc1 {l}")
                    e(f"v_lshlrev_b32 v{vF0}, 3, v{vL16}"); e(f"s_lshl_b32 s{sT}, s2, 2"); e(f"s_add_u32 s{sT}, s{sT}, s{sLW}"); e(f"s_lshl_b32 s{sT}, s{sT}, 13")
                    e(f"buffer_load_dword v250, v{vF0}, s[{sW2}:{sW2+3}], s{sT} offen")
                    self.label(l)
                post.append(w2)
            if s == 20: it += self.atomize(addr)
            if s >= c0: it += self.chunk(work, float(self.opt.get("budC", 24)) if s < 30 else 1e9) if work else []
            if s >= 1 and (s - 1) // 2 + 3 < 16: dm = A((s - 1) // 2 + 3, (s - 1) & 1)
            self.run_period(dm + self.w_take(vm, PT, 1, 40 + s, 4 if s >= 27 else (1 if s >= cu0 and not S0 <= s < S0 + 4 else 0)), it)
            self.run_period([], post)
        assert not work and self.wn == 72 + self.xw0, self.wn
        self.tr_flush(P)
        e("s_setprio 0")
        self.g3bw = [vm.need(("W", 72 + s + 1)) for s in range(7)]

    def y_g3b(self):
        e = self.e; P = "YC"
        XF, WF = 96, 128
        vXa, vWa = self.VBX, self.VBW
        def xf(b, rt): return XF + b * 16 + rt * 4
        def wf(b, mat, t): return WF + b * 24 + (mat * 3 + t) * 4
        def reads(s):
            b = s & 1; sl = (72 + s) % 6
            xr = [f"ds_read_b128 v[{xf(b,rt)}:{xf(b,rt)+3}], v{vXa} offset:{((16 + (s >> 1)) % 3) * 16384 + rt * 2048 + (s & 1) * 1024}" for rt in range(4)]
            wr = []
            for t in range(3):
                for mat in range(2):
                    r = wf(b, mat, t); ad = vWa + 3 * (sl // 3) + t; off = (sl % 3) * WSLOT + mat * 6144
                    wr += [f"ds_read_b64_tr_b16 v[{r}:{r+1}], v{ad} offset:{off}", f"ds_read_b64_tr_b16 v[{r+2}:{r+3}], v{ad} offset:{off + 3072}"]
            return wr[0:2] + xr + wr[2:]
        def mf(s):
            b = s & 1
            return [mfma(self.b3(mat, t, rt), wf(b, mat, t), xf(b, rt)) for t in range(3) for mat in range(2) for rt in range(4)]
        self.emit(reads(0))
        e(f"s_add_u32 s{sGa}, s{sHx}, s{sM4}"); e(f"v_add_u32 v{self.YAP[0]}, s{sGa}, v{vL16}")
        def fn(s, ex):
            extra = []
            if ex: extra.append((20, self.CNT))
            self.step(P, ("G3B", s), mf(s), reads(s + 1) if s < 31 else [], vmw=(self.g3bw[s] if s < 7 else None), last=17, extra=extra)
        self.looped(P, 32, 6, fn)

    def y_g4(self):
        e = self.e; P = "Y"; vm = VM(); T0, T1, T2, _ = self.YT; PT = self.YP; vPL = self.vPL
        E, OUT, vX = 96, 100, 120
        e("s_setprio 1")
        work = ["s_nop 7"]
        for rt in range(4):
            O = OUT + 4 * (rt & 1)
            for t in range(2):
                work += self.silu_group(self.b3(0, t, rt), self.b3(1, t, rt), E, self.YRL + rt, self.YI2 + rt, O + 2 * t)
            work.append(self.grp(vm, ("H", 0), [f"s_add_u32 s{sT}, s{sGh}, {16 * 16384 + rt * 2048}"],
                                 f"buffer_store_dwordx4 v[{O}:{O+3}], v{vL16}, s[{sWS}:{sWS+3}], s{sT} offen sc0 sc1"))
        work.append(("FLAG", 0))
        work += [f"s_lshl_b32 s{sT}, s{sWM}, 12", f"s_lshl_b32 s{sT2}, s{sWN}, 3", f"s_add_u32 s{sT}, s{sT}, s{sT2}", f"s_add_u32 s{sT}, s{sT}, {L_SG}", f"v_add_u32 v{vX}, s{sT}, v{vL16}"]
        for rt in range(4):
            O = 108 + 2 * rt
            work += self.silu_group(self.b3(0, 2, rt), self.b3(1, 2, rt), E, self.YRL + rt, self.YI2 + rt, O)
            work.append(f"ds_write_b64 v{vX}, v[{O}:{O+1}] offset:{1024 * rt}")
        work += [f"s_lshr_b32 s{sT}, s{sM4}, 1", f"s_add_u32 s{sT}, s{sT}, {L_SG}", f"v_add_u32 v{vX+1}, s{sT}, v{vL16}"]
        work.append(("GATE",))
        for k in range(2): work.append(f"ds_read_b128 v[{OUT+4*k}:{OUT+4*k+3}], v{vX+1} offset:{1024 * k}")
        work.append("s_waitcnt lgkmcnt(0)")
        for k in range(2):
            work.append(self.grp(vm, ("H", 1), [], f"buffer_store_dwordx4 v[{OUT+4*k}:{OUT+4*k+3}], v{vL16}, s[{sWS}:{sWS+3}], s{sGs} offen offset:{2048 * k} sc0 sc1"))
        work.append(("FLAG", 1))
        work += [f"s_cmp_eq_u32 s{sLAY}, 0", f"s_cselect_b32 s{sB1}, s{sB1}, {OOB}"] + self.pat_g1(PT, T0, T1, T2, False)
        work = self.costed(work)
        self.run_period([], self.chunk(work, float(self.opt.get("budY0", 24))))
        self.w_start(110, 138)
        def need(u): return [self.wneed(104 + u + 1), ("A", u + 1)] if u < 27 else []
        def hook(u):
            if u + 5 in (8, 16, 24): self.apoll_issue(vm, self.FL(1, 4 * (u + 5)), 8, vPL)
            if u + 3 in (8, 16, 24): self.apoll_check(vm, self.FL(1, 4 * (u + 3)), 8, vPL)
            if u == 22: assert not work
        def dmas(u):
            return (self.a_issue(vm, ("A", u + 3), (32 + u + 3) % 3, self.YAP[0], (u + 3) * 16384) if u + 3 < 28 else []) + self.w_take(vm, PT, 1, 104 + u)
        bud = float(self.opt.get("budY", 36))
        self.epi_loop(P, "G4", 28, vm, work, lambda s: bud, int(self.opt.get("lagY", 3)), need, dmas, [self.FL(1, 64), self.FL(1, 96)], [13, 21], hook)
        self.tr_dump("Y")
        e("s_setprio 0")

    def next_layer(self):
        e = self.e
        e(f"s_mov_b32 s{sLAY}, 1")
        e(f"s_add_u32 s{sOo}, s{sOo}, {256 * KB}"); e(f"s_add_u32 s{sXm}, s{sXm}, {512 * KB}"); e(f"s_add_u32 s{sHo}, s{sHo}, {896 * KB}")
        e(f"s_add_u32 s{sSTm}, s{sSTm}, {64 * KB}"); e(f"s_add_u32 s{sFl}, s{sFl}, {32 * KB}"); e(f"s_add_u32 s{sFL}, s{sFL}, {32 * KB}")

    def warm(self, which):
        self.emit([f"#WARM {which}"])

    def gen(self, name):
        e = self.e; a = self.a; self.info = []; self.xw0 = 6
        kernel_header(a, name)
        e("s_cmp_ge_u32 s2, 256"); e("s_cbranch_scc0 K_go"); e("s_endpgm")
        self.label("K_go")
        K = sAT
        e(f"s_load_dwordx4 s[{K}:{K+3}], s[0:1], 0")
        e(f"s_load_dwordx2 s[{K+4}:{K+5}], s[0:1], 16")
        e(f"s_load_dwordx8 s[{K+8}:{K+15}], s[0:1], 32")
        e(f"s_load_dwordx4 s[{K+16}:{K+19}], s[0:1], 64")
        e("v_lshrrev_b32 v1, 6, v0"); e(f"v_and_b32 v{vL16}, 63, v0")
        e(f"v_readfirstlane_b32 s{sWAVE}, v1")
        e(f"v_lshlrev_b32 v{vL16}, 4, v{vL16}")
        if self.opt.get("ts"): e(f"v_mov_b32 v{vTS}, 0")
        e(f"s_and_b32 s{sT}, s2, 6"); e(f"s_lshl_b32 s{sT}, s{sT}, 1"); e(f"s_lshr_b32 s{sT2}, s2, 3"); e(f"s_and_b32 s{sT2}, s{sT2}, 3")
        e(f"s_add_u32 s{sMT}, s{sT}, s{sT2}")
        e(f"s_and_b32 s{sT}, s2, 1"); e(f"s_lshr_b32 s{sT2}, s2, 5")
        e(f"s_lshl_b32 s{sNT}, s{sT}, 3"); e(f"s_add_u32 s{sNT}, s{sNT}, s{sT2}")
        e(f"s_lshl_b32 s{sN4}, s{sT2}, 1"); e(f"s_add_u32 s{sN4}, s{sN4}, s{sT}")
        e(f"s_and_b32 s{sLW}, s{sWAVE}, 3"); e(f"s_and_b32 s{sWM}, s{sWAVE}, 1"); e(f"s_lshr_b32 s{sWN}, s{sLW}, 1")
        e(f"s_lshl_b32 s{sT}, s{sWM}, 1"); e(f"s_add_u32 s{sT}, s{sT}, s{sWN}"); e(f"s_mul_i32 s{sM3}, s{sT}, 3072"); e(f"s_lshl_b32 s{sM4}, s{sT}, 12")
        e(f"s_mov_b32 s{sMODE}, 1"); e(f"s_mov_b32 s{sLAY}, 0")
        e(f"s_lshl_b32 s{sOo}, s{sMT}, 22"); e(f"s_add_u32 s{sXm}, s{sOo}, {WS_X1}"); e(f"s_add_u32 s{sX2}, s{sOo}, {WS_X1 + 256 * KB}")
        e(f"s_add_u32 s{sHo}, s{sOo}, {WS_H}")
        e(f"s_add_u32 s{sSTm}, s{sOo}, {WS_ST}"); e(f"s_add_u32 s{sSTo}, s{sSTm}, {32 * KB}")
        e(f"s_lshl_b32 s{sFl}, s{sMT}, 7"); e(f"s_add_u32 s{sFl}, s{sFl}, {WS_FL}")
        self.bases()
        e("s_waitcnt lgkmcnt(0)")
        make_srd(a, sQKV, K + 2, K + 3, 1024 * 6144)
        make_srd(a, sA1, K, K + 1, 4 * MB)
        make_srd(a, sWS, K + 18, K + 19, 256 * MB)
        make_srd(a, sX0, K, K + 1, 4 * MB)
        make_srd(a, sWO, K + 4, K + 5, 1024 * 2048)
        e(f"s_cmp_eq_u32 s{sWM}, 0")
        e(f"s_cselect_b32 s{sW13}, s{K+8}, s{K+10}"); e(f"s_cselect_b32 s{sW13+1}, s{K+9}, s{K+11}")
        e(f"s_mov_b32 s{sW13+2}, {1024 * 7168}"); e(f"s_mov_b32 s{sW13+3}, 0x00020000")
        make_srd(a, sW2, K + 12, K + 13, 3584 * 2048)
        make_srd(a, sOUT, K + 14, K + 15, 4 * MB)
        make_srd(a, sDBG, K + 16, K + 17, 256)
        e(f"s_and_b32 s{sT}, s2, 1"); e(f"s_lshl_b32 s{sT}, s{sT}, 13"); e(f"s_add_u32 s{sT}, s{sT}, {16 * KB}"); e(f"s_add_u32 s{sFL}, s{sFl}, s{sT}")
        e(f"s_lshl_b32 s{sT}, s{sN4}, 14"); e(f"s_lshl_b32 s{sT2}, s{sWM}, 13"); e(f"s_add_u32 s{sT}, s{sT}, s{sT2}")
        e(f"s_lshl_b32 s{sT2}, s{sWN}, 10"); e(f"s_add_u32 s{sTile}, s{sT}, s{sT2}")
        self.ts(15)
        e(f"s_cmp_lt_u32 s{sWAVE}, 4"); e("s_cbranch_scc1 X_start")
        vm1 = VM(); self.y_start(vm1); e("s_branch Y_first")
        self.label("X_start")
        self.x_prep()
        self.label("X_layer")
        self.x_g1(); self.x_g2(); self.x_g3a(); self.x_g3b(); self.x_g4()
        e(f"s_cmp_lg_u32 s{sLAY}, 0"); e("s_cbranch_scc1 X_fin")
        self.res_epilogue(self.a4, sX2, 236, 226); self.bars["X"].append(("G4", 99))
        self.next_layer()
        e("s_branch X_layer")
        self.label("X_fin")
        self.x_final()
        if self.opt.get("ts"):
            e("s_waitcnt vmcnt(0)")
            self.ts(24)
            e(f"s_lshl_b32 s{sT}, s2, 2"); e(f"s_add_u32 s{sT}, s{sT}, s{sLW}"); e(f"s_lshl_b32 s{sT}, s{sT}, 8"); e(f"s_add_u32 s{sT}, s{sT}, {WS_TS}")
            e(f"v_lshrrev_b32 v1, 2, v{vL16}")
            e(f"buffer_store_dword v{vTS}, v1, s[{sWS}:{sWS+3}], s{sT} offen")
            if self.opt.get("dbgts") is not None:
                e(f"s_lshl_b32 s{sT}, s2, 2"); e(f"s_add_u32 s{sT}, s{sT}, s{sLW}"); e(f"s_cmp_lg_u32 s{sT}, {4 * int(self.opt['dbgts'])}"); e("s_cbranch_scc1 K_nod")
                e(f"v_readlane_b32 s{sT2}, v{vTS}, 15"); e("v_mov_b32 v1, 0"); e("s_mov_b64 exec, 1")
                for slot, k in zip([1, 2, 3, 4, 5, 6, 7, 9, 10, 11, 12, 13, 14, 15], [1, 2, 7, 11, 12, 13, 14, 33, 34, 39, 43, 44, 45, 56]):
                    e(f"v_readlane_b32 s{sT}, v{vTS}, {k}"); e("s_nop 3"); e(f"s_sub_u32 s{sT}, s{sT}, s{sT2}"); e(f"v_mov_b32 v2, s{sT}")
                    e(f"buffer_store_dword v2, v1, s[{sDBG}:{sDBG+3}], 0 offen offset:{4 * slot}"); e("s_nop 1")
                self.label("K_nod")
        e("s_endpgm")
        self.label("Y_first")
        self.y_g1(vm1, True); e("s_branch Y_g2")
        self.label("Y_layer")
        self.y_g1(VM(), False)
        self.label("Y_g2")
        vm = self.y_g2(); self.y_g3a(vm); self.y_g3b(); self.y_g4()
        e(f"s_cmp_lg_u32 s{sLAY}, 0"); e("s_cbranch_scc1 K_end")
        self.next_layer(); self.bars["Y"].append(("G4", 99)); self.warm("B"); e("s_branch Y_layer")
        self.label("K_end")
        e("s_endpgm")
        B = self.bars
        def ph(p, *names): return [x for x in B[p] if x[0] in names]
        assert B["XL"] == B["YC"] and B["X"] == B["Y"] and B["Y1"] == ph("Y", "G1"), "barrier mismatch"
        kernels.append((name, 256, 102))
        return a.text()


def full(opt):
    kernels.clear()
    g = Gen(opt)
    KN = "mega_kernel" if opt.get("list") else NAME + "_kernel"
    body = g.gen(KN)
    body = "\n".join(x for x in body.split("\n") if not x.startswith("#")) + "\n"
    t = build([(KN, 256, 512, 163840)], [body], single=not opt.get("list"))
    for x in g.info: print(x, file=sys.stderr)
    return t

if __name__ == "__main__":
    opt = parse_opts(sys.argv[2:])
    open(sys.argv[1], "w").write(full(opt))
```

```python
import sys, re
from common import *

KB = 1024
ARENA = 4 * MB
WS_O = 0
WS_X1 = 512 * KB
WS_P = 1280 * KB
WS_ST = 1792 * KB
WS_H = 2 * MB
WS_RT = 64 * MB
WS_ST0 = 67 * MB
WS_CSQ = 67 * MB + 256 * KB
WS_CS13 = 67 * MB + 512 * KB
WS_FL = 68 * MB
WS_SF = 68 * MB + 256 * KB
WS_TS = 69 * MB
WS_C13 = 80 * MB
WS_C2 = 96 * MB
OOB = 0x7f000000
POLL = 0x40000
WSLOT = 16384
LA = 98304
L_SG = LA + 49152
L_SS = L_SG + 8192
L_ST = 159744
L_CSQ = L_ST + 1152
L_CSA = L_CSQ + 768
L_CSB = L_CSA + 1024
L_MODE = L_CSB + 1024
sFL = 0
sTile = 1
sWAVE = 3
sWS, sQKV, sWO, sW13, sW2, sX0, sOUT, sDBG, sA1 = 4, 8, 12, 16, 20, 24, 28, 32, 36
sW3B, sW3A = 24, 28
sMT, sNT, sLW, sWM, sWN, sMODE, sLAY = 40, 41, 42, 43, 44, 45, 46
sOo, sX2, sXm, sHo, sN4, sSTm, sSTo, sFl = 47, 48, 49, 50, 51, 52, 53, 54
sT, sT2, sT3, sCnt = 55, 56, 57, 58
sD0, sD1 = 59, 60
sM3, sM4 = 61, 62
sB1, sB2, sB3, sB4, sB5, sB6, sB7 = 63, 64, 65, 66, 67, 68, 69
sEX = 70
sAT = 72
sGa, sGh, sGs, sSu, sDa, sRw, sRa, sHx = 88, 89, 90, 91, 92, 93, 94, 95
sTS = 96
vL16, vTS = 254, 255
vF0, vF1 = 252, 253
EPS_BITS = 0x3727c5ac

def uord(t):
    return 2 * t if t < 8 else 2 * (t - 8) + 1
def snake(n, k):
    return list(n) if k % 2 == 0 else list(n)[::-1]
BORD = [13, 14, 15] + list(range(13))

class VM:
    def __init__(self): self.ops = []
    def issue(self, tag): self.ops.append(tag)
    def need(self, *tags):
        last = -1
        for i, t in enumerate(self.ops):
            if t in tags: last = i
        n = len(self.ops) - 1 - last
        if last < 0: return None
        self.ops = self.ops[last + 1:]
        return n
    def clear(self): self.ops = []


class Gen:
    def __init__(self, opt):
        self.opt = opt
        self.a = Asm()
        self.nlab = 0
        self.bars = {}
        self.trp = {}
    def e(self, s): self.a.e(s)
    def lab(self, p="L"):
        self.nlab += 1
        return f"{p}_{self.nlab}"
    def label(self, l): self.a.label(l)
    def al(self): self.a.raw("    .p2align 3")
    def bar(self, path, name):
        self.bars.setdefault(path, []).append(name)
        self.e("s_barrier")
    PH0 = {"G1": 1, "G2": 34, "G3A": 51, "G3B": 83, "G4": 115}
    def tr_flush(self, path):
        p = self.trp.pop(path[0], None)
        if p is None: return
        l = self.lab("tr")
        self.e("s_waitcnt lgkmcnt(0)")
        self.e(f"s_cmp_lg_u32 s{sLAY}, {int(self.opt['trace'])}"); self.e(f"s_cbranch_scc1 {l}")
        for k in range(3):
            if path[0] == "X": i = p[1] * 3 + k; reg = 233 + i // 64
            else: i = (self.PH0[p[0]] + p[1]) * 3 + k; reg = 228 + i // 64
            self.e(f"v_writelane_b32 v{reg}, s{96 + 2 * k}, {i % 64}")
        self.label(l)
    def pb(self, path, name, vm=None, lgkm=None):
        tr = self.opt.get("trace") is not None
        if tr:
            if path[0] not in self.trp: self.e("s_waitcnt lgkmcnt(0)")
            self.tr_flush(path)
            self.e("s_memtime s[96:97]")
            lgkm = None
        self.wait(vm, lgkm)
        if tr: self.e("s_memtime s[98:99]")
        self.bar(path, name)
        if tr:
            self.e("s_memtime s[100:101]")
            self.trp[path[0]] = name
    def tr_dump(self, grp):
        if self.opt.get("trace") is None: return
        e = self.e; l = self.lab("td")
        e(f"s_cmp_lg_u32 s{sLAY}, {int(self.opt['trace'])}"); e(f"s_cbranch_scc1 {l}")
        e(f"s_lshl_b32 s{sT}, s2, 3"); e(f"s_add_u32 s{sT}, s{sT}, s{sWAVE}"); e(f"s_lshl_b32 s{sT}, s{sT}, 11"); e(f"s_add_u32 s{sT}, s{sT}, {WS_TS + MB}")
        e(f"v_lshrrev_b32 v{vF0}, 2, v{vL16}")
        for k in range(2 if grp == "X" else 7):
            e(f"buffer_store_dword v{(233 if grp == 'X' else 228) + k}, v{vF0}, s[{sWS}:{sWS+3}], s{sT} offen offset:{256 * k}")
        self.label(l)
    def wait(self, vm=None, lgkm=None):
        p = []
        if vm is not None:
            assert vm <= 63
            p.append(f"vmcnt({vm})")
        if lgkm is not None: p.append(f"lgkmcnt({lgkm})")
        if p: self.e("s_waitcnt " + " ".join(p))
    def ts(self, k):
        if self.opt.get("ts"):
            self.e(f"s_memrealtime s[{sTS}:{sTS+1}]")
            self.e(f"s_lshl_b32 s{sT3}, s{sLAY}, 5")
            self.e(f"s_add_u32 m0, s{sT3}, {k}")
            self.e("s_waitcnt lgkmcnt(0)")
            self.e(f"v_writelane_b32 v{vTS}, s{sTS}, m0")
    def tsc(self, k):
        if self.opt.get("ts"):
            self.e(f"s_memtime s[{sTS}:{sTS+1}]")
            self.e(f"s_lshl_b32 s{sT3}, s{sLAY}, 5")
            self.e(f"s_add_u32 m0, s{sT3}, {k}")
            self.e("s_waitcnt lgkmcnt(0)")
            self.e(f"v_writelane_b32 v{vTS}, s{sTS}, m0")

    def lanes(self, vL, vG=None, vI=None):
        self.e(f"v_lshrrev_b32 v{vL}, 4, v{vL16}")
        if vG is not None: self.e(f"v_lshrrev_b32 v{vG}, 8, v{vL16}")
        if vI is not None: self.e(f"v_and_b32 v{vI}, 15, v{vL}")

    def store(self, instr):
        l1, l2 = self.lab("st"), self.lab("st")
        return [f"s_cmp_eq_u32 s{sMODE}, 0", f"s_cbranch_scc1 {l1}", instr + " sc0 sc1", f"s_branch {l2}", f"@{l1}", instr, f"@{l2}"]

    def emit(self, seq):
        for x in seq:
            if isinstance(x, (list, tuple)): self.emit(x)
            elif x.startswith("@"): self.label(x[1:])
            elif x.startswith("."): self.a.raw("    " + x)
            elif x.startswith("#"): self.a.raw(x)
            else: self.e(x)

    @staticmethod
    def FG(kind): return (sFl, kind * 2048)
    @staticmethod
    def FL(line, off): return (sFL, line * 2048 + off)
    def wg_flag(self, fa):
        e = self.e; loc = fa[0] == sFL
        if loc: e(f"s_lshr_b32 s{sT}, s2, 5"); e(f"s_lshl_b32 s{sT}, s{sT}, 2")
        else: e(f"s_lshl_b32 s{sT}, s{sN4}, 2")
        e(f"s_add_u32 s{sT}, s{sT}, s{fa[0]}")
        e(f"v_mov_b32 v{vF0}, {fa[1]}"); e(f"v_mov_b32 v{vF1}, 0x01010101")
        e("s_mov_b64 exec, 1")
        ins = f"buffer_store_dword v{vF1}, v{vF0}, s[{sWS}:{sWS+3}], s{sT} offen"
        self.emit(self.store(ins) if loc else [ins + " sc0 sc1"])
        e("s_mov_b64 exec, -1")
    def wg_flags(self, fg, fl):
        self.wg_flag_if(2, fl)
        if fg is not None: self.wg_flag_if(3, fg)
    def wg_flag_if(self, lw, fa):
        l = self.lab("wf")
        self.e(f"s_cmp_lg_u32 s{sLW}, {lw}"); self.e(f"s_cbranch_scc1 {l}")
        self.wg_flag(fa)
        self.label(l)
    def fl_addr(self, fa, nl):
        lim = f"s{nl[1]}" if isinstance(nl, tuple) else str(4 * (nl - 1))
        return [f"v_lshrrev_b32 v{vF0}, 2, v{vL16}", f"v_min_u32 v{vF0}, {lim}, v{vF0}", f"s_add_u32 s{sT}, s{fa[0]}, {fa[1] & 0xffffffff}"]
    def poll_flags(self, fa, nl):
        lp, ld = self.lab("poll"), self.lab("pd")
        self.emit(self.fl_addr(fa, nl))
        self.e(f"s_mov_b32 s{sT2}, {POLL}")
        self.label(lp)
        self.e(f"buffer_load_dword v{vF1}, v{vF0}, s[{sWS}:{sWS+3}], s{sT} offen sc0 sc1")
        self.e("s_waitcnt vmcnt(0)")
        self.e(f"v_cmp_ne_u32 vcc, 0x01010101, v{vF1}")
        self.e(f"s_cbranch_vccz {ld}")
        if self.opt.get("psleep", 1): self.e(f"s_sleep {int(self.opt.get('psleep', 1))}")
        self.e(f"s_sub_u32 s{sT2}, s{sT2}, 1")
        self.e(f"s_cmp_lg_u32 s{sT2}, 0")
        self.e(f"s_cbranch_scc1 {lp}")
        self.label(ld)
    def apoll_issue(self, vm, fa, nl, vP):
        self.emit(self.fl_addr(fa, nl))
        self.e(f"buffer_load_dword v{vP}, v{vF0}, s[{sWS}:{sWS+3}], s{sT} offen sc0 sc1"); vm.issue("ap")
    def apoll_check(self, vm, fa, nl, vP, skip=()):
        e = self.e; l = self.lab("ap")
        self.wait(vm.need("ap"))
        e(f"v_cmp_ne_u32 vcc, 0x01010101, v{vP}")
        e(f"s_cbranch_vccz {l}")
        for r, v in skip:
            e(f"s_cmp_eq_u32 s{r}, {v}"); e(f"s_cbranch_scc1 {l}")
        self.poll_flags(fa, nl)
        self.label(l)
    def round_bf16(self, v): return [f"v_cvt_pk_bf16_f32 v{v}, v{v}, v{v}", f"v_lshlrev_b32 v{v}, 16, v{v}"]
    def finish_stats(self, vs, vq):
        o = [f"v_mul_f32 v{vs}, 0x3a800000, v{vs}", f"v_mul_f32 v{vq}, 0x3a800000, v{vq}",
             f"v_fma_f32 v{vq}, -v{vs}, v{vs}, v{vq}", f"v_max_f32 v{vq}, 0, v{vq}"]
        o += self.round_bf16(vs) + self.round_bf16(vq)
        o += [f"v_add_f32 v{vq}, 0x{EPS_BITS:08x}, v{vq}"] + self.round_bf16(vq)
        o += [f"v_sqrt_f32 v{vq}, v{vq}", "s_nop 0"] + self.round_bf16(vq)
        o += [f"v_rcp_f32 v{vq}, v{vq}", "s_nop 0"]
        return o
    def xred(self, regs, tmps, op="v_add_f32", steps=("v_permlane16_swap_b32", "v_permlane32_swap_b32")):
        o = []
        for sw in steps:
            o += [f"v_mov_b32 v{t}, v{v}" for v, t in zip(regs, tmps)]
            o += ["s_nop 1"]
            o += [f"{sw} v{v}, v{t}" for v, t in zip(regs, tmps)]
            o += [f"{op} v{v}, v{v}, v{t}" for v, t in zip(regs, tmps)]
        return o

    def mix(self, dmas, side):
        if not dmas: return list(side)
        out = []; n = len(dmas); k = 0
        for i, d in enumerate(dmas):
            out.append(d)
            want = (len(side) * (i + 1)) // n
            out += side[k:want]; k = want
        return out

    def chunk(self, work, budget):
        out = []; c = 0
        while work and (c + work[0][0] <= budget or not out):
            k, it = work.pop(0); c += k; out.append(it)
        return out
    def atomize(self, instrs):
        tm = [f"s{sT}", f"s{sT2}", f"s{sT3}"]
        def toks(x): return re.findall(r"[a-z_0-9]+", x)
        n = len(instrs); end = list(range(n))
        for i, x in enumerate(instrs):
            if not isinstance(x, str) or not x.startswith("s_") or x.startswith(("s_waitcnt", "s_nop")): continue
            t = toks(x)
            if t[0].startswith("s_cmp"):
                for j in range(i + 1, n):
                    if isinstance(instrs[j], str) and instrs[j].startswith("s_cselect"): end[i] = j; break
                continue
            d = t[1]
            if d not in tm: continue
            for j in range(i + 1, n):
                y = instrs[j]
                if not isinstance(y, str): continue
                ty = toks(y)
                if d in ty[2:]: end[i] = j
                if ty[1:2] == [d] and y.startswith("s_"): break
        out = []; i = 0
        while i < n:
            k = end[i]; j = i
            while j < k:
                j += 1; k = max(k, end[j])
            out.append(instrs[i] if k == i else list(instrs[i:k + 1])); i = k + 1
        return out
    def costed(self, instrs):
        w = []
        for x in self.atomize(instrs):
            if isinstance(x, list) and all(isinstance(y, str) for y in x):
                w.append((sum(1 if y.startswith("v_") else 0.5 for y in x), x)); continue
            if isinstance(x, (list, tuple)): w.append((4, x))
            elif callable(x): w.append((4, x))
            elif x.startswith(("v_exp", "v_rcp", "v_sqrt")): w.append((2, x))
            elif x.startswith("v_"): w.append((1, x))
            else: w.append((0.5, x))
        return w
    def run_period(self, dmas, items):
        seq = self.mix(dmas, items)
        for x in seq:
            if callable(x): x()
            else: self.emit([x])

    def selector(self, S, t0, t1):
        o = [f"v_lshrrev_b32 v{t0}, 4, v{vL16}", f"v_and_b32 v{t1}, 1, v{t0}", f"v_lshlrev_b32 v{t1}, 4, v{t1}", f"v_lshlrev_b32 v{t1}, v{t1}, v{S}",
             f"v_bfe_u32 v{t0}, v{t0}, 1, 3"]
        o = [f"v_mov_b32 v{S}, 0x3f80"] + o
        for d in range(4): o += [f"v_cmp_eq_u32 vcc, {d}, v{t0}", "s_nop 1", f"v_cndmask_b32 v{S+d}, 0, v{t1}, vcc"]
        return o
    def side_flag(self, which):
        e = self.e
        e(f"v_mov_b32 v{vF0}, 0"); e(f"v_mov_b32 v{vF1}, 1"); e(f"s_lshl_b32 s{sT}, s2, 2"); e(f"s_add_u32 s{sT}, s{sT}, {WS_SF + 1024 * which}")
        e("s_mov_b64 exec, 1")
        e(f"buffer_store_dword v{vF1}, v{vF0}, s[{sWS}:{sWS+3}], s{sT} offen sc0 sc1")
        e("s_mov_b64 exec, -1")
    def apoll4_issue(self, vm, which, G):
        self.e(f"s_mov_b32 s{sT}, {WS_SF + 1024 * which}")
        self.e(f"buffer_load_dwordx4 v[{G}:{G+3}], v{vL16}, s[{sWS}:{sWS+3}], s{sT} offen sc0 sc1"); vm.issue("p4")
    def apoll4_check(self, vm, which, G, skip=()):
        e = self.e; l = self.lab("a4")
        self.wait(vm.need("p4"))
        for r, v in skip:
            e(f"s_cmp_eq_u32 s{r}, {v}"); e(f"s_cbranch_scc1 {l}")
        e(f"v_and_b32 v{G}, v{G}, v{G+1}"); e(f"v_and_b32 v{G+2}, v{G+2}, v{G+3}"); e(f"v_and_b32 v{G}, v{G}, v{G+2}")
        e(f"v_cmp_ne_u32 vcc, 1, v{G}")
        e(f"s_cbranch_vccz {l}")
        self.poll4(WS_SF + 1024 * which, None, G)
        self.label(l)

    def poll4(self, off, T0, G):
        e = self.e
        lp, ld = self.lab("p4"), self.lab("p4")
        e(f"s_mov_b32 s{sT}, {off}"); e(f"s_mov_b32 s{sT2}, {POLL}")
        self.label(lp)
        e(f"buffer_load_dwordx4 v[{G}:{G+3}], v{vL16}, s[{sWS}:{sWS+3}], s{sT} offen sc0 sc1")
        e("s_waitcnt vmcnt(0)")
        e(f"v_and_b32 v{G}, v{G}, v{G+1}"); e(f"v_and_b32 v{G+2}, v{G+2}, v{G+3}"); e(f"v_and_b32 v{G}, v{G}, v{G+2}")
        e(f"v_cmp_ne_u32 vcc, 1, v{G}")
        e(f"s_cbranch_vccz {ld}")
        e("s_sleep 1"); e(f"s_sub_u32 s{sT2}, s{sT2}, 1"); e(f"s_cmp_lg_u32 s{sT2}, 0"); e(f"s_cbranch_scc1 {lp}")
        self.label(ld)

    def grp(self, vm, tag, pre, ins, post=()):
        def f():
            vm.issue(tag); self.emit(list(pre) + [ins] + list(post))
        return f

    def w_unit(self, n, P):
        n = n % 132; slot = (n % 6) * WSLOT; tag = ("W", n)
        def lds(srd, pats, so): return [f"buffer_load_dwordx4 v{p}, s[{srd}:{srd+3}], s{so} offen{f' offset:{1024 * i}' if i else ''} lds" for i, p in enumerate(pats)]
        def adv(inc, msk): return [f"s_add_u32 s{sRw}, s{sRw}, {inc}", f"s_and_b32 s{sRw}, s{sRw}, {msk}"]
        def sinc(order, st):
            if st == 31: return []
            d = 1 if st % 2 == 0 else (2 * (uord(order[st // 2 + 1]) - uord(order[st // 2])) - 1) % 32
            return adv(d * 2048, 0xffff)
        ident = list(range(16))
        if n < 32:
            init = [f"s_lshl_b32 s{sRw}, s{self.rot0}, 12"] if n == 0 else []
            return tag, f"s_add_u32 m0, s{sM3}, {slot}", init + [f"s_mul_i32 s{sD0}, s{sRw}, 96"], lds(sQKV, P["g1"], sD0), sinc(ident, n)
        if n < 40:
            init = [f"s_lshl_b32 s{sRw}, s{sWM}, 1", f"s_add_u32 s{sRw}, s{sN4}, s{sRw}", f"s_and_b32 s{sRw}, s{sRw}, 15", f"s_lshl_b32 s{sRw}, s{sRw}, 17"] if n == 32 else []
            return tag, f"s_add_u32 m0, s{sM4}, {slot}", init, lds(sWO, P["g2"], sRw), adv((5 if n == 35 else 4) << 17, (16 << 17) - 1)
        if n < 72:
            init = [f"s_lshl_b32 s{sRw}, s{sN4}, 12"] if n == 40 else []
            return tag, f"s_add_u32 m0, s{sM4}, {slot}", init + [f"s_mul_i32 s{sD0}, s{sRw}, 112"], lds(sW3A, P["g3a"], sD0), sinc(ident, n - 40)
        if n < 104:
            st = n - 72; init = []
            if st in (0, self.xw0):
                assert st % 2 == 0
                init = [f"s_add_u32 s{sRw}, s{sN4}, {uord(BORD[st // 2])}", f"s_and_b32 s{sRw}, s{sRw}, 15", f"s_lshl_b32 s{sRw}, s{sRw}, 12"]
            ld = lds(sW3B, P["g3b"][:2], sD0) + [f"buffer_load_dwordx4 v{P['g3b'][2]}, s[{sWS}:{sWS+3}], s{sRw} offen offset:2048 lds"]
            return tag, f"s_add_u32 m0, s{sM3}, {slot}", init + [f"s_mul_i32 s{sD0}, s{sRw}, 112"], ld, sinc(BORD, st)
        u = n - 104
        if u < 24:
            p = u & 7; c = u >> 3
            colA = 224 * p + (96 if p & 1 else 0); colF = 224 * p + (32 if p & 1 else 128)
            row = [colA, colA + 32, colF][c]; base = sB6 if c < 2 else sB7
        else:
            row = 448 * (u - 24) + 192; base = sB7
        return tag, f"s_add_u32 m0, s{sM4}, {slot}", [f"s_add_u32 s{sD0}, s{base}, {row * 2048}"], lds(sW2, P["g4"], sD0), []

    def w_start(self, n, lim): self.wn = n; self.wlim = lim; self.wi = 0
    def w_take(self, vm, P, units, freed, extra=0):
        out = []; fresh = True; left = None
        while True:
            if self.wn - 6 > freed or self.wn >= self.wlim: break
            tag, m0, setup, ld, adv = self.w_unit(self.wn, P)
            if left is None: left = units * len(ld) + extra
            if left == 0: break
            i = self.wi; pre = []
            if i == 0: pre = (setup[:-1] + [m0, setup[-1]]) if setup else [m0, "s_nop 0"]
            elif fresh: pre = [m0, "s_nop 0"]
            out.append(self.grp(vm, tag if i == len(ld) - 1 else (tag, i), pre, ld[i], adv if i == len(ld) - 1 else ()))
            fresh = False; left -= 1; self.wi += 1
            if self.wi == len(ld): self.wi = 0; self.wn += 1
        return out
    def wneed(self, n):
        assert n < self.wn, (n, self.wn)
        return ("W", n % 132)

    def a_issue(self, vm, tag, slot, vA, glit=None, inc=None, part=None, srd=sWS, pats=None, lbase=None):
        pats = pats or [vA] * 4
        lb = LA + slot * 16384 if lbase is None else lbase
        so = sRa if glit is None else sDa
        g = []
        for i in (range(4) if part is None else (2 * part, 2 * part + 1)):
            pre = []
            if i == 0 or (part == 1 and i == 2):
                pre = [f"s_add_u32 m0, s{sM4}, {lb}", f"s_mov_b32 s{sDa}, {glit}" if glit is not None else "s_nop 0"]
            off = f" offset:{1024 * i}" if i else ""
            g.append(self.grp(vm, tag, pre, f"buffer_load_dwordx4 v{pats[i]}, s[{srd}:{srd+3}], s{so} offen{off} lds", inc if (i == 3 and inc) else ()))
        return g
    def ainc(self, d, stride=16384):
        return [f"s_add_u32 s{sRa}, s{sRa}, {(d % 16) * stride}", f"s_and_b32 s{sRa}, s{sRa}, {16 * stride - 1}"]

    def reloc(self, dst, src, mask, sidx, off, size):
        if self.opt.get("norel"): mask = 0
        o = [f"s_add_u32 s{sT}, s{sWS}, {off}", f"s_addc_u32 s{sT2}, s{sWS+1}, 0", f"s_lshr_b32 s{sT3}, {mask}, s{sidx}", f"s_and_b32 s{sT3}, s{sT3}, 1",
             f"s_cselect_b32 s{dst}, s{sT}, s{src}", f"s_cselect_b32 s{dst+1}, s{sT2}, s{src+1}"]
        if dst != src: o += [f"s_mov_b32 s{dst+2}, {size}", f"s_mov_b32 s{dst+3}, 0x00020000"]
        return o
    def reloc13(self, dst, mask):
        return [f"s_lshl_b32 s{sD1}, s{sWM}, 23", f"s_add_u32 s{sD1}, s{sD1}, {WS_C13 + 256}"] + self.reloc(dst, sW13, mask, sNT, f"s{sD1}", 1024 * 7168)
    def reloc2(self): return self.reloc(sW2, sW2, 0x0c0c, sN4, WS_C2 + 256, 0)

    def swz128(self, t0, t1, t2):
        return [f"v_lshrrev_b32 v{t0}, 7, v{vL16}", f"v_and_b32 v{t1}, 0x70, v{vL16}",
                f"v_and_b32 v{t2}, 6, v{t0}", f"v_lshlrev_b32 v{t2}, 4, v{t2}", f"v_xor_b32 v{t1}, v{t1}, v{t2}"]
    def pat_g1(self, P, t0, t1, t2, first):
        o = self.swz128(t0, t1, t2)
        if first: o += [f"v_and_b32 v{t2}, 4, v{t0}", f"v_add_u32 v{t0}, v{t0}, v{t2}"]
        o += [f"v_mul_u32_u24 v{t0}, 6144, v{t0}", f"v_add3_u32 v{t0}, v{t0}, v{t1}, s{sB1}"]
        for i in range(3):
            o += [f"s_lshr_b32 s{sT}, s{sM3}, 10", f"s_add_u32 s{sT}, s{sT}, {i}", f"s_and_b32 s{sT2}, s{sT}, 3"]
            if first: o += [f"s_and_b32 s{sT3}, s{sT2}, 1", f"s_lshl_b32 s{sT3}, s{sT3}, 4", f"s_and_b32 s{sT2}, s{sT2}, 2", f"s_lshl_b32 s{sT2}, s{sT2}, 1", f"s_add_u32 s{sT2}, s{sT2}, s{sT3}"]
            else: o += [f"s_lshl_b32 s{sT2}, s{sT2}, 3"]
            o += [f"s_mul_i32 s{sT2}, s{sT2}, 6144", f"s_lshr_b32 s{sT}, s{sT}, 2", f"s_lshl_b32 s{sT}, s{sT}, 11", f"s_add_u32 s{sT}, s{sT}, s{sT2}",
                  f"s_sub_u32 s{sT}, s{sT}, {1024 * i}", f"v_add_u32 v{P['g1'][i]}, s{sT}, v{t0}"]
        return o
    def pat_128(self, regs, pitch, t0, t1, t2, sb):
        o = self.swz128(t0, t1, t2) + [f"v_mul_u32_u24 v{t0}, {pitch}, v{t0}", f"v_add3_u32 v{regs[0]}, v{t0}, v{t1}, s{sb}"]
        for i in range(1, len(regs)): o.append(f"v_add_u32 v{regs[i]}, {i * (8 * pitch - 1024)}, v{regs[0]}")
        return o
    def pat_g3b(self, regs, t0, t1, t2):
        return self.pat_128(regs[:2], 7168, t0, t1, t2, sB4) + [f"v_add_u32 v{regs[2]}, s{sB5}, v{vL16}"]
    def pat_256(self, regs, pitch, t0, t1, t2, sb=None):
        o = [f"v_and_b32 v{t1}, 0xf0, v{vL16}", f"v_lshrrev_b32 v{t0}, 8, v{vL16}", f"v_lshlrev_b32 v{t2}, 5, v{t0}", f"v_xor_b32 v{t1}, v{t1}, v{t2}",
             f"v_mul_u32_u24 v{t0}, {pitch}, v{t0}"] + ([f"v_add_u32 v{t0}, s{sb}, v{t0}"] if sb else []) + [f"v_add_u32 v{regs[0]}, v{t0}, v{t1}",
             f"v_xor_b32 v{t1}, 0x80, v{t1}", f"v_add_u32 v{t0}, v{t0}, v{t1}", f"v_add_u32 v{regs[1]}, {4 * pitch - 1024}, v{t0}"]
        for i in (2, 3): o.append(f"v_add_u32 v{regs[i]}, {8 * pitch - 2048}, v{regs[i-2]}")
        return o
    def bases(self):
        e = self.e
        e(f"s_lshl_b32 s{sB1}, s{sN4}, 7")
        e(f"s_lshl_b32 s{sT}, s{sWN}, 16"); e(f"s_add_u32 s{sB2}, s{sB1}, s{sT}")
        e(f"s_mul_i32 s{sT}, s{sWN}, {16 * 7168}"); e(f"s_mul_i32 s{sT2}, s{sNT}, 448"); e(f"s_add_u32 s{sT}, s{sT}, s{sT2}")
        e(f"s_and_b32 s{sT2}, s{sNT}, 1"); e(f"s_mul_i32 s{sT2}, s{sT2}, 192")
        e(f"s_add_u32 s{sB3}, s{sT}, s{sT2}"); e(f"s_sub_u32 s{sB4}, s{sT}, s{sT2}"); e(f"s_add_u32 s{sB4}, s{sB4}, 256")
        e(f"s_lshl_b32 s{sT}, s{sWM}, 4"); e(f"s_add_u32 s{sT}, s{sT}, s{sNT}"); e(f"s_lshl_b32 s{sT}, s{sT}, 6"); e(f"s_add_u32 s{sT}, s{sT}, s{sWN}")
        e(f"s_lshl_b32 s{sT}, s{sT}, 10"); e(f"s_add_u32 s{sB5}, s{sT}, {WS_RT - 2048}")
        e(f"s_and_b32 s{sT}, s{sN4}, 1"); e(f"s_mul_i32 s{sT}, s{sT}, {1792 * 2048}"); e(f"s_lshr_b32 s{sT2}, s{sN4}, 1"); e(f"s_lshl_b32 s{sT2}, s{sT2}, 8")
        e(f"s_add_u32 s{sT}, s{sT}, s{sT2}"); e(f"s_lshl_b32 s{sT2}, s{sWN}, 15"); e(f"s_add_u32 s{sT}, s{sT}, s{sT2}")
        e(f"s_lshl_b32 s{sT2}, s{sWM}, 16"); e(f"s_add_u32 s{sB7}, s{sT}, s{sT2}"); e(f"s_add_u32 s{sB6}, s{sB7}, s{sT2}")

    def step(self, path, name, mf, reads, vmw=None, bar=True, last=None, extra=None):
        self.wait(vmw, 0)
        if bar: self.bar(path, name)
        self.al()
        oth = [[r] for r in reads]
        if last is None: last = len(reads) - 1
        sl = spread(len(reads), 0, last)
        if extra:
            for s, x in extra:
                oth.append(x + [".p2align 3"]); sl.append(s)
        self.emit(place(mf, oth, sl))

    def looped(self, path, nsteps, body, fn, pre=1):
        trips = (nsteps - pre - 1) // body
        l = self.lab("loop")
        self.e(f"s_mov_b32 s{sCnt}, {trips}")
        for s in range(pre): fn(s, None)
        self.emit([".p2align 3", "#LOOP"])
        self.label(l)
        nb0 = len(self.bars.get(path, []))
        for s in range(pre, pre + body): fn(s, "cnt" if s == pre + body - 1 else None)
        self.e(f"s_cbranch_scc1 {l}")
        self.emit(["#ENDLOOP"])
        names = self.bars[path][nb0:]
        for t in range(1, trips):
            for nm in names: self.bars[path].append((nm[0], nm[1] + t * len(names)))
        for s in range(pre + trips * body, nsteps): fn(s, None)

    CNT = [f"s_sub_u32 s{sCnt}, s{sCnt}, 1", f"s_cmp_lg_u32 s{sCnt}, 0"]

    def xcc_word(self, r):
        return [f"s_getreg_b32 s{r}, hwreg(HW_REG_XCC_ID, 0, 4)"] + ([f"s_lshr_b32 s{r}, s2, 7"] if self.opt.get("slow") else []) + \
               [f"s_mul_i32 s{sT}, s{r}, s{r}", f"s_lshl_b32 s{sT}, s{sT}, 15", f"s_lshl_b32 s{r}, s{r}, 6", f"s_add_u32 s{r}, s{r}, s{sT}", f"s_add_u32 s{r}, s{r}, 1"]

    def x_prep(self):
        e = self.e
        l3, ld = self.lab("xp"), self.lab("xp")
        D = 0; AC = 64; T = 80
        vO, vS0, vS1, vS2 = 100, 235, 102, 103
        lz = self.lab("xz")
        e(f"s_cmp_lg_u32 s{sLW}, 0"); e(f"s_cbranch_scc1 {lz}")
        e(f"v_mov_b32 v{vS2}, 0"); e(f"v_lshrrev_b32 v{vO}, 2, v{vL16}")
        e(f"s_lshl_b32 s{sT}, s2, 8"); e(f"s_add_u32 s{sT}, s{sT}, {WS_FL}")
        e(f"buffer_store_dword v{vS2}, v{vO}, s[{sWS}:{sWS+3}], s{sT} offen sc0 sc1")
        e(f"v_lshlrev_b32 v{vO}, 6, v{vL16}")
        e(f"s_lshl_b32 s{sT}, s2, 2"); e(f"s_add_u32 s{sT}, s{sT}, {WS_SF}")
        e("s_mov_b64 exec, 15")
        e(f"buffer_store_dword v{vS2}, v{vO}, s[{sWS}:{sWS+3}], s{sT} offen sc0 sc1")
        e("s_mov_b64 exec, -1")
        self.label(lz)
        e(f"s_getpc_b64 s[{sAT}:{sAT+1}]")
        self.label("K_pc")
        e(f"s_mov_b32 s{sAT+2}, K_end-K_pc")
        e(f"s_mov_b32 s{sAT+3}, 0x00020000")
        e(f"s_lshr_b32 s{sT}, s2, 3"); e(f"s_lshl_b32 s{sT}, s{sT}, 2"); e(f"s_add_u32 s{sT}, s{sT}, s{sLW}"); e(f"s_lshl_b32 s{sT}, s{sT}, 10")
        e(f"v_lshlrev_b32 v{vO}, 3, v{vL16}")
        e("s_mov_b64 exec, 0xff")
        e(f"buffer_load_dword v{vS0}, v{vO}, s[{sAT}:{sAT+3}], s{sT} offen")
        e("s_mov_b64 exec, -1")
        lz = self.lab("xz")
        e(f"s_cmp_lg_u32 s{sLW}, 0"); e(f"s_cbranch_scc1 {lz}")
        self.emit(self.xcc_word(sD0))
        e(f"v_mov_b32 v{vF1}, s{sD0}"); e(f"s_and_b32 s{sT}, s2, 7"); e(f"s_lshl_b32 s{sT}, s{sT}, 5"); e(f"v_mov_b32 v{vF0}, 0")
        e("s_waitcnt vmcnt(1)")
        e("s_mov_b64 exec, 1")
        e(f"buffer_atomic_add v{vF1}, v{vF0}, s[{sDBG}:{sDBG+3}], s{sT} offen sc1")
        e("s_mov_b64 exec, -1")
        self.label(lz)

    def out_addr(self, T0, T1, sd):
        return [f"v_and_b32 v{T0}, 0xf0, v{vL16}", f"v_lshlrev_b32 v{T0}, 7, v{T0}",
                f"v_and_b32 v{T1}, 0x100, v{vL16}", f"v_lshrrev_b32 v{T1}, 3, v{T1}", f"v_add_u32 v{T0}, v{T0}, v{T1}",
                f"v_and_b32 v{T1}, 0x200, v{vL16}", f"v_lshrrev_b32 v{T1}, 5, v{T1}", f"v_add_u32 v{T0}, v{T0}, v{T1}",
                f"s_lshl_b32 s{sd}, s{sMT}, 18", f"s_lshl_b32 s{sT2}, s{sWM}, 17", f"s_add_u32 s{sd}, s{sd}, s{sT2}",
                f"s_lshl_b32 s{sT2}, s{sN4}, 7", f"s_add_u32 s{sd}, s{sd}, s{sT2}", f"s_lshl_b32 s{sT2}, s{sWN}, 6", f"s_add_u32 s{sd}, s{sd}, s{sT2}"]

    def waddr128(self, dst, sel, t0, t1, t2, nt=2):
        e = self.e
        e(f"v_lshrrev_b32 v{t0}, 6, v{vL16}")
        e(f"v_lshrrev_b32 v{t1}, 1, v{t0}"); e(f"v_and_b32 v{t1}, 3, v{t1}")
        e(f"s_lshl_b32 s{sT}, s{sel}, 1")
        e(f"v_xor_b32 v{t1}, s{sT}, v{t1}")
        e(f"v_lshlrev_b32 v{t0}, 7, v{t0}")
        e(f"v_lshl_add_u32 v{t0}, v{t1}, 5, v{t0}")
        e(f"v_and_b32 v{t1}, 0x30, v{vL16}"); e(f"v_lshrrev_b32 v{t1}, 1, v{t1}")
        e(f"v_add_u32 v{dst}, v{t0}, v{t1}")
        e(f"v_xor_b32 v{dst+1}, 32, v{dst}")
        for t in range(2): e(f"v_add_u32 v{dst+2+t}, {3 * WSLOT}, v{dst+t}")

    def waddr256(self, dst, xs, sbase, t0, t1):
        o = [f"v_lshrrev_b32 v{t0}, 6, v{vL16}", f"v_and_b32 v{t1}, 7, v{t0}", f"v_xor_b32 v{t1}, s{sbase}, v{t1}",
             f"v_lshlrev_b32 v{t0}, 8, v{t0}", f"v_lshl_add_u32 v{t0}, v{t1}, 5, v{t0}",
             f"v_and_b32 v{t1}, 0x30, v{vL16}", f"v_lshrrev_b32 v{t1}, 1, v{t1}", f"v_add_u32 v{t0}, v{t0}, v{t1}"]
        for t in range(4): o.append(f"v_xor_b32 v{dst+t}, {xs[t] << 5}, v{t0}")
        for t in range(4): o.append(f"v_add_u32 v{dst+4+t}, {3 * WSLOT}, v{dst+t}")
        return o

    def x_g1(self):
        e = self.e; P = "X"
        ACCQ, ACCK, ACCV, XF, WF = 0, 32, 72, 112, 152
        vXa, vWa = 200, 202
        vL, vG, vI, vT0, vT1, vT2, vT3, vOA = 206, 207, 208, 209, 210, 211, 212, 213
        def aq(j, ab): return ACCQ + ((j - 1) * 2 + ab) * 4
        def ak(j, ab): return ACCK + (j * 2 + ab) * 4
        def av(j, ab): return ACCV + (j * 2 + ab) * 4
        def xf(b, j): return XF + b * 20 + j * 4
        def wf(b, seg, ab): return WF + b * 24 + (seg * 2 + ab) * 4
        self.lanes(vL, vG, vI)
        l2, l3 = self.lab("g1"), self.lab("g1")
        e(f"s_lshl_b32 s{sT}, s{sWM}, 13"); e(f"s_add_u32 s{sT}, s{sT}, {LA}")
        e(f"s_cmp_lg_u32 s{sLAY}, 0"); e(f"s_cbranch_scc1 {l2}")
        e(f"v_and_b32 v{vT1}, 6, v{vI}"); e(f"v_xor_b32 v{vT1}, v{vT1}, v{vG}"); e(f"v_lshlrev_b32 v{vT1}, 4, v{vT1}")
        e(f"v_lshl_add_u32 v{vXa}, v{vI}, 7, v{vT1}"); e(f"v_xor_b32 v{vXa+1}, 64, v{vXa}")
        e(f"s_branch {l3}")
        self.label(l2)
        e(f"v_mov_b32 v{vXa}, v{vL16}"); e(f"v_add_u32 v{vXa+1}, 1024, v{vL16}")
        self.label(l3)
        e(f"v_add_u32 v{vXa}, s{sT}, v{vXa}"); e(f"v_add_u32 v{vXa+1}, s{sT}, v{vXa+1}")
        self.waddr128(vWa, sWN, vT0, vT1, vT2)
        e(f"s_add_u32 s{sGa}, s{sTile}, s{sOo}")
        SEL, vQa, vVa, vCq, vCv, ONES = 214, 218, 219, 220, 221, 222
        sM = sAT; sOdd = sAT + 8; sInv = sAT + 10
        e(f"v_lshlrev_b32 v{vT0}, 2, v{vG}"); e(f"v_sub_u32 v{vT0}, v{vI}, v{vT0}")
        for r in range(4): e(f"v_cmp_le_i32 s[{sM+2*r}:{sM+2*r+1}], {r}, v{vT0}")
        e(f"v_and_b32 v{vT1}, 1, v{vI}"); e(f"v_cmp_eq_u32 s[{sOdd}:{sOdd+1}], 1, v{vT1}")
        e(f"v_sub_u32 v{vT0}, v{vT0}, v{vT1}")
        e(f"v_mov_b32 v{vT3}, 0x0c0c0c0c")
        for k in range(2):
            e(f"v_mov_b32 v{vT1}, {hex([0x0c0c0100, 0x0c0c0302][k])}"); e(f"v_mov_b32 v{vT2}, {hex([0x01000c0c, 0x03020c0c][k])}")
            e(f"v_cmp_le_i32 vcc, {2 * k}, v{vT0}")
            e(f"v_cndmask_b32 v{vT1}, v{vT1}, v{vT2}, s[{sOdd}:{sOdd+1}]")
            e(f"s_not_b64 s[{sInv+2*k}:{sInv+2*k+1}], vcc")
            e(f"v_cndmask_b32 v{SEL+k}, v{vT1}, v{vT3}, vcc")
            e(f"v_cndmask_b32 v{SEL+2+k}, v{vT3}, v{vT1}, vcc")
        e(f"s_or_b32 s{sT}, s{sMT}, s{sWM}"); e(f"s_cmp_eq_u32 s{sT}, 0")
        for k in range(2): e(f"s_cselect_b64 s[{sInv+2*k}:{sInv+2*k+1}], s[{sInv+2*k}:{sInv+2*k+1}], 0")
        e(f"s_lshl_b32 s{sT}, s{sWM}, 8"); e(f"s_add_u32 s{sT}, s{sT}, {L_ST}")
        e(f"v_lshlrev_b32 v{vQa}, 2, v{vI}"); e(f"v_add_u32 v{vQa}, s{sT}, v{vQa}")
        e(f"v_lshlrev_b32 v{vVa}, 4, v{vG}"); e(f"v_add_u32 v{vVa}, s{sT}, v{vVa}")
        e(f"s_lshl_b32 s{sT}, s{sWN}, 7"); e(f"s_add_u32 s{sT}, s{sT}, {L_CSQ}")
        e(f"v_lshlrev_b32 v{vCq}, 4, v{vG}"); e(f"v_add_u32 v{vCq}, s{sT}, v{vCq}")
        e(f"v_lshlrev_b32 v{vCv}, 2, v{vI}"); e(f"v_add_u32 v{vCv}, s{sT}, v{vCv}")
        for i in range(4): e(f"v_mov_b32 v{ONES+i}, 0x3f803f80")
        e(f"v_mov_b32 v{vOA}, {L_MODE}")
        self.emit(self.out_addr(vL, vT1, sDa))
        CS, CSV, NMq, RSq, NMv, RSv = 152, 168, 112, 118, 132, 176
        tab = [f"ds_read_b128 v[{CS+4*k}:{CS+4*k+3}], v{vCq} offset:{256 * (k >> 1) + 64 * (k & 1)}" for k in range(4)]
        tab += [f"ds_read_b32 v{NMq+j}, v{vQa} offset:{64 * j}" for j in range(5)]
        tab += [f"ds_read_b32 v{RSq+j}, v{vQa} offset:{576 + 64 * j}" for j in range(5)]
        tab += [f"ds_read_b32 v{CSV+ab}, v{vCv} offset:{512 + 64 * ab}" for ab in range(2)]
        tab += [f"ds_read_b32 v170, v{vOA}"]
        def reads(s):
            b = s & 1; u = s >> 1; sl = s % 6
            xr = [f"ds_read_b128 v[{xf(b,j)}:{xf(b,j)+3}], v{vXa + (s & 1)} offset:{(u % 3) * 18432 + j * 2048}" for j in range(5)]
            wr = []
            for seg in range(3):
                for ab in range(2):
                    r = wf(b, seg, ab); ad = vWa + 2 * (sl // 3) + ab; off = (sl % 3) * WSLOT + seg * 4096
                    wr.append(f"ds_read_b64_tr_b16 v[{r}:{r+1}], v{ad} offset:{off}")
                    wr.append(f"ds_read_b64_tr_b16 v[{r+2}:{r+3}], v{ad} offset:{off + 2048}")
            return wr[0:2] + xr[1:] + wr[2:6] + xr[0:1] + wr[6:]
        def mf(s):
            b = s & 1; m = []; c = "0" if s == 0 else None
            for ab in range(2):
                for j in snake((1, 2, 3, 4), ab): m.append(mfma(aq(j, ab), wf(b, 0, ab), xf(b, j), c))
            for ab in range(2):
                for j in snake((1, 2, 3, 4, 0), ab): m.append(mfma(ak(j, ab), wf(b, 1, ab), xf(b, j), c))
            for ab in range(2):
                for j in snake(range(5), ab): m.append(mfma(av(j, ab), xf(b, j), wf(b, 2, ab), c))
            return m
        lq = self.lab("g1")
        e(f"s_cmp_eq_u32 s{sLAY}, 0"); e(f"s_cbranch_scc1 {lq}")
        e("s_waitcnt vmcnt(0) lgkmcnt(0)"); e("s_barrier")
        self.wg_flags(self.FG(4), self.FL(0, 64))
        self.stats_out(sSTo, 226)
        self.label(lq)
        self.ts(0)
        self.bar(P, ("G1", -1))
        self.ts(1); self.tsc(16)
        self.emit(reads(0))
        def fn(s, ex):
            extra = []
            if ex: extra.append((24, self.CNT))
            if s == 31:
                lr = self.lab("g1"); x = [f"s_cmp_lg_u32 s{sLAY}, 0", f"s_cbranch_scc1 {lr}"]
                for rt in range(4):
                    x += [f"buffer_load_dwordx4 v[{236+4*rt}:{239+4*rt}], v{vL}, s[{sX0}:{sX0+3}], s{sDa} offen", f"s_add_u32 s{sDa}, s{sDa}, {16 * 2048}"]
                extra.append((25, x + [f"@{lr}"]))
            self.step(P, ("G1", s), mf(s), reads(s + 1) if s < 31 else tab, vmw=(0 if s == 2 else None), last=20, extra=extra)
        self.looped(P, 32, 6, fn)
        self.ts(2); self.tsc(17)
        def pk(op, d, srcs):
            ops = []; sel = []; selhi = []
            for kind, r in srcs:
                if kind == 'p': ops.append(f"v[{r}:{r+1}]"); sel.append(0); selhi.append(1)
                else: ops.append(f"v[{r & ~1}:{(r & ~1) + 1}]"); sel.append(r & 1); selhi.append(r & 1)
            e(f"{op} v[{d}:{d+1}], " + ", ".join(ops) + f" op_sel:[{','.join(map(str, sel))}] op_sel_hi:[{','.join(map(str, selhi))}]")
        e("s_waitcnt lgkmcnt(0)")
        self.al()
        for j in range(5):
            e(f"ds_read_b128 v[{NMv+4*j}:{NMv+4*j+3}], v{vVa} offset:{64 * j}")
            e(f"ds_read_b128 v[{RSv+4*j}:{RSv+4*j+3}], v{vVa} offset:{576 + 64 * j}")
        def pack4(b):
            for i in range(4): e(f"v_cvt_pk_bf16_f32 v{b+i}, v{b+2*i}, v{b+2*i+1}")
        for j in range(1, 5):
            b = aq(j, 0)
            for i in range(4): pk("v_pk_fma_f32", b + 2 * i, [('b', NMq + j), ('p', CS + 2 * i), ('p', b + 2 * i)])
        for j in range(5):
            b = ak(j, 0)
            for i in range(4): pk("v_pk_fma_f32", b + 2 * i, [('b', NMq + j), ('p', CS + 8 + 2 * i), ('p', b + 2 * i)])
        for j in range(1, 5): pack4(aq(j, 0))
        for j in range(5):
            b = ak(j, 0)
            for i in range(4): pk("v_pk_mul_f32", b + 2 * i, [('b', RSq + j), ('p', b + 2 * i)])
        for j in range(5): pack4(ak(j, 0))
        e(f"v_readfirstlane_b32 s{sMODE}, v170")
        e("s_waitcnt lgkmcnt(0)")
        def Sc(j): return aq(j, 1)
        def Sp(j): return ak(j, 1)
        for j in range(1, 5):
            e(mfma(Sc(j), ak(j, 0), aq(j, 0), "0"))
            e(mfma(Sp(j), ak(j - 1, 0), aq(j, 0), "0"))
        VP = [226, 152]
        for j in range(5):
            for ab in range(2):
                c = av(j, ab)
                for r in (0, 2): pk("v_pk_fma_f32", c + r, [('p', NMv + 4 * j + r), ('b', CSV + ab), ('p', c + r)])
        J = range(1, 5)
        for j in J:
            for r in range(4): e(f"v_cndmask_b32 v{Sp(j)+r}, v{Sp(j)+r}, v{Sc(j)+r}, s[{sM+2*r}:{sM+2*r+1}]")
        for j in J:
            e(f"v_cndmask_b32 v{Sp(j)}, v{Sp(j)}, v{Sp(j)+1}, s[{sOdd}:{sOdd+1}]")
            e(f"v_cndmask_b32 v{Sp(j)+1}, v{Sp(j)+2}, v{Sp(j)+3}, s[{sOdd}:{sOdd+1}]")
        e(f"v_mov_b32 v{vT0}, 0xf149f2ca")
        for k in range(2): e(f"v_cndmask_b32 v{Sp(1)+k}, v{Sp(1)+k}, v{vT0}, s[{sInv+2*k}:{sInv+2*k+1}]")
        MX = {j: Sp(j) + 2 for j in J}
        for j in J: e(f"v_max_f32 v{MX[j]}, v{Sp(j)}, v{Sp(j)+1}")
        fill = []
        for j in range(5):
            for ab in range(2):
                c = av(j, ab)
                for r in (0, 2): fill.append((c + r, RSv + 4 * j + r))
        def F(n):
            for _ in range(n):
                d, r = fill.pop(0); pk("v_pk_mul_f32", d, [('p', r), ('p', d)])
        F(2)
        e(f"v_permlane32_swap_b32 v{MX[1]}, v{MX[3]}"); e(f"v_permlane32_swap_b32 v{MX[2]}, v{MX[4]}")
        e(f"v_max_f32 v{MX[1]}, v{MX[1]}, v{MX[3]}"); e(f"v_max_f32 v{MX[2]}, v{MX[2]}, v{MX[4]}")
        F(2)
        e(f"v_permlane16_swap_b32 v{MX[1]}, v{MX[2]}")
        e(f"v_max_f32 v{MX[1]}, v{MX[1]}, v{MX[2]}")
        e(f"v_mov_b32 v{MX[2]}, v{MX[1]}")
        F(2)
        e(f"v_permlane16_swap_b32 v{MX[1]}, v{MX[2]}")
        e(f"v_mov_b32 v{MX[3]}, v{MX[1]}"); e(f"v_mov_b32 v{MX[4]}, v{MX[2]}")
        F(2)
        e(f"v_permlane32_swap_b32 v{MX[1]}, v{MX[3]}"); e(f"v_permlane32_swap_b32 v{MX[2]}, v{MX[4]}")
        sc = f32bits((32 ** -0.5) * 1.4426950408889634)
        for j in J: e(f"v_mul_f32 v{RSq+j}, 0x{sc:08x}, v{RSq+j}")
        for j in J:
            for k in range(2): e(f"v_sub_f32 v{Sp(j)+k}, v{Sp(j)+k}, v{MX[j]}")
        for j in J:
            for k in range(2): e(f"v_mul_f32 v{Sp(j)+k}, v{RSq+j}, v{Sp(j)+k}")
        for j in J:
            for k in range(2): e(f"v_exp_f32 v{Sp(j)+k}, v{Sp(j)+k}")
        self.al()
        F(len(fill))
        for j in J: e(f"v_cvt_pk_bf16_f32 v{Sp(j)}, v{Sp(j)}, v{Sp(j)+1}")
        for j in range(5):
            for ab in range(2):
                c = av(j, ab)
                e(f"v_cvt_pk_bf16_f32 v{VP[ab]+2*j}, v{c}, v{c+1}"); e(f"v_cvt_pk_bf16_f32 v{VP[ab]+2*j+1}, v{c+2}, v{c+3}")
        for j in J:
            for k in range(4): e(f"v_perm_b32 v{Sc(j)+k}, v{Sp(j)}, v{Sp(j)}, v{SEL+k}")
        def OO(j): return 72 + 8 * (j - 1)
        e(f"s_add_u32 s{sT}, s{sGa}, 4096")
        for j in J: e(mfma(aq(j, 0), ONES, Sc(j), "0"))
        for j in J:
            for ab in range(2): e(mfma(OO(j) + 4 * ab, VP[ab] + 2 * (j - 1), Sc(j), "0"))
        for j in J: e(f"v_rcp_f32 v{aq(j,0)}, v{aq(j,0)}")
        for j in J:
            if j == 4: e("s_nop 1")
            for i in range(4): pk("v_pk_mul_f32", OO(j) + 2 * i, [('b', aq(j, 0)), ('p', OO(j) + 2 * i)])
            pack4(OO(j))
            e(f"buffer_store_dwordx4 v[{OO(j)}:{OO(j)+3}], v{vL16}, s[{sWS}:{sWS+3}], s{sGa if j < 3 else sT} offen offset:{2048 * ((j - 1) & 1)} sc0 sc1")
        self.ts(3)

    def silu_group(self, cg, cu, E, RL, I2, O, NM=None, sg=None, su=None):
        o = []
        if NM is not None: o += [f"v_fmac_f32 v{cg+r}, v{NM}, v{sg+r}" for r in range(4)]
        o += [f"v_mul_f32 v{E+r}, v{RL}, v{cg+r}" for r in range(4)]
        if NM is not None: o += [f"v_fmac_f32 v{cu+r}, v{NM}, v{su+r}" for r in range(4)]
        o += [f"v_exp_f32 v{E+r}, v{E+r}" for r in range(4)]
        o += [f"v_mul_f32 v{cg+r}, v{cg+r}, v{cu+r}" for r in range(4)]
        o += [f"v_fma_f32 v{E+r}, v{E+r}, v{I2}, v{I2}" for r in range(4)]
        o += [f"v_rcp_f32 v{E+r}, v{E+r}" for r in range(4)]
        o += [f"v_mul_f32 v{cg+r}, v{cg+r}, v{E+r}" for r in range(4)]
        o += [f"v_cvt_pk_bf16_f32 v{O}, v{cg}, v{cg+1}", f"v_cvt_pk_bf16_f32 v{O+1}, v{cg+2}, v{cg+3}"]
        return o

    def stat_regs(self, MR, NM, RL, I2, t0):
        o = [f"s_lshl_b32 s{sT}, s{sWM}, 9", f"s_add_u32 s{sT}, s{sT}, {L_ST}", f"v_and_b32 v{t0}, 0xf0, v{vL16}", f"v_lshrrev_b32 v{t0}, 1, v{t0}",
             f"v_add_u32 v{t0}, s{sT}, v{t0}"]
        o += [f"ds_read_b64 v[{MR+2*rt}:{MR+2*rt+1}], v{t0} offset:{128*rt}" for rt in range(4)]
        o += ["s_waitcnt lgkmcnt(0)"]
        for rt in range(4):
            o += [f"v_sub_f32 v{NM+rt}, 0, v{MR+2*rt}", f"v_mul_f32 v{RL+rt}, 0xbfb8aa3b, v{MR+2*rt+1}", f"v_mul_f32 v{I2+rt}, v{MR+2*rt+1}, v{MR+2*rt+1}"]
        o += [f"v_rcp_f32 v{I2+rt}, v{I2+rt}" for rt in range(4)] + ["s_nop 0"]
        return o

    def unpack(self, dst, src):
        return [f"v_lshlrev_b32 v{dst}, 16, v{src}", f"v_and_b32 v{dst+1}, 0xffff0000, v{src}"]

    def res_epilogue(self, acc, sX, PK, T):
        e = self.e
        e(f"s_add_u32 s{sD0}, s{sTile}, s{sX}"); e(f"s_add_u32 s{sD1}, s{sD0}, 4096")
        for rt in range(4):
            for t in range(2):
                c = acc(t, rt)
                e(f"v_cvt_pk_bf16_f32 v{PK+4*rt+2*t}, v{c}, v{c+1}"); e(f"v_cvt_pk_bf16_f32 v{PK+4*rt+2*t+1}, v{c+2}, v{c+3}")
            e(f"buffer_store_dwordx4 v[{PK+4*rt}:{PK+4*rt+3}], v{vL16}, s[{sWS}:{sWS+3}], s{sD0 + (rt >> 1)} offen offset:{2048 * (rt & 1)} sc0 sc1")
        S = T; Q = T + 4; ON = T + 8
        e(f"v_mov_b32 v{ON}, 0x3f803f80")
        for i in range(4):
            for rt in range(4):
                e(f"v_dot2_f32_bf16 v{S+rt}, v{PK+4*rt+i}, v{ON}, {f'v{S+rt}' if i else 0}")
                e(f"v_dot2_f32_bf16 v{Q+rt}, v{PK+4*rt+i}, v{PK+4*rt+i}, {f'v{Q+rt}' if i else 0}")
        e(f"s_lshl_b32 s{sT}, s{sLW}, 9"); e(f"s_add_u32 s{sT}, s{sT}, {L_SS}")
        e("s_nop 1")
        for B in (S, Q):
            e(f"v_permlane32_swap_b32 v{B}, v{B+2}"); e(f"v_permlane32_swap_b32 v{B+1}, v{B+3}")
        for B in (S, Q):
            e(f"v_add_f32 v{B}, v{B}, v{B+2}"); e(f"v_add_f32 v{B+1}, v{B+1}, v{B+3}")
        e(f"v_lshrrev_b32 v{ON}, 1, v{vL16}"); e(f"v_add_u32 v{ON}, s{sT}, v{ON}")
        for B in (S, Q): e(f"v_permlane16_swap_b32 v{B}, v{B+1}")
        e(f"v_add_f32 v{S}, v{S}, v{S+1}"); e(f"v_add_f32 v{S+1}, v{Q}, v{Q+1}")
        e(f"ds_write_b64 v{ON}, v[{S}:{S+1}]")

    def stats_out(self, sST, T):
        e = self.e; l = self.lab("so")
        e(f"s_cmp_lg_u32 s{sLW}, 0"); e(f"s_cbranch_scc1 {l}")
        e(f"v_add_u32 v{T+8}, {L_SS}, v{vL16}")
        e(f"ds_read_b128 v[{T}:{T+3}], v{T+8}"); e(f"ds_read_b128 v[{T+4}:{T+7}], v{T+8} offset:1024")
        e(f"s_lshl_b32 s{sT}, s{sN4}, 10"); e(f"s_add_u32 s{sT}, s{sT}, s{sST}")
        e("s_waitcnt lgkmcnt(0)")
        for r in range(4): e(f"v_add_f32 v{T+r}, v{T+r}, v{T+4+r}")
        e(f"buffer_store_dwordx4 v[{T}:{T+3}], v{vL16}, s[{sWS}:{sWS+3}], s{sT} offen sc0 sc1")
        self.label(l)

    def x_g2(self):
        e = self.e; P = "X"
        ACC, XF, WF, vXa, vWa = 0, 32, 104, 136, 137
        R, T0, T1, T2 = 236, 152, 153, 154
        def acc(t, rt): return ACC + (t * 4 + rt) * 4
        def xf(b, h, rt): return XF + b * 32 + h * 16 + rt * 4
        def wf(b, h, t): return WF + b * 16 + h * 8 + t * 4
        e(f"s_lshl_b32 s{sT}, s{sWM}, 13"); e(f"s_add_u32 s{sT}, s{sT}, {LA}")
        e(f"v_add_u32 v{vXa}, s{sT}, v{vL16}")
        self.waddr128(vWa, sWN, T0, T1, T2)
        lr = self.lab("g2")
        e(f"s_cmp_lg_u32 s{sLAY}, 0"); e(f"s_cbranch_scc1 {lr}")
        e("s_waitcnt vmcnt(4)")
        for rt in range(4):
            e(f"v_permlane16_swap_b32 v{R+4*rt}, v{R+4*rt+2}"); e(f"v_permlane16_swap_b32 v{R+4*rt+1}, v{R+4*rt+3}")
        self.label(lr)
        for rt in range(4):
            for t in range(2):
                for k in range(2): self.emit(self.unpack(acc(t, rt) + 2 * k, R + 4 * rt + 2 * t + k))
        def reads(u):
            b = u & 1; o = []
            sl = (32 + (u >> 1)) % 6
            for h in range(2):
                wr = []
                for t in range(2):
                    r = wf(b, h, t); ad = vWa + 2 * (sl // 3) + t; off = (sl % 3) * WSLOT + ((u & 1) * 2 + h) * 4096
                    wr += [f"ds_read_b64_tr_b16 v[{r}:{r+1}], v{ad} offset:{off}", f"ds_read_b64_tr_b16 v[{r+2}:{r+3}], v{ad} offset:{off + 2048}"]
                xr = [f"ds_read_b128 v[{xf(b,h,rt)}:{xf(b,h,rt)+3}], v{vXa} offset:{(u % 3) * 16384 + rt * 2048 + h * 1024}" for rt in range(4)]
                o += wr[0:2] + xr + wr[2:]
            return o
        def mf(u):
            b = u & 1
            return [mfma(acc(t, rt), wf(b, h, t), xf(b, h, rt)) for t in range(2) for i, rt in enumerate(snake(range(4), t)) for h in snake(range(2), i)]
        self.ts(4)
        e("s_waitcnt vmcnt(0)")
        self.bar(P, ("G2", -2))
        self.wg_flags(self.FG(0), self.FL(0, 0))
        self.ts(5)
        self.bar(P, ("G2", -1))
        self.ts(6); self.tsc(18)
        self.emit(reads(0))
        for u in range(16):
            self.step(P, ("G2", u), mf(u), reads(u + 1) if u < 15 else [], last=int(self.opt.get("g2last", 11)))
        self.ts(7); self.tsc(19)
        e("s_nop 7")
        self.res_epilogue(acc, sXm, 32, 48)
        self.ts(8)

    def a3(self, mat, t, rt): return ((mat * 4 + t) * 4 + rt) * 4
    def a4(self, t, rt): return 128 + (t * 4 + rt) * 4
    V4X, V4W = 243, 244
    XP = {"g3b": [236, 237, 242], "g4": [238, 239, 240, 241]}
    vXA = 191

    def x_g3a(self):
        e = self.e; P = "X"
        XF, WF, vXa, vWa, T0, T1, T2 = 128, 160, 224, 225, 233, 234, 235
        def xf(b, rt): return XF + b * 16 + rt * 4
        def wf(b, mat, t): return WF + b * 32 + (mat * 4 + t) * 4
        e(f"s_lshl_b32 s{sT}, s{sWM}, 13"); e(f"s_add_u32 s{sT}, s{sT}, {LA}")
        e(f"v_add_u32 v{vXa}, s{sT}, v{vL16}")
        e(f"s_lshl_b32 s{sT2}, s{sWN}, 2")
        self.emit(self.waddr256(vWa, [0, 1, 2, 3], sT2, T0, T1))
        self.emit(self.pat_g3b(self.XP["g3b"], T0, T1, T2)); self.emit(self.pat_256(self.XP["g4"], 2048, T0, T1, T2))
        e(f"v_mov_b32 v{self.V4X}, v{vXa}")
        e(f"s_and_b32 s{sT2}, s{sN4}, 1"); e(f"s_lshl_b32 s{sT2}, s{sT2}, 2"); e(f"s_lshl_b32 s{sT}, s{sWN}, 1"); e(f"s_add_u32 s{sT2}, s{sT2}, s{sT}")
        self.emit(self.waddr256(self.V4W, [0, 1, 4, 5], sT2, T0, T1))
        self.h_bases()
        self.emit(self.reloc13(sW3B, 0x4008)); self.emit(self.reloc2())
        e(f"s_add_u32 s{sGa}, s{sXm}, s{sM4}")
        e(f"s_lshl_b32 s{sRa}, s{sN4}, 14")
        def reads(s):
            b = s & 1; sl = (40 + s) % 6
            xr = [f"ds_read_b128 v[{xf(b,rt)}:{xf(b,rt)+3}], v{vXa} offset:{((s >> 1) % 3) * 16384 + rt * 2048 + (s & 1) * 1024}" for rt in range(4)]
            wr = []
            for t in range(4):
                for mat in range(2):
                    r = wf(b, mat, t); ad = vWa + 4 * (sl // 3) + t; off = (sl % 3) * WSLOT + mat * 8192
                    wr += [f"ds_read_b64_tr_b16 v[{r}:{r+1}], v{ad} offset:{off}", f"ds_read_b64_tr_b16 v[{r+2}:{r+3}], v{ad} offset:{off + 4096}"]
            return wr[0:2] + xr + wr[2:]
        def mf(s):
            b = s & 1
            return [mfma(self.a3(mat, t, rt), wf(b, mat, t), xf(b, rt), "0" if s == 0 else None) for t in range(4) for mat in range(2) for rt in snake(range(4), mat)]
        e("s_waitcnt vmcnt(0) lgkmcnt(0)")
        self.bar(P, ("G3A", -2))
        self.wg_flags(None, self.FL(0, 32))
        self.stats_out(sSTm, 208)
        self.ts(9)
        self.bar(P, ("G3A", -1))
        self.ts(10); self.tsc(20)
        self.emit(reads(0))
        def fn(s, ex):
            extra = []
            if ex: extra.append((28, self.CNT))
            self.step(P, ("G3A", s), mf(s), reads(s + 1) if s < 31 else [], vmw=(0 if s == 2 else None), last=23, extra=extra)
        self.looped(P, 32, 6, fn)
        self.ts(11); self.tsc(21)

    def h_bases(self):
        e = self.e
        e(f"s_and_b32 s{sT}, s{sN4}, 1"); e(f"s_mul_i32 s{sT}, s{sT}, {28 * 16384}"); e(f"s_add_u32 s{sHx}, s{sHo}, s{sT}")
        e(f"s_and_b32 s{sT}, s{sNT}, 7"); e(f"s_lshl_b32 s{sT}, s{sT}, 14"); e(f"s_and_b32 s{sT2}, s{sTile}, 0x3fff")
        e(f"s_add_u32 s{sT}, s{sT}, s{sT2}"); e(f"s_add_u32 s{sGh}, s{sT}, s{sHx}")
        e(f"s_and_b32 s{sT}, s{sNT}, 6"); e(f"s_add_u32 s{sT}, s{sT}, 48"); e(f"s_lshl_b32 s{sT}, s{sT}, 13")
        e(f"s_and_b32 s{sT2}, s{sNT}, 1"); e(f"s_lshl_b32 s{sT2}, s{sT2}, 10"); e(f"s_add_u32 s{sT}, s{sT}, s{sT2}")
        e(f"s_add_u32 s{sT}, s{sT}, s{sM4}"); e(f"s_add_u32 s{sGs}, s{sT}, s{sHx}")

    def epi_loop(self, P, ph, n, vm, work, budget, lag, need, dmas, flags, dead, hook=None):
        pend = []
        for s in range(n):
            ready = [b for b, p in pend if p <= s]
            gate = bool(work) and work[0][1] == ("GATE",)
            self.pb(P, (ph, s), vm.need(*(need(s) + [("H", b) for b in ready])), 0 if gate else None)
            for b in ready: self.wg_flag_if(b & 3, flags[b])
            pend = [(b, p) for b, p in pend if p > s]
            if hook: hook(s)
            dm = dmas(s)
            its = []
            if work and work[0][1] == ("GATE",): work.pop(0)
            if work:
                its = self.chunk(work, budget(s))
                if ("GATE",) in its:
                    k = its.index(("GATE",)); work[0:0] = self.costed(its[k:]); its = its[:k]
            items = []
            for it in its:
                if isinstance(it, tuple) and it[0] == "FLAG":
                    assert s + lag <= dead[it[1]], (ph, it, s)
                    pend.append((it[1], s + lag)); self.info.append(f"{ph}: flag {it[1]} work done in period {s}")
                else: items.append(it)
            self.run_period(dm, items)
        assert not work and not pend, (ph, len(work), pend)
        self.tr_flush(P)

    def x_g3b(self):
        e = self.e; P = "XL"; vm = VM()
        NM, RL, I2, CS, E, OUT = 192, 196, 200, 204, 220, 224
        PT = self.XP
        T0, vCS = 232, 235
        e("s_setprio 1")
        vA = self.vXA
        e(f"v_add_u32 v{vA}, s{sGa}, v{vL16}")
        work = ["s_nop 7"] + self.stat_regs(E, NM, RL, I2, T0)
        work += [f"s_lshl_b32 s{sT}, s{sWN}, 8", f"s_add_u32 s{sT}, s{sT}, {L_CSA}", f"v_lshrrev_b32 v{vCS}, 8, v{vL16}", f"v_lshlrev_b32 v{vCS}, 4, v{vCS}", f"v_add_u32 v{vCS}, s{sT}, v{vCS}"]
        for b in range(2):
            for t in range(2):
                for mat in range(2):
                    c = CS + (t * 2 + mat) * 4
                    work.append(f"ds_read_b128 v[{c}:{c+3}], v{vCS} offset:{mat * 512 + (2 * b + t) * 64}")
            work.append("s_waitcnt lgkmcnt(0)")
            for rt in range(4):
                O = OUT + 4 * (rt & 1)
                for t in range(2):
                    work += self.silu_group(self.a3(0, 2 * b + t, rt), self.a3(1, 2 * b + t, rt), E, RL + rt, I2 + rt, O + 2 * t, NM + rt, CS + t * 8, CS + t * 8 + 4)
                work.append(self.grp(vm, ("H", b), [f"s_add_u32 s{sT}, s{sGh}, {b * 8 * 16384 + rt * 2048}"],
                                     f"buffer_store_dwordx4 v[{O}:{O+3}], v{vL16}, s[{sWS}:{sWS+3}], s{sT} offen sc0 sc1"))
            work.append(("FLAG", b))
        self.w_start(72 + self.xw0, 109)
        def need(s): return [self.wneed(72 + s + 1)] + ([("A", 16 + (s + 1) // 2)] if s & 1 else [])
        def hook(s):
            if s == 7:
                l = self.lab("cf")
                e(f"s_xor_b32 s{sT}, s{sLW}, 3"); e(f"s_or_b32 s{sT}, s{sLAY}, s{sT}"); e(f"s_cbranch_scc1 {l}")
                self.side_flag(3)
                self.label(l)
            if s == 21: self.apoll4_issue(vm, 3, 184)
            if s == 24: self.apoll4_check(vm, 3, 184, [(sLAY, 1)])
            if s == 25: self.apoll_issue(vm, self.FL(1, 0), 8, T0)
            if s == 27:
                self.apoll_check(vm, self.FL(1, 0), 8, T0)
                e(f"s_add_u32 s{sGa}, s{sHx}, s{sM4}"); e(f"v_add_u32 v{vA}, s{sGa}, v{vL16}")
            if s == 31:
                assert not wk
                self.emit(self.g4_reads(0))
        def dmas(s):
            dm = []
            if s >= 1:
                idx = 16 + (s - 1) // 2 + 3; part = (s - 1) & 1
                if idx < 32:
                    t = idx - 16
                    dm = self.a_issue(vm, ("A", idx), idx % 3, vA, None, self.ainc(uord(BORD[t + 1]) - uord(BORD[t])) if t < 15 else None, part)
                elif s < 31: dm = self.a_issue(vm, ("A", idx), idx % 3, vA, (idx - 32) * 16384, None, part)
                else: dm = self.a_issue(vm, ("A", idx), idx % 3, vA, (idx - 32) * 16384)
            return dm + self.w_take(vm, PT, 1, 72 + s)
        bud = float(self.opt.get("budX", 28))
        wk = self.costed(work)
        self.epi_loop(P, "G3B", 32, vm, wk, lambda s: bud, int(self.opt.get("lagX", 4)), need, dmas,
                      [self.FL(1, 0), self.FL(1, 32)], [25, 31], hook)
        assert self.wn == 109
        e("s_setprio 0")
        self.g4w = [vm.need(("W", 104 + u + 1), ("A", 32 + u + 1)) for u in range(7)]

    def g4_reads(self, u):
        b = u & 1; sl = (104 + u) % 6; o = []
        for h in range(2):
            xr = [f"ds_read_b128 v[{64*b+16*h+4*rt}:{64*b+16*h+4*rt+3}], v{self.V4X} offset:{((32 + u) % 3) * 16384 + rt * 2048 + h * 1024}" for rt in range(4)]
            wr = []
            for t in range(4):
                r = 64 * b + 32 + 16 * h + 4 * t; ad = self.V4W + 4 * (sl // 3) + t; off = (sl % 3) * WSLOT + h * 8192
                wr += [f"ds_read_b64_tr_b16 v[{r}:{r+1}], v{ad} offset:{off}", f"ds_read_b64_tr_b16 v[{r+2}:{r+3}], v{ad} offset:{off + 4096}"]
            o += wr[0:2] + xr + wr[2:]
        return o

    def x_g4(self):
        e = self.e; P = "X"
        T0, T1 = 192, 193
        SP, RP, RS = 0, 16, 196
        def mf(u):
            b = u & 1; o = []
            for t in range(4):
                for i, rt in enumerate(snake(range(4), t)):
                    for k, h in enumerate(snake(range(2), i)):
                        o.append(mfma(self.a4(t, rt), 64 * b + 32 + 16 * h + 4 * t, 64 * b + 16 * h + 4 * rt, "0" if u == 0 and k == 0 else None))
            return o
        e(f"s_lshl_b32 s{sT}, s{sN4}, 14"); e(f"s_add_u32 s{sT}, s{sT}, s{sM4}")
        e(f"s_add_u32 s{sT}, s{sT}, s{sOo}"); e(f"s_add_u32 s{sGa}, s{sT}, {WS_P}")
        e(f"s_xor_b32 s{sGh}, s{sGa}, {1 << 14}")
        e(f"s_add_u32 s{sD0}, s{sTile}, s{sXm}"); e(f"s_add_u32 s{sD1}, s{sD0}, 4096")
        self.ts(12); self.tsc(22)
        def res(rt): return [f"buffer_load_dwordx4 v[{RS+4*rt}:{RS+4*rt+3}], v{vL16}, s[{sWS}:{sWS+3}], s{sD0 + (rt >> 1)} offen offset:{2048 * (rt & 1)}"]
        def fn(u, ex):
            extra = []
            if ex: extra.append((29, self.CNT))
            if u == 27: extra += [(2 + 4 * rt, res(rt)) for rt in range(4)]
            self.step(P, ("G4", u), mf(u), self.g4_reads(u + 1) if u < 27 else [], vmw=(self.g4w[u] if u < 7 else None), last=26, extra=extra)
        self.looped(P, 28, 6, fn)
        self.ts(13); self.tsc(23)
        e("s_nop 7")
        for rt in range(4):
            for t in range(2):
                c = self.a4(2 + t, rt); p = SP + 4 * rt + 2 * t
                e(f"v_cvt_pk_bf16_f32 v{p}, v{c}, v{c+1}"); e(f"v_cvt_pk_bf16_f32 v{p+1}, v{c+2}, v{c+3}")
            for i in range(4): e(f"v_min_u32 v{SP+4*rt+i}, -2, v{SP+4*rt+i}")
            e(f"buffer_store_dwordx4 v[{SP+4*rt}:{SP+4*rt+3}], v{vL16}, s[{sWS}:{sWS+3}], s{sGa} offen offset:{1024 * rt} sc0 sc1")
        def addin(R):
            for rt in range(4):
                for t in range(2):
                    U = 160 + 4 * (t + 2 * (rt & 1))
                    for k in range(2): self.emit(self.unpack(U + 2 * k, R + 4 * rt + 2 * t + k))
                    c = self.a4(t, rt)
                    for k in range(2): e(f"v_pk_add_f32 v[{c+2*k}:{c+2*k+1}], v[{c+2*k}:{c+2*k+1}], v[{U+2*k}:{U+2*k+1}]")
        e("s_waitcnt vmcnt(4)")
        addin(RS)
        lp, ld = self.lab("poll"), self.lab("pd")
        e(f"s_mov_b32 s{sT2}, {POLL}")
        self.label(lp)
        for rt in range(4):
            e(f"buffer_load_dwordx4 v[{RP+4*rt}:{RP+4*rt+3}], v{vL16}, s[{sWS}:{sWS+3}], s{sGh} offen offset:{1024 * rt} sc0 sc1")
        e("s_waitcnt vmcnt(0)")
        e(f"v_max3_u32 v{T0}, v{RP}, v{RP+1}, v{RP+2}"); e(f"v_max3_u32 v{T1}, v{RP+3}, v{RP+4}, v{RP+5}")
        for k in range(6, 14, 4):
            e(f"v_max3_u32 v{T0}, v{T0}, v{RP+k}, v{RP+k+1}"); e(f"v_max3_u32 v{T1}, v{T1}, v{RP+k+2}, v{RP+k+3}")
        e(f"v_max3_u32 v{T0}, v{T0}, v{RP+14}, v{RP+15}"); e(f"v_max_u32 v{T0}, v{T0}, v{T1}")
        e(f"v_cmp_eq_u32 vcc, -1, v{T0}")
        e(f"s_cbranch_vccz {ld}")
        e(f"s_sub_u32 s{sT2}, s{sT2}, 1"); e(f"s_cmp_lg_u32 s{sT2}, 0"); e(f"s_cbranch_scc1 {lp}")
        self.label(ld)
        addin(RP)
        self.ts(14)
        self.tr_dump("X")

    def x_final(self):
        e = self.e
        T0, T1, PK = 192, 193, 0
        self.emit(self.out_addr(T0, T1, sT))
        for rt in range(4):
            for t in range(2):
                c = self.a4(t, rt)
                e(f"v_cvt_pk_bf16_f32 v{PK+4*rt+2*t}, v{c}, v{c+1}"); e(f"v_cvt_pk_bf16_f32 v{PK+4*rt+2*t+1}, v{c+2}, v{c+3}")
            e("s_nop 1")
            e(f"v_permlane16_swap_b32 v{PK+4*rt}, v{PK+4*rt+2}"); e(f"v_permlane16_swap_b32 v{PK+4*rt+1}, v{PK+4*rt+3}")
            e(f"buffer_store_dwordx4 v[{PK+4*rt}:{PK+4*rt+3}], v{T0}, s[{sOUT}:{sOUT+3}], s{sT} offen{self.opt.get('osc', '_sc0_sc1').replace('_', ' ')}")
            e(f"s_add_u32 s{sT}, s{sT}, {16 * 2048}")

    YP = {"g1": [200, 201, 202], "g2": [203, 204, 205, 206], "g3a": [207, 208, 209, 210], "g3b": [211, 212, 222], "g4": [213, 214, 215, 216]}
    YAP = [217, 218, 219, 220]
    YT = [224, 225, 226, 227]
    vHP, vPL = 221, 251
    sJ, sJo, sXc, sRt = sAT, sAT + 4, sAT + 5, sAT + 6
    sHm = sAT + 12

    sJi = sAT + 7
    def jobid(self):
        r = self.sJi
        return [f"s_add_u32 s{sT}, s{sN4}, 4", f"s_and_b32 s{sT2}, s{sT}, 7", f"s_lshr_b32 s{sT}, s{sT}, 3", f"s_and_b32 s{sT}, s{sT}, 1",
                f"s_lshl_b32 s{sT2}, s{sT2}, 1", f"s_add_u32 s{sT}, s{sT}, s{sT2}", f"s_lshl_b32 s{r}, s{sT}, 4", f"s_add_u32 s{r}, s{r}, s{sMT}"]

    def g1_src(self, first):
        e = self.e; T0, T1, T2, _ = self.YT; AP = self.YAP
        if first:
            e(f"s_lshl_b32 s{sT}, s{sMT}, 18"); e(f"s_lshl_b32 s{sT2}, s{sM4}, 4"); e(f"s_add_u32 s{sGa}, s{sT}, s{sT2}")
            e(f"s_lshl_b32 s{sT2}, s{sWM}, 14"); e(f"s_add_u32 s{sGh}, s{sT}, s{sT2}"); e(f"s_sub_u32 s{sGh}, s{sGh}, 32768")
            self.emit(self.pat_128(AP, 2048, T0, T1, T2, sGa))
            e(f"s_lshl_b32 s{sRa}, s{sDa}, 7")
        else:
            for i in range(4): e(f"s_mov_b32 s{sA1+i}, s{sWS+i}")
            e(f"s_add_u32 s{sGa}, s{sX2}, s{sM4}")
            e(f"s_lshl_b32 s{sT2}, s{sWM}, 10"); e(f"s_add_u32 s{sGh}, s{sX2}, s{sT2}"); e(f"s_sub_u32 s{sGh}, s{sGh}, {ARENA - 14336}")
            e(f"v_add_u32 v{AP[0]}, s{sGa}, v{vL16}")
            e(f"s_lshl_b32 s{sRa}, s{sN4}, 14")
        e(f"s_cmp_eq_u32 s{sMT}, 0"); e(f"s_cselect_b32 s{sGh}, {OOB}, s{sGh}")
        e(f"s_sub_u32 s{sGh}, s{sGh}, s{sGa}"); e(f"v_add_u32 v{self.vHP}, s{sGh}, v{AP[0]}")
        e(f"s_lshl_b32 s{sSu}, s{sWM}, 10")
        e(f"s_cmp_eq_u32 s{sWN}, 0"); e(f"s_cselect_b32 s{self.sHm}, -1, 0"); e(f"s_not_b32 s{self.sHm+1}, s{self.sHm}")

    def g1_a(self, vm, first, u, part=None):
        g = []; base = LA + (u % 3) * 18432
        if part in (None, 0):
            g.append(self.grp(vm, ("A", u), [f"s_add_u32 m0, s{sSu}, {base}", f"s_mov_b64 exec, s[{self.sHm}:{self.sHm+1}]"],
                              f"buffer_load_dwordx4 v{self.vHP}, s[{sA1}:{sA1+3}], s{sRa} offen lds", ["s_mov_b64 exec, -1"]))
        inc = self.ainc(uord(u + 1) - uord(u), 128 if first else 16384) if u < 15 else None
        return g + self.a_issue(vm, ("A", u), 0, self.YAP[0], None, inc, part, sA1, self.YAP if first else None, base + 2048)

    def stats_gather(self, vm, s, s0, sST, R, AC, fin, so=0, fast=False):
        e = self.e; T0, T1, T2, T3 = self.YT; it = []
        if s == s0:
            it.append([f"v_and_b32 v{T2}, 0xf0, v{vL16}", f"v_and_b32 v{T3}, 0x300, v{vL16}", f"v_lshl_add_u32 v{T3}, v{T3}, 2, v{T2}",
                       f"s_lshl_b32 s{self.sRt}, s{sLW}, 8", f"s_add_u32 s{self.sRt}, s{self.sRt}, s{sST}"] +
                      ([f"s_add_u32 s{self.sRt}, s{self.sRt}, {so}"] if so else []))
        for k in range(4):
            if s != s0 + (k // 3 if fast else k): continue
            it.append(self.grp(vm, "S", [], f"buffer_load_dwordx4 v[{R+4*k}:{R+4*k+3}], v{T3}, s[{sWS}:{sWS+3}], s{self.sRt} offen", [f"s_add_u32 s{self.sRt}, s{self.sRt}, 4096"]))
        if fast: s0 -= 3
        if s == s0 + 6:
            self.wait(vm.need("S"))
            it += [f"v_add_f32 v{R+r}, v{R+r}, v{R+4+r}" for r in range(4)] + [f"v_add_f32 v{R+8+r}, v{R+8+r}, v{R+12+r}" for r in range(4)]
            it += [f"v_add_f32 v{AC+r}, v{R+r}, v{R+8+r}" for r in range(4)]
            it += self.xred(list(range(AC, AC + 4)), list(range(R, R + 4)), steps=("v_permlane16_swap_b32",))
        if s == s0 + 7:
            it += self.xred(list(range(AC, AC + 4)), list(range(R, R + 4)), steps=("v_permlane32_swap_b32",))
        if s == s0 + 8: it += self.finish_stats(AC, AC + 1)
        if s == s0 + 9: it += self.finish_stats(AC + 2, AC + 3) + fin
        return it

    def y_start(self, vm):
        e = self.e; T0, T1, T2, T3 = self.YT; PT = self.YP
        self.emit(self.pat_g1(PT, T0, T1, T2, True))
        e(f"s_and_b32 s{sT}, s{sMT}, 4"); e(f"s_lshl_b32 s{sT}, s{sT}, 1"); e(f"s_lshr_b32 s{sT2}, s{sMT}, 3"); e(f"s_add_u32 s{sT}, s{sT}, s{sT2}")
        e(f"s_add_u32 s{sDa}, s{sT}, s{sN4}"); e(f"s_and_b32 s{sDa}, s{sDa}, 15")
        self.rot0 = sDa
        self.w_start(0, 38)
        self.run_period(self.w_take(vm, PT, 1, 0), [])
        self.rot0 = sN4
        self.g1_src(True)
        tpos = int(self.opt.get("tpos", 1))
        for n in range(6):
            if n: self.run_period(self.w_take(vm, PT, 1, 0), [])
            if n == tpos: self.y_touch(vm)
            if n < 3: self.run_period(self.g1_a(vm, True, n), [])
        if tpos > 5: self.y_touch(vm)

    def y_touch(self, vm):
        e = self.e; T0 = self.YT[3]
        sJ = self.sJ
        e("s_cmp_lt_u32 s2, 128")
        e(f"s_cselect_b32 s{sJ}, s{sAT+8}, s{sAT+10}"); e(f"s_cselect_b32 s{sJ+1}, s{sAT+9}, s{sAT+11}")
        e(f"s_mov_b32 s{sJ+2}, {1024 * 7168}"); e(f"s_mov_b32 s{sJ+3}, 0x00020000")
        e(f"s_and_b32 s{sT}, s2, 127"); e(f"s_mul_i32 s{sT}, s{sT}, {448 * 128}"); e(f"s_lshl_b32 s{sT2}, s{sLW}, 14"); e(f"s_add_u32 s{sT}, s{sT}, s{sT2}")
        e(f"v_lshlrev_b32 v{T0}, 3, v{vL16}")
        e(f"buffer_load_dword v{self.vPL}, v{T0}, s[{sJ}:{sJ+3}], s{sT} offen"); vm.issue("t")
        l, l2 = self.lab("t"), self.lab("t")
        e(f"s_cmp_eq_u32 s{sLW}, 3"); e(f"s_cbranch_scc1 {l}")
        e(f"s_add_u32 s{sT}, s{sT}, 8192")
        e(f"buffer_load_dword v{self.vPL}, v{T0}, s[{sJ}:{sJ+3}], s{sT} offen"); e(f"s_branch {l2}")
        self.label(l)
        e(f"s_lshl_b32 s{sT}, s2, 13")
        e(f"buffer_load_dword v{self.vPL}, v{T0}, s[{sWO}:{sWO+3}], s{sT} offen")
        self.label(l2); vm.issue("t")

    def y_g1(self, vm, first):
        e = self.e; P = "Y1" if first else "Y"; T0, T1, T2, T3 = self.YT; PT = self.YP; vPL = self.vPL
        sJ, sJo, sXc, sRt = self.sJ, self.sJo, self.sXc, self.sRt
        JB, RB, G, CQ, vJ, vR, vHs = 0, 64, 72, 76, 96, 97, 98
        if not first:
            self.g1_src(False)
            e(f"s_add_u32 s{sD0}, s{sFL}, {(64 - 128) & 0xffffffff}"); e(f"s_add_u32 s{sD1}, s{sFl}, {4 * 2048 - 128}")
            e(f"s_and_b32 s{sT}, s{sMT}, 3")
            e(f"s_cselect_b32 s{sD0}, s{sD0}, s{sD1}"); e(f"s_cselect_b32 s{sD1}, 28, 60")
            e(f"s_add_u32 s{sT}, s{sFL}, 64")
            e(f"s_cmp_eq_u32 s{sMT}, 0"); e(f"s_cselect_b32 s{sD0}, s{sT}, s{sD0}"); e(f"s_cselect_b32 s{sD1}, 28, s{sD1}")
            e(f"v_lshrrev_b32 v{T0}, 2, v{vL16}"); e(f"v_and_b32 v{T0}, 60, v{T0}")
            e(f"v_min_u32 v{T1}, s{sD1}, v{T0}"); e(f"v_add_u32 v{T1}, s{sD0}, v{T1}")
            e(f"v_min_u32 v{T0}, 28, v{T0}"); e(f"v_add_u32 v{T0}, s{sT}, v{T0}")
            e(f"v_cmp_gt_u32 vcc, 256, v{vL16}"); e(f"v_lshlrev_b32 v{T2}, 3, v{vL16}"); e(f"v_and_b32 v{T2}, 0xfff, v{T2}")
            e(f"v_cndmask_b32 v{T0}, v{T1}, v{T0}, vcc")
            e(f"s_add_u32 s{sDa}, s{sGa}, s{sRa}")
            e("s_barrier")
            e(f"buffer_load_dword v{vPL}, v{T2}, s[{sWS}:{sWS+3}], s{sDa} offen sc0 sc1")
            lp, ld = self.lab("poll"), self.lab("pd")
            e(f"s_mov_b32 s{sT2}, {POLL}")
            self.label(lp)
            e(f"buffer_load_dword v{T1}, v{T0}, s[{sWS}:{sWS+3}], 0 offen sc0 sc1")
            e("s_waitcnt vmcnt(0)")
            e(f"v_cmp_ne_u32 vcc, 0x01010101, v{T1}"); e(f"s_cbranch_vccz {ld}")
            e("s_sleep 1"); e(f"s_sub_u32 s{sT2}, s{sT2}, 1"); e(f"s_cmp_lg_u32 s{sT2}, 0"); e(f"s_cbranch_scc1 {lp}")
            self.label(ld)
            vm.clear()
            for u in range(3): self.run_period(self.g1_a(vm, False, u), [])
        SL, QA, QB, XS, vQ = 120, 124, 128, 144, 172
        def qcol(s):
            l = self.lab("qc")
            e(f"s_and_b32 s{sT}, s{sMT}, 3"); e(f"s_cmp_lg_u32 s{sT}, {s >> 1}"); e(f"s_cbranch_scc1 {l}")
            if s % 6 >= 3: e(f"v_add_u32 v{vF0}, {3 * WSLOT}, v{vQ}")
            for i in range(4): e(f"ds_read_b128 v[{QB+4*i}:{QB+4*i+3}], v{vF0 if s % 6 >= 3 else vQ} offset:{(s % 3) * WSLOT + 1024 * i}")
            e("s_waitcnt lgkmcnt(0)")
            for i in range(4): e(mfma(QA, SL, QB + 4 * i, "0" if (s & 1) == 0 and i == 0 else None))
            e("s_nop 7")
            self.label(l)
        if first:
            self.emit(self.selector(SL, T0, T1))
            self.emit(self.swz128(T0, T1, T2)); e(f"v_lshl_add_u32 v{vQ}, v{T0}, 7, v{T1}")
            e(f"s_min_u32 s{sT}, s{sLW}, 2"); e(f"s_lshl_b32 s{sT}, s{sT}, 12"); e(f"v_add_u32 v{vQ}, s{sT}, v{vQ}")
            e(f"s_add_u32 s{sT}, s{sM4}, {LA + 2048}"); e(f"v_add_u32 v{T0}, s{sT}, v{vL16}"); e(f"v_mov_b32 v{T1}, 0x3f803f80")
        e("s_setprio 1")
        self.pb(P, ("G1", -1), vm.need(("W", 0), ("A", 0)))
        if first:
            for i in range(4): e(f"ds_read_b128 v[{XS+4*i}:{XS+4*i+3}], v{T0} offset:{1024 * i}")
            e("s_waitcnt lgkmcnt(0)")
            for k in range(4):
                for i in range(4):
                    e(f"v_dot2_f32_bf16 v{XS+16+2*i}, v{XS+4*i+k}, v{T1}, {f'v{XS+16+2*i}' if k else 0}")
                    e(f"v_dot2_f32_bf16 v{XS+17+2*i}, v{XS+4*i+k}, v{XS+4*i+k}, {f'v{XS+17+2*i}' if k else 0}")
            qcol(0)
        self.w_start(6, 38)
        j0 = int(self.opt.get("j0", 10)); jn = int(self.opt.get("jn", 1)); g = int(self.opt.get("gat", 14)); r0 = int(self.opt.get("r0", 10)); pf = 10
        jsch = [int(x) for x in str(self.opt.get("jsch", "4_6_8_9_11_13_15_17_27_27_28_28_29_29_30_30")).split("_")]
        for s in range(32):
            need = ([self.wneed(s + 1)] if s < 31 else []) + ([("A", (s + 1) // 2)] if s & 1 else []) + (["p"] if s == pf else [])
            self.pb(P, ("G1", s), vm.need(*need), 0 if s == 31 else None)
            it = []; post = []
            if first:
                if s < 7: post.append(lambda s=s: qcol(s + 1))
                if s == 0:
                    for m in ("quad_perm:[1,0,3,2]", "quad_perm:[2,3,0,1]", "row_half_mirror"):
                        it += [f"v_add_f32_dpp v{XS+16+i}, v{XS+16+i}, v{XS+16+i} {m} row_mask:0xf bank_mask:0xf" for i in range(8)]
                if s == 1:
                    sel = [f"v_and_b32 v{T0}, 0x70, v{vL16}"]
                    for i in range(1, 4):
                        sel += [[f"v_cmp_eq_u32 vcc, {16 * i}, v{T0}", "s_nop 1", f"v_cndmask_b32 v{XS+16}, v{XS+16}, v{XS+16+2*i}, vcc", f"v_cndmask_b32 v{XS+17}, v{XS+17}, v{XS+17+2*i}, vcc"]]
                    sel += [f"v_lshrrev_b32 v{T1}, 7, v{vL16}", f"v_lshlrev_b32 v{T1}, 3, v{T1}", f"v_lshl_add_u32 v{T0}, v{T0}, 2, v{T1}"]
                    it += sel
                    post.append(self.grp(vm, "p", [f"s_lshl_b32 s{sT}, s{sN4}, 10", f"s_lshr_b32 s{sT2}, s{sM4}, 4", f"s_add_u32 s{sT}, s{sT}, s{sT2}", f"s_add_u32 s{sT}, s{sT}, s{sSTo}",
                                                   f"s_add_u32 s{sT}, s{sT}, {64 * KB}", f"s_mov_b32 s{sEX}, 0x0f0f0f0f", f"s_mov_b32 s{sEX+1}, 0x0f0f0f0f", f"s_mov_b64 exec, s[{sEX}:{sEX+1}]"],
                                         f"buffer_store_dwordx2 v[{XS+16}:{XS+17}], v{T0}, s[{sWS}:{sWS+3}], s{sT} offen sc0 sc1", ["s_mov_b64 exec, -1"]))
                if s == 7:
                    it += [f"v_add_f32_dpp v{QA+r}, v{QA+r}, v{QA+r} row_ror:8 row_mask:0xf bank_mask:0xf" for r in range(4)]
                    it += [f"v_and_b32 v{T0}, 0x70, v{vL16}", f"v_lshrrev_b32 v{T1}, 4, v{vL16}", f"v_and_b32 v{T1}, 16, v{T1}", f"v_lshl_add_u32 v{T0}, v{T0}, 1, v{T1}"]
                    post.append(self.grp(vm, "p", [f"s_mul_i32 s{sT}, s{sMT}, 12288", f"s_lshl_b32 s{sT2}, s{sLW}, 12", f"s_add_u32 s{sT}, s{sT}, s{sT2}",
                                                   f"s_lshl_b32 s{sT2}, s{sN4}, 8", f"s_add_u32 s{sT}, s{sT}, s{sT2}", f"s_add_u32 s{sT}, s{sT}, {WS_CSQ}",
                                                   f"s_cmp_lt_u32 s{sLW}, 3", f"s_cselect_b32 s{sT}, s{sT}, {OOB}", "s_mov_b64 exec, 0x00ff00ff"],
                                         f"buffer_store_dwordx4 v[{QA}:{QA+3}], v{T0}, s[{sWS}:{sWS+3}], s{sT} offen sc0 sc1", ["s_mov_b64 exec, -1"]))
                if s == 8: it += self.atomize(self.pat_128(PT["g2"], 2048, T0, T1, T2, sB2))
                if s == 2:
                    it.append(self.jobid() + [f"s_lshr_b32 s{sT}, s{self.sJi}, 1", f"s_cmp_lt_u32 s{sT}, 56",
                               f"s_cselect_b32 s{sJ}, s{sAT+8}, s{sAT+10}", f"s_cselect_b32 s{sJ+1}, s{sAT+9}, s{sAT+11}",
                               f"s_cselect_b32 s{sT2}, 0, 56", f"s_sub_u32 s{sT}, s{sT}, s{sT2}", f"s_lshl_b32 s{sJo}, s{sT}, 7",
                               f"s_and_b32 s{sT}, s{self.sJi}, 1", f"s_lshl_b32 s{sT}, s{sT}, 2", f"s_add_u32 s{sT}, s{sT}, s{sLW}", f"s_mul_i32 s{sT}, s{sT}, {128 * 7168}",
                               f"s_add_u32 s{sJo}, s{sJo}, s{sT}", f"s_cmp_lt_u32 s{self.sJi}, 224", f"s_cselect_b32 s{sJo}, s{sJo}, {OOB}"])
                    it += [f"v_lshrrev_b32 v{vJ}, 7, v{vL16}", f"v_mul_u32_u24 v{vJ}, 7168, v{vJ}", f"v_and_b32 v{T0}, 0x70, v{vL16}", f"v_add_u32 v{vJ}, v{vJ}, v{T0}"]
                    it += [f"v_lshrrev_b32 v{vR}, 6, v{vL16}", f"v_mul_u32_u24 v{vR}, 7168, v{vR}", f"v_lshrrev_b32 v{T0}, 3, v{vL16}", f"v_and_b32 v{T0}, 0x20, v{T0}",
                           f"v_and_b32 v{T1}, 0x30, v{vL16}", f"v_xor_b32 v{T0}, v{T0}, v{T1}", f"v_add_u32 v{vR}, v{vR}, v{T0}"]
                if s == 3: it.append(self.xcc_word(sXc))
                if s == pf:
                    def hs():
                        l = self.lab("hs")
                        e(f"s_cmp_lg_u32 s{sLW}, 1"); e(f"s_cbranch_scc1 {l}")
                        self.side_flag(0)
                        self.label(l)
                    post.append(hs)
                if s == r0:
                    it.append([f"s_lshr_b32 s{sT}, s2, 3", f"s_lshl_b32 s{sT}, s{sT}, 1", f"s_add_u32 s{sT}, s{sT}, s{sWN}", f"s_and_b32 s{sT2}, s2, 7",
                               f"s_lshl_b32 s{sGs}, s{sWM}, 3", f"s_add_u32 s{sGs}, s{sGs}, s{sT2}", f"s_lshl_b32 s{sGs}, s{sGs}, 7", f"s_add_u32 s{sGs}, s{sGs}, s{sT}",
                               f"s_lshl_b32 s{sGs}, s{sGs}, 10", f"s_add_u32 s{sGs}, s{sGs}, {WS_RT}",
                               f"s_mul_i32 s{sT}, s{sT}, {16 * 7168}", f"s_mul_i32 s{sT2}, s{sT2}, 896", f"s_add_u32 s{sEX}, s{sT}, s{sT2}"])
                    for h in range(2):
                        it.append(self.grp(vm, "R", [], f"buffer_load_dwordx4 v[{RB+4*h}:{RB+4*h+3}], v{vR}, s[{sW13}:{sW13+3}], s{sEX} offen offset:{384 + 64 * h}"))
                st0 = int(self.opt.get("st0", 31))
                for h in range(2):
                    if s == min(st0 + 3 + h, 31):
                        assert "R" not in vm.ops
                        post.append(self.grp(vm, "r", [], f"buffer_store_dwordx4 v[{RB+4*h}:{RB+4*h+3}], v{vL16}, s[{sWS}:{sWS+3}], s{sGs} offen sc0 sc1", [f"s_add_u32 s{sGs}, s{sGs}, 65536"]))
                CB, vC = 104, 99
                if s == r0 - 2:
                    it.append([f"v_lshrrev_b32 v{vC}, 8, v{vL16}", f"v_mul_u32_u24 v{vC}, 7168, v{vC}", f"v_and_b32 v{T0}, 0xf0, v{vL16}", f"v_add_u32 v{vC}, v{vC}, v{T0}",
                               f"s_mul_i32 s{sT}, s2, {4 * 7168}", f"v_add_u32 v{vC}, s{sT}, v{vC}"])
                for k in range(3):
                    pre = [f"s_cmp_eq_u32 s{sWN}, 0", f"s_movk_i32 s{sT}, {(11, 19, 26)[k] * 128}", f"s_cselect_b32 s{sT}, s{sT}, {(35, 42, 51)[k] * 128}"]
                    if s == r0 + 2 + 2 * k: post.append(self.grp(vm, "C", pre, f"buffer_load_dwordx4 v[{CB+4*k}:{CB+4*k+3}], v{vC}, s[{sW13}:{sW13+3}], s{sT} offen"))
                    if s == min(st0 + k, 31):
                        assert "C" not in vm.ops
                        pre += [f"s_lshl_b32 s{sT2}, s{sWM}, 23", f"s_add_u32 s{sT}, s{sT}, s{sT2}", f"s_add_u32 s{sT}, s{sT}, {WS_C13 + 256}"]
                        post.append(self.grp(vm, "r", pre, f"buffer_store_dwordx4 v[{CB+4*k}:{CB+4*k+3}], v{vC}, s[{sWS}:{sWS+3}], s{sT} offen sc0 sc1"))
                for k in range(16):
                    if jsch[k] != s: continue
                    b = JB + 4 * k
                    post.append(self.grp(vm, "J", [], f"buffer_load_dwordx4 v[{b}:{b+3}], v{vJ}, s[{sJ}:{sJ+3}], s{sJo} offen", [f"s_add_u32 s{sJo}, s{sJo}, {8 * 7168}"]))
                if s == g:
                    e(f"v_lshlrev_b32 v{T3}, 1, v{vL16}"); e(f"v_and_b32 v{T3}, 0xff, v{T3}")
                    e(f"buffer_load_dword v{vHs}, v{T3}, s[{sDBG}:{sDBG+3}], 0 offen sc0 sc1"); vm.issue("hs")
                if s == g + 3:
                    lp, ld_ = self.lab("hs"), self.lab("hs")
                    self.wait(vm.need("hs"))
                    e(f"s_mov_b32 s{sT2}, {POLL}")
                    self.label(lp)
                    e(f"v_and_b32 v{T1}, 63, v{vHs}")
                    e(f"v_cmp_ne_u32 vcc, 32, v{T1}")
                    e(f"s_cbranch_vccz {ld_}")
                    e(f"buffer_load_dword v{vHs}, v{T3}, s[{sDBG}:{sDBG+3}], 0 offen sc0 sc1")
                    e("s_waitcnt vmcnt(0)")
                    e(f"s_sub_u32 s{sT2}, s{sT2}, 1"); e(f"s_cmp_lg_u32 s{sT2}, 0"); e(f"s_cbranch_scc1 {lp}")
                    self.label(ld_)
                    self.apoll4_issue(vm, 0, G)
                    it.append([f"s_and_b32 s{sT}, s2, 7", f"s_lshl_b32 s{sT2}, s{sXc}, 5", f"v_readlane_b32 s{sT}, v{vHs}, s{sT}", "s_nop 3",
                               f"s_cmp_lg_u32 s{sT}, s{sT2}", f"s_cselect_b32 s{sMODE}, 1, 0",
                               f"v_mov_b32 v{T0}, {L_MODE}", f"v_mov_b32 v{T1}, s{sMODE}", f"ds_write_b32 v{T0}, v{T1}"])
                vC0, vC1 = 173, 174
                if s == g + 4:
                    it += self.atomize([f"v_and_b32 v{vC0}, 0xf0, v{vL16}", f"v_min_u32 v{vC0}, 0xb0, v{vC0}", f"s_mul_i32 s{sT}, s{sLW}, 192", f"v_add_u32 v{vC0}, s{sT}, v{vC0}",
                                        f"v_lshrrev_b32 v{T0}, 8, v{vC0}", f"v_and_b32 v{T1}, 0xff, v{vC0}", f"v_lshl_add_u32 v{T0}, v{T0}, 12, v{T1}",
                                        f"v_lshrrev_b32 v{T1}, 8, v{vL16}", f"v_mul_u32_u24 v{T1}, 12288, v{T1}", f"s_lshl_b32 s{sT}, s{sN4}, 8", f"v_add3_u32 v{vC1}, v{T0}, v{T1}, s{sT}"])
                if s == g + 6: self.apoll4_check(vm, 0, G)
                if g + 8 <= s < g + 10:
                    for k in (2 * (s - g - 8), 2 * (s - g - 8) + 1):
                        it.append(self.grp(vm, "g1", [f"s_mov_b32 s{sT}, {WS_CSQ + 49152 * k}"], f"buffer_load_dwordx4 v[{CQ+4*k}:{CQ+4*k+3}], v{vC1}, s[{sWS}:{sWS+3}], s{sT} offen sc1"))
                if s == g + 15:
                    self.wait(vm.need("g1"))
                    it += [f"v_add_f32 v{CQ+r}, v{CQ+r}, v{CQ+4+r}" for r in range(4)] + [f"v_add_f32 v{CQ+8+r}, v{CQ+8+r}, v{CQ+12+r}" for r in range(4)]
                    it += [f"v_add_f32 v{CQ+r}, v{CQ+r}, v{CQ+8+r}" for r in range(4)]
                    it += self.xred(list(range(CQ, CQ + 4)), list(range(CQ + 4, CQ + 8)), steps=("v_permlane16_swap_b32",))
                if s == g + 16:
                    it += self.xred(list(range(CQ, CQ + 4)), list(range(CQ + 4, CQ + 8)), steps=("v_permlane32_swap_b32",))
                    it += [f"v_add_u32 v{vC0}, {L_CSQ}, v{vC0}", f"ds_write_b128 v{vC0}, v[{CQ}:{CQ+3}]"]
                if s == int(self.opt.get("w2at", 99)):
                    it.append(self.grp(vm, "t", [f"v_lshlrev_b32 v{T0}, 3, v{vL16}", f"s_lshl_b32 s{sT}, s2, 2", f"s_add_u32 s{sT}, s{sT}, s{sLW}", f"s_lshl_b32 s{sT}, s{sT}, 13"],
                                       f"buffer_load_dword v{vPL}, v{T0}, s[{sW2}:{sW2+3}], s{sT} offen"))
            else:
                if s == 2: post.append(lambda: self.wg_flag_if(0, self.FG(7)))
                if s == 7:
                    e(f"v_lshrrev_b32 v{T0}, 2, v{vL16}"); e(f"v_and_b32 v{T1}, 64, v{T0}"); e(f"v_and_b32 v{T0}, 60, v{T0}")
                    e(f"s_cmp_eq_u32 s{sMT}, 0"); e(f"s_cselect_b32 s{sT}, 0, 2")
                    e(f"v_mul_lo_u32 v{T1}, v{T1}, s{sT}"); e(f"v_sub_u32 v{vHs}, v{T0}, v{T1}"); e(f"v_add_u32 v{vHs}, {7 * 2048}, v{vHs}")
                    e(f"buffer_load_dword v{vPL}, v{vHs}, s[{sWS}:{sWS+3}], s{sFl} offen sc0 sc1"); vm.issue("ap")
                if s == 10:
                    lp, ld = self.lab("poll"), self.lab("pd")
                    self.wait(vm.need("ap"))
                    e(f"s_mov_b32 s{sT2}, {POLL}")
                    self.label(lp)
                    e(f"v_cmp_ne_u32 vcc, 0x01010101, v{vPL}"); e(f"s_cbranch_vccz {ld}")
                    e(f"buffer_load_dword v{vPL}, v{vHs}, s[{sWS}:{sWS+3}], s{sFl} offen sc0 sc1"); e("s_waitcnt vmcnt(0)")
                    e(f"s_sub_u32 s{sT2}, s{sT2}, 1"); e(f"s_cmp_lg_u32 s{sT2}, 0"); e(f"s_cbranch_scc1 {lp}")
                    self.label(ld)
            R0, AC, H, vH = 144, 160, 164, 175
            s0 = g + 6 if first else 11
            so = 64 * KB if first else 0
            fin = [[f"v_lshrrev_b32 v{T2}, 1, v{T2}", f"s_lshl_b32 s{sT}, s{sLW}, 7", f"s_add_u32 s{sT}, s{sT}, {L_ST + 64}", f"v_add_u32 v{T2}, s{sT}, v{T2}",
                    f"v_sub_f32 v{AC}, 0, v{AC}", f"v_sub_f32 v{AC+2}, 0, v{AC+2}",
                    f"ds_write2_b32 v{T2}, v{AC}, v{AC+2} offset0:0 offset1:1", f"ds_write2_b32 v{T2}, v{AC+1}, v{AC+3} offset0:144 offset1:145"]]
            it += self.stats_gather(vm, s, s0, sSTo, R0, AC, fin, so, first)
            h0 = s0 + 1 if first else 16
            h1 = s0 + 6 if first else 21
            if s == h0:
                it.append([f"v_lshrrev_b32 v{T0}, 7, v{vL16}", f"v_and_b32 v{vH}, 0x70, v{vL16}", f"v_lshl_add_u32 v{T0}, v{T0}, 10, v{vH}",
                           f"s_sub_u32 s{sEX}, s{sSTo}, {ARENA - 896 - so}", f"s_cmp_eq_u32 s{sMT}, 0", f"s_cselect_b32 s{sEX}, {OOB}, s{sEX}"])
                for k in range(2):
                    it.append(self.grp(vm, "h", [], f"buffer_load_dwordx4 v[{H+4*k}:{H+4*k+3}], v{T0}, s[{sWS}:{sWS+3}], s{sEX} offen", [f"s_add_u32 s{sEX}, s{sEX}, 8192"]))
            if s == h1:
                self.wait(vm.need("h"))
                it += [f"v_add_f32 v{H+r}, v{H+r}, v{H+4+r}" for r in range(4)] + ["s_nop 1"]
                it += [f"v_add_f32_dpp v{H+r}, v{H+r}, v{H+r} row_ror:8 row_mask:0xf bank_mask:0xf" for r in range(4)]
                if not first: it += self.xred(list(range(H, H + 4)), list(range(H + 4, H + 8)), steps=("v_permlane16_swap_b32",))
            if s == h1 + 1:
                if first: it += self.xred(list(range(H, H + 4)), list(range(H + 4, H + 8)), steps=("v_permlane16_swap_b32",))
                it += self.xred(list(range(H, H + 4)), list(range(H + 4, H + 8)), steps=("v_permlane32_swap_b32",))
            if s == h1 + 2: it += self.finish_stats(H, H + 1)
            if s == h1 + (2 if first else 3):
                it += self.finish_stats(H + 2, H + 3)
                it += [f"v_lshrrev_b32 v{vH}, 1, v{vH}", f"v_add_u32 v{vH}, {L_ST}, v{vH}", f"v_sub_f32 v{H}, 0, v{H}", f"v_sub_f32 v{H+2}, 0, v{H+2}",
                       f"ds_write2_b32 v{vH}, v{H}, v{H+2} offset0:0 offset1:1", f"ds_write2_b32 v{vH}, v{H+1}, v{H+3} offset0:144 offset1:145"]
            dm = []
            if s >= 1 and (s - 1) // 2 + 3 < 16: dm = self.g1_a(vm, first, (s - 1) // 2 + 3, (s - 1) & 1)
            self.run_period(dm + self.w_take(vm, PT, 1, s), it)
            self.run_period([], post)
        assert self.wn == 38 and g + 16 <= 30
        self.tr_flush(P)
        e("s_setprio 0")

    def job_finish(self):
        e = self.e; T0, T1 = self.YT[:2]; JB = 0
        l = self.lab("jf")
        e(f"s_cmp_lg_u32 s{sLAY}, 0"); e(f"s_cbranch_scc1 {l}")
        if True:
            AC, S = 100, 104
            self.emit(self.selector(S, T0, T1)); e("s_nop 1")
            for i in range(16): e(mfma(AC, S, JB + 4 * i, "0" if i == 0 else None))
            e(f"s_and_b32 s{sT2}, s{self.sJi}, 1"); e(f"s_lshl_b32 s{sT2}, s{sT2}, 2"); e(f"s_add_u32 s{sT2}, s{sT2}, s{sLW}"); e(f"s_mul_i32 s{sT2}, s{sT2}, 28672")
            e(f"s_lshr_b32 s{sT}, s{self.sJi}, 1"); e(f"s_lshl_b32 s{sT}, s{sT}, 8")
            e(f"s_add_u32 s{sT}, s{sT}, s{sT2}"); e(f"s_add_u32 s{sT}, s{sT}, {WS_CS13}")
            e(f"s_cmp_lt_u32 s{self.sJi}, 224"); e(f"s_cselect_b32 s{sT}, s{sT}, {OOB}")
            e(f"v_and_b32 v{T0}, 0x70, v{vL16}"); e(f"v_lshrrev_b32 v{T1}, 4, v{vL16}"); e(f"v_and_b32 v{T1}, 16, v{T1}"); e(f"v_lshl_add_u32 v{T0}, v{T0}, 1, v{T1}")
            e("s_nop 2")
            for r in range(4): e(f"v_add_f32_dpp v{AC+r}, v{AC+r}, v{AC+r} row_ror:8 row_mask:0xf bank_mask:0xf")
            e("s_mov_b64 exec, 0x00ff00ff")
            e(f"buffer_store_dwordx4 v[{AC}:{AC+3}], v{T0}, s[{sWS}:{sWS+3}], s{sT} offen sc0 sc1")
            e("s_mov_b64 exec, -1")
        self.label(l)

    def y_g2(self):
        e = self.e; P = "Y"; vm = VM(); T0, T1, T2, _ = self.YT; PT = self.YP; vPL = self.vPL
        e(f"v_lshlrev_b32 v{T0}, 7, v{vL16}")
        e(f"s_lshl_b32 s{sT}, s{sWN}, 19"); e(f"s_add_u32 s{sT}, s{sT}, s{sRw}"); e(f"s_and_b32 s{sT}, s{sT}, {(16 << 17) - 1}"); e(f"s_add_u32 s{sT}, s{sT}, s{sB1}")
        e(f"buffer_load_dword v{vPL}, v{T0}, s[{sWO}:{sWO+3}], s{sT} offen")
        for i in range(4): e(f"v_mov_b32 v{112+i}, -1")
        e(f"s_lshl_b32 s{sRa}, s{sN4}, 14")
        vA = self.YAP[0]
        e(f"s_add_u32 s{sGa}, s{sOo}, s{sM4}"); e(f"v_add_u32 v{vA}, s{sGa}, v{vL16}")
        e(f"s_add_u32 s{sT}, s{sGa}, s{sRa}"); e(f"s_add_u32 s{sT}, s{sT}, {WS_P}")
        for i in range(4): e(f"buffer_store_dwordx4 v[112:115], v{vL16}, s[{sWS}:{sWS+3}], s{sT} offen offset:{1024 * i} sc0 sc1")
        l = self.lab("cp")
        e(f"s_cmp_lg_u32 s{sLAY}, 0"); e(f"s_cbranch_scc1 {l}")
        self.emit(self.pat_256(PT["g3a"], 7168, T0, T1, T2, sB3) + self.pat_g3b(PT["g3b"], T0, T1, T2) + self.pat_256(PT["g4"], 2048, T0, T1, T2))
        self.emit(self.reloc13(sW3A, 0)); self.emit(self.reloc13(sW3B, 0x4008))
        self.label(l)
        self.warm("A")
        def A(u): return self.a_issue(vm, ("A", u), u % 3, vA, None, self.ainc(uord(u + 1) - uord(u)) if u < 15 else None)
        self.bar(P, ("G2", -2))
        self.run_period(A(0), [])
        self.pb(P, ("G2", -1), 0)
        self.poll_flags(self.FL(0, 0), 8); vm.clear()
        self.run_period(A(1) + A(2), [])
        npre = int(self.opt.get("g2pre", 4)); g2w = int(self.opt.get("g2w", 13))
        sched = {1: 1, 3: 1}
        for k in range(npre): sched[min(g2w + k, 15)] = sched.get(min(g2w + k, 15), 0) + 1
        self.w_start(38, 72 + self.xw0)
        for u in range(16):
            need = ([("A", u + 1)] if u < 15 else []) + ([self.wneed(32 + (u + 1) // 2)] if (u & 1 and u < 15) else [])
            self.pb(P, ("G2", u), vm.need(*need))
            if u == 3: self.apoll_issue(vm, self.FG(0), 16, vPL)
            if u == 5: self.apoll_check(vm, self.FG(0), 16, vPL)
            self.run_period((A(u + 3) if u + 3 < 16 else []) + self.w_take(vm, PT, sched.get(u, 0), 32 + (u - 1) // 2), [])
        self.job_finish()
        return vm

    def b3(self, mat, t, rt): return ((mat * 3 + t) * 4 + rt) * 4
    VBX, VBW, YRL, YI2 = 176, 177, 184, 188

    def y_g3a(self, vm):
        e = self.e; P = "Y"; T0, T1, T2, T3 = self.YT; PT = self.YP; vPL = self.vPL
        R = 96; AC = 192; NM = 196; CS = 96; CT = 128
        vA = self.YAP[0]
        e(f"s_add_u32 s{sGa}, s{sXm}, s{sM4}"); e(f"s_lshl_b32 s{sRa}, s{sN4}, 14"); e(f"v_add_u32 v{vA}, s{sGa}, v{vL16}")
        self.h_bases()
        def A(u, part=None): return self.a_issue(vm, ("A", u), u % 3, vA, None, self.ainc(uord(u + 1) - uord(u)) if u < 15 else None, part)
        self.bar(P, ("G3A", -2))
        self.run_period(A(0), [])
        self.pb(P, ("G3A", -1), 0); vm.clear()
        self.apoll_issue(vm, self.FL(0, 32), 8, vPL)
        e("s_setprio 1")
        work = self.stat_regs(R, NM, self.YRL, self.YI2, T0)
        work += [f"v_lshrrev_b32 v{T0}, 8, v{vL16}", f"v_lshlrev_b32 v{T0}, 4, v{T0}", f"v_add_u32 v{T0}, {L_CSB}, v{T0}",
                 f"s_and_b32 s{sT2}, s{sNT}, 1", f"s_add_u32 s{sT}, s{sT2}, s{sWN}", f"s_lshl_b32 s{sT}, s{sT}, 7", f"v_add_u32 v{T1}, s{sT}, v{T0}",
                 f"s_xor_b32 s{sT2}, s{sT2}, 1", f"s_lshl_b32 s{sT2}, s{sT2}, 2", f"s_add_u32 s{sT2}, s{sT2}, s{sWN}", f"s_lshl_b32 s{sT2}, s{sT2}, 6", f"v_add_u32 v{T0}, s{sT2}, v{T0}"]
        for mat in range(2):
            for t in range(3):
                c = CS + (mat * 3 + t) * 4
                work.append(f"ds_read_b128 v[{c}:{c+3}], v{T1 if t < 2 else T0} offset:{mat * 512 + (64 * t if t < 2 else 0)}")
        work.append("s_waitcnt lgkmcnt(0)")
        for mat in range(2):
            for t in range(3):
                for rt in range(4):
                    work += [f"v_mul_f32 v{self.b3(mat,t,rt)+r}, v{NM+rt}, v{CS+(mat*3+t)*4+r}" for r in range(4)]
        work = self.costed(work)
        vW = self.VBW
        addr = [f"s_lshl_b32 s{sT}, s{sWM}, 13", f"s_add_u32 s{sT}, s{sT}, {LA}", f"v_add_u32 v{self.VBX}, s{sT}, v{vL16}",
                f"v_lshrrev_b32 v{T0}, 6, v{vL16}", f"v_lshrrev_b32 v{T1}, 1, v{T0}", f"v_and_b32 v{T1}, 3, v{T1}",
                f"s_lshl_b32 s{sT}, s{sWN}, 1", f"v_xor_b32 v{T1}, s{sT}, v{T1}", f"v_lshlrev_b32 v{T1}, 5, v{T1}", f"v_lshl_add_u32 v{T1}, v{T0}, 7, v{T1}",
                f"v_and_b32 v{vW+3}, 0x30, v{vL16}", f"v_lshrrev_b32 v{vW+3}, 1, v{vW+3}",
                f"v_add_u32 v{vW}, v{T1}, v{vW+3}", f"v_xor_b32 v{vW+1}, 32, v{vW}",
                f"v_lshrrev_b32 v{T1}, 2, v{T0}", f"v_and_b32 v{T1}, 1, v{T1}", f"v_xor_b32 v{T1}, s{sWN}, v{T1}", f"v_lshlrev_b32 v{T1}, 5, v{T1}",
                f"v_lshl_add_u32 v{T1}, v{T0}, 6, v{T1}", f"v_add_u32 v{T1}, v{T1}, v{vW+3}", f"v_add_u32 v{vW+2}, 2048, v{T1}"]
        addr += [f"v_add_u32 v{vW+3+t}, {3 * WSLOT}, v{vW+t}" for t in range(3)]
        c0 = 22; S0 = 9; C1 = 10
        cu0 = int(self.opt.get("cu0", 1))
        for s in range(32):
            need = [self.wneed(40 + s + 1)] + ([("A", (s + 1) // 2)] if s & 1 else [])
            self.pb(P, ("G3A", s), vm.need(*need), 0 if s == c0 else None)
            it = []; dm = []; post = []
            if s == 0:
                self.apoll_check(vm, self.FL(0, 32), 8, vPL)
                dm = A(1) + A(2)
            if s == 2: post.append(lambda: self.wg_flag_if(0, self.FG(6)))
            if s == 2:
                def cf():
                    l = self.lab("cf")
                    e(f"s_xor_b32 s{sT}, s{sLW}, 1"); e(f"s_or_b32 s{sT}, s{sLAY}, s{sT}"); e(f"s_cbranch_scc1 {l}")
                    self.side_flag(1)
                    self.label(l)
                post.append(cf)
            if s == S0 - 3: self.apoll_issue(vm, self.FG(6), 16, vPL)
            if s == S0: self.apoll_check(vm, self.FG(6), 16, vPL)
            fin = [[f"s_lshl_b32 s{sT}, s{sLW}, 8", f"s_add_u32 s{sT}, s{sT}, {L_ST}", f"v_add_u32 v{T2}, s{sT}, v{T2}", f"ds_write_b128 v{T2}, v[{AC}:{AC+3}]"]]
            it += self.stats_gather(vm, s, S0, sSTm, R, AC, fin)
            if s == C1: self.apoll4_issue(vm, 1, CT)
            if s == C1 + 3:
                self.apoll4_check(vm, 1, CT, [(sLAY, 1)])
                l = self.lab("cs")
                e(f"s_cmp_lg_u32 s{sLAY}, 0"); e(f"s_cbranch_scc1 {l}")
                e(f"s_and_b32 s{sT}, s{sNT}, 1"); e(f"s_mul_i32 s{sT2}, s{sT}, 384")
                e(f"s_xor_b32 s{sT}, s{sT}, 1"); e(f"s_lshl_b32 s{sT}, s{sT}, 9")
                e(f"s_cmp_eq_u32 s{sWN}, 0"); e(f"s_cselect_b32 s{sT}, s{sT2}, s{sT}")
                e(f"s_mul_i32 s{sT2}, s{sNT}, 896"); e(f"s_add_u32 s{sT}, s{sT}, s{sT2}")
                e(f"s_mul_i32 s{sT2}, s{sWM}, 14336"); e(f"s_add_u32 s{sT}, s{sT}, s{sT2}"); e(f"s_add_u32 s{sT}, s{sT}, {WS_CS13}")
                e(f"v_lshrrev_b32 v{T0}, 9, v{vL16}"); e(f"v_mul_u32_u24 v{T0}, 28672, v{T0}"); e(f"v_and_b32 v{T1}, 0x1f0, v{vL16}"); e(f"v_add_u32 v{T0}, v{T0}, v{T1}")
                for k in range(4):
                    e(f"buffer_load_dwordx4 v[{CT+4*k}:{CT+4*k+3}], v{T0}, s[{sWS}:{sWS+3}], s{sT} offen sc1")
                    e(f"s_add_u32 s{sT}, s{sT}, 57344")
                self.label(l)
                ct_after = ("A", (s - 1) // 2 + 3)
            if s == C1 + 7:
                assert ct_after not in vm.ops
                l = self.lab("cs")
                e(f"s_cmp_lg_u32 s{sLAY}, 0"); e(f"s_cbranch_scc1 {l}")
                for r in range(4): e(f"v_add_f32 v{CT+r}, v{CT+r}, v{CT+4+r}"); e(f"v_add_f32 v{CT+8+r}, v{CT+8+r}, v{CT+12+r}")
                for r in range(4): e(f"v_add_f32 v{CT+r}, v{CT+r}, v{CT+8+r}")
                self.emit(self.xred(list(range(CT, CT + 4)), list(range(CT + 4, CT + 8)), steps=("v_permlane32_swap_b32",)))
                e(f"s_lshl_b32 s{sT}, s{sLW}, 9"); e(f"s_add_u32 s{sT}, s{sT}, {L_CSA}"); e(f"v_and_b32 v{T1}, 0x1f0, v{vL16}"); e(f"v_add_u32 v{T0}, s{sT}, v{T1}")
                e(f"ds_write_b128 v{T0}, v[{CT}:{CT+3}]")
                self.label(l)
            if 4 <= s < 20 and s % 2 == 0 and self.opt.get("w2at") is None:
                def w2(s=s):
                    l = self.lab("w2")
                    e(f"s_lshl_b32 s{sT}, s{sLAY}, 4"); e(f"s_lshr_b32 s{sT2}, s{sMT}, 1"); e(f"s_add_u32 s{sT}, s{sT}, s{sT2}")
                    e(f"s_cmp_lg_u32 s{sT}, {(s - 4) // 2}"); e(f"s_cbranch_scc1 {l}")
                    e(f"v_lshlrev_b32 v{vF0}, 3, v{vL16}"); e(f"s_lshl_b32 s{sT}, s2, 2"); e(f"s_add_u32 s{sT}, s{sT}, s{sLW}"); e(f"s_lshl_b32 s{sT}, s{sT}, 13")
                    e(f"buffer_load_dword v250, v{vF0}, s[{sW2}:{sW2+3}], s{sT} offen")
                    self.label(l)
                post.append(w2)
            if s in (21, 26):
                def cp2(s=s):
                    l = self.lab("cp")
                    e(f"s_cmp_lg_u32 s{sLAY}, 0"); e(f"s_cbranch_scc1 {l}")
                    e(f"s_lshl_b32 s{sT}, s2, 2"); e(f"s_add_u32 s{sT}, s{sT}, s{sLW}"); e(f"s_lshl_b32 s{sT}, s{sT}, 13")
                    if s == 21:
                        e(f"v_and_b32 v{vF0}, 0x300, v{vL16}"); e(f"v_and_b32 v250, 0xf0, v{vL16}"); e(f"v_lshl_add_u32 v249, v{vF0}, 3, v250")
                        for k in range(2): e(f"buffer_load_dwordx4 v[{240+4*k}:{243+4*k}], v249, s[{sW2}:{sW2+3}], s{sT} offen offset:{256 + 1024 * k}")
                    else:
                        e(f"s_add_u32 s{sT}, s{sT}, {WS_C2 + 256}"); e("s_cmp_lt_u32 s2, 224"); e(f"s_cselect_b32 s{sT}, s{sT}, {OOB}")
                        for k in range(2): e(f"buffer_store_dwordx4 v[{240+4*k}:{243+4*k}], v249, s[{sWS}:{sWS+3}], s{sT} offen offset:{256 + 1024 * k} sc0 sc1")
                        self.emit(self.reloc2())
                    self.label(l)
                if s == 21: cp2(); cp_after = ("A", (s - 1) // 2 + 3)
                else:
                    assert cp_after not in vm.ops
                    post.append(cp2)
            if s == 20: it += self.atomize(addr)
            if s >= c0: it += self.chunk(work, float(self.opt.get("budC", 24)) if s < 30 else 1e9) if work else []
            if s >= 1 and (s - 1) // 2 + 3 < 16: dm = A((s - 1) // 2 + 3, (s - 1) & 1)
            self.run_period(dm + self.w_take(vm, PT, 1, 40 + s, 4 if s >= 27 else (1 if s >= cu0 and not S0 <= s < S0 + 4 else 0)), it)
            self.run_period([], post)
        assert not work and self.wn == 72 + self.xw0, self.wn
        self.tr_flush(P)
        e("s_setprio 0")
        self.g3bw = [vm.need(("W", 72 + s + 1)) for s in range(7)]
        assert 0 in self.g3bw

    def y_g3b(self):
        e = self.e; P = "YC"
        XF, WF = 96, 128
        vXa, vWa = self.VBX, self.VBW
        def xf(b, rt): return XF + b * 16 + rt * 4
        def wf(b, mat, t): return WF + b * 24 + (mat * 3 + t) * 4
        def reads(s):
            b = s & 1; sl = (72 + s) % 6
            xr = [f"ds_read_b128 v[{xf(b,rt)}:{xf(b,rt)+3}], v{vXa} offset:{((16 + (s >> 1)) % 3) * 16384 + rt * 2048 + (s & 1) * 1024}" for rt in range(4)]
            wr = []
            for t in range(3):
                for mat in range(2):
                    r = wf(b, mat, t); ad = vWa + 3 * (sl // 3) + t; off = (sl % 3) * WSLOT + mat * 6144
                    wr += [f"ds_read_b64_tr_b16 v[{r}:{r+1}], v{ad} offset:{off}", f"ds_read_b64_tr_b16 v[{r+2}:{r+3}], v{ad} offset:{off + 3072}"]
            return wr[0:2] + xr + wr[2:]
        def mf(s):
            b = s & 1
            return [mfma(self.b3(mat, t, rt), wf(b, mat, t), xf(b, rt)) for t in range(3) for mat in range(2) for rt in snake(range(4), mat)]
        self.emit(reads(0))
        e(f"s_add_u32 s{sGa}, s{sHx}, s{sM4}"); e(f"v_add_u32 v{self.YAP[0]}, s{sGa}, v{vL16}")
        def fn(s, ex):
            extra = []
            if ex: extra.append((20, self.CNT))
            self.step(P, ("G3B", s), mf(s), reads(s + 1) if s < 31 else [], vmw=(self.g3bw[s] if s < 7 else None), last=17, extra=extra)
        self.looped(P, 32, 6, fn)

    def y_g4(self):
        e = self.e; P = "Y"; vm = VM(); T0, T1, T2, _ = self.YT; PT = self.YP; vPL = self.vPL
        E, OUT, vX = 96, 100, 120
        e("s_setprio 1")
        work = ["s_nop 7"]
        for rt in range(4):
            O = OUT + 4 * (rt & 1)
            for t in range(2):
                work += self.silu_group(self.b3(0, t, rt), self.b3(1, t, rt), E, self.YRL + rt, self.YI2 + rt, O + 2 * t)
            work.append(self.grp(vm, ("H", 0), [f"s_add_u32 s{sT}, s{sGh}, {16 * 16384 + rt * 2048}"],
                                 f"buffer_store_dwordx4 v[{O}:{O+3}], v{vL16}, s[{sWS}:{sWS+3}], s{sT} offen sc0 sc1"))
        work.append(("FLAG", 0))
        work += [f"s_lshl_b32 s{sT}, s{sWM}, 12", f"s_lshl_b32 s{sT2}, s{sWN}, 3", f"s_add_u32 s{sT}, s{sT}, s{sT2}", f"s_add_u32 s{sT}, s{sT}, {L_SG}", f"v_add_u32 v{vX}, s{sT}, v{vL16}"]
        for rt in range(4):
            O = 108 + 2 * rt
            work += self.silu_group(self.b3(0, 2, rt), self.b3(1, 2, rt), E, self.YRL + rt, self.YI2 + rt, O)
            work.append(f"ds_write_b64 v{vX}, v[{O}:{O+1}] offset:{1024 * rt}")
        work += [f"s_lshr_b32 s{sT}, s{sM4}, 1", f"s_add_u32 s{sT}, s{sT}, {L_SG}", f"v_add_u32 v{vX+1}, s{sT}, v{vL16}"]
        work.append(("GATE",))
        for k in range(2): work.append(f"ds_read_b128 v[{OUT+4*k}:{OUT+4*k+3}], v{vX+1} offset:{1024 * k}")
        work.append("s_waitcnt lgkmcnt(0)")
        for k in range(2):
            work.append(self.grp(vm, ("H", 1), [], f"buffer_store_dwordx4 v[{OUT+4*k}:{OUT+4*k+3}], v{vL16}, s[{sWS}:{sWS+3}], s{sGs} offen offset:{2048 * k} sc0 sc1"))
        work.append(("FLAG", 1))
        work += [f"s_cmp_eq_u32 s{sLAY}, 0", f"s_cselect_b32 s{sB1}, s{sB1}, {OOB}"] + self.pat_g1(PT, T0, T1, T2, False)
        work = self.costed(work)
        self.w_start(109, 138)
        def need(u): return [self.wneed(104 + u + 1), ("A", u + 1)] if u < 27 else []
        def hook(u):
            pd = int(self.opt.get("pd", 4))
            if u + pd in (8, 16, 24): self.apoll_issue(vm, self.FL(1, 4 * (u + pd)), 8, vPL)
            if u + 3 in (8, 16, 24): self.apoll_check(vm, self.FL(1, 4 * (u + 3)), 8, vPL)
            if u == 23: assert not work
        def dmas(u):
            return (self.a_issue(vm, ("A", u + 3), (32 + u + 3) % 3, self.YAP[0], (u + 3) * 16384) if u + 3 < 28 else []) + self.w_take(vm, PT, 2 if u == 25 else 1, 104 + u)
        bud = float(self.opt.get("budY", 40))
        self.epi_loop(P, "G4", 28, vm, work, lambda s: bud, int(self.opt.get("lagY", 2)), need, dmas, [self.FL(1, 64), self.FL(1, 96)], [13, 21], hook)
        assert self.wn == 138
        self.tr_dump("Y")
        e("s_setprio 0")

    def next_layer(self):
        e = self.e
        e(f"s_mov_b32 s{sLAY}, 1")
        e(f"s_add_u32 s{sOo}, s{sOo}, {256 * KB}"); e(f"s_add_u32 s{sXm}, s{sXm}, {512 * KB}"); e(f"s_add_u32 s{sHo}, s{sHo}, {896 * KB}")
        e(f"s_add_u32 s{sSTm}, s{sSTm}, {64 * KB}"); e(f"s_add_u32 s{sFl}, s{sFl}, {32 * KB}"); e(f"s_add_u32 s{sFL}, s{sFL}, {32 * KB}")

    def warm(self, which):
        self.emit([f"#WARM {which}"])

    def gen(self, name):
        e = self.e; a = self.a; self.info = []; self.xw0 = 6; self.rot0 = sN4
        kernel_header(a, name)
        e("s_cmp_ge_u32 s2, 256"); e("s_cbranch_scc0 K_go"); e("s_endpgm")
        self.label("K_go")
        K = sAT
        e(f"s_load_dwordx4 s[{K}:{K+3}], s[0:1], 0")
        e(f"s_load_dwordx2 s[{K+4}:{K+5}], s[0:1], 16")
        e(f"s_load_dwordx8 s[{K+8}:{K+15}], s[0:1], 32")
        e(f"s_load_dwordx4 s[{K+16}:{K+19}], s[0:1], 64")
        e("v_lshrrev_b32 v1, 6, v0"); e(f"v_and_b32 v{vL16}, 63, v0")
        e(f"v_readfirstlane_b32 s{sWAVE}, v1")
        e(f"v_lshlrev_b32 v{vL16}, 4, v{vL16}")
        if self.opt.get("ts"): e(f"v_mov_b32 v{vTS}, 0")
        e(f"s_and_b32 s{sT}, s2, 6"); e(f"s_lshl_b32 s{sT}, s{sT}, 1"); e(f"s_lshr_b32 s{sT2}, s2, 3"); e(f"s_and_b32 s{sT2}, s{sT2}, 3")
        e(f"s_add_u32 s{sMT}, s{sT}, s{sT2}")
        e(f"s_and_b32 s{sT}, s2, 1"); e(f"s_lshr_b32 s{sT2}, s2, 5")
        e(f"s_lshl_b32 s{sNT}, s{sT}, 3"); e(f"s_add_u32 s{sNT}, s{sNT}, s{sT2}")
        e(f"s_lshl_b32 s{sN4}, s{sT2}, 1"); e(f"s_add_u32 s{sN4}, s{sN4}, s{sT}")
        e(f"s_and_b32 s{sLW}, s{sWAVE}, 3"); e(f"s_and_b32 s{sWM}, s{sWAVE}, 1"); e(f"s_lshr_b32 s{sWN}, s{sLW}, 1")
        e(f"s_lshl_b32 s{sT}, s{sWM}, 1"); e(f"s_add_u32 s{sT}, s{sT}, s{sWN}"); e(f"s_mul_i32 s{sM3}, s{sT}, 3072"); e(f"s_lshl_b32 s{sM4}, s{sT}, 12")
        e(f"s_mov_b32 s{sMODE}, 1"); e(f"s_mov_b32 s{sLAY}, 0")
        e(f"s_lshl_b32 s{sOo}, s{sMT}, 22"); e(f"s_add_u32 s{sXm}, s{sOo}, {WS_X1}"); e(f"s_add_u32 s{sX2}, s{sOo}, {WS_X1 + 256 * KB}")
        e(f"s_add_u32 s{sHo}, s{sOo}, {WS_H}")
        e(f"s_add_u32 s{sSTm}, s{sOo}, {WS_ST}"); e(f"s_add_u32 s{sSTo}, s{sSTm}, {32 * KB}")
        e(f"s_lshl_b32 s{sFl}, s{sMT}, 7"); e(f"s_add_u32 s{sFl}, s{sFl}, {WS_FL}")
        self.bases()
        e("s_waitcnt lgkmcnt(0)")
        make_srd(a, sQKV, K + 2, K + 3, 1024 * 6144)
        make_srd(a, sA1, K, K + 1, 4 * MB)
        make_srd(a, sWS, K + 18, K + 19, 256 * MB)
        make_srd(a, sX0, K, K + 1, 4 * MB)
        make_srd(a, sWO, K + 4, K + 5, 1024 * 2048)
        e(f"s_cmp_eq_u32 s{sWM}, 0")
        e(f"s_cselect_b32 s{sW13}, s{K+8}, s{K+10}"); e(f"s_cselect_b32 s{sW13+1}, s{K+9}, s{K+11}")
        e(f"s_mov_b32 s{sW13+2}, {1024 * 7168}"); e(f"s_mov_b32 s{sW13+3}, 0x00020000")
        make_srd(a, sW2, K + 12, K + 13, 3584 * 2048)
        make_srd(a, sOUT, K + 14, K + 15, 4 * MB)
        make_srd(a, sDBG, K + 16, K + 17, 256)
        e(f"s_and_b32 s{sT}, s2, 1"); e(f"s_lshl_b32 s{sT}, s{sT}, 13"); e(f"s_add_u32 s{sT}, s{sT}, {16 * KB}"); e(f"s_add_u32 s{sFL}, s{sFl}, s{sT}")
        e(f"s_lshl_b32 s{sT}, s{sN4}, 14"); e(f"s_lshl_b32 s{sT2}, s{sWM}, 13"); e(f"s_add_u32 s{sT}, s{sT}, s{sT2}")
        e(f"s_lshl_b32 s{sT2}, s{sWN}, 10"); e(f"s_add_u32 s{sTile}, s{sT}, s{sT2}")
        self.ts(15)
        e(f"s_cmp_lt_u32 s{sWAVE}, 4"); e("s_cbranch_scc1 X_start")
        vm1 = VM(); self.y_start(vm1); e("s_branch Y_first")
        self.label("X_start")
        self.x_prep()
        self.label("X_layer")
        self.x_g1(); self.x_g2(); self.x_g3a(); self.x_g3b(); self.x_g4()
        e(f"s_cmp_lg_u32 s{sLAY}, 0"); e("s_cbranch_scc1 X_fin")
        self.res_epilogue(self.a4, sX2, 236, 226); self.bars["X"].append(("G4", 99))
        self.next_layer()
        e("s_branch X_layer")
        self.label("X_fin")
        self.x_final()
        if self.opt.get("ts"):
            e("s_waitcnt vmcnt(0)")
            self.ts(24)
            e(f"s_lshl_b32 s{sT}, s2, 2"); e(f"s_add_u32 s{sT}, s{sT}, s{sLW}"); e(f"s_lshl_b32 s{sT}, s{sT}, 8"); e(f"s_add_u32 s{sT}, s{sT}, {WS_TS}")
            e(f"v_lshrrev_b32 v1, 2, v{vL16}")
            e(f"buffer_store_dword v{vTS}, v1, s[{sWS}:{sWS+3}], s{sT} offen")
            if self.opt.get("dbgts") is not None:
                e(f"s_lshl_b32 s{sT}, s2, 2"); e(f"s_add_u32 s{sT}, s{sT}, s{sLW}"); e(f"s_cmp_lg_u32 s{sT}, {4 * int(self.opt['dbgts'])}"); e("s_cbranch_scc1 K_nod")
                e(f"v_readlane_b32 s{sT2}, v{vTS}, 15"); e("v_mov_b32 v1, 0"); e("s_mov_b64 exec, 1")
                for slot, k in zip([1, 2, 3, 4, 5, 6, 7, 9, 10, 11, 12, 13, 14, 15], [1, 2, 7, 11, 12, 13, 14, 33, 34, 39, 43, 44, 45, 56]):
                    e(f"v_readlane_b32 s{sT}, v{vTS}, {k}"); e("s_nop 3"); e(f"s_sub_u32 s{sT}, s{sT}, s{sT2}"); e(f"v_mov_b32 v2, s{sT}")
                    e(f"buffer_store_dword v2, v1, s[{sDBG}:{sDBG+3}], 0 offen offset:{4 * slot}"); e("s_nop 1")
                self.label("K_nod")
        e("s_endpgm")
        self.label("Y_first")
        self.y_g1(vm1, True); e("s_branch Y_g2")
        self.label("Y_layer")
        self.y_g1(VM(), False)
        self.label("Y_g2")
        vm = self.y_g2(); self.y_g3a(vm); self.y_g3b(); self.y_g4()
        e(f"s_cmp_lg_u32 s{sLAY}, 0"); e("s_cbranch_scc1 K_end")
        self.emit(self.reloc13(sW3A, 0x14a0))
        self.next_layer(); self.bars["Y"].append(("G4", 99)); self.warm("B"); e("s_branch Y_layer")
        self.label("K_end")
        e("s_endpgm")
        B = self.bars
        def ph(p, *names): return [x for x in B[p] if x[0] in names]
        assert B["XL"] == B["YC"] and B["X"] == B["Y"] and B["Y1"] == ph("Y", "G1"), "barrier mismatch"
        kernels.append((name, 256, 102))
        return a.text()


def full(opt):
    kernels.clear()
    g = Gen(opt)
    KN = "mega_kernel" if opt.get("list") else NAME + "_kernel"
    body = g.gen(KN)
    body = "\n".join(x for x in body.split("\n") if not x.startswith("#")) + "\n"
    t = build([(KN, 256, 512, 163840)], [body], single=not opt.get("list"))
    for x in g.info: print(x, file=sys.stderr)
    return t

if __name__ == "__main__":
    opt = parse_opts(sys.argv[2:])
    open(sys.argv[1], "w").write(full(opt))
```

```python
import sys, re
from common import *

KB = 1024
ARENA = 4 * MB
WS_O = 0
WS_X1 = 512 * KB
WS_P = 1280 * KB
WS_ST = 1792 * KB
WS_H = 2 * MB
WS_RT = 64 * MB
WS_ST0 = 67 * MB
WS_CSQ = 67 * MB + 256 * KB
WS_CS13 = 67 * MB + 512 * KB
WS_FL = 68 * MB
WS_SF = 68 * MB + 256 * KB
WS_TS = 69 * MB
WS_C13 = 80 * MB
WS_C2 = 96 * MB
OOB = 0x7f000000
POLL = 0x40000
WSLOT = 16384
LA = 98304
L_SG = LA + 49152
L_SS = L_SG + 8192
L_ST = 159744
L_CSQ = L_ST + 1152
L_CSA = L_CSQ + 768
L_CSB = L_CSA + 1024
L_MODE = L_CSB + 1024
sFL = 0
sTile = 1
sWAVE = 3
sWS, sQKV, sWO, sW13, sW2, sX0, sOUT, sDBG, sA1 = 4, 8, 12, 16, 20, 24, 28, 32, 36
sW3B, sW3A = 24, 28
sMT, sNT, sLW, sWM, sWN, sMODE, sLAY = 40, 41, 42, 43, 44, 45, 46
sOo, sX2, sXm, sHo, sN4, sSTm, sSTo, sFl = 47, 48, 49, 50, 51, 52, 53, 54
sT, sT2, sT3, sCnt = 55, 56, 57, 58
sD0, sD1 = 59, 60
sM3, sM4 = 61, 62
sB1, sB2, sB3, sB4, sB5, sB6, sB7 = 63, 64, 65, 66, 67, 68, 69
sEX = 70
sAT = 72
sGa, sGh, sGs, sSu, sDa, sRw, sRa, sHx = 88, 89, 90, 91, 92, 93, 94, 95
sTS = 96
vL16, vTS = 254, 255
vF0, vF1 = 252, 253
EPS_BITS = 0x3727c5ac

def uord(t):
    return 2 * t if t < 8 else 2 * (t - 8) + 1
def snake(n, k):
    return list(n) if k % 2 == 0 else list(n)[::-1]
BORD = [13, 14, 15] + list(range(13))

class VM:
    def __init__(self): self.ops = []
    def issue(self, tag): self.ops.append(tag)
    def need(self, *tags):
        last = -1
        for i, t in enumerate(self.ops):
            if t in tags: last = i
        n = len(self.ops) - 1 - last
        if last < 0: return None
        self.ops = self.ops[last + 1:]
        return n
    def clear(self): self.ops = []


class Gen:
    def __init__(self, opt):
        self.opt = opt
        self.a = Asm()
        self.nlab = 0
        self.bars = {}
        self.trp = {}
    def e(self, s): self.a.e(s)
    def lab(self, p="L"):
        self.nlab += 1
        return f"{p}_{self.nlab}"
    def label(self, l): self.a.label(l)
    def al(self): self.a.raw("    .p2align 3")
    def bar(self, path, name):
        self.bars.setdefault(path, []).append(name)
        self.e("s_barrier")
    PH0 = {"G1": 1, "G2": 34, "G3A": 51, "G3B": 83, "G4": 115}
    def tr_flush(self, path):
        p = self.trp.pop(path[0], None)
        if p is None: return
        l = self.lab("tr")
        self.e("s_waitcnt lgkmcnt(0)")
        self.e(f"s_cmp_lg_u32 s{sLAY}, {int(self.opt['trace'])}"); self.e(f"s_cbranch_scc1 {l}")
        for k in range(3):
            if path[0] == "X": i = p[1] * 3 + k; reg = 233 + i // 64
            else: i = (self.PH0[p[0]] + p[1]) * 3 + k; reg = 228 + i // 64
            self.e(f"v_writelane_b32 v{reg}, s{96 + 2 * k}, {i % 64}")
        self.label(l)
    def pb(self, path, name, vm=None, lgkm=None):
        tr = self.opt.get("trace") is not None
        if tr:
            if path[0] not in self.trp: self.e("s_waitcnt lgkmcnt(0)")
            self.tr_flush(path)
            self.e("s_memtime s[96:97]")
            lgkm = None
        self.wait(vm, lgkm)
        if tr: self.e("s_memtime s[98:99]")
        self.bar(path, name)
        if tr:
            self.e("s_memtime s[100:101]")
            self.trp[path[0]] = name
    def tr_dump(self, grp):
        if self.opt.get("trace") is None: return
        e = self.e; l = self.lab("td")
        e(f"s_cmp_lg_u32 s{sLAY}, {int(self.opt['trace'])}"); e(f"s_cbranch_scc1 {l}")
        e(f"s_lshl_b32 s{sT}, s2, 3"); e(f"s_add_u32 s{sT}, s{sT}, s{sWAVE}"); e(f"s_lshl_b32 s{sT}, s{sT}, 11"); e(f"s_add_u32 s{sT}, s{sT}, {WS_TS + MB}")
        e(f"v_lshrrev_b32 v{vF0}, 2, v{vL16}")
        for k in range(2 if grp == "X" else 7):
            e(f"buffer_store_dword v{(233 if grp == 'X' else 228) + k}, v{vF0}, s[{sWS}:{sWS+3}], s{sT} offen offset:{256 * k}")
        self.label(l)
    def wait(self, vm=None, lgkm=None):
        p = []
        if vm is not None:
            assert vm <= 63
            p.append(f"vmcnt({vm})")
        if lgkm is not None: p.append(f"lgkmcnt({lgkm})")
        if p: self.e("s_waitcnt " + " ".join(p))
    def ts(self, k):
        sp = self.opt.get("spin")
        if sp:
            kk, ly, tk = [int(x) for x in sp.split("_")]
            if k == 15: self.e("s_memrealtime s[100:101]"); self.e("s_waitcnt lgkmcnt(0)")
            if k == kk:
                l, l2 = self.lab("sp"), self.lab("sp")
                self.e(f"s_cmp_lg_u32 s{sLAY}, {ly}"); self.e(f"s_cbranch_scc1 {l2}")
                self.label(l)
                self.e("s_memrealtime s[98:99]"); self.e("s_waitcnt lgkmcnt(0)"); self.e("s_sub_u32 s98, s98, s100")
                self.e(f"s_cmp_lt_u32 s98, {tk}"); self.e(f"s_cbranch_scc1 {l}")
                self.label(l2)
        if self.opt.get("ts"):
            self.e(f"s_memrealtime s[{sTS}:{sTS+1}]")
            self.e(f"s_lshl_b32 s{sT3}, s{sLAY}, 5")
            self.e(f"s_add_u32 m0, s{sT3}, {k}")
            self.e("s_waitcnt lgkmcnt(0)")
            self.e(f"v_writelane_b32 v{vTS}, s{sTS}, m0")
    def tsc(self, k):
        if self.opt.get("ts"):
            self.e(f"s_memtime s[{sTS}:{sTS+1}]")
            self.e(f"s_lshl_b32 s{sT3}, s{sLAY}, 5")
            self.e(f"s_add_u32 m0, s{sT3}, {k}")
            self.e("s_waitcnt lgkmcnt(0)")
            self.e(f"v_writelane_b32 v{vTS}, s{sTS}, m0")

    def lanes(self, vL, vG=None, vI=None):
        self.e(f"v_lshrrev_b32 v{vL}, 4, v{vL16}")
        if vG is not None: self.e(f"v_lshrrev_b32 v{vG}, 8, v{vL16}")
        if vI is not None: self.e(f"v_and_b32 v{vI}, 15, v{vL}")

    def store(self, instr):
        l1, l2 = self.lab("st"), self.lab("st")
        return [f"s_cmp_eq_u32 s{sMODE}, 0", f"s_cbranch_scc1 {l1}", instr + " sc0 sc1", f"s_branch {l2}", f"@{l1}", instr, f"@{l2}"]

    def emit(self, seq):
        for x in seq:
            if isinstance(x, (list, tuple)): self.emit(x)
            elif x.startswith("@"): self.label(x[1:])
            elif x.startswith("."): self.a.raw("    " + x)
            elif x.startswith("#"): self.a.raw(x)
            else: self.e(x)

    @staticmethod
    def FG(kind): return (sFl, kind * 2048)
    @staticmethod
    def FL(line, off): return (sFL, line * 2048 + off)
    def wg_flag(self, fa):
        e = self.e; loc = fa[0] == sFL
        if loc: e(f"s_lshr_b32 s{sT}, s2, 5"); e(f"s_lshl_b32 s{sT}, s{sT}, 2")
        else: e(f"s_lshl_b32 s{sT}, s{sN4}, 2")
        e(f"s_add_u32 s{sT}, s{sT}, s{fa[0]}")
        e(f"v_mov_b32 v{vF0}, {fa[1]}"); e(f"v_mov_b32 v{vF1}, 0x01010101")
        e("s_mov_b64 exec, 1")
        ins = f"buffer_store_dword v{vF1}, v{vF0}, s[{sWS}:{sWS+3}], s{sT} offen"
        self.emit(self.store(ins) if loc else [ins + " sc0 sc1"])
        e("s_mov_b64 exec, -1")
    def wg_flags(self, fg, fl):
        self.wg_flag_if(2, fl)
        if fg is not None: self.wg_flag_if(3, fg)
    def wg_flag_if(self, lw, fa):
        l = self.lab("wf")
        self.e(f"s_cmp_lg_u32 s{sLW}, {lw}"); self.e(f"s_cbranch_scc1 {l}")
        self.wg_flag(fa)
        self.label(l)
    def fl_addr(self, fa, nl):
        lim = f"s{nl[1]}" if isinstance(nl, tuple) else str(4 * (nl - 1))
        return [f"v_lshrrev_b32 v{vF0}, 2, v{vL16}", f"v_min_u32 v{vF0}, {lim}, v{vF0}", f"s_add_u32 s{sT}, s{fa[0]}, {fa[1] & 0xffffffff}"]
    def poll_flags(self, fa, nl):
        lp, ld = self.lab("poll"), self.lab("pd")
        self.emit(self.fl_addr(fa, nl))
        self.e(f"s_mov_b32 s{sT2}, {POLL}")
        self.label(lp)
        self.e(f"buffer_load_dword v{vF1}, v{vF0}, s[{sWS}:{sWS+3}], s{sT} offen sc0 sc1")
        self.e("s_waitcnt vmcnt(0)")
        self.e(f"v_cmp_ne_u32 vcc, 0x01010101, v{vF1}")
        self.e(f"s_cbranch_vccz {ld}")
        if self.opt.get("psleep", 1): self.e(f"s_sleep {int(self.opt.get('psleep', 1))}")
        self.e(f"s_sub_u32 s{sT2}, s{sT2}, 1")
        self.e(f"s_cmp_lg_u32 s{sT2}, 0")
        self.e(f"s_cbranch_scc1 {lp}")
        self.label(ld)
    def apoll_issue(self, vm, fa, nl, vP):
        self.emit(self.fl_addr(fa, nl))
        self.e(f"buffer_load_dword v{vP}, v{vF0}, s[{sWS}:{sWS+3}], s{sT} offen sc0 sc1"); vm.issue("ap")
    def apoll_check(self, vm, fa, nl, vP, skip=()):
        e = self.e; l = self.lab("ap")
        self.wait(vm.need("ap"))
        e(f"v_cmp_ne_u32 vcc, 0x01010101, v{vP}")
        e(f"s_cbranch_vccz {l}")
        for r, v in skip:
            e(f"s_cmp_eq_u32 s{r}, {v}"); e(f"s_cbranch_scc1 {l}")
        self.poll_flags(fa, nl)
        self.label(l)
    def round_bf16(self, v): return [f"v_cvt_pk_bf16_f32 v{v}, v{v}, v{v}", f"v_lshlrev_b32 v{v}, 16, v{v}"]
    def finish_stats(self, vs, vq):
        o = [f"v_mul_f32 v{vs}, 0x3a800000, v{vs}", f"v_mul_f32 v{vq}, 0x3a800000, v{vq}",
             f"v_fma_f32 v{vq}, -v{vs}, v{vs}, v{vq}", f"v_max_f32 v{vq}, 0, v{vq}"]
        o += self.round_bf16(vs) + self.round_bf16(vq)
        o += [f"v_add_f32 v{vq}, 0x{EPS_BITS:08x}, v{vq}"] + self.round_bf16(vq)
        o += [f"v_sqrt_f32 v{vq}, v{vq}", "s_nop 0"] + self.round_bf16(vq)
        o += [f"v_rcp_f32 v{vq}, v{vq}", "s_nop 0"]
        return o
    def xred(self, regs, tmps, op="v_add_f32", steps=("v_permlane16_swap_b32", "v_permlane32_swap_b32")):
        o = []
        for sw in steps:
            o += [f"v_mov_b32 v{t}, v{v}" for v, t in zip(regs, tmps)]
            o += ["s_nop 1"]
            o += [f"{sw} v{v}, v{t}" for v, t in zip(regs, tmps)]
            o += [f"{op} v{v}, v{v}, v{t}" for v, t in zip(regs, tmps)]
        return o

    def mix(self, dmas, side):
        if not dmas: return list(side)
        out = []; n = len(dmas); k = 0
        for i, d in enumerate(dmas):
            out.append(d)
            want = (len(side) * (i + 1)) // n
            out += side[k:want]; k = want
        return out

    def chunk(self, work, budget):
        out = []; c = 0
        while work and (c + work[0][0] <= budget or not out):
            k, it = work.pop(0); c += k; out.append(it)
        return out
    def atomize(self, instrs):
        tm = [f"s{sT}", f"s{sT2}", f"s{sT3}"]
        def toks(x): return re.findall(r"[a-z_0-9]+", x)
        n = len(instrs); end = list(range(n))
        for i, x in enumerate(instrs):
            if not isinstance(x, str) or not x.startswith("s_") or x.startswith(("s_waitcnt", "s_nop")): continue
            t = toks(x)
            if t[0].startswith("s_cmp"):
                for j in range(i + 1, n):
                    if isinstance(instrs[j], str) and instrs[j].startswith("s_cselect"): end[i] = j; break
                continue
            d = t[1]
            if d not in tm: continue
            for j in range(i + 1, n):
                y = instrs[j]
                if not isinstance(y, str): continue
                ty = toks(y)
                if d in ty[2:]: end[i] = j
                if ty[1:2] == [d] and y.startswith("s_"): break
        out = []; i = 0
        while i < n:
            k = end[i]; j = i
            while j < k:
                j += 1; k = max(k, end[j])
            out.append(instrs[i] if k == i else list(instrs[i:k + 1])); i = k + 1
        return out
    def costed(self, instrs):
        w = []
        for x in self.atomize(instrs):
            if isinstance(x, list) and all(isinstance(y, str) for y in x):
                w.append((sum(1 if y.startswith("v_") else 0.5 for y in x), x)); continue
            if isinstance(x, (list, tuple)): w.append((4, x))
            elif callable(x): w.append((4, x))
            elif x.startswith(("v_exp", "v_rcp", "v_sqrt")): w.append((2, x))
            elif x.startswith("v_"): w.append((1, x))
            else: w.append((0.5, x))
        return w
    def run_period(self, dmas, items):
        seq = self.mix(dmas, items)
        for x in seq:
            if callable(x): x()
            else: self.emit([x])

    def selector(self, S, t0, t1):
        o = [f"v_lshrrev_b32 v{t0}, 4, v{vL16}", f"v_and_b32 v{t1}, 1, v{t0}", f"v_lshlrev_b32 v{t1}, 4, v{t1}", f"v_lshlrev_b32 v{t1}, v{t1}, v{S}",
             f"v_bfe_u32 v{t0}, v{t0}, 1, 3"]
        o = [f"v_mov_b32 v{S}, 0x3f80"] + o
        for d in range(4): o += [f"v_cmp_eq_u32 vcc, {d}, v{t0}", "s_nop 1", f"v_cndmask_b32 v{S+d}, 0, v{t1}, vcc"]
        return o
    def side_flag(self, which):
        e = self.e
        e(f"v_mov_b32 v{vF0}, 0"); e(f"v_mov_b32 v{vF1}, 1"); e(f"s_lshl_b32 s{sT}, s2, 2"); e(f"s_add_u32 s{sT}, s{sT}, {WS_SF + 1024 * which}")
        e("s_mov_b64 exec, 1")
        e(f"buffer_store_dword v{vF1}, v{vF0}, s[{sWS}:{sWS+3}], s{sT} offen sc0 sc1")
        e("s_mov_b64 exec, -1")
    def apoll4_issue(self, vm, which, G):
        self.e(f"s_mov_b32 s{sT}, {WS_SF + 1024 * which}")
        self.e(f"buffer_load_dwordx4 v[{G}:{G+3}], v{vL16}, s[{sWS}:{sWS+3}], s{sT} offen sc0 sc1"); vm.issue("p4")
    def apoll4_check(self, vm, which, G, skip=()):
        e = self.e; l = self.lab("a4")
        self.wait(vm.need("p4"))
        for r, v in skip:
            e(f"s_cmp_eq_u32 s{r}, {v}"); e(f"s_cbranch_scc1 {l}")
        e(f"v_and_b32 v{G}, v{G}, v{G+1}"); e(f"v_and_b32 v{G+2}, v{G+2}, v{G+3}"); e(f"v_and_b32 v{G}, v{G}, v{G+2}")
        e(f"v_cmp_ne_u32 vcc, 1, v{G}")
        e(f"s_cbranch_vccz {l}")
        self.poll4(WS_SF + 1024 * which, None, G)
        self.label(l)

    def poll4(self, off, T0, G):
        e = self.e
        lp, ld = self.lab("p4"), self.lab("p4")
        e(f"s_mov_b32 s{sT}, {off}"); e(f"s_mov_b32 s{sT2}, {POLL}")
        self.label(lp)
        e(f"buffer_load_dwordx4 v[{G}:{G+3}], v{vL16}, s[{sWS}:{sWS+3}], s{sT} offen sc0 sc1")
        e("s_waitcnt vmcnt(0)")
        e(f"v_and_b32 v{G}, v{G}, v{G+1}"); e(f"v_and_b32 v{G+2}, v{G+2}, v{G+3}"); e(f"v_and_b32 v{G}, v{G}, v{G+2}")
        e(f"v_cmp_ne_u32 vcc, 1, v{G}")
        e(f"s_cbranch_vccz {ld}")
        e("s_sleep 1"); e(f"s_sub_u32 s{sT2}, s{sT2}, 1"); e(f"s_cmp_lg_u32 s{sT2}, 0"); e(f"s_cbranch_scc1 {lp}")
        self.label(ld)

    def grp(self, vm, tag, pre, ins, post=()):
        def f():
            vm.issue(tag); self.emit(list(pre) + [ins] + list(post))
        return f

    def w_unit(self, n, P):
        n = n % 132; slot = (n % 6) * WSLOT; tag = ("W", n)
        def lds(srd, pats, so): return [f"buffer_load_dwordx4 v{p}, s[{srd}:{srd+3}], s{so} offen{f' offset:{1024 * i}' if i else ''} lds" for i, p in enumerate(pats)]
        def adv(inc, msk): return [f"s_add_u32 s{sRw}, s{sRw}, {inc}", f"s_and_b32 s{sRw}, s{sRw}, {msk}"]
        def sinc(order, st):
            if st == 31: return []
            d = 1 if st % 2 == 0 else (2 * (uord(order[st // 2 + 1]) - uord(order[st // 2])) - 1) % 32
            return adv(d * 2048, 0xffff)
        ident = list(range(16))
        if n < 32:
            init = [f"s_lshl_b32 s{sRw}, s{self.rot0}, 12"] if n == 0 else []
            return tag, f"s_add_u32 m0, s{sM3}, {slot}", init + [f"s_mul_i32 s{sD0}, s{sRw}, 96"], lds(sQKV, P["g1"], sD0), sinc(ident, n)
        if n < 40:
            init = [f"s_lshl_b32 s{sRw}, s{sWM}, 1", f"s_add_u32 s{sRw}, s{sN4}, s{sRw}", f"s_and_b32 s{sRw}, s{sRw}, 15", f"s_lshl_b32 s{sRw}, s{sRw}, 17"] if n == 32 else []
            return tag, f"s_add_u32 m0, s{sM4}, {slot}", init, lds(sWO, P["g2"], sRw), adv((5 if n == 35 else 4) << 17, (16 << 17) - 1)
        if n < 72:
            init = [f"s_lshl_b32 s{sRw}, s{sN4}, 12"] if n == 40 else []
            return tag, f"s_add_u32 m0, s{sM4}, {slot}", init + [f"s_mul_i32 s{sD0}, s{sRw}, 112"], lds(sW3A, P["g3a"], sD0), sinc(ident, n - 40)
        if n < 104:
            st = n - 72; init = []
            if st in (0, self.xw0):
                assert st % 2 == 0
                init = [f"s_add_u32 s{sRw}, s{sN4}, {uord(BORD[st // 2])}", f"s_and_b32 s{sRw}, s{sRw}, 15", f"s_lshl_b32 s{sRw}, s{sRw}, 12"]
            ld = lds(sW3B, P["g3b"][:2], sD0) + [f"buffer_load_dwordx4 v{P['g3b'][2]}, s[{sWS}:{sWS+3}], s{sRw} offen offset:2048 lds"]
            return tag, f"s_add_u32 m0, s{sM3}, {slot}", init + [f"s_mul_i32 s{sD0}, s{sRw}, 112"], ld, sinc(BORD, st)
        u = n - 104
        if u < 24:
            p = u & 7; c = u >> 3
            colA = 224 * p + (96 if p & 1 else 0); colF = 224 * p + (32 if p & 1 else 128)
            row = [colA, colA + 32, colF][c]; base = sB6 if c < 2 else sB7
        else:
            row = 448 * (u - 24) + 192; base = sB7
        return tag, f"s_add_u32 m0, s{sM4}, {slot}", [f"s_add_u32 s{sD0}, s{base}, {row * 2048}"], lds(sW2, P["g4"], sD0), []

    def w_start(self, n, lim): self.wn = n; self.wlim = lim; self.wi = 0
    def w_take(self, vm, P, units, freed, extra=0):
        out = []; fresh = True; left = None
        while True:
            if self.wn - 6 > freed or self.wn >= self.wlim: break
            tag, m0, setup, ld, adv = self.w_unit(self.wn, P)
            if left is None: left = units * len(ld) + extra
            if left == 0: break
            i = self.wi; pre = []
            if i == 0: pre = (setup[:-1] + [m0, setup[-1]]) if setup else [m0, "s_nop 0"]
            elif fresh: pre = [m0, "s_nop 0"]
            out.append(self.grp(vm, tag if i == len(ld) - 1 else (tag, i), pre, ld[i], adv if i == len(ld) - 1 else ()))
            fresh = False; left -= 1; self.wi += 1
            if self.wi == len(ld): self.wi = 0; self.wn += 1
        return out
    def wneed(self, n):
        assert n < self.wn, (n, self.wn)
        return ("W", n % 132)

    def a_issue(self, vm, tag, slot, vA, glit=None, inc=None, part=None, srd=sWS, pats=None, lbase=None):
        pats = pats or [vA] * 4
        lb = LA + slot * 16384 if lbase is None else lbase
        so = sRa if glit is None else sDa
        g = []
        for i in (range(4) if part is None else (2 * part, 2 * part + 1)):
            pre = []
            if i == 0 or (part == 1 and i == 2):
                pre = [f"s_add_u32 m0, s{sM4}, {lb}", f"s_mov_b32 s{sDa}, {glit}" if glit is not None else "s_nop 0"]
            off = f" offset:{1024 * i}" if i else ""
            g.append(self.grp(vm, tag, pre, f"buffer_load_dwordx4 v{pats[i]}, s[{srd}:{srd+3}], s{so} offen{off} lds", inc if (i == 3 and inc) else ()))
        return g
    def ainc(self, d, stride=16384):
        return [f"s_add_u32 s{sRa}, s{sRa}, {(d % 16) * stride}", f"s_and_b32 s{sRa}, s{sRa}, {16 * stride - 1}"]

    def reloc(self, dst, src, mask, sidx, off, size):
        if self.opt.get("norel"): mask = 0
        o = [f"s_add_u32 s{sT}, s{sWS}, {off}", f"s_addc_u32 s{sT2}, s{sWS+1}, 0", f"s_lshr_b32 s{sT3}, {mask}, s{sidx}", f"s_and_b32 s{sT3}, s{sT3}, 1",
             f"s_cselect_b32 s{dst}, s{sT}, s{src}", f"s_cselect_b32 s{dst+1}, s{sT2}, s{src+1}"]
        if dst != src: o += [f"s_mov_b32 s{dst+2}, {size}", f"s_mov_b32 s{dst+3}, 0x00020000"]
        return o
    def reloc13(self, dst, mask):
        return [f"s_lshl_b32 s{sD1}, s{sWM}, 23", f"s_add_u32 s{sD1}, s{sD1}, {WS_C13 + 256}"] + self.reloc(dst, sW13, mask, sNT, f"s{sD1}", 1024 * 7168)
    def reloc2(self): return self.reloc(sW2, sW2, 0x0c0c, sN4, WS_C2 + 256, 0)

    def swz128(self, t0, t1, t2):
        return [f"v_lshrrev_b32 v{t0}, 7, v{vL16}", f"v_and_b32 v{t1}, 0x70, v{vL16}",
                f"v_and_b32 v{t2}, 6, v{t0}", f"v_lshlrev_b32 v{t2}, 4, v{t2}", f"v_xor_b32 v{t1}, v{t1}, v{t2}"]
    def pat_g1(self, P, t0, t1, t2, first):
        o = self.swz128(t0, t1, t2)
        if first: o += [f"v_and_b32 v{t2}, 4, v{t0}", f"v_add_u32 v{t0}, v{t0}, v{t2}"]
        o += [f"v_mul_u32_u24 v{t0}, 6144, v{t0}", f"v_add3_u32 v{t0}, v{t0}, v{t1}, s{sB1}"]
        for i in range(3):
            o += [f"s_lshr_b32 s{sT}, s{sM3}, 10", f"s_add_u32 s{sT}, s{sT}, {i}", f"s_and_b32 s{sT2}, s{sT}, 3"]
            if first: o += [f"s_and_b32 s{sT3}, s{sT2}, 1", f"s_lshl_b32 s{sT3}, s{sT3}, 4", f"s_and_b32 s{sT2}, s{sT2}, 2", f"s_lshl_b32 s{sT2}, s{sT2}, 1", f"s_add_u32 s{sT2}, s{sT2}, s{sT3}"]
            else: o += [f"s_lshl_b32 s{sT2}, s{sT2}, 3"]
            o += [f"s_mul_i32 s{sT2}, s{sT2}, 6144", f"s_lshr_b32 s{sT}, s{sT}, 2", f"s_lshl_b32 s{sT}, s{sT}, 11", f"s_add_u32 s{sT}, s{sT}, s{sT2}",
                  f"s_sub_u32 s{sT}, s{sT}, {1024 * i}", f"v_add_u32 v{P['g1'][i]}, s{sT}, v{t0}"]
        return o
    def pat_128(self, regs, pitch, t0, t1, t2, sb):
        o = self.swz128(t0, t1, t2) + [f"v_mul_u32_u24 v{t0}, {pitch}, v{t0}", f"v_add3_u32 v{regs[0]}, v{t0}, v{t1}, s{sb}"]
        for i in range(1, len(regs)): o.append(f"v_add_u32 v{regs[i]}, {i * (8 * pitch - 1024)}, v{regs[0]}")
        return o
    def pat_g3b(self, regs, t0, t1, t2):
        return self.pat_128(regs[:2], 7168, t0, t1, t2, sB4) + [f"v_add_u32 v{regs[2]}, s{sB5}, v{vL16}"]
    def pat_256(self, regs, pitch, t0, t1, t2, sb=None):
        o = [f"v_and_b32 v{t1}, 0xf0, v{vL16}", f"v_lshrrev_b32 v{t0}, 8, v{vL16}", f"v_lshlrev_b32 v{t2}, 5, v{t0}", f"v_xor_b32 v{t1}, v{t1}, v{t2}",
             f"v_mul_u32_u24 v{t0}, {pitch}, v{t0}"] + ([f"v_add_u32 v{t0}, s{sb}, v{t0}"] if sb else []) + [f"v_add_u32 v{regs[0]}, v{t0}, v{t1}",
             f"v_xor_b32 v{t1}, 0x80, v{t1}", f"v_add_u32 v{t0}, v{t0}, v{t1}", f"v_add_u32 v{regs[1]}, {4 * pitch - 1024}, v{t0}"]
        for i in (2, 3): o.append(f"v_add_u32 v{regs[i]}, {8 * pitch - 2048}, v{regs[i-2]}")
        return o
    def bases(self):
        e = self.e
        e(f"s_lshl_b32 s{sB1}, s{sN4}, 7")
        e(f"s_lshl_b32 s{sT}, s{sWN}, 16"); e(f"s_add_u32 s{sB2}, s{sB1}, s{sT}")
        e(f"s_mul_i32 s{sT}, s{sWN}, {16 * 7168}"); e(f"s_mul_i32 s{sT2}, s{sNT}, 448"); e(f"s_add_u32 s{sT}, s{sT}, s{sT2}")
        e(f"s_and_b32 s{sT2}, s{sNT}, 1"); e(f"s_mul_i32 s{sT2}, s{sT2}, 192")
        e(f"s_add_u32 s{sB3}, s{sT}, s{sT2}"); e(f"s_sub_u32 s{sB4}, s{sT}, s{sT2}"); e(f"s_add_u32 s{sB4}, s{sB4}, 256")
        e(f"s_lshl_b32 s{sT}, s{sWM}, 4"); e(f"s_add_u32 s{sT}, s{sT}, s{sNT}"); e(f"s_lshl_b32 s{sT}, s{sT}, 6"); e(f"s_add_u32 s{sT}, s{sT}, s{sWN}")
        e(f"s_lshl_b32 s{sT}, s{sT}, 10"); e(f"s_add_u32 s{sB5}, s{sT}, {WS_RT - 2048}")
        e(f"s_and_b32 s{sT}, s{sN4}, 1"); e(f"s_mul_i32 s{sT}, s{sT}, {1792 * 2048}"); e(f"s_lshr_b32 s{sT2}, s{sN4}, 1"); e(f"s_lshl_b32 s{sT2}, s{sT2}, 8")
        e(f"s_add_u32 s{sT}, s{sT}, s{sT2}"); e(f"s_lshl_b32 s{sT2}, s{sWN}, 15"); e(f"s_add_u32 s{sT}, s{sT}, s{sT2}")
        e(f"s_lshl_b32 s{sT2}, s{sWM}, 16"); e(f"s_add_u32 s{sB7}, s{sT}, s{sT2}"); e(f"s_add_u32 s{sB6}, s{sB7}, s{sT2}")

    def step(self, path, name, mf, reads, vmw=None, bar=True, last=None, extra=None):
        self.wait(vmw, 0)
        if bar: self.bar(path, name)
        self.al()
        oth = [[r] for r in reads]
        if last is None: last = len(reads) - 1
        sl = spread(len(reads), 0, last)
        if extra:
            for s, x in extra:
                oth.append(x + [".p2align 3"]); sl.append(s)
        self.emit(place(mf, oth, sl))

    def looped(self, path, nsteps, body, fn, pre=1):
        trips = (nsteps - pre - 1) // body
        l = self.lab("loop")
        self.e(f"s_mov_b32 s{sCnt}, {trips}")
        for s in range(pre): fn(s, None)
        self.emit([".p2align 3", "#LOOP"])
        self.label(l)
        nb0 = len(self.bars.get(path, []))
        for s in range(pre, pre + body): fn(s, "cnt" if s == pre + body - 1 else None)
        self.e(f"s_cbranch_scc1 {l}")
        self.emit(["#ENDLOOP"])
        names = self.bars[path][nb0:]
        for t in range(1, trips):
            for nm in names: self.bars[path].append((nm[0], nm[1] + t * len(names)))
        for s in range(pre + trips * body, nsteps): fn(s, None)

    CNT = [f"s_sub_u32 s{sCnt}, s{sCnt}, 1", f"s_cmp_lg_u32 s{sCnt}, 0"]

    def xcc_word(self, r):
        return [f"s_getreg_b32 s{r}, hwreg(HW_REG_XCC_ID, 0, 4)"] + ([f"s_lshr_b32 s{r}, s2, 7"] if self.opt.get("slow") else []) + \
               [f"s_mul_i32 s{sT}, s{r}, s{r}", f"s_lshl_b32 s{sT}, s{sT}, 15", f"s_lshl_b32 s{r}, s{r}, 6", f"s_add_u32 s{r}, s{r}, s{sT}", f"s_add_u32 s{r}, s{r}, 1"]

    def x_prep(self):
        e = self.e
        l3, ld = self.lab("xp"), self.lab("xp")
        D = 0; AC = 64; T = 80
        vO, vS0, vS1, vS2 = 100, 235, 102, 103
        lz = self.lab("xz")
        e(f"s_cmp_lg_u32 s{sLW}, 0"); e(f"s_cbranch_scc1 {lz}")
        e(f"v_mov_b32 v{vS2}, 0"); e(f"v_lshrrev_b32 v{vO}, 2, v{vL16}")
        e(f"s_lshl_b32 s{sT}, s2, 8"); e(f"s_add_u32 s{sT}, s{sT}, {WS_FL}")
        e(f"buffer_store_dword v{vS2}, v{vO}, s[{sWS}:{sWS+3}], s{sT} offen sc0 sc1")
        e(f"v_lshlrev_b32 v{vO}, 6, v{vL16}")
        e(f"s_lshl_b32 s{sT}, s2, 2"); e(f"s_add_u32 s{sT}, s{sT}, {WS_SF}")
        e("s_mov_b64 exec, 15")
        e(f"buffer_store_dword v{vS2}, v{vO}, s[{sWS}:{sWS+3}], s{sT} offen sc0 sc1")
        e("s_mov_b64 exec, -1")
        self.label(lz)
        e(f"s_getpc_b64 s[{sAT}:{sAT+1}]")
        self.label("K_pc")
        e(f"s_mov_b32 s{sAT+2}, K_end-K_pc")
        e(f"s_mov_b32 s{sAT+3}, 0x00020000")
        e(f"s_lshr_b32 s{sT}, s2, 3"); e(f"s_lshl_b32 s{sT}, s{sT}, 2"); e(f"s_add_u32 s{sT}, s{sT}, s{sLW}"); e(f"s_lshl_b32 s{sT}, s{sT}, 10")
        e(f"v_lshlrev_b32 v{vO}, 3, v{vL16}")
        e("s_mov_b64 exec, 0xff")
        e(f"buffer_load_dword v{vS0}, v{vO}, s[{sAT}:{sAT+3}], s{sT} offen")
        e("s_mov_b64 exec, -1")
        lz = self.lab("xz")
        e(f"s_cmp_lg_u32 s{sLW}, 0"); e(f"s_cbranch_scc1 {lz}")
        self.emit(self.xcc_word(sD0))
        e(f"v_mov_b32 v{vF1}, s{sD0}"); e(f"s_and_b32 s{sT}, s2, 7"); e(f"s_lshl_b32 s{sT}, s{sT}, 5"); e(f"v_mov_b32 v{vF0}, 0")
        e("s_waitcnt vmcnt(1)")
        e("s_mov_b64 exec, 1")
        e(f"buffer_atomic_add v{vF1}, v{vF0}, s[{sDBG}:{sDBG+3}], s{sT} offen sc1")
        e("s_mov_b64 exec, -1")
        self.label(lz)

    def out_addr(self, T0, T1, sd):
        return [f"v_and_b32 v{T0}, 0xf0, v{vL16}", f"v_lshlrev_b32 v{T0}, 7, v{T0}",
                f"v_and_b32 v{T1}, 0x100, v{vL16}", f"v_lshrrev_b32 v{T1}, 3, v{T1}", f"v_add_u32 v{T0}, v{T0}, v{T1}",
                f"v_and_b32 v{T1}, 0x200, v{vL16}", f"v_lshrrev_b32 v{T1}, 5, v{T1}", f"v_add_u32 v{T0}, v{T0}, v{T1}",
                f"s_lshl_b32 s{sd}, s{sMT}, 18", f"s_lshl_b32 s{sT2}, s{sWM}, 17", f"s_add_u32 s{sd}, s{sd}, s{sT2}",
                f"s_lshl_b32 s{sT2}, s{sN4}, 7", f"s_add_u32 s{sd}, s{sd}, s{sT2}", f"s_lshl_b32 s{sT2}, s{sWN}, 6", f"s_add_u32 s{sd}, s{sd}, s{sT2}"]

    def waddr128(self, dst, sel, t0, t1, t2, nt=2):
        e = self.e
        e(f"v_lshrrev_b32 v{t0}, 6, v{vL16}")
        e(f"v_lshrrev_b32 v{t1}, 1, v{t0}"); e(f"v_and_b32 v{t1}, 3, v{t1}")
        e(f"s_lshl_b32 s{sT}, s{sel}, 1")
        e(f"v_xor_b32 v{t1}, s{sT}, v{t1}")
        e(f"v_lshlrev_b32 v{t0}, 7, v{t0}")
        e(f"v_lshl_add_u32 v{t0}, v{t1}, 5, v{t0}")
        e(f"v_and_b32 v{t1}, 0x30, v{vL16}"); e(f"v_lshrrev_b32 v{t1}, 1, v{t1}")
        e(f"v_add_u32 v{dst}, v{t0}, v{t1}")
        e(f"v_xor_b32 v{dst+1}, 32, v{dst}")
        for t in range(2): e(f"v_add_u32 v{dst+2+t}, {3 * WSLOT}, v{dst+t}")

    def waddr256(self, dst, xs, sbase, t0, t1):
        o = [f"v_lshrrev_b32 v{t0}, 6, v{vL16}", f"v_and_b32 v{t1}, 7, v{t0}", f"v_xor_b32 v{t1}, s{sbase}, v{t1}",
             f"v_lshlrev_b32 v{t0}, 8, v{t0}", f"v_lshl_add_u32 v{t0}, v{t1}, 5, v{t0}",
             f"v_and_b32 v{t1}, 0x30, v{vL16}", f"v_lshrrev_b32 v{t1}, 1, v{t1}", f"v_add_u32 v{t0}, v{t0}, v{t1}"]
        for t in range(4): o.append(f"v_xor_b32 v{dst+t}, {xs[t] << 5}, v{t0}")
        for t in range(4): o.append(f"v_add_u32 v{dst+4+t}, {3 * WSLOT}, v{dst+t}")
        return o

    def x_g1(self):
        e = self.e; P = "X"
        ACCQ, ACCK, ACCV, XF, WF = 0, 32, 72, 112, 152
        vXa, vWa = 200, 202
        vL, vG, vI, vT0, vT1, vT2, vT3, vOA = 206, 207, 208, 209, 210, 211, 212, 213
        def aq(j, ab): return ACCQ + ((j - 1) * 2 + ab) * 4
        def ak(j, ab): return ACCK + (j * 2 + ab) * 4
        def av(j, ab): return ACCV + (j * 2 + ab) * 4
        def xf(b, j): return XF + b * 20 + j * 4
        def wf(b, seg, ab): return WF + b * 24 + (seg * 2 + ab) * 4
        self.lanes(vL, vG, vI)
        l2, l3 = self.lab("g1"), self.lab("g1")
        e(f"s_lshl_b32 s{sT}, s{sWM}, 13"); e(f"s_add_u32 s{sT}, s{sT}, {LA}")
        e(f"s_cmp_lg_u32 s{sLAY}, 0"); e(f"s_cbranch_scc1 {l2}")
        e(f"v_and_b32 v{vT1}, 6, v{vI}"); e(f"v_xor_b32 v{vT1}, v{vT1}, v{vG}"); e(f"v_lshlrev_b32 v{vT1}, 4, v{vT1}")
        e(f"v_lshl_add_u32 v{vXa}, v{vI}, 7, v{vT1}"); e(f"v_xor_b32 v{vXa+1}, 64, v{vXa}")
        e(f"s_branch {l3}")
        self.label(l2)
        e(f"v_mov_b32 v{vXa}, v{vL16}"); e(f"v_add_u32 v{vXa+1}, 1024, v{vL16}")
        self.label(l3)
        e(f"v_add_u32 v{vXa}, s{sT}, v{vXa}"); e(f"v_add_u32 v{vXa+1}, s{sT}, v{vXa+1}")
        self.waddr128(vWa, sWN, vT0, vT1, vT2)
        e(f"s_add_u32 s{sGa}, s{sTile}, s{sOo}")
        SEL, vQa, vVa, vCq, vCv, ONES = 214, 218, 219, 220, 221, 222
        sM = sAT; sOdd = sAT + 8; sInv = sAT + 10
        e(f"v_lshlrev_b32 v{vT0}, 2, v{vG}"); e(f"v_sub_u32 v{vT0}, v{vI}, v{vT0}")
        for r in range(4): e(f"v_cmp_le_i32 s[{sM+2*r}:{sM+2*r+1}], {r}, v{vT0}")
        e(f"v_and_b32 v{vT1}, 1, v{vI}"); e(f"v_cmp_eq_u32 s[{sOdd}:{sOdd+1}], 1, v{vT1}")
        e(f"v_sub_u32 v{vT0}, v{vT0}, v{vT1}")
        e(f"v_mov_b32 v{vT3}, 0x0c0c0c0c")
        for k in range(2):
            e(f"v_mov_b32 v{vT1}, {hex([0x0c0c0100, 0x0c0c0302][k])}"); e(f"v_mov_b32 v{vT2}, {hex([0x01000c0c, 0x03020c0c][k])}")
            e(f"v_cmp_le_i32 vcc, {2 * k}, v{vT0}")
            e(f"v_cndmask_b32 v{vT1}, v{vT1}, v{vT2}, s[{sOdd}:{sOdd+1}]")
            e(f"s_not_b64 s[{sInv+2*k}:{sInv+2*k+1}], vcc")
            e(f"v_cndmask_b32 v{SEL+k}, v{vT1}, v{vT3}, vcc")
            e(f"v_cndmask_b32 v{SEL+2+k}, v{vT3}, v{vT1}, vcc")
        e(f"s_or_b32 s{sT}, s{sMT}, s{sWM}"); e(f"s_cmp_eq_u32 s{sT}, 0")
        for k in range(2): e(f"s_cselect_b64 s[{sInv+2*k}:{sInv+2*k+1}], s[{sInv+2*k}:{sInv+2*k+1}], 0")
        e(f"s_lshl_b32 s{sT}, s{sWM}, 8"); e(f"s_add_u32 s{sT}, s{sT}, {L_ST}")
        e(f"v_lshlrev_b32 v{vQa}, 2, v{vI}"); e(f"v_add_u32 v{vQa}, s{sT}, v{vQa}")
        e(f"v_lshlrev_b32 v{vVa}, 4, v{vG}"); e(f"v_add_u32 v{vVa}, s{sT}, v{vVa}")
        e(f"s_lshl_b32 s{sT}, s{sWN}, 7"); e(f"s_add_u32 s{sT}, s{sT}, {L_CSQ}")
        e(f"v_lshlrev_b32 v{vCq}, 4, v{vG}"); e(f"v_add_u32 v{vCq}, s{sT}, v{vCq}")
        e(f"v_lshlrev_b32 v{vCv}, 2, v{vI}"); e(f"v_add_u32 v{vCv}, s{sT}, v{vCv}")
        for i in range(4): e(f"v_mov_b32 v{ONES+i}, 0x3f803f80")
        e(f"v_mov_b32 v{vOA}, {L_MODE}")
        self.emit(self.out_addr(vL, vT1, sDa))
        CS, CSV, NMq, RSq, NMv, RSv = 152, 168, 112, 118, 132, 176
        tab = [f"ds_read_b128 v[{CS+4*k}:{CS+4*k+3}], v{vCq} offset:{256 * (k >> 1) + 64 * (k & 1)}" for k in range(4)]
        tab += [f"ds_read_b32 v{NMq+j}, v{vQa} offset:{64 * j}" for j in range(5)]
        tab += [f"ds_read_b32 v{RSq+j}, v{vQa} offset:{576 + 64 * j}" for j in range(5)]
        tab += [f"ds_read_b32 v{CSV+ab}, v{vCv} offset:{512 + 64 * ab}" for ab in range(2)]
        tab += [f"ds_read_b32 v170, v{vOA}"]
        def reads(s):
            b = s & 1; u = s >> 1; sl = s % 6
            xr = [f"ds_read_b128 v[{xf(b,j)}:{xf(b,j)+3}], v{vXa + (s & 1)} offset:{(u % 3) * 18432 + j * 2048}" for j in range(5)]
            wr = []
            for seg in range(3):
                for ab in range(2):
                    r = wf(b, seg, ab); ad = vWa + 2 * (sl // 3) + ab; off = (sl % 3) * WSLOT + seg * 4096
                    wr.append(f"ds_read_b64_tr_b16 v[{r}:{r+1}], v{ad} offset:{off}")
                    wr.append(f"ds_read_b64_tr_b16 v[{r+2}:{r+3}], v{ad} offset:{off + 2048}")
            return wr[0:2] + xr[1:] + wr[2:6] + xr[0:1] + wr[6:]
        def mf(s):
            b = s & 1; m = []; c = "0" if s == 0 else None
            for ab in range(2):
                for j in snake((1, 2, 3, 4), ab): m.append(mfma(aq(j, ab), wf(b, 0, ab), xf(b, j), c))
            for ab in range(2):
                for j in snake((1, 2, 3, 4, 0), ab): m.append(mfma(ak(j, ab), wf(b, 1, ab), xf(b, j), c))
            for ab in range(2):
                for j in snake(range(5), ab): m.append(mfma(av(j, ab), xf(b, j), wf(b, 2, ab), c))
            return m
        lq = self.lab("g1")
        e(f"s_cmp_eq_u32 s{sLAY}, 0"); e(f"s_cbranch_scc1 {lq}")
        e("s_waitcnt vmcnt(0) lgkmcnt(0)"); e("s_barrier")
        self.wg_flags(self.FG(4), self.FL(0, 64))
        self.stats_out(sSTo, 226)
        self.label(lq)
        self.ts(0)
        self.bar(P, ("G1", -1))
        self.ts(1); self.tsc(16)
        self.emit(reads(0))
        def fn(s, ex):
            extra = []
            if ex: extra.append((24, self.CNT))
            if s == 31:
                lr = self.lab("g1"); x = [f"s_cmp_lg_u32 s{sLAY}, 0", f"s_cbranch_scc1 {lr}"]
                for rt in range(4):
                    x += [f"buffer_load_dwordx4 v[{236+4*rt}:{239+4*rt}], v{vL}, s[{sX0}:{sX0+3}], s{sDa} offen", f"s_add_u32 s{sDa}, s{sDa}, {16 * 2048}"]
                extra.append((25, x + [f"@{lr}"]))
            self.step(P, ("G1", s), mf(s), reads(s + 1) if s < 31 else tab, vmw=(0 if s == 2 else None), last=20, extra=extra)
        self.looped(P, 32, 6, fn)
        self.ts(2); self.tsc(17)
        def pk(op, d, srcs):
            ops = []; sel = []; selhi = []
            for kind, r in srcs:
                if kind == 'p': ops.append(f"v[{r}:{r+1}]"); sel.append(0); selhi.append(1)
                else: ops.append(f"v[{r & ~1}:{(r & ~1) + 1}]"); sel.append(r & 1); selhi.append(r & 1)
            e(f"{op} v[{d}:{d+1}], " + ", ".join(ops) + f" op_sel:[{','.join(map(str, sel))}] op_sel_hi:[{','.join(map(str, selhi))}]")
        e("s_waitcnt lgkmcnt(0)")
        self.al()
        for j in range(5):
            e(f"ds_read_b128 v[{NMv+4*j}:{NMv+4*j+3}], v{vVa} offset:{64 * j}")
            e(f"ds_read_b128 v[{RSv+4*j}:{RSv+4*j+3}], v{vVa} offset:{576 + 64 * j}")
        def pack4(b):
            for i in range(4): e(f"v_cvt_pk_bf16_f32 v{b+i}, v{b+2*i}, v{b+2*i+1}")
        for j in range(1, 5):
            b = aq(j, 0)
            for i in range(4): pk("v_pk_fma_f32", b + 2 * i, [('b', NMq + j), ('p', CS + 2 * i), ('p', b + 2 * i)])
        for j in range(5):
            b = ak(j, 0)
            for i in range(4): pk("v_pk_fma_f32", b + 2 * i, [('b', NMq + j), ('p', CS + 8 + 2 * i), ('p', b + 2 * i)])
        for j in range(1, 5): pack4(aq(j, 0))
        for j in range(5):
            b = ak(j, 0)
            for i in range(4): pk("v_pk_mul_f32", b + 2 * i, [('b', RSq + j), ('p', b + 2 * i)])
        for j in range(5): pack4(ak(j, 0))
        e(f"v_readfirstlane_b32 s{sMODE}, v170")
        e("s_waitcnt lgkmcnt(0)")
        def Sc(j): return aq(j, 1)
        def Sp(j): return ak(j, 1)
        for j in range(1, 5):
            e(mfma(Sc(j), ak(j, 0), aq(j, 0), "0"))
            e(mfma(Sp(j), ak(j - 1, 0), aq(j, 0), "0"))
        VP = [226, 152]
        for j in range(5):
            for ab in range(2):
                c = av(j, ab)
                for r in (0, 2): pk("v_pk_fma_f32", c + r, [('p', NMv + 4 * j + r), ('b', CSV + ab), ('p', c + r)])
        J = range(1, 5)
        for j in J:
            for r in range(4): e(f"v_cndmask_b32 v{Sp(j)+r}, v{Sp(j)+r}, v{Sc(j)+r}, s[{sM+2*r}:{sM+2*r+1}]")
        for j in J:
            e(f"v_cndmask_b32 v{Sp(j)}, v{Sp(j)}, v{Sp(j)+1}, s[{sOdd}:{sOdd+1}]")
            e(f"v_cndmask_b32 v{Sp(j)+1}, v{Sp(j)+2}, v{Sp(j)+3}, s[{sOdd}:{sOdd+1}]")
        e(f"v_mov_b32 v{vT0}, 0xf149f2ca")
        for k in range(2): e(f"v_cndmask_b32 v{Sp(1)+k}, v{Sp(1)+k}, v{vT0}, s[{sInv+2*k}:{sInv+2*k+1}]")
        MX = {j: Sp(j) + 2 for j in J}
        for j in J: e(f"v_max_f32 v{MX[j]}, v{Sp(j)}, v{Sp(j)+1}")
        fill = []
        for j in range(5):
            for ab in range(2):
                c = av(j, ab)
                for r in (0, 2): fill.append((c + r, RSv + 4 * j + r))
        def F(n):
            for _ in range(n):
                d, r = fill.pop(0); pk("v_pk_mul_f32", d, [('p', r), ('p', d)])
        F(2)
        e(f"v_permlane32_swap_b32 v{MX[1]}, v{MX[3]}"); e(f"v_permlane32_swap_b32 v{MX[2]}, v{MX[4]}")
        e(f"v_max_f32 v{MX[1]}, v{MX[1]}, v{MX[3]}"); e(f"v_max_f32 v{MX[2]}, v{MX[2]}, v{MX[4]}")
        F(2)
        e(f"v_permlane16_swap_b32 v{MX[1]}, v{MX[2]}")
        e(f"v_max_f32 v{MX[1]}, v{MX[1]}, v{MX[2]}")
        e(f"v_mov_b32 v{MX[2]}, v{MX[1]}")
        F(2)
        e(f"v_permlane16_swap_b32 v{MX[1]}, v{MX[2]}")
        e(f"v_mov_b32 v{MX[3]}, v{MX[1]}"); e(f"v_mov_b32 v{MX[4]}, v{MX[2]}")
        F(2)
        e(f"v_permlane32_swap_b32 v{MX[1]}, v{MX[3]}"); e(f"v_permlane32_swap_b32 v{MX[2]}, v{MX[4]}")
        sc = f32bits((32 ** -0.5) * 1.4426950408889634)
        for j in J: e(f"v_mul_f32 v{RSq+j}, 0x{sc:08x}, v{RSq+j}")
        for j in J:
            for k in range(2): e(f"v_sub_f32 v{Sp(j)+k}, v{Sp(j)+k}, v{MX[j]}")
        for j in J:
            for k in range(2): e(f"v_mul_f32 v{Sp(j)+k}, v{RSq+j}, v{Sp(j)+k}")
        for j in J:
            for k in range(2): e(f"v_exp_f32 v{Sp(j)+k}, v{Sp(j)+k}")
        self.al()
        F(len(fill))
        for j in J: e(f"v_cvt_pk_bf16_f32 v{Sp(j)}, v{Sp(j)}, v{Sp(j)+1}")
        for j in range(5):
            for ab in range(2):
                c = av(j, ab)
                e(f"v_cvt_pk_bf16_f32 v{VP[ab]+2*j}, v{c}, v{c+1}"); e(f"v_cvt_pk_bf16_f32 v{VP[ab]+2*j+1}, v{c+2}, v{c+3}")
        for j in J:
            for k in range(4): e(f"v_perm_b32 v{Sc(j)+k}, v{Sp(j)}, v{Sp(j)}, v{SEL+k}")
        def OO(j): return 72 + 8 * (j - 1)
        e(f"s_add_u32 s{sT}, s{sGa}, 4096")
        for j in J: e(mfma(aq(j, 0), ONES, Sc(j), "0"))
        for j in J:
            for ab in range(2): e(mfma(OO(j) + 4 * ab, VP[ab] + 2 * (j - 1), Sc(j), "0"))
        for j in J: e(f"v_rcp_f32 v{aq(j,0)}, v{aq(j,0)}")
        for j in J:
            if j == 4: e("s_nop 1")
            for i in range(4): pk("v_pk_mul_f32", OO(j) + 2 * i, [('b', aq(j, 0)), ('p', OO(j) + 2 * i)])
            pack4(OO(j))
            e(f"buffer_store_dwordx4 v[{OO(j)}:{OO(j)+3}], v{vL16}, s[{sWS}:{sWS+3}], s{sGa if j < 3 else sT} offen offset:{2048 * ((j - 1) & 1)} sc0 sc1")
        self.ts(3)

    def silu_group(self, cg, cu, E, RL, I2, O, NM=None, sg=None, su=None):
        o = []
        if NM is not None: o += [f"v_fmac_f32 v{cg+r}, v{NM}, v{sg+r}" for r in range(4)]
        o += [f"v_mul_f32 v{E+r}, v{RL}, v{cg+r}" for r in range(4)]
        if NM is not None: o += [f"v_fmac_f32 v{cu+r}, v{NM}, v{su+r}" for r in range(4)]
        o += [f"v_exp_f32 v{E+r}, v{E+r}" for r in range(4)]
        o += [f"v_mul_f32 v{cg+r}, v{cg+r}, v{cu+r}" for r in range(4)]
        o += [f"v_fma_f32 v{E+r}, v{E+r}, v{I2}, v{I2}" for r in range(4)]
        o += [f"v_rcp_f32 v{E+r}, v{E+r}" for r in range(4)]
        o += [f"v_mul_f32 v{cg+r}, v{cg+r}, v{E+r}" for r in range(4)]
        o += [f"v_cvt_pk_bf16_f32 v{O}, v{cg}, v{cg+1}", f"v_cvt_pk_bf16_f32 v{O+1}, v{cg+2}, v{cg+3}"]
        return o

    def stat_regs(self, MR, NM, RL, I2, t0):
        o = [f"s_lshl_b32 s{sT}, s{sWM}, 9", f"s_add_u32 s{sT}, s{sT}, {L_ST}", f"v_and_b32 v{t0}, 0xf0, v{vL16}", f"v_lshrrev_b32 v{t0}, 1, v{t0}",
             f"v_add_u32 v{t0}, s{sT}, v{t0}"]
        o += [f"ds_read_b64 v[{MR+2*rt}:{MR+2*rt+1}], v{t0} offset:{128*rt}" for rt in range(4)]
        o += ["s_waitcnt lgkmcnt(0)"]
        for rt in range(4):
            o += [f"v_sub_f32 v{NM+rt}, 0, v{MR+2*rt}", f"v_mul_f32 v{RL+rt}, 0xbfb8aa3b, v{MR+2*rt+1}", f"v_mul_f32 v{I2+rt}, v{MR+2*rt+1}, v{MR+2*rt+1}"]
        o += [f"v_rcp_f32 v{I2+rt}, v{I2+rt}" for rt in range(4)] + ["s_nop 0"]
        return o

    def unpack(self, dst, src):
        return [f"v_lshlrev_b32 v{dst}, 16, v{src}", f"v_and_b32 v{dst+1}, 0xffff0000, v{src}"]

    def res_epilogue(self, acc, sX, PK, T):
        e = self.e
        e(f"s_add_u32 s{sD0}, s{sTile}, s{sX}"); e(f"s_add_u32 s{sD1}, s{sD0}, 4096")
        for rt in range(4):
            for t in range(2):
                c = acc(t, rt)
                e(f"v_cvt_pk_bf16_f32 v{PK+4*rt+2*t}, v{c}, v{c+1}"); e(f"v_cvt_pk_bf16_f32 v{PK+4*rt+2*t+1}, v{c+2}, v{c+3}")
            e(f"buffer_store_dwordx4 v[{PK+4*rt}:{PK+4*rt+3}], v{vL16}, s[{sWS}:{sWS+3}], s{sD0 + (rt >> 1)} offen offset:{2048 * (rt & 1)} sc0 sc1")
        S = T; Q = T + 4; ON = T + 8
        e(f"v_mov_b32 v{ON}, 0x3f803f80")
        for i in range(4):
            for rt in range(4):
                e(f"v_dot2_f32_bf16 v{S+rt}, v{PK+4*rt+i}, v{ON}, {f'v{S+rt}' if i else 0}")
                e(f"v_dot2_f32_bf16 v{Q+rt}, v{PK+4*rt+i}, v{PK+4*rt+i}, {f'v{Q+rt}' if i else 0}")
        e(f"s_lshl_b32 s{sT}, s{sLW}, 9"); e(f"s_add_u32 s{sT}, s{sT}, {L_SS}")
        e("s_nop 1")
        for B in (S, Q):
            e(f"v_permlane32_swap_b32 v{B}, v{B+2}"); e(f"v_permlane32_swap_b32 v{B+1}, v{B+3}")
        for B in (S, Q):
            e(f"v_add_f32 v{B}, v{B}, v{B+2}"); e(f"v_add_f32 v{B+1}, v{B+1}, v{B+3}")
        e(f"v_lshrrev_b32 v{ON}, 1, v{vL16}"); e(f"v_add_u32 v{ON}, s{sT}, v{ON}")
        for B in (S, Q): e(f"v_permlane16_swap_b32 v{B}, v{B+1}")
        e(f"v_add_f32 v{S}, v{S}, v{S+1}"); e(f"v_add_f32 v{S+1}, v{Q}, v{Q+1}")
        e(f"ds_write_b64 v{ON}, v[{S}:{S+1}]")

    def stats_out(self, sST, T):
        e = self.e; l = self.lab("so")
        e(f"s_cmp_lg_u32 s{sLW}, 0"); e(f"s_cbranch_scc1 {l}")
        e(f"v_add_u32 v{T+8}, {L_SS}, v{vL16}")
        e(f"ds_read_b128 v[{T}:{T+3}], v{T+8}"); e(f"ds_read_b128 v[{T+4}:{T+7}], v{T+8} offset:1024")
        e(f"s_lshl_b32 s{sT}, s{sN4}, 10"); e(f"s_add_u32 s{sT}, s{sT}, s{sST}")
        e("s_waitcnt lgkmcnt(0)")
        for r in range(4): e(f"v_add_f32 v{T+r}, v{T+r}, v{T+4+r}")
        e(f"buffer_store_dwordx4 v[{T}:{T+3}], v{vL16}, s[{sWS}:{sWS+3}], s{sT} offen sc0 sc1")
        self.label(l)

    def x_g2(self):
        e = self.e; P = "X"
        ACC, XF, WF, vXa, vWa = 0, 32, 104, 136, 137
        R, T0, T1, T2 = 236, 152, 153, 154
        def acc(t, rt): return ACC + (t * 4 + rt) * 4
        def xf(b, h, rt): return XF + b * 32 + h * 16 + rt * 4
        def wf(b, h, t): return WF + b * 16 + h * 8 + t * 4
        e(f"s_lshl_b32 s{sT}, s{sWM}, 13"); e(f"s_add_u32 s{sT}, s{sT}, {LA}")
        e(f"v_add_u32 v{vXa}, s{sT}, v{vL16}")
        self.waddr128(vWa, sWN, T0, T1, T2)
        lr = self.lab("g2")
        e(f"s_cmp_lg_u32 s{sLAY}, 0"); e(f"s_cbranch_scc1 {lr}")
        e("s_waitcnt vmcnt(4)")
        for rt in range(4):
            e(f"v_permlane16_swap_b32 v{R+4*rt}, v{R+4*rt+2}"); e(f"v_permlane16_swap_b32 v{R+4*rt+1}, v{R+4*rt+3}")
        self.label(lr)
        for rt in range(4):
            for t in range(2):
                for k in range(2): self.emit(self.unpack(acc(t, rt) + 2 * k, R + 4 * rt + 2 * t + k))
        def reads(u):
            b = u & 1; o = []
            sl = (32 + (u >> 1)) % 6
            for h in range(2):
                wr = []
                for t in range(2):
                    r = wf(b, h, t); ad = vWa + 2 * (sl // 3) + t; off = (sl % 3) * WSLOT + ((u & 1) * 2 + h) * 4096
                    wr += [f"ds_read_b64_tr_b16 v[{r}:{r+1}], v{ad} offset:{off}", f"ds_read_b64_tr_b16 v[{r+2}:{r+3}], v{ad} offset:{off + 2048}"]
                xr = [f"ds_read_b128 v[{xf(b,h,rt)}:{xf(b,h,rt)+3}], v{vXa} offset:{(u % 3) * 16384 + rt * 2048 + h * 1024}" for rt in range(4)]
                o += wr[0:2] + xr + wr[2:]
            return o
        def mf(u):
            b = u & 1
            return [mfma(acc(t, rt), wf(b, h, t), xf(b, h, rt)) for t in range(2) for i, rt in enumerate(snake(range(4), t)) for h in snake(range(2), i)]
        self.ts(4)
        e("s_waitcnt vmcnt(0)")
        self.bar(P, ("G2", -2))
        self.wg_flags(self.FG(0), self.FL(0, 0))
        self.ts(5)
        self.bar(P, ("G2", -1))
        self.ts(6); self.tsc(18)
        self.emit(reads(0))
        for u in range(16):
            self.step(P, ("G2", u), mf(u), reads(u + 1) if u < 15 else [], last=int(self.opt.get("g2last", 11)))
        self.ts(7); self.tsc(19)
        e("s_nop 7")
        self.res_epilogue(acc, sXm, 32, 48)
        self.ts(8)

    def a3(self, mat, t, rt): return ((mat * 4 + t) * 4 + rt) * 4
    def a4(self, t, rt): return 128 + (t * 4 + rt) * 4
    V4X, V4W = 243, 244
    XP = {"g3b": [236, 237, 242], "g4": [238, 239, 240, 241]}
    vXA = 191

    def x_g3a(self):
        e = self.e; P = "X"
        XF, WF, vXa, vWa, T0, T1, T2 = 128, 160, 224, 225, 233, 234, 235
        def xf(b, rt): return XF + b * 16 + rt * 4
        def wf(b, mat, t): return WF + b * 32 + (mat * 4 + t) * 4
        e(f"s_lshl_b32 s{sT}, s{sWM}, 13"); e(f"s_add_u32 s{sT}, s{sT}, {LA}")
        e(f"v_add_u32 v{vXa}, s{sT}, v{vL16}")
        e(f"s_lshl_b32 s{sT2}, s{sWN}, 2")
        self.emit(self.waddr256(vWa, [0, 1, 2, 3], sT2, T0, T1))
        self.emit(self.pat_g3b(self.XP["g3b"], T0, T1, T2)); self.emit(self.pat_256(self.XP["g4"], 2048, T0, T1, T2))
        e(f"v_mov_b32 v{self.V4X}, v{vXa}")
        e(f"s_and_b32 s{sT2}, s{sN4}, 1"); e(f"s_lshl_b32 s{sT2}, s{sT2}, 2"); e(f"s_lshl_b32 s{sT}, s{sWN}, 1"); e(f"s_add_u32 s{sT2}, s{sT2}, s{sT}")
        self.emit(self.waddr256(self.V4W, [0, 1, 4, 5], sT2, T0, T1))
        self.h_bases()
        self.emit(self.reloc13(sW3B, 0x4008)); self.emit(self.reloc2())
        e(f"s_add_u32 s{sGa}, s{sXm}, s{sM4}")
        e(f"s_lshl_b32 s{sRa}, s{sN4}, 14")
        def reads(s):
            b = s & 1; sl = (40 + s) % 6
            xr = [f"ds_read_b128 v[{xf(b,rt)}:{xf(b,rt)+3}], v{vXa} offset:{((s >> 1) % 3) * 16384 + rt * 2048 + (s & 1) * 1024}" for rt in range(4)]
            wr = []
            for t in range(4):
                for mat in range(2):
                    r = wf(b, mat, t); ad = vWa + 4 * (sl // 3) + t; off = (sl % 3) * WSLOT + mat * 8192
                    wr += [f"ds_read_b64_tr_b16 v[{r}:{r+1}], v{ad} offset:{off}", f"ds_read_b64_tr_b16 v[{r+2}:{r+3}], v{ad} offset:{off + 4096}"]
            return wr[0:2] + xr + wr[2:]
        def mf(s):
            b = s & 1
            return [mfma(self.a3(mat, t, rt), wf(b, mat, t), xf(b, rt), "0" if s == 0 else None) for t in range(4) for mat in range(2) for rt in snake(range(4), mat)]
        e("s_waitcnt vmcnt(0) lgkmcnt(0)")
        self.bar(P, ("G3A", -2))
        self.wg_flags(None, self.FL(0, 32))
        self.stats_out(sSTm, 208)
        self.ts(9)
        self.bar(P, ("G3A", -1))
        self.ts(10); self.tsc(20)
        self.emit(reads(0))
        def fn(s, ex):
            extra = []
            if ex: extra.append((28, self.CNT))
            self.step(P, ("G3A", s), mf(s), reads(s + 1) if s < 31 else [], vmw=(0 if s == 2 else None), last=23, extra=extra)
        self.looped(P, 32, 6, fn)
        self.ts(11); self.tsc(21)

    def h_bases(self):
        e = self.e
        e(f"s_and_b32 s{sT}, s{sN4}, 1"); e(f"s_mul_i32 s{sT}, s{sT}, {28 * 16384}"); e(f"s_add_u32 s{sHx}, s{sHo}, s{sT}")
        e(f"s_and_b32 s{sT}, s{sNT}, 7"); e(f"s_lshl_b32 s{sT}, s{sT}, 14"); e(f"s_and_b32 s{sT2}, s{sTile}, 0x3fff")
        e(f"s_add_u32 s{sT}, s{sT}, s{sT2}"); e(f"s_add_u32 s{sGh}, s{sT}, s{sHx}")
        e(f"s_and_b32 s{sT}, s{sNT}, 6"); e(f"s_add_u32 s{sT}, s{sT}, 48"); e(f"s_lshl_b32 s{sT}, s{sT}, 13")
        e(f"s_and_b32 s{sT2}, s{sNT}, 1"); e(f"s_lshl_b32 s{sT2}, s{sT2}, 10"); e(f"s_add_u32 s{sT}, s{sT}, s{sT2}")
        e(f"s_add_u32 s{sT}, s{sT}, s{sM4}"); e(f"s_add_u32 s{sGs}, s{sT}, s{sHx}")

    def epi_loop(self, P, ph, n, vm, work, budget, lag, need, dmas, flags, dead, hook=None):
        pend = []
        for s in range(n):
            ready = [b for b, p in pend if p <= s]
            gate = bool(work) and work[0][1] == ("GATE",)
            self.pb(P, (ph, s), vm.need(*(need(s) + [("H", b) for b in ready])), 0 if gate else None)
            for b in ready: self.wg_flag_if(b & 3, flags[b])
            pend = [(b, p) for b, p in pend if p > s]
            if hook: hook(s)
            dm = dmas(s)
            its = []
            if work and work[0][1] == ("GATE",): work.pop(0)
            if work:
                its = self.chunk(work, budget(s))
                if ("GATE",) in its:
                    k = its.index(("GATE",)); work[0:0] = self.costed(its[k:]); its = its[:k]
            items = []
            for it in its:
                if isinstance(it, tuple) and it[0] == "FLAG":
                    assert s + lag <= dead[it[1]], (ph, it, s)
                    pend.append((it[1], s + lag)); self.info.append(f"{ph}: flag {it[1]} work done in period {s}")
                else: items.append(it)
            self.run_period(dm, items)
        assert not work and not pend, (ph, len(work), pend)
        self.tr_flush(P)

    def x_g3b(self):
        e = self.e; P = "XL"; vm = VM()
        NM, RL, I2, CS, E, OUT = 192, 196, 200, 204, 220, 224
        PT = self.XP
        T0, vCS = 232, 235
        e("s_setprio 1")
        vA = self.vXA
        e(f"v_add_u32 v{vA}, s{sGa}, v{vL16}")
        work = ["s_nop 7"] + self.stat_regs(E, NM, RL, I2, T0)
        work += [f"s_lshl_b32 s{sT}, s{sWN}, 8", f"s_add_u32 s{sT}, s{sT}, {L_CSA}", f"v_lshrrev_b32 v{vCS}, 8, v{vL16}", f"v_lshlrev_b32 v{vCS}, 4, v{vCS}", f"v_add_u32 v{vCS}, s{sT}, v{vCS}"]
        for b in range(2):
            for t in range(2):
                for mat in range(2):
                    c = CS + (t * 2 + mat) * 4
                    work.append(f"ds_read_b128 v[{c}:{c+3}], v{vCS} offset:{mat * 512 + (2 * b + t) * 64}")
            work.append("s_waitcnt lgkmcnt(0)")
            for rt in range(4):
                O = OUT + 4 * (rt & 1)
                for t in range(2):
                    work += self.silu_group(self.a3(0, 2 * b + t, rt), self.a3(1, 2 * b + t, rt), E, RL + rt, I2 + rt, O + 2 * t, NM + rt, CS + t * 8, CS + t * 8 + 4)
                work.append(self.grp(vm, ("H", b), [f"s_add_u32 s{sT}, s{sGh}, {b * 8 * 16384 + rt * 2048}"],
                                     f"buffer_store_dwordx4 v[{O}:{O+3}], v{vL16}, s[{sWS}:{sWS+3}], s{sT} offen sc0 sc1"))
            work.append(("FLAG", b))
        self.w_start(72 + self.xw0, 109)
        def need(s): return [self.wneed(72 + s + 1)] + ([("A", 16 + (s + 1) // 2)] if s & 1 else [])
        def hook(s):
            if s == 7:
                l = self.lab("cf")
                e(f"s_xor_b32 s{sT}, s{sLW}, 3"); e(f"s_or_b32 s{sT}, s{sLAY}, s{sT}"); e(f"s_cbranch_scc1 {l}")
                self.side_flag(3)
                self.label(l)
            if s == 21: self.apoll4_issue(vm, 3, 184)
            if s == 24: self.apoll4_check(vm, 3, 184, [(sLAY, 1)])
            if s == 25: self.apoll_issue(vm, self.FL(1, 0), 8, T0)
            if s == 27:
                self.apoll_check(vm, self.FL(1, 0), 8, T0)
                e(f"s_add_u32 s{sGa}, s{sHx}, s{sM4}"); e(f"v_add_u32 v{vA}, s{sGa}, v{vL16}")
            if s == 31:
                assert not wk
                self.emit(self.g4_reads(0))
        def dmas(s):
            dm = []
            if s >= 1:
                idx = 16 + (s - 1) // 2 + 3; part = (s - 1) & 1
                if idx < 32:
                    t = idx - 16
                    dm = self.a_issue(vm, ("A", idx), idx % 3, vA, None, self.ainc(uord(BORD[t + 1]) - uord(BORD[t])) if t < 15 else None, part)
                elif s < 31: dm = self.a_issue(vm, ("A", idx), idx % 3, vA, (idx - 32) * 16384, None, part)
                else: dm = self.a_issue(vm, ("A", idx), idx % 3, vA, (idx - 32) * 16384)
            return dm + self.w_take(vm, PT, 1, 72 + s)
        bud = float(self.opt.get("budX", 28))
        wk = self.costed(work)
        self.epi_loop(P, "G3B", 32, vm, wk, lambda s: bud, int(self.opt.get("lagX", 4)), need, dmas,
                      [self.FL(1, 0), self.FL(1, 32)], [25, 31], hook)
        assert self.wn == 109
        e("s_setprio 0")
        self.g4w = [vm.need(("W", 104 + u + 1), ("A", 32 + u + 1)) for u in range(7)]

    def g4_reads(self, u):
        b = u & 1; sl = (104 + u) % 6; o = []
        for h in range(2):
            xr = [f"ds_read_b128 v[{64*b+16*h+4*rt}:{64*b+16*h+4*rt+3}], v{self.V4X} offset:{((32 + u) % 3) * 16384 + rt * 2048 + h * 1024}" for rt in range(4)]
            wr = []
            for t in range(4):
                r = 64 * b + 32 + 16 * h + 4 * t; ad = self.V4W + 4 * (sl // 3) + t; off = (sl % 3) * WSLOT + h * 8192
                wr += [f"ds_read_b64_tr_b16 v[{r}:{r+1}], v{ad} offset:{off}", f"ds_read_b64_tr_b16 v[{r+2}:{r+3}], v{ad} offset:{off + 4096}"]
            o += wr[0:2] + xr + wr[2:]
        return o

    def x_g4(self):
        e = self.e; P = "X"
        T0, T1 = 192, 193
        SP, RP, RS = 0, 16, 196
        def mf(u):
            b = u & 1; o = []
            for t in range(4):
                for i, rt in enumerate(snake(range(4), t)):
                    for k, h in enumerate(snake(range(2), i)):
                        o.append(mfma(self.a4(t, rt), 64 * b + 32 + 16 * h + 4 * t, 64 * b + 16 * h + 4 * rt, "0" if u == 0 and k == 0 else None))
            return o
        e(f"s_lshl_b32 s{sT}, s{sN4}, 14"); e(f"s_add_u32 s{sT}, s{sT}, s{sM4}")
        e(f"s_add_u32 s{sT}, s{sT}, s{sOo}"); e(f"s_add_u32 s{sGa}, s{sT}, {WS_P}")
        e(f"s_xor_b32 s{sGh}, s{sGa}, {1 << 14}")
        e(f"s_add_u32 s{sD0}, s{sTile}, s{sXm}"); e(f"s_add_u32 s{sD1}, s{sD0}, 4096")
        self.ts(12); self.tsc(22)
        def res(rt): return [f"buffer_load_dwordx4 v[{RS+4*rt}:{RS+4*rt+3}], v{vL16}, s[{sWS}:{sWS+3}], s{sD0 + (rt >> 1)} offen offset:{2048 * (rt & 1)}"]
        def fn(u, ex):
            extra = []
            if ex: extra.append((29, self.CNT))
            if u == 27: extra += [(2 + 4 * rt, res(rt)) for rt in range(4)]
            self.step(P, ("G4", u), mf(u), self.g4_reads(u + 1) if u < 27 else [], vmw=(self.g4w[u] if u < 7 else None), last=26, extra=extra)
        self.looped(P, 28, 6, fn)
        self.ts(13); self.tsc(23)
        e("s_nop 7")
        for rt in range(4):
            for t in range(2):
                c = self.a4(2 + t, rt); p = SP + 4 * rt + 2 * t
                e(f"v_cvt_pk_bf16_f32 v{p}, v{c}, v{c+1}"); e(f"v_cvt_pk_bf16_f32 v{p+1}, v{c+2}, v{c+3}")
            for i in range(4): e(f"v_min_u32 v{SP+4*rt+i}, -2, v{SP+4*rt+i}")
            e(f"buffer_store_dwordx4 v[{SP+4*rt}:{SP+4*rt+3}], v{vL16}, s[{sWS}:{sWS+3}], s{sGa} offen offset:{1024 * rt} sc0 sc1")
        def addin(R):
            for rt in range(4):
                for t in range(2):
                    U = 160 + 4 * (t + 2 * (rt & 1))
                    for k in range(2): self.emit(self.unpack(U + 2 * k, R + 4 * rt + 2 * t + k))
                    c = self.a4(t, rt)
                    for k in range(2): e(f"v_pk_add_f32 v[{c+2*k}:{c+2*k+1}], v[{c+2*k}:{c+2*k+1}], v[{U+2*k}:{U+2*k+1}]")
        e("s_waitcnt vmcnt(4)")
        addin(RS)
        lp, ld = self.lab("poll"), self.lab("pd")
        e(f"s_mov_b32 s{sT2}, {POLL}")
        self.label(lp)
        for rt in range(4):
            e(f"buffer_load_dwordx4 v[{RP+4*rt}:{RP+4*rt+3}], v{vL16}, s[{sWS}:{sWS+3}], s{sGh} offen offset:{1024 * rt} sc0 sc1")
        e("s_waitcnt vmcnt(0)")
        e(f"v_max3_u32 v{T0}, v{RP}, v{RP+1}, v{RP+2}"); e(f"v_max3_u32 v{T1}, v{RP+3}, v{RP+4}, v{RP+5}")
        for k in range(6, 14, 4):
            e(f"v_max3_u32 v{T0}, v{T0}, v{RP+k}, v{RP+k+1}"); e(f"v_max3_u32 v{T1}, v{T1}, v{RP+k+2}, v{RP+k+3}")
        e(f"v_max3_u32 v{T0}, v{T0}, v{RP+14}, v{RP+15}"); e(f"v_max_u32 v{T0}, v{T0}, v{T1}")
        e(f"v_cmp_eq_u32 vcc, -1, v{T0}")
        e(f"s_cbranch_vccz {ld}")
        e(f"s_sub_u32 s{sT2}, s{sT2}, 1"); e(f"s_cmp_lg_u32 s{sT2}, 0"); e(f"s_cbranch_scc1 {lp}")
        self.label(ld)
        addin(RP)
        self.ts(14)
        self.tr_dump("X")

    def x_final(self):
        e = self.e
        T0, T1, PK = 192, 193, 0
        self.emit(self.out_addr(T0, T1, sT))
        for rt in range(4):
            for t in range(2):
                c = self.a4(t, rt)
                e(f"v_cvt_pk_bf16_f32 v{PK+4*rt+2*t}, v{c}, v{c+1}"); e(f"v_cvt_pk_bf16_f32 v{PK+4*rt+2*t+1}, v{c+2}, v{c+3}")
            e("s_nop 1")
            e(f"v_permlane16_swap_b32 v{PK+4*rt}, v{PK+4*rt+2}"); e(f"v_permlane16_swap_b32 v{PK+4*rt+1}, v{PK+4*rt+3}")
            e(f"buffer_store_dwordx4 v[{PK+4*rt}:{PK+4*rt+3}], v{T0}, s[{sOUT}:{sOUT+3}], s{sT} offen{self.opt.get('osc', '_sc0_sc1').replace('_', ' ')}")
            e(f"s_add_u32 s{sT}, s{sT}, {16 * 2048}")

    YP = {"g1": [200, 201, 202], "g2": [203, 204, 205, 206], "g3a": [207, 208, 209, 210], "g3b": [211, 212, 222], "g4": [213, 214, 215, 216]}
    YAP = [217, 218, 219, 220]
    YT = [224, 225, 226, 227]
    vHP, vPL = 221, 251
    sJ, sJo, sXc, sRt = sAT, sAT + 4, sAT + 5, sAT + 6
    sHm = sAT + 12

    sJi = sAT + 7
    def jobid(self):
        r = self.sJi
        return [f"s_add_u32 s{sT}, s{sN4}, 4", f"s_and_b32 s{sT2}, s{sT}, 7", f"s_lshr_b32 s{sT}, s{sT}, 3", f"s_and_b32 s{sT}, s{sT}, 1",
                f"s_lshl_b32 s{sT2}, s{sT2}, 1", f"s_add_u32 s{sT}, s{sT}, s{sT2}", f"s_lshl_b32 s{r}, s{sT}, 4", f"s_add_u32 s{r}, s{r}, s{sMT}"]

    def g1_src(self, first):
        e = self.e; T0, T1, T2, _ = self.YT; AP = self.YAP
        if first:
            e(f"s_lshl_b32 s{sT}, s{sMT}, 18"); e(f"s_lshl_b32 s{sT2}, s{sM4}, 4"); e(f"s_add_u32 s{sGa}, s{sT}, s{sT2}")
            e(f"s_lshl_b32 s{sT2}, s{sWM}, 14"); e(f"s_add_u32 s{sGh}, s{sT}, s{sT2}"); e(f"s_sub_u32 s{sGh}, s{sGh}, 32768")
            self.emit(self.pat_128(AP, 2048, T0, T1, T2, sGa))
            e(f"s_lshl_b32 s{sRa}, s{sDa}, 7")
        else:
            for i in range(4): e(f"s_mov_b32 s{sA1+i}, s{sWS+i}")
            e(f"s_add_u32 s{sGa}, s{sX2}, s{sM4}")
            e(f"s_lshl_b32 s{sT2}, s{sWM}, 10"); e(f"s_add_u32 s{sGh}, s{sX2}, s{sT2}"); e(f"s_sub_u32 s{sGh}, s{sGh}, {ARENA - 14336}")
            e(f"v_add_u32 v{AP[0]}, s{sGa}, v{vL16}")
            e(f"s_lshl_b32 s{sRa}, s{sN4}, 14")
        e(f"s_cmp_eq_u32 s{sMT}, 0"); e(f"s_cselect_b32 s{sGh}, {OOB}, s{sGh}")
        e(f"s_sub_u32 s{sGh}, s{sGh}, s{sGa}"); e(f"v_add_u32 v{self.vHP}, s{sGh}, v{AP[0]}")
        e(f"s_lshl_b32 s{sSu}, s{sWM}, 10")
        e(f"s_cmp_eq_u32 s{sWN}, 0"); e(f"s_cselect_b32 s{self.sHm}, -1, 0"); e(f"s_not_b32 s{self.sHm+1}, s{self.sHm}")

    def g1_a(self, vm, first, u, part=None):
        g = []; base = LA + (u % 3) * 18432
        if part in (None, 0):
            g.append(self.grp(vm, ("A", u), [f"s_add_u32 m0, s{sSu}, {base}", f"s_mov_b64 exec, s[{self.sHm}:{self.sHm+1}]"],
                              f"buffer_load_dwordx4 v{self.vHP}, s[{sA1}:{sA1+3}], s{sRa} offen lds", ["s_mov_b64 exec, -1"]))
        inc = self.ainc(uord(u + 1) - uord(u), 128 if first else 16384) if u < 15 else None
        return g + self.a_issue(vm, ("A", u), 0, self.YAP[0], None, inc, part, sA1, self.YAP if first else None, base + 2048)

    def stats_gather(self, vm, s, s0, sST, R, AC, fin, so=0, fast=False):
        e = self.e; T0, T1, T2, T3 = self.YT; it = []
        if s == s0:
            it.append([f"v_and_b32 v{T2}, 0xf0, v{vL16}", f"v_and_b32 v{T3}, 0x300, v{vL16}", f"v_lshl_add_u32 v{T3}, v{T3}, 2, v{T2}",
                       f"s_lshl_b32 s{self.sRt}, s{sLW}, 8", f"s_add_u32 s{self.sRt}, s{self.sRt}, s{sST}"] +
                      ([f"s_add_u32 s{self.sRt}, s{self.sRt}, {so}"] if so else []))
        for k in range(4):
            if s != s0 + (k // 3 if fast else k): continue
            it.append(self.grp(vm, "S", [], f"buffer_load_dwordx4 v[{R+4*k}:{R+4*k+3}], v{T3}, s[{sWS}:{sWS+3}], s{self.sRt} offen", [f"s_add_u32 s{self.sRt}, s{self.sRt}, 4096"]))
        if fast: s0 -= 3
        if s == s0 + 6:
            self.wait(vm.need("S"))
            it += [f"v_add_f32 v{R+r}, v{R+r}, v{R+4+r}" for r in range(4)] + [f"v_add_f32 v{R+8+r}, v{R+8+r}, v{R+12+r}" for r in range(4)]
            it += [f"v_add_f32 v{AC+r}, v{R+r}, v{R+8+r}" for r in range(4)]
            it += self.xred(list(range(AC, AC + 4)), list(range(R, R + 4)), steps=("v_permlane16_swap_b32",))
        if s == s0 + 7:
            it += self.xred(list(range(AC, AC + 4)), list(range(R, R + 4)), steps=("v_permlane32_swap_b32",))
        if s == s0 + 8: it += self.finish_stats(AC, AC + 1)
        if s == s0 + 9: it += self.finish_stats(AC + 2, AC + 3) + fin
        return it

    def y_start(self, vm):
        e = self.e; T0, T1, T2, T3 = self.YT; PT = self.YP
        self.emit(self.pat_g1(PT, T0, T1, T2, True))
        e(f"s_and_b32 s{sT}, s{sMT}, 4"); e(f"s_lshl_b32 s{sT}, s{sT}, 1"); e(f"s_lshr_b32 s{sT2}, s{sMT}, 3"); e(f"s_add_u32 s{sT}, s{sT}, s{sT2}")
        e(f"s_add_u32 s{sDa}, s{sT}, s{sN4}"); e(f"s_and_b32 s{sDa}, s{sDa}, 15")
        self.rot0 = sDa
        self.w_start(0, 38)
        self.run_period(self.w_take(vm, PT, 1, 0), [])
        self.rot0 = sN4
        self.g1_src(True)
        tpos = int(self.opt.get("tpos", 1))
        for n in range(6):
            if n: self.run_period(self.w_take(vm, PT, 1, 0), [])
            if n == tpos: self.y_touch(vm)
            if n < 3: self.run_period(self.g1_a(vm, True, n), [])
        if tpos > 5: self.y_touch(vm)

    def y_touch(self, vm):
        e = self.e; T0 = self.YT[3]
        sJ = self.sJ
        e("s_cmp_lt_u32 s2, 128")
        e(f"s_cselect_b32 s{sJ}, s{sAT+8}, s{sAT+10}"); e(f"s_cselect_b32 s{sJ+1}, s{sAT+9}, s{sAT+11}")
        e(f"s_mov_b32 s{sJ+2}, {1024 * 7168}"); e(f"s_mov_b32 s{sJ+3}, 0x00020000")
        e(f"s_and_b32 s{sT}, s2, 127"); e(f"s_mul_i32 s{sT}, s{sT}, {448 * 128}"); e(f"s_lshl_b32 s{sT2}, s{sLW}, 14"); e(f"s_add_u32 s{sT}, s{sT}, s{sT2}")
        e(f"v_lshlrev_b32 v{T0}, 3, v{vL16}")
        e(f"buffer_load_dword v{self.vPL}, v{T0}, s[{sJ}:{sJ+3}], s{sT} offen"); vm.issue("t")
        l, l2 = self.lab("t"), self.lab("t")
        e(f"s_cmp_eq_u32 s{sLW}, 3"); e(f"s_cbranch_scc1 {l}")
        e(f"s_add_u32 s{sT}, s{sT}, 8192")
        e(f"buffer_load_dword v{self.vPL}, v{T0}, s[{sJ}:{sJ+3}], s{sT} offen"); e(f"s_branch {l2}")
        self.label(l)
        e(f"s_lshl_b32 s{sT}, s2, 13")
        e(f"buffer_load_dword v{self.vPL}, v{T0}, s[{sWO}:{sWO+3}], s{sT} offen")
        self.label(l2); vm.issue("t")

    def y_g1(self, vm, first):
        e = self.e; P = "Y1" if first else "Y"; T0, T1, T2, T3 = self.YT; PT = self.YP; vPL = self.vPL
        sJ, sJo, sXc, sRt = self.sJ, self.sJo, self.sXc, self.sRt
        JB, RB, G, CQ, vJ, vR, vHs = 0, 64, 72, 76, 96, 97, 98
        if not first:
            self.g1_src(False)
            e(f"s_add_u32 s{sD0}, s{sFL}, {(64 - 128) & 0xffffffff}"); e(f"s_add_u32 s{sD1}, s{sFl}, {4 * 2048 - 128}")
            e(f"s_and_b32 s{sT}, s{sMT}, 3")
            e(f"s_cselect_b32 s{sD0}, s{sD0}, s{sD1}"); e(f"s_cselect_b32 s{sD1}, 28, 60")
            e(f"s_add_u32 s{sT}, s{sFL}, 64")
            e(f"s_cmp_eq_u32 s{sMT}, 0"); e(f"s_cselect_b32 s{sD0}, s{sT}, s{sD0}"); e(f"s_cselect_b32 s{sD1}, 28, s{sD1}")
            e(f"v_lshrrev_b32 v{T0}, 2, v{vL16}"); e(f"v_and_b32 v{T0}, 60, v{T0}")
            e(f"v_min_u32 v{T1}, s{sD1}, v{T0}"); e(f"v_add_u32 v{T1}, s{sD0}, v{T1}")
            e(f"v_min_u32 v{T0}, 28, v{T0}"); e(f"v_add_u32 v{T0}, s{sT}, v{T0}")
            e(f"v_cmp_gt_u32 vcc, 256, v{vL16}"); e(f"v_lshlrev_b32 v{T2}, 3, v{vL16}"); e(f"v_and_b32 v{T2}, 0xfff, v{T2}")
            e(f"v_cndmask_b32 v{T0}, v{T1}, v{T0}, vcc")
            e(f"s_add_u32 s{sDa}, s{sGa}, s{sRa}")
            e("s_barrier")
            e(f"buffer_load_dword v{vPL}, v{T2}, s[{sWS}:{sWS+3}], s{sDa} offen sc0 sc1")
            lp, ld = self.lab("poll"), self.lab("pd")
            e(f"s_mov_b32 s{sT2}, {POLL}")
            self.label(lp)
            e(f"buffer_load_dword v{T1}, v{T0}, s[{sWS}:{sWS+3}], 0 offen sc0 sc1")
            e("s_waitcnt vmcnt(0)")
            e(f"v_cmp_ne_u32 vcc, 0x01010101, v{T1}"); e(f"s_cbranch_vccz {ld}")
            e("s_sleep 1"); e(f"s_sub_u32 s{sT2}, s{sT2}, 1"); e(f"s_cmp_lg_u32 s{sT2}, 0"); e(f"s_cbranch_scc1 {lp}")
            self.label(ld)
            vm.clear()
            for u in range(3): self.run_period(self.g1_a(vm, False, u), [])
        SL, QA, QB, XS, vQ = 120, 124, 128, 144, 172
        def qcol(s):
            l = self.lab("qc")
            e(f"s_and_b32 s{sT}, s{sMT}, 3"); e(f"s_cmp_lg_u32 s{sT}, {s >> 1}"); e(f"s_cbranch_scc1 {l}")
            if s % 6 >= 3: e(f"v_add_u32 v{vF0}, {3 * WSLOT}, v{vQ}")
            for i in range(4): e(f"ds_read_b128 v[{QB+4*i}:{QB+4*i+3}], v{vF0 if s % 6 >= 3 else vQ} offset:{(s % 3) * WSLOT + 1024 * i}")
            e("s_waitcnt lgkmcnt(0)")
            for i in range(4): e(mfma(QA, SL, QB + 4 * i, "0" if (s & 1) == 0 and i == 0 else None))
            e("s_nop 7")
            self.label(l)
        if first:
            self.emit(self.selector(SL, T0, T1))
            self.emit(self.swz128(T0, T1, T2)); e(f"v_lshl_add_u32 v{vQ}, v{T0}, 7, v{T1}")
            e(f"s_min_u32 s{sT}, s{sLW}, 2"); e(f"s_lshl_b32 s{sT}, s{sT}, 12"); e(f"v_add_u32 v{vQ}, s{sT}, v{vQ}")
            e(f"s_add_u32 s{sT}, s{sM4}, {LA + 2048}"); e(f"v_add_u32 v{T0}, s{sT}, v{vL16}"); e(f"v_mov_b32 v{T1}, 0x3f803f80")
        e("s_setprio 1")
        self.pb(P, ("G1", -1), vm.need(("W", 0), ("A", 0)))
        if first:
            for i in range(4): e(f"ds_read_b128 v[{XS+4*i}:{XS+4*i+3}], v{T0} offset:{1024 * i}")
            e("s_waitcnt lgkmcnt(0)")
            for k in range(4):
                for i in range(4):
                    e(f"v_dot2_f32_bf16 v{XS+16+2*i}, v{XS+4*i+k}, v{T1}, {f'v{XS+16+2*i}' if k else 0}")
                    e(f"v_dot2_f32_bf16 v{XS+17+2*i}, v{XS+4*i+k}, v{XS+4*i+k}, {f'v{XS+17+2*i}' if k else 0}")
            qcol(0)
        self.w_start(6, 38)
        j0 = int(self.opt.get("j0", 10)); jn = int(self.opt.get("jn", 1)); g = int(self.opt.get("gat", 14)); r0 = int(self.opt.get("r0", 10)); pf = 10
        jsch = [int(x) for x in str(self.opt.get("jsch", "4_6_8_9_11_13_15_17_27_27_28_28_29_29_30_30")).split("_")]
        for s in range(32):
            need = ([self.wneed(s + 1)] if s < 31 else []) + ([("A", (s + 1) // 2)] if s & 1 else []) + (["p"] if s == pf else [])
            self.pb(P, ("G1", s), vm.need(*need), 0 if s == 31 else None)
            it = []; post = []
            if first:
                if s < 7: post.append(lambda s=s: qcol(s + 1))
                if s == 0:
                    for m in ("quad_perm:[1,0,3,2]", "quad_perm:[2,3,0,1]", "row_half_mirror"):
                        it += [f"v_add_f32_dpp v{XS+16+i}, v{XS+16+i}, v{XS+16+i} {m} row_mask:0xf bank_mask:0xf" for i in range(8)]
                if s == 1:
                    sel = [f"v_and_b32 v{T0}, 0x70, v{vL16}"]
                    for i in range(1, 4):
                        sel += [[f"v_cmp_eq_u32 vcc, {16 * i}, v{T0}", "s_nop 1", f"v_cndmask_b32 v{XS+16}, v{XS+16}, v{XS+16+2*i}, vcc", f"v_cndmask_b32 v{XS+17}, v{XS+17}, v{XS+17+2*i}, vcc"]]
                    sel += [f"v_lshrrev_b32 v{T1}, 7, v{vL16}", f"v_lshlrev_b32 v{T1}, 3, v{T1}", f"v_lshl_add_u32 v{T0}, v{T0}, 2, v{T1}"]
                    it += sel
                    post.append(self.grp(vm, "p", [f"s_lshl_b32 s{sT}, s{sN4}, 10", f"s_lshr_b32 s{sT2}, s{sM4}, 4", f"s_add_u32 s{sT}, s{sT}, s{sT2}", f"s_add_u32 s{sT}, s{sT}, s{sSTo}",
                                                   f"s_add_u32 s{sT}, s{sT}, {64 * KB}", f"s_mov_b32 s{sEX}, 0x0f0f0f0f", f"s_mov_b32 s{sEX+1}, 0x0f0f0f0f", f"s_mov_b64 exec, s[{sEX}:{sEX+1}]"],
                                         f"buffer_store_dwordx2 v[{XS+16}:{XS+17}], v{T0}, s[{sWS}:{sWS+3}], s{sT} offen sc0 sc1", ["s_mov_b64 exec, -1"]))
                if s == 7:
                    it += [f"v_add_f32_dpp v{QA+r}, v{QA+r}, v{QA+r} row_ror:8 row_mask:0xf bank_mask:0xf" for r in range(4)]
                    it += [f"v_and_b32 v{T0}, 0x70, v{vL16}", f"v_lshrrev_b32 v{T1}, 4, v{vL16}", f"v_and_b32 v{T1}, 16, v{T1}", f"v_lshl_add_u32 v{T0}, v{T0}, 1, v{T1}"]
                    post.append(self.grp(vm, "p", [f"s_mul_i32 s{sT}, s{sMT}, 12288", f"s_lshl_b32 s{sT2}, s{sLW}, 12", f"s_add_u32 s{sT}, s{sT}, s{sT2}",
                                                   f"s_lshl_b32 s{sT2}, s{sN4}, 8", f"s_add_u32 s{sT}, s{sT}, s{sT2}", f"s_add_u32 s{sT}, s{sT}, {WS_CSQ}",
                                                   f"s_cmp_lt_u32 s{sLW}, 3", f"s_cselect_b32 s{sT}, s{sT}, {OOB}", "s_mov_b64 exec, 0x00ff00ff"],
                                         f"buffer_store_dwordx4 v[{QA}:{QA+3}], v{T0}, s[{sWS}:{sWS+3}], s{sT} offen sc0 sc1", ["s_mov_b64 exec, -1"]))
                if s == 8: it += self.atomize(self.pat_128(PT["g2"], 2048, T0, T1, T2, sB2))
                if s == 2:
                    it.append(self.jobid() + [f"s_lshr_b32 s{sT}, s{self.sJi}, 1", f"s_cmp_lt_u32 s{sT}, 56",
                               f"s_cselect_b32 s{sJ}, s{sAT+8}, s{sAT+10}", f"s_cselect_b32 s{sJ+1}, s{sAT+9}, s{sAT+11}",
                               f"s_cselect_b32 s{sT2}, 0, 56", f"s_sub_u32 s{sT}, s{sT}, s{sT2}", f"s_lshl_b32 s{sJo}, s{sT}, 7",
                               f"s_and_b32 s{sT}, s{self.sJi}, 1", f"s_lshl_b32 s{sT}, s{sT}, 2", f"s_add_u32 s{sT}, s{sT}, s{sLW}", f"s_mul_i32 s{sT}, s{sT}, {128 * 7168}",
                               f"s_add_u32 s{sJo}, s{sJo}, s{sT}", f"s_cmp_lt_u32 s{self.sJi}, 224", f"s_cselect_b32 s{sJo}, s{sJo}, {OOB}"])
                    it += [f"v_lshrrev_b32 v{vJ}, 7, v{vL16}", f"v_mul_u32_u24 v{vJ}, 7168, v{vJ}", f"v_and_b32 v{T0}, 0x70, v{vL16}", f"v_add_u32 v{vJ}, v{vJ}, v{T0}"]
                    it += [f"v_lshrrev_b32 v{vR}, 6, v{vL16}", f"v_mul_u32_u24 v{vR}, 7168, v{vR}", f"v_lshrrev_b32 v{T0}, 3, v{vL16}", f"v_and_b32 v{T0}, 0x20, v{T0}",
                           f"v_and_b32 v{T1}, 0x30, v{vL16}", f"v_xor_b32 v{T0}, v{T0}, v{T1}", f"v_add_u32 v{vR}, v{vR}, v{T0}"]
                if s == 3: it.append(self.xcc_word(sXc))
                if s == pf:
                    def hs():
                        l = self.lab("hs")
                        e(f"s_cmp_lg_u32 s{sLW}, 1"); e(f"s_cbranch_scc1 {l}")
                        self.side_flag(0)
                        self.label(l)
                    post.append(hs)
                if s == r0:
                    it.append([f"s_lshr_b32 s{sT}, s2, 3", f"s_lshl_b32 s{sT}, s{sT}, 1", f"s_add_u32 s{sT}, s{sT}, s{sWN}", f"s_and_b32 s{sT2}, s2, 7",
                               f"s_lshl_b32 s{sGs}, s{sWM}, 3", f"s_add_u32 s{sGs}, s{sGs}, s{sT2}", f"s_lshl_b32 s{sGs}, s{sGs}, 7", f"s_add_u32 s{sGs}, s{sGs}, s{sT}",
                               f"s_lshl_b32 s{sGs}, s{sGs}, 10", f"s_add_u32 s{sGs}, s{sGs}, {WS_RT}",
                               f"s_mul_i32 s{sT}, s{sT}, {16 * 7168}", f"s_mul_i32 s{sT2}, s{sT2}, 896", f"s_add_u32 s{sEX}, s{sT}, s{sT2}"])
                    for h in range(2):
                        it.append(self.grp(vm, "R", [], f"buffer_load_dwordx4 v[{RB+4*h}:{RB+4*h+3}], v{vR}, s[{sW13}:{sW13+3}], s{sEX} offen offset:{384 + 64 * h}"))
                st0 = int(self.opt.get("st0", 31))
                for h in range(2):
                    if s == min(st0 + 3 + h, 31):
                        assert "R" not in vm.ops
                        post.append(self.grp(vm, "r", [], f"buffer_store_dwordx4 v[{RB+4*h}:{RB+4*h+3}], v{vL16}, s[{sWS}:{sWS+3}], s{sGs} offen sc0 sc1", [f"s_add_u32 s{sGs}, s{sGs}, 65536"]))
                CB, vC = 104, 99
                if s == r0 - 2:
                    it.append([f"v_lshrrev_b32 v{vC}, 8, v{vL16}", f"v_mul_u32_u24 v{vC}, 7168, v{vC}", f"v_and_b32 v{T0}, 0xf0, v{vL16}", f"v_add_u32 v{vC}, v{vC}, v{T0}",
                               f"s_mul_i32 s{sT}, s2, {4 * 7168}", f"v_add_u32 v{vC}, s{sT}, v{vC}"])
                for k in range(3):
                    pre = [f"s_cmp_eq_u32 s{sWN}, 0", f"s_movk_i32 s{sT}, {(11, 19, 26)[k] * 128}", f"s_cselect_b32 s{sT}, s{sT}, {(35, 42, 51)[k] * 128}"]
                    if s == r0 + 2 + 2 * k: post.append(self.grp(vm, "C", pre, f"buffer_load_dwordx4 v[{CB+4*k}:{CB+4*k+3}], v{vC}, s[{sW13}:{sW13+3}], s{sT} offen"))
                    if s == min(st0 + k, 31):
                        assert "C" not in vm.ops
                        pre += [f"s_lshl_b32 s{sT2}, s{sWM}, 23", f"s_add_u32 s{sT}, s{sT}, s{sT2}", f"s_add_u32 s{sT}, s{sT}, {WS_C13 + 256}"]
                        post.append(self.grp(vm, "r", pre, f"buffer_store_dwordx4 v[{CB+4*k}:{CB+4*k+3}], v{vC}, s[{sWS}:{sWS+3}], s{sT} offen sc0 sc1"))
                for k in range(16):
                    if jsch[k] != s: continue
                    b = JB + 4 * k
                    post.append(self.grp(vm, "J", [], f"buffer_load_dwordx4 v[{b}:{b+3}], v{vJ}, s[{sJ}:{sJ+3}], s{sJo} offen", [f"s_add_u32 s{sJo}, s{sJo}, {8 * 7168}"]))
                if s == g:
                    e(f"v_lshlrev_b32 v{T3}, 1, v{vL16}"); e(f"v_and_b32 v{T3}, 0xff, v{T3}")
                    e(f"buffer_load_dword v{vHs}, v{T3}, s[{sDBG}:{sDBG+3}], 0 offen sc0 sc1"); vm.issue("hs")
                if s == g + 3:
                    lp, ld_ = self.lab("hs"), self.lab("hs")
                    self.wait(vm.need("hs"))
                    e(f"s_mov_b32 s{sT2}, {POLL}")
                    self.label(lp)
                    e(f"v_and_b32 v{T1}, 63, v{vHs}")
                    e(f"v_cmp_ne_u32 vcc, 32, v{T1}")
                    e(f"s_cbranch_vccz {ld_}")
                    e(f"buffer_load_dword v{vHs}, v{T3}, s[{sDBG}:{sDBG+3}], 0 offen sc0 sc1")
                    e("s_waitcnt vmcnt(0)")
                    e(f"s_sub_u32 s{sT2}, s{sT2}, 1"); e(f"s_cmp_lg_u32 s{sT2}, 0"); e(f"s_cbranch_scc1 {lp}")
                    self.label(ld_)
                    self.apoll4_issue(vm, 0, G)
                    it.append([f"s_and_b32 s{sT}, s2, 7", f"s_lshl_b32 s{sT2}, s{sXc}, 5", f"v_readlane_b32 s{sT}, v{vHs}, s{sT}", "s_nop 3",
                               f"s_cmp_lg_u32 s{sT}, s{sT2}", f"s_cselect_b32 s{sMODE}, 1, 0",
                               f"v_mov_b32 v{T0}, {L_MODE}", f"v_mov_b32 v{T1}, s{sMODE}", f"ds_write_b32 v{T0}, v{T1}"])
                vC0, vC1 = 173, 174
                if s == g + 4:
                    it += self.atomize([f"v_and_b32 v{vC0}, 0xf0, v{vL16}", f"v_min_u32 v{vC0}, 0xb0, v{vC0}", f"s_mul_i32 s{sT}, s{sLW}, 192", f"v_add_u32 v{vC0}, s{sT}, v{vC0}",
                                        f"v_lshrrev_b32 v{T0}, 8, v{vC0}", f"v_and_b32 v{T1}, 0xff, v{vC0}", f"v_lshl_add_u32 v{T0}, v{T0}, 12, v{T1}",
                                        f"v_lshrrev_b32 v{T1}, 8, v{vL16}", f"v_mul_u32_u24 v{T1}, 12288, v{T1}", f"s_lshl_b32 s{sT}, s{sN4}, 8", f"v_add3_u32 v{vC1}, v{T0}, v{T1}, s{sT}"])
                if s == g + 6: self.apoll4_check(vm, 0, G)
                if g + 8 <= s < g + 10:
                    for k in (2 * (s - g - 8), 2 * (s - g - 8) + 1):
                        it.append(self.grp(vm, "g1", [f"s_mov_b32 s{sT}, {WS_CSQ + 49152 * k}"], f"buffer_load_dwordx4 v[{CQ+4*k}:{CQ+4*k+3}], v{vC1}, s[{sWS}:{sWS+3}], s{sT} offen sc1"))
                if s == g + 15:
                    self.wait(vm.need("g1"))
                    it += [f"v_add_f32 v{CQ+r}, v{CQ+r}, v{CQ+4+r}" for r in range(4)] + [f"v_add_f32 v{CQ+8+r}, v{CQ+8+r}, v{CQ+12+r}" for r in range(4)]
                    it += [f"v_add_f32 v{CQ+r}, v{CQ+r}, v{CQ+8+r}" for r in range(4)]
                    it += self.xred(list(range(CQ, CQ + 4)), list(range(CQ + 4, CQ + 8)), steps=("v_permlane16_swap_b32",))
                if s == g + 16:
                    it += self.xred(list(range(CQ, CQ + 4)), list(range(CQ + 4, CQ + 8)), steps=("v_permlane32_swap_b32",))
                    it += [f"v_add_u32 v{vC0}, {L_CSQ}, v{vC0}", f"ds_write_b128 v{vC0}, v[{CQ}:{CQ+3}]"]
                if s == int(self.opt.get("w2at", 99)):
                    it.append(self.grp(vm, "t", [f"v_lshlrev_b32 v{T0}, 3, v{vL16}", f"s_lshl_b32 s{sT}, s2, 2", f"s_add_u32 s{sT}, s{sT}, s{sLW}", f"s_lshl_b32 s{sT}, s{sT}, 13"],
                                       f"buffer_load_dword v{vPL}, v{T0}, s[{sW2}:{sW2+3}], s{sT} offen"))
            else:
                if s == 2: post.append(lambda: self.wg_flag_if(0, self.FG(7)))
                if s == 7:
                    e(f"v_lshrrev_b32 v{T0}, 2, v{vL16}"); e(f"v_and_b32 v{T1}, 64, v{T0}"); e(f"v_and_b32 v{T0}, 60, v{T0}")
                    e(f"s_cmp_eq_u32 s{sMT}, 0"); e(f"s_cselect_b32 s{sT}, 0, 2")
                    e(f"v_mul_lo_u32 v{T1}, v{T1}, s{sT}"); e(f"v_sub_u32 v{vHs}, v{T0}, v{T1}"); e(f"v_add_u32 v{vHs}, {7 * 2048}, v{vHs}")
                    e(f"buffer_load_dword v{vPL}, v{vHs}, s[{sWS}:{sWS+3}], s{sFl} offen sc0 sc1"); vm.issue("ap")
                if s == 10:
                    lp, ld = self.lab("poll"), self.lab("pd")
                    self.wait(vm.need("ap"))
                    e(f"s_mov_b32 s{sT2}, {POLL}")
                    self.label(lp)
                    e(f"v_cmp_ne_u32 vcc, 0x01010101, v{vPL}"); e(f"s_cbranch_vccz {ld}")
                    e(f"buffer_load_dword v{vPL}, v{vHs}, s[{sWS}:{sWS+3}], s{sFl} offen sc0 sc1"); e("s_waitcnt vmcnt(0)")
                    e(f"s_sub_u32 s{sT2}, s{sT2}, 1"); e(f"s_cmp_lg_u32 s{sT2}, 0"); e(f"s_cbranch_scc1 {lp}")
                    self.label(ld)
            R0, AC, H, vH = 144, 160, 164, 175
            s0 = g + 6 if first else 11
            so = 64 * KB if first else 0
            fin = [[f"v_lshrrev_b32 v{T2}, 1, v{T2}", f"s_lshl_b32 s{sT}, s{sLW}, 7", f"s_add_u32 s{sT}, s{sT}, {L_ST + 64}", f"v_add_u32 v{T2}, s{sT}, v{T2}",
                    f"v_sub_f32 v{AC}, 0, v{AC}", f"v_sub_f32 v{AC+2}, 0, v{AC+2}",
                    f"ds_write2_b32 v{T2}, v{AC}, v{AC+2} offset0:0 offset1:1", f"ds_write2_b32 v{T2}, v{AC+1}, v{AC+3} offset0:144 offset1:145"]]
            it += self.stats_gather(vm, s, s0, sSTo, R0, AC, fin, so, first)
            h0 = s0 + 1 if first else 16
            h1 = s0 + 6 if first else 21
            if s == h0:
                it.append([f"v_lshrrev_b32 v{T0}, 7, v{vL16}", f"v_and_b32 v{vH}, 0x70, v{vL16}", f"v_lshl_add_u32 v{T0}, v{T0}, 10, v{vH}",
                           f"s_sub_u32 s{sEX}, s{sSTo}, {ARENA - 896 - so}", f"s_cmp_eq_u32 s{sMT}, 0", f"s_cselect_b32 s{sEX}, {OOB}, s{sEX}"])
                for k in range(2):
                    it.append(self.grp(vm, "h", [], f"buffer_load_dwordx4 v[{H+4*k}:{H+4*k+3}], v{T0}, s[{sWS}:{sWS+3}], s{sEX} offen", [f"s_add_u32 s{sEX}, s{sEX}, 8192"]))
            if s == h1:
                self.wait(vm.need("h"))
                it += [f"v_add_f32 v{H+r}, v{H+r}, v{H+4+r}" for r in range(4)] + ["s_nop 1"]
                it += [f"v_add_f32_dpp v{H+r}, v{H+r}, v{H+r} row_ror:8 row_mask:0xf bank_mask:0xf" for r in range(4)]
                if not first: it += self.xred(list(range(H, H + 4)), list(range(H + 4, H + 8)), steps=("v_permlane16_swap_b32",))
            if s == h1 + 1:
                if first: it += self.xred(list(range(H, H + 4)), list(range(H + 4, H + 8)), steps=("v_permlane16_swap_b32",))
                it += self.xred(list(range(H, H + 4)), list(range(H + 4, H + 8)), steps=("v_permlane32_swap_b32",))
            if s == h1 + 2: it += self.finish_stats(H, H + 1)
            if s == h1 + (2 if first else 3):
                it += self.finish_stats(H + 2, H + 3)
                it += [f"v_lshrrev_b32 v{vH}, 1, v{vH}", f"v_add_u32 v{vH}, {L_ST}, v{vH}", f"v_sub_f32 v{H}, 0, v{H}", f"v_sub_f32 v{H+2}, 0, v{H+2}",
                       f"ds_write2_b32 v{vH}, v{H}, v{H+2} offset0:0 offset1:1", f"ds_write2_b32 v{vH}, v{H+1}, v{H+3} offset0:144 offset1:145"]
            dm = []
            if s >= 1 and (s - 1) // 2 + 3 < 16: dm = self.g1_a(vm, first, (s - 1) // 2 + 3, (s - 1) & 1)
            self.run_period(dm + self.w_take(vm, PT, 1, s), it)
            self.run_period([], post)
        assert self.wn == 38 and g + 16 <= 30
        self.tr_flush(P)
        e("s_setprio 0")

    def job_finish(self):
        e = self.e; T0, T1 = self.YT[:2]; JB = 0
        l = self.lab("jf")
        e(f"s_cmp_lg_u32 s{sLAY}, 0"); e(f"s_cbranch_scc1 {l}")
        if True:
            AC, S = 100, 104
            self.emit(self.selector(S, T0, T1)); e("s_nop 1")
            for i in range(16): e(mfma(AC, S, JB + 4 * i, "0" if i == 0 else None))
            e(f"s_and_b32 s{sT2}, s{self.sJi}, 1"); e(f"s_lshl_b32 s{sT2}, s{sT2}, 2"); e(f"s_add_u32 s{sT2}, s{sT2}, s{sLW}"); e(f"s_mul_i32 s{sT2}, s{sT2}, 28672")
            e(f"s_lshr_b32 s{sT}, s{self.sJi}, 1"); e(f"s_lshl_b32 s{sT}, s{sT}, 8")
            e(f"s_add_u32 s{sT}, s{sT}, s{sT2}"); e(f"s_add_u32 s{sT}, s{sT}, {WS_CS13}")
            e(f"s_cmp_lt_u32 s{self.sJi}, 224"); e(f"s_cselect_b32 s{sT}, s{sT}, {OOB}")
            e(f"v_and_b32 v{T0}, 0x70, v{vL16}"); e(f"v_lshrrev_b32 v{T1}, 4, v{vL16}"); e(f"v_and_b32 v{T1}, 16, v{T1}"); e(f"v_lshl_add_u32 v{T0}, v{T0}, 1, v{T1}")
            e("s_nop 2")
            for r in range(4): e(f"v_add_f32_dpp v{AC+r}, v{AC+r}, v{AC+r} row_ror:8 row_mask:0xf bank_mask:0xf")
            e("s_mov_b64 exec, 0x00ff00ff")
            e(f"buffer_store_dwordx4 v[{AC}:{AC+3}], v{T0}, s[{sWS}:{sWS+3}], s{sT} offen sc0 sc1")
            e("s_mov_b64 exec, -1")
        self.label(l)

    def y_g2(self):
        e = self.e; P = "Y"; vm = VM(); T0, T1, T2, _ = self.YT; PT = self.YP; vPL = self.vPL
        e(f"v_lshlrev_b32 v{T0}, 7, v{vL16}")
        e(f"s_lshl_b32 s{sT}, s{sWN}, 19"); e(f"s_add_u32 s{sT}, s{sT}, s{sRw}"); e(f"s_and_b32 s{sT}, s{sT}, {(16 << 17) - 1}"); e(f"s_add_u32 s{sT}, s{sT}, s{sB1}")
        e(f"buffer_load_dword v{vPL}, v{T0}, s[{sWO}:{sWO+3}], s{sT} offen")
        for i in range(4): e(f"v_mov_b32 v{112+i}, -1")
        e(f"s_lshl_b32 s{sRa}, s{sN4}, 14")
        vA = self.YAP[0]
        e(f"s_add_u32 s{sGa}, s{sOo}, s{sM4}"); e(f"v_add_u32 v{vA}, s{sGa}, v{vL16}")
        e(f"s_add_u32 s{sT}, s{sGa}, s{sRa}"); e(f"s_add_u32 s{sT}, s{sT}, {WS_P}")
        for i in range(4): e(f"buffer_store_dwordx4 v[112:115], v{vL16}, s[{sWS}:{sWS+3}], s{sT} offen offset:{1024 * i} sc0 sc1")
        l = self.lab("cp")
        e(f"s_cmp_lg_u32 s{sLAY}, 0"); e(f"s_cbranch_scc1 {l}")
        self.emit(self.pat_256(PT["g3a"], 7168, T0, T1, T2, sB3) + self.pat_g3b(PT["g3b"], T0, T1, T2) + self.pat_256(PT["g4"], 2048, T0, T1, T2))
        self.emit(self.reloc13(sW3A, 0)); self.emit(self.reloc13(sW3B, 0x4008))
        self.label(l)
        self.warm("A")
        def A(u): return self.a_issue(vm, ("A", u), u % 3, vA, None, self.ainc(uord(u + 1) - uord(u)) if u < 15 else None)
        self.bar(P, ("G2", -2))
        self.run_period(A(0), [])
        self.pb(P, ("G2", -1), 0)
        self.poll_flags(self.FL(0, 0), 8); vm.clear()
        self.run_period(A(1) + A(2), [])
        npre = int(self.opt.get("g2pre", 4)); g2w = int(self.opt.get("g2w", 13))
        sched = {1: 1, 3: 1}
        for k in range(npre): sched[min(g2w + k, 15)] = sched.get(min(g2w + k, 15), 0) + 1
        self.w_start(38, 72 + self.xw0)
        for u in range(16):
            need = ([("A", u + 1)] if u < 15 else []) + ([self.wneed(32 + (u + 1) // 2)] if (u & 1 and u < 15) else [])
            self.pb(P, ("G2", u), vm.need(*need))
            if u == 3: self.apoll_issue(vm, self.FG(0), 16, vPL)
            if u == 5: self.apoll_check(vm, self.FG(0), 16, vPL)
            self.run_period((A(u + 3) if u + 3 < 16 else []) + self.w_take(vm, PT, sched.get(u, 0), 32 + (u - 1) // 2), [])
        self.job_finish()
        return vm

    def b3(self, mat, t, rt): return ((mat * 3 + t) * 4 + rt) * 4
    VBX, VBW, YRL, YI2 = 176, 177, 184, 188

    def y_g3a(self, vm):
        e = self.e; P = "Y"; T0, T1, T2, T3 = self.YT; PT = self.YP; vPL = self.vPL
        R = 96; AC = 192; NM = 196; CS = 96; CT = 128
        vA = self.YAP[0]
        e(f"s_add_u32 s{sGa}, s{sXm}, s{sM4}"); e(f"s_lshl_b32 s{sRa}, s{sN4}, 14"); e(f"v_add_u32 v{vA}, s{sGa}, v{vL16}")
        self.h_bases()
        def A(u, part=None): return self.a_issue(vm, ("A", u), u % 3, vA, None, self.ainc(uord(u + 1) - uord(u)) if u < 15 else None, part)
        self.bar(P, ("G3A", -2))
        self.run_period(A(0), [])
        self.pb(P, ("G3A", -1), 0); vm.clear()
        self.apoll_issue(vm, self.FL(0, 32), 8, vPL)
        e("s_setprio 1")
        work = self.stat_regs(R, NM, self.YRL, self.YI2, T0)
        work += [f"v_lshrrev_b32 v{T0}, 8, v{vL16}", f"v_lshlrev_b32 v{T0}, 4, v{T0}", f"v_add_u32 v{T0}, {L_CSB}, v{T0}",
                 f"s_and_b32 s{sT2}, s{sNT}, 1", f"s_add_u32 s{sT}, s{sT2}, s{sWN}", f"s_lshl_b32 s{sT}, s{sT}, 7", f"v_add_u32 v{T1}, s{sT}, v{T0}",
                 f"s_xor_b32 s{sT2}, s{sT2}, 1", f"s_lshl_b32 s{sT2}, s{sT2}, 2", f"s_add_u32 s{sT2}, s{sT2}, s{sWN}", f"s_lshl_b32 s{sT2}, s{sT2}, 6", f"v_add_u32 v{T0}, s{sT2}, v{T0}"]
        for mat in range(2):
            for t in range(3):
                c = CS + (mat * 3 + t) * 4
                work.append(f"ds_read_b128 v[{c}:{c+3}], v{T1 if t < 2 else T0} offset:{mat * 512 + (64 * t if t < 2 else 0)}")
        work.append("s_waitcnt lgkmcnt(0)")
        for mat in range(2):
            for t in range(3):
                for rt in range(4):
                    work += [f"v_mul_f32 v{self.b3(mat,t,rt)+r}, v{NM+rt}, v{CS+(mat*3+t)*4+r}" for r in range(4)]
        work = self.costed(work)
        vW = self.VBW
        addr = [f"s_lshl_b32 s{sT}, s{sWM}, 13", f"s_add_u32 s{sT}, s{sT}, {LA}", f"v_add_u32 v{self.VBX}, s{sT}, v{vL16}",
                f"v_lshrrev_b32 v{T0}, 6, v{vL16}", f"v_lshrrev_b32 v{T1}, 1, v{T0}", f"v_and_b32 v{T1}, 3, v{T1}",
                f"s_lshl_b32 s{sT}, s{sWN}, 1", f"v_xor_b32 v{T1}, s{sT}, v{T1}", f"v_lshlrev_b32 v{T1}, 5, v{T1}", f"v_lshl_add_u32 v{T1}, v{T0}, 7, v{T1}",
                f"v_and_b32 v{vW+3}, 0x30, v{vL16}", f"v_lshrrev_b32 v{vW+3}, 1, v{vW+3}",
                f"v_add_u32 v{vW}, v{T1}, v{vW+3}", f"v_xor_b32 v{vW+1}, 32, v{vW}",
                f"v_lshrrev_b32 v{T1}, 2, v{T0}", f"v_and_b32 v{T1}, 1, v{T1}", f"v_xor_b32 v{T1}, s{sWN}, v{T1}", f"v_lshlrev_b32 v{T1}, 5, v{T1}",
                f"v_lshl_add_u32 v{T1}, v{T0}, 6, v{T1}", f"v_add_u32 v{T1}, v{T1}, v{vW+3}", f"v_add_u32 v{vW+2}, 2048, v{T1}"]
        addr += [f"v_add_u32 v{vW+3+t}, {3 * WSLOT}, v{vW+t}" for t in range(3)]
        c0 = 22; S0 = 9; C1 = 10
        cu0 = int(self.opt.get("cu0", 1))
        for s in range(32):
            need = [self.wneed(40 + s + 1)] + ([("A", (s + 1) // 2)] if s & 1 else [])
            self.pb(P, ("G3A", s), vm.need(*need), 0 if s == c0 else None)
            it = []; dm = []; post = []
            if s == 0:
                self.apoll_check(vm, self.FL(0, 32), 8, vPL)
                dm = A(1) + A(2)
            if s == 2: post.append(lambda: self.wg_flag_if(0, self.FG(6)))
            if s == 2:
                def cf():
                    l = self.lab("cf")
                    e(f"s_xor_b32 s{sT}, s{sLW}, 1"); e(f"s_or_b32 s{sT}, s{sLAY}, s{sT}"); e(f"s_cbranch_scc1 {l}")
                    self.side_flag(1)
                    self.label(l)
                post.append(cf)
            if s == S0 - 3: self.apoll_issue(vm, self.FG(6), 16, vPL)
            if s == S0: self.apoll_check(vm, self.FG(6), 16, vPL)
            fin = [[f"s_lshl_b32 s{sT}, s{sLW}, 8", f"s_add_u32 s{sT}, s{sT}, {L_ST}", f"v_add_u32 v{T2}, s{sT}, v{T2}", f"ds_write_b128 v{T2}, v[{AC}:{AC+3}]"]]
            it += self.stats_gather(vm, s, S0, sSTm, R, AC, fin)
            if s == C1: self.apoll4_issue(vm, 1, CT)
            if s == C1 + 3:
                self.apoll4_check(vm, 1, CT, [(sLAY, 1)])
                l = self.lab("cs")
                e(f"s_cmp_lg_u32 s{sLAY}, 0"); e(f"s_cbranch_scc1 {l}")
                e(f"s_and_b32 s{sT}, s{sNT}, 1"); e(f"s_mul_i32 s{sT2}, s{sT}, 384")
                e(f"s_xor_b32 s{sT}, s{sT}, 1"); e(f"s_lshl_b32 s{sT}, s{sT}, 9")
                e(f"s_cmp_eq_u32 s{sWN}, 0"); e(f"s_cselect_b32 s{sT}, s{sT2}, s{sT}")
                e(f"s_mul_i32 s{sT2}, s{sNT}, 896"); e(f"s_add_u32 s{sT}, s{sT}, s{sT2}")
                e(f"s_mul_i32 s{sT2}, s{sWM}, 14336"); e(f"s_add_u32 s{sT}, s{sT}, s{sT2}"); e(f"s_add_u32 s{sT}, s{sT}, {WS_CS13}")
                e(f"v_lshrrev_b32 v{T0}, 9, v{vL16}"); e(f"v_mul_u32_u24 v{T0}, 28672, v{T0}"); e(f"v_and_b32 v{T1}, 0x1f0, v{vL16}"); e(f"v_add_u32 v{T0}, v{T0}, v{T1}")
                for k in range(4):
                    e(f"buffer_load_dwordx4 v[{CT+4*k}:{CT+4*k+3}], v{T0}, s[{sWS}:{sWS+3}], s{sT} offen sc1")
                    e(f"s_add_u32 s{sT}, s{sT}, 57344")
                self.label(l)
                ct_after = ("A", (s - 1) // 2 + 3)
            if s == C1 + 7:
                assert ct_after not in vm.ops
                l = self.lab("cs")
                e(f"s_cmp_lg_u32 s{sLAY}, 0"); e(f"s_cbranch_scc1 {l}")
                for r in range(4): e(f"v_add_f32 v{CT+r}, v{CT+r}, v{CT+4+r}"); e(f"v_add_f32 v{CT+8+r}, v{CT+8+r}, v{CT+12+r}")
                for r in range(4): e(f"v_add_f32 v{CT+r}, v{CT+r}, v{CT+8+r}")
                self.emit(self.xred(list(range(CT, CT + 4)), list(range(CT + 4, CT + 8)), steps=("v_permlane32_swap_b32",)))
                e(f"s_lshl_b32 s{sT}, s{sLW}, 9"); e(f"s_add_u32 s{sT}, s{sT}, {L_CSA}"); e(f"v_and_b32 v{T1}, 0x1f0, v{vL16}"); e(f"v_add_u32 v{T0}, s{sT}, v{T1}")
                e(f"ds_write_b128 v{T0}, v[{CT}:{CT+3}]")
                self.label(l)
            if 4 <= s < 20 and s % 2 == 0 and self.opt.get("w2at") is None:
                def w2(s=s):
                    l = self.lab("w2")
                    e(f"s_lshl_b32 s{sT}, s{sLAY}, 4"); e(f"s_lshr_b32 s{sT2}, s{sMT}, 1"); e(f"s_add_u32 s{sT}, s{sT}, s{sT2}")
                    e(f"s_cmp_lg_u32 s{sT}, {(s - 4) // 2}"); e(f"s_cbranch_scc1 {l}")
                    e(f"v_lshlrev_b32 v{vF0}, 3, v{vL16}"); e(f"s_lshl_b32 s{sT}, s2, 2"); e(f"s_add_u32 s{sT}, s{sT}, s{sLW}"); e(f"s_lshl_b32 s{sT}, s{sT}, 13")
                    e(f"buffer_load_dword v250, v{vF0}, s[{sW2}:{sW2+3}], s{sT} offen")
                    self.label(l)
                post.append(w2)
            if s in (21, 26):
                def cp2(s=s):
                    l = self.lab("cp")
                    e(f"s_cmp_lg_u32 s{sLAY}, 0"); e(f"s_cbranch_scc1 {l}")
                    e(f"s_lshl_b32 s{sT}, s2, 2"); e(f"s_add_u32 s{sT}, s{sT}, s{sLW}"); e(f"s_lshl_b32 s{sT}, s{sT}, 13")
                    if s == 21:
                        e(f"v_and_b32 v{vF0}, 0x300, v{vL16}"); e(f"v_and_b32 v250, 0xf0, v{vL16}"); e(f"v_lshl_add_u32 v249, v{vF0}, 3, v250")
                        for k in range(2): e(f"buffer_load_dwordx4 v[{240+4*k}:{243+4*k}], v249, s[{sW2}:{sW2+3}], s{sT} offen offset:{256 + 1024 * k}")
                    else:
                        e(f"s_add_u32 s{sT}, s{sT}, {WS_C2 + 256}"); e("s_cmp_lt_u32 s2, 224"); e(f"s_cselect_b32 s{sT}, s{sT}, {OOB}")
                        for k in range(2): e(f"buffer_store_dwordx4 v[{240+4*k}:{243+4*k}], v249, s[{sWS}:{sWS+3}], s{sT} offen offset:{256 + 1024 * k} sc0 sc1")
                        self.emit(self.reloc2())
                    self.label(l)
                if s == 21: cp2(); cp_after = ("A", (s - 1) // 2 + 3)
                else:
                    assert cp_after not in vm.ops
                    post.append(cp2)
            if s == 20: it += self.atomize(addr)
            if s >= c0: it += self.chunk(work, float(self.opt.get("budC", 24)) if s < 30 else 1e9) if work else []
            if s >= 1 and (s - 1) // 2 + 3 < 16: dm = A((s - 1) // 2 + 3, (s - 1) & 1)
            self.run_period(dm + self.w_take(vm, PT, 1, 40 + s, 4 if s >= 27 else (1 if s >= cu0 and not S0 <= s < S0 + 4 else 0)), it)
            self.run_period([], post)
        assert not work and self.wn == 72 + self.xw0, self.wn
        self.tr_flush(P)
        e("s_setprio 0")
        self.g3bw = [vm.need(("W", 72 + s + 1)) for s in range(7)]
        assert 0 in self.g3bw

    def y_g3b(self):
        e = self.e; P = "YC"
        XF, WF = 96, 128
        vXa, vWa = self.VBX, self.VBW
        def xf(b, rt): return XF + b * 16 + rt * 4
        def wf(b, mat, t): return WF + b * 24 + (mat * 3 + t) * 4
        def reads(s):
            b = s & 1; sl = (72 + s) % 6
            xr = [f"ds_read_b128 v[{xf(b,rt)}:{xf(b,rt)+3}], v{vXa} offset:{((16 + (s >> 1)) % 3) * 16384 + rt * 2048 + (s & 1) * 1024}" for rt in range(4)]
            wr = []
            for t in range(3):
                for mat in range(2):
                    r = wf(b, mat, t); ad = vWa + 3 * (sl // 3) + t; off = (sl % 3) * WSLOT + mat * 6144
                    wr += [f"ds_read_b64_tr_b16 v[{r}:{r+1}], v{ad} offset:{off}", f"ds_read_b64_tr_b16 v[{r+2}:{r+3}], v{ad} offset:{off + 3072}"]
            return wr[0:2] + xr + wr[2:]
        def mf(s):
            b = s & 1
            return [mfma(self.b3(mat, t, rt), wf(b, mat, t), xf(b, rt)) for t in range(3) for mat in range(2) for rt in snake(range(4), mat)]
        self.emit(reads(0))
        e(f"s_add_u32 s{sGa}, s{sHx}, s{sM4}"); e(f"v_add_u32 v{self.YAP[0]}, s{sGa}, v{vL16}")
        def fn(s, ex):
            extra = []
            if ex: extra.append((20, self.CNT))
            self.step(P, ("G3B", s), mf(s), reads(s + 1) if s < 31 else [], vmw=(self.g3bw[s] if s < 7 else None), last=17, extra=extra)
        self.looped(P, 32, 6, fn)

    def y_g4(self):
        e = self.e; P = "Y"; vm = VM(); T0, T1, T2, _ = self.YT; PT = self.YP; vPL = self.vPL
        E, OUT, vX = 96, 100, 120
        e("s_setprio 1")
        work = ["s_nop 7"]
        for rt in range(4):
            O = OUT + 4 * (rt & 1)
            for t in range(2):
                work += self.silu_group(self.b3(0, t, rt), self.b3(1, t, rt), E, self.YRL + rt, self.YI2 + rt, O + 2 * t)
            work.append(self.grp(vm, ("H", 0), [f"s_add_u32 s{sT}, s{sGh}, {16 * 16384 + rt * 2048}"],
                                 f"buffer_store_dwordx4 v[{O}:{O+3}], v{vL16}, s[{sWS}:{sWS+3}], s{sT} offen sc0 sc1"))
        work.append(("FLAG", 0))
        work += [f"s_lshl_b32 s{sT}, s{sWM}, 12", f"s_lshl_b32 s{sT2}, s{sWN}, 3", f"s_add_u32 s{sT}, s{sT}, s{sT2}", f"s_add_u32 s{sT}, s{sT}, {L_SG}", f"v_add_u32 v{vX}, s{sT}, v{vL16}"]
        for rt in range(4):
            O = 108 + 2 * rt
            work += self.silu_group(self.b3(0, 2, rt), self.b3(1, 2, rt), E, self.YRL + rt, self.YI2 + rt, O)
            work.append(f"ds_write_b64 v{vX}, v[{O}:{O+1}] offset:{1024 * rt}")
        work += [f"s_lshr_b32 s{sT}, s{sM4}, 1", f"s_add_u32 s{sT}, s{sT}, {L_SG}", f"v_add_u32 v{vX+1}, s{sT}, v{vL16}"]
        work.append(("GATE",))
        for k in range(2): work.append(f"ds_read_b128 v[{OUT+4*k}:{OUT+4*k+3}], v{vX+1} offset:{1024 * k}")
        work.append("s_waitcnt lgkmcnt(0)")
        for k in range(2):
            work.append(self.grp(vm, ("H", 1), [], f"buffer_store_dwordx4 v[{OUT+4*k}:{OUT+4*k+3}], v{vL16}, s[{sWS}:{sWS+3}], s{sGs} offen offset:{2048 * k} sc0 sc1"))
        work.append(("FLAG", 1))
        work += [f"s_cmp_eq_u32 s{sLAY}, 0", f"s_cselect_b32 s{sB1}, s{sB1}, {OOB}"] + self.pat_g1(PT, T0, T1, T2, False)
        work = self.costed(work)
        self.w_start(109, 138)
        def need(u): return [self.wneed(104 + u + 1), ("A", u + 1)] if u < 27 else []
        def hook(u):
            pd = int(self.opt.get("pd", 4))
            if u + pd in (8, 16, 24): self.apoll_issue(vm, self.FL(1, 4 * (u + pd)), 8, vPL)
            if u + 3 in (8, 16, 24): self.apoll_check(vm, self.FL(1, 4 * (u + 3)), 8, vPL)
            if u == 23: assert not work
        def dmas(u):
            return (self.a_issue(vm, ("A", u + 3), (32 + u + 3) % 3, self.YAP[0], (u + 3) * 16384) if u + 3 < 28 else []) + self.w_take(vm, PT, 2 if u == 25 else 1, 104 + u)
        bud = float(self.opt.get("budY", 40))
        self.epi_loop(P, "G4", 28, vm, work, lambda s: bud, int(self.opt.get("lagY", 2)), need, dmas, [self.FL(1, 64), self.FL(1, 96)], [13, 21], hook)
        assert self.wn == 138
        self.tr_dump("Y")
        e("s_setprio 0")

    def next_layer(self):
        e = self.e
        e(f"s_mov_b32 s{sLAY}, 1")
        e(f"s_add_u32 s{sOo}, s{sOo}, {256 * KB}"); e(f"s_add_u32 s{sXm}, s{sXm}, {512 * KB}"); e(f"s_add_u32 s{sHo}, s{sHo}, {896 * KB}")
        e(f"s_add_u32 s{sSTm}, s{sSTm}, {64 * KB}"); e(f"s_add_u32 s{sFl}, s{sFl}, {32 * KB}"); e(f"s_add_u32 s{sFL}, s{sFL}, {32 * KB}")

    def warm(self, which):
        self.emit([f"#WARM {which}"])

    def gen(self, name):
        e = self.e; a = self.a; self.info = []; self.xw0 = 6; self.rot0 = sN4
        kernel_header(a, name)
        e("s_cmp_ge_u32 s2, 256"); e("s_cbranch_scc0 K_go"); e("s_endpgm")
        self.label("K_go")
        K = sAT
        e(f"s_load_dwordx4 s[{K}:{K+3}], s[0:1], 0")
        e(f"s_load_dwordx2 s[{K+4}:{K+5}], s[0:1], 16")
        e(f"s_load_dwordx8 s[{K+8}:{K+15}], s[0:1], 32")
        e(f"s_load_dwordx4 s[{K+16}:{K+19}], s[0:1], 64")
        e("v_lshrrev_b32 v1, 6, v0"); e(f"v_and_b32 v{vL16}, 63, v0")
        e(f"v_readfirstlane_b32 s{sWAVE}, v1")
        e(f"v_lshlrev_b32 v{vL16}, 4, v{vL16}")
        if self.opt.get("ts"): e(f"v_mov_b32 v{vTS}, 0")
        e(f"s_and_b32 s{sT}, s2, 6"); e(f"s_lshl_b32 s{sT}, s{sT}, 1"); e(f"s_lshr_b32 s{sT2}, s2, 3"); e(f"s_and_b32 s{sT2}, s{sT2}, 3")
        e(f"s_add_u32 s{sMT}, s{sT}, s{sT2}")
        e(f"s_and_b32 s{sT}, s2, 1"); e(f"s_lshr_b32 s{sT2}, s2, 5")
        e(f"s_lshl_b32 s{sNT}, s{sT}, 3"); e(f"s_add_u32 s{sNT}, s{sNT}, s{sT2}")
        e(f"s_lshl_b32 s{sN4}, s{sT2}, 1"); e(f"s_add_u32 s{sN4}, s{sN4}, s{sT}")
        e(f"s_and_b32 s{sLW}, s{sWAVE}, 3"); e(f"s_and_b32 s{sWM}, s{sWAVE}, 1"); e(f"s_lshr_b32 s{sWN}, s{sLW}, 1")
        e(f"s_lshl_b32 s{sT}, s{sWM}, 1"); e(f"s_add_u32 s{sT}, s{sT}, s{sWN}"); e(f"s_mul_i32 s{sM3}, s{sT}, 3072"); e(f"s_lshl_b32 s{sM4}, s{sT}, 12")
        e(f"s_mov_b32 s{sMODE}, 1"); e(f"s_mov_b32 s{sLAY}, 0")
        e(f"s_lshl_b32 s{sOo}, s{sMT}, 22"); e(f"s_add_u32 s{sXm}, s{sOo}, {WS_X1}"); e(f"s_add_u32 s{sX2}, s{sOo}, {WS_X1 + 256 * KB}")
        e(f"s_add_u32 s{sHo}, s{sOo}, {WS_H}")
        e(f"s_add_u32 s{sSTm}, s{sOo}, {WS_ST}"); e(f"s_add_u32 s{sSTo}, s{sSTm}, {32 * KB}")
        e(f"s_lshl_b32 s{sFl}, s{sMT}, 7"); e(f"s_add_u32 s{sFl}, s{sFl}, {WS_FL}")
        self.bases()
        e("s_waitcnt lgkmcnt(0)")
        make_srd(a, sQKV, K + 2, K + 3, 1024 * 6144)
        make_srd(a, sA1, K, K + 1, 4 * MB)
        make_srd(a, sWS, K + 18, K + 19, 256 * MB)
        make_srd(a, sX0, K, K + 1, 4 * MB)
        make_srd(a, sWO, K + 4, K + 5, 1024 * 2048)
        e(f"s_cmp_eq_u32 s{sWM}, 0")
        e(f"s_cselect_b32 s{sW13}, s{K+8}, s{K+10}"); e(f"s_cselect_b32 s{sW13+1}, s{K+9}, s{K+11}")
        e(f"s_mov_b32 s{sW13+2}, {1024 * 7168}"); e(f"s_mov_b32 s{sW13+3}, 0x00020000")
        make_srd(a, sW2, K + 12, K + 13, 3584 * 2048)
        make_srd(a, sOUT, K + 14, K + 15, 4 * MB)
        make_srd(a, sDBG, K + 16, K + 17, 256)
        e(f"s_and_b32 s{sT}, s2, 1"); e(f"s_lshl_b32 s{sT}, s{sT}, 13"); e(f"s_add_u32 s{sT}, s{sT}, {16 * KB}"); e(f"s_add_u32 s{sFL}, s{sFl}, s{sT}")
        e(f"s_lshl_b32 s{sT}, s{sN4}, 14"); e(f"s_lshl_b32 s{sT2}, s{sWM}, 13"); e(f"s_add_u32 s{sT}, s{sT}, s{sT2}")
        e(f"s_lshl_b32 s{sT2}, s{sWN}, 10"); e(f"s_add_u32 s{sTile}, s{sT}, s{sT2}")
        self.ts(15)
        e(f"s_cmp_lt_u32 s{sWAVE}, 4"); e("s_cbranch_scc1 X_start")
        vm1 = VM(); self.y_start(vm1); e("s_branch Y_first")
        self.label("X_start")
        self.x_prep()
        self.label("X_layer")
        self.x_g1(); self.x_g2(); self.x_g3a(); self.x_g3b(); self.x_g4()
        e(f"s_cmp_lg_u32 s{sLAY}, 0"); e("s_cbranch_scc1 X_fin")
        self.res_epilogue(self.a4, sX2, 236, 226); self.bars["X"].append(("G4", 99))
        self.next_layer()
        e("s_branch X_layer")
        self.label("X_fin")
        self.x_final()
        if self.opt.get("ts"):
            e("s_waitcnt vmcnt(0)")
            self.ts(24)
            e(f"s_lshl_b32 s{sT}, s2, 2"); e(f"s_add_u32 s{sT}, s{sT}, s{sLW}"); e(f"s_lshl_b32 s{sT}, s{sT}, 8"); e(f"s_add_u32 s{sT}, s{sT}, {WS_TS}")
            e(f"v_lshrrev_b32 v1, 2, v{vL16}")
            e(f"buffer_store_dword v{vTS}, v1, s[{sWS}:{sWS+3}], s{sT} offen")
            if self.opt.get("dbgts") is not None:
                e(f"s_lshl_b32 s{sT}, s2, 2"); e(f"s_add_u32 s{sT}, s{sT}, s{sLW}"); e(f"s_cmp_lg_u32 s{sT}, {4 * int(self.opt['dbgts'])}"); e("s_cbranch_scc1 K_nod")
                e(f"v_readlane_b32 s{sT2}, v{vTS}, 15"); e("v_mov_b32 v1, 0"); e("s_mov_b64 exec, 1")
                for slot, k in zip([1, 2, 3, 4, 5, 6, 7, 9, 10, 11, 12, 13, 14, 15], [1, 2, 7, 11, 12, 13, 14, 33, 34, 39, 43, 44, 45, 56]):
                    e(f"v_readlane_b32 s{sT}, v{vTS}, {k}"); e("s_nop 3"); e(f"s_sub_u32 s{sT}, s{sT}, s{sT2}"); e(f"v_mov_b32 v2, s{sT}")
                    e(f"buffer_store_dword v2, v1, s[{sDBG}:{sDBG+3}], 0 offen offset:{4 * slot}"); e("s_nop 1")
                self.label("K_nod")
        e("s_endpgm")
        self.label("Y_first")
        self.y_g1(vm1, True); e("s_branch Y_g2")
        self.label("Y_layer")
        self.y_g1(VM(), False)
        self.label("Y_g2")
        vm = self.y_g2(); self.y_g3a(vm); self.y_g3b(); self.y_g4()
        e(f"s_cmp_lg_u32 s{sLAY}, 0"); e("s_cbranch_scc1 K_end")
        self.emit(self.reloc13(sW3A, 0x14a0))
        self.next_layer(); self.bars["Y"].append(("G4", 99)); self.warm("B"); e("s_branch Y_layer")
        self.label("K_end")
        e("s_endpgm")
        B = self.bars
        def ph(p, *names): return [x for x in B[p] if x[0] in names]
        assert B["XL"] == B["YC"] and B["X"] == B["Y"] and B["Y1"] == ph("Y", "G1"), "barrier mismatch"
        kernels.append((name, 256, 102))
        return a.text()


def full(opt):
    kernels.clear()
    g = Gen(opt)
    KN = "mega_kernel" if opt.get("list") else NAME + "_kernel"
    body = g.gen(KN)
    body = "\n".join(x for x in body.split("\n") if not x.startswith("#")) + "\n"
    t = build([(KN, 256, 512, 163840)], [body], single=not opt.get("list"))
    for x in g.info: print(x, file=sys.stderr)
    return t

if __name__ == "__main__":
    opt = parse_opts(sys.argv[2:])
    open(sys.argv[1], "w").write(full(opt))
```

```python
import sys, re
from common import *

KB = 1024
ARENA = 4 * MB
WS_O = 0
WS_X1 = 512 * KB
WS_P = 1280 * KB
WS_ST = 1792 * KB
WS_H = 2 * MB
WS_RT = 64 * MB
WS_ST0 = 67 * MB
WS_CSQ = 67 * MB + 256 * KB
WS_CS13 = 67 * MB + 512 * KB
WS_FL = 68 * MB
WS_SF = 68 * MB + 256 * KB
WS_TS = 69 * MB
WS_C13 = 80 * MB
WS_C2 = 96 * MB
OOB = 0x7f000000
POLL = 0x40000
WSLOT = 16384
LA = 98304
L_SG = LA + 49152
L_SS = L_SG + 8192
L_ST = 159744
L_CSQ = L_ST + 1152
L_CSA = L_CSQ + 768
L_CSB = L_CSA + 1024
L_MODE = L_CSB + 1024
sFL = 0
sTile = 1
sWAVE = 3
sWS, sQKV, sWO, sW13, sW2, sX0, sOUT, sDBG, sA1 = 4, 8, 12, 16, 20, 24, 28, 32, 36
sW3B, sW3A = 24, 28
sMT, sNT, sLW, sWM, sWN, sMODE, sLAY = 40, 41, 42, 43, 44, 45, 46
sOo, sX2, sXm, sHo, sN4, sSTm, sSTo, sFl = 47, 48, 49, 50, 51, 52, 53, 54
sT, sT2, sT3, sCnt = 55, 56, 57, 58
sD0, sD1 = 59, 60
sM3, sM4 = 61, 62
sB1, sB2, sB3, sB4, sB5, sB6, sB7 = 63, 64, 65, 66, 67, 68, 69
sEX = 70
sAT = 72
sGa, sGh, sGs, sSu, sDa, sRw, sRa, sHx = 88, 89, 90, 91, 92, 93, 94, 95
sTS = 96
vL16, vTS = 254, 255
vF0, vF1 = 252, 253
EPS_BITS = 0x3727c5ac

def uord(t):
    return 2 * t if t < 8 else 2 * (t - 8) + 1
def snake(n, k):
    return list(n) if k % 2 == 0 else list(n)[::-1]
BORD = [13, 14, 15] + list(range(13))

class VM:
    def __init__(self): self.ops = []
    def issue(self, tag): self.ops.append(tag)
    def need(self, *tags):
        last = -1
        for i, t in enumerate(self.ops):
            if t in tags: last = i
        n = len(self.ops) - 1 - last
        if last < 0: return None
        self.ops = self.ops[last + 1:]
        return n
    def clear(self): self.ops = []


class Gen:
    def __init__(self, opt):
        self.opt = opt
        self.a = Asm()
        self.nlab = 0
        self.bars = {}
        self.trp = {}
        self.b2 = int(opt.get("b2", 0))
    def e(self, s): self.a.e(s)
    def lab(self, p="L"):
        self.nlab += 1
        return f"{p}_{self.nlab}"
    def label(self, l): self.a.label(l)
    def al(self): self.a.raw("    .p2align 3")
    def bar(self, path, name):
        self.bars.setdefault(path, []).append(name)
        self.e("s_barrier")
    PH0 = {"G1": 1, "G2": 34, "G3A": 51, "G3B": 83, "G4": 115}
    def tr_flush(self, path):
        p = self.trp.pop(path[0], None)
        if p is None: return
        l = self.lab("tr")
        self.e("s_waitcnt lgkmcnt(0)")
        self.e(f"s_cmp_lg_u32 s{sLAY}, {int(self.opt['trace'])}"); self.e(f"s_cbranch_scc1 {l}")
        for k in range(3):
            if path[0] == "X": i = p[1] * 3 + k; reg = 233 + i // 64
            else: i = (self.PH0[p[0]] + p[1]) * 3 + k; reg = 228 + i // 64
            self.e(f"v_writelane_b32 v{reg}, s{96 + 2 * k}, {i % 64}")
        self.label(l)
    def pb(self, path, name, vm=None, lgkm=None):
        tr = self.opt.get("trace") is not None
        if tr:
            if path[0] not in self.trp: self.e("s_waitcnt lgkmcnt(0)")
            self.tr_flush(path)
            self.e("s_memtime s[96:97]")
            lgkm = None
        self.wait(vm, lgkm)
        if tr: self.e("s_memtime s[98:99]")
        self.bar(path, name)
        if tr:
            self.e("s_memtime s[100:101]")
            self.trp[path[0]] = name
    def tr_dump(self, grp):
        if self.opt.get("trace") is None: return
        e = self.e; l = self.lab("td")
        e(f"s_cmp_lg_u32 s{sLAY}, {int(self.opt['trace'])}"); e(f"s_cbranch_scc1 {l}")
        e(f"s_lshl_b32 s{sT}, s2, 3"); e(f"s_add_u32 s{sT}, s{sT}, s{sLW}"); e(f"s_add_u32 s{sT}, s{sT}, {0 if grp == 'X' else 4}"); e(f"s_lshl_b32 s{sT}, s{sT}, 11"); e(f"s_add_u32 s{sT}, s{sT}, {WS_TS + MB}")
        e(f"v_lshrrev_b32 v{vF0}, 2, v{vL16}")
        for k in range(2 if grp == "X" else 7):
            e(f"buffer_store_dword v{(233 if grp == 'X' else 228) + k}, v{vF0}, s[{sWS}:{sWS+3}], s{sT} offen offset:{256 * k}")
        self.label(l)
    def wait(self, vm=None, lgkm=None):
        p = []
        if vm is not None:
            assert vm <= 63
            p.append(f"vmcnt({vm})")
        if lgkm is not None: p.append(f"lgkmcnt({lgkm})")
        if p: self.e("s_waitcnt " + " ".join(p))
    def ts(self, k):
        sp = self.opt.get("spin")
        if sp:
            kk, ly, tk = [int(x) for x in sp.split("_")]
            if k == 15: self.e("s_memrealtime s[100:101]"); self.e("s_waitcnt lgkmcnt(0)")
            if k == kk:
                l, l2 = self.lab("sp"), self.lab("sp")
                self.e(f"s_cmp_lg_u32 s{sLAY}, {ly}"); self.e(f"s_cbranch_scc1 {l2}")
                self.label(l)
                self.e("s_memrealtime s[98:99]"); self.e("s_waitcnt lgkmcnt(0)"); self.e("s_sub_u32 s98, s98, s100")
                self.e(f"s_cmp_lt_u32 s98, {tk}"); self.e(f"s_cbranch_scc1 {l}")
                self.label(l2)
        if self.opt.get("ts"):
            self.e(f"s_memrealtime s[{sTS}:{sTS+1}]")
            self.e(f"s_lshl_b32 s{sT3}, s{sLAY}, 5")
            self.e(f"s_add_u32 m0, s{sT3}, {k}")
            self.e("s_waitcnt lgkmcnt(0)")
            self.e(f"v_writelane_b32 v{vTS}, s{sTS}, m0")
    def tsc(self, k):
        if self.opt.get("ts"):
            self.e(f"s_memtime s[{sTS}:{sTS+1}]")
            self.e(f"s_lshl_b32 s{sT3}, s{sLAY}, 5")
            self.e(f"s_add_u32 m0, s{sT3}, {k}")
            self.e("s_waitcnt lgkmcnt(0)")
            self.e(f"v_writelane_b32 v{vTS}, s{sTS}, m0")

    def lanes(self, vL, vG=None, vI=None):
        self.e(f"v_lshrrev_b32 v{vL}, 4, v{vL16}")
        if vG is not None: self.e(f"v_lshrrev_b32 v{vG}, 8, v{vL16}")
        if vI is not None: self.e(f"v_and_b32 v{vI}, 15, v{vL}")

    def store(self, instr):
        l1, l2 = self.lab("st"), self.lab("st")
        return [f"s_cmp_eq_u32 s{sMODE}, 0", f"s_cbranch_scc1 {l1}", instr + " sc0 sc1", f"s_branch {l2}", f"@{l1}", instr, f"@{l2}"]

    def emit(self, seq):
        for x in seq:
            if isinstance(x, (list, tuple)): self.emit(x)
            elif x.startswith("@"): self.label(x[1:])
            elif x.startswith("."): self.a.raw("    " + x)
            elif x.startswith("#"): self.a.raw(x)
            else: self.e(x)

    @staticmethod
    def FG(kind): return (sFl, kind * 2048)
    @staticmethod
    def FL(line, off): return (sFL, line * 2048 + off)
    def wg_flag(self, fa):
        e = self.e; loc = fa[0] == sFL
        if loc: e(f"s_lshr_b32 s{sT}, s2, 5"); e(f"s_lshl_b32 s{sT}, s{sT}, 2")
        else: e(f"s_lshl_b32 s{sT}, s{sN4}, 2")
        e(f"s_add_u32 s{sT}, s{sT}, s{fa[0]}")
        e(f"v_mov_b32 v{vF0}, {fa[1]}"); e(f"v_mov_b32 v{vF1}, 0x01010101")
        e("s_mov_b64 exec, 1")
        ins = f"buffer_store_dword v{vF1}, v{vF0}, s[{sWS}:{sWS+3}], s{sT} offen"
        self.emit(self.store(ins) if loc else [ins + " sc0 sc1"])
        e("s_mov_b64 exec, -1")
    def wg_flags(self, fg, fl):
        self.wg_flag_if(2, fl)
        if fg is not None: self.wg_flag_if(3, fg)
    def wg_flag_if(self, lw, fa):
        l = self.lab("wf")
        self.e(f"s_cmp_lg_u32 s{sLW}, {lw}"); self.e(f"s_cbranch_scc1 {l}")
        self.wg_flag(fa)
        self.label(l)
    def fl_addr(self, fa, nl):
        lim = f"s{nl[1]}" if isinstance(nl, tuple) else str(4 * (nl - 1))
        return [f"v_lshrrev_b32 v{vF0}, 2, v{vL16}", f"v_min_u32 v{vF0}, {lim}, v{vF0}", f"s_add_u32 s{sT}, s{fa[0]}, {fa[1] & 0xffffffff}"]
    def poll_flags(self, fa, nl):
        lp, ld = self.lab("poll"), self.lab("pd")
        self.emit(self.fl_addr(fa, nl))
        self.e(f"s_mov_b32 s{sT2}, {POLL}")
        self.label(lp)
        self.e(f"buffer_load_dword v{vF1}, v{vF0}, s[{sWS}:{sWS+3}], s{sT} offen sc0 sc1")
        self.e("s_waitcnt vmcnt(0)")
        self.e(f"v_cmp_ne_u32 vcc, 0x01010101, v{vF1}")
        self.e(f"s_cbranch_vccz {ld}")
        if self.opt.get("psleep", 1): self.e(f"s_sleep {int(self.opt.get('psleep', 1))}")
        self.e(f"s_sub_u32 s{sT2}, s{sT2}, 1")
        self.e(f"s_cmp_lg_u32 s{sT2}, 0")
        self.e(f"s_cbranch_scc1 {lp}")
        self.label(ld)
    def apoll_issue(self, vm, fa, nl, vP):
        self.emit(self.fl_addr(fa, nl))
        self.e(f"buffer_load_dword v{vP}, v{vF0}, s[{sWS}:{sWS+3}], s{sT} offen sc0 sc1"); vm.issue("ap")
    def apoll_check(self, vm, fa, nl, vP, skip=()):
        e = self.e; l = self.lab("ap")
        self.wait(vm.need("ap"))
        e(f"v_cmp_ne_u32 vcc, 0x01010101, v{vP}")
        e(f"s_cbranch_vccz {l}")
        for r, v in skip:
            e(f"s_cmp_eq_u32 s{r}, {v}"); e(f"s_cbranch_scc1 {l}")
        self.poll_flags(fa, nl)
        self.label(l)
    def round_bf16(self, v): return [f"v_cvt_pk_bf16_f32 v{v}, v{v}, v{v}", f"v_lshlrev_b32 v{v}, 16, v{v}"]
    def finish_stats(self, vs, vq):
        o = [f"v_mul_f32 v{vs}, 0x3a800000, v{vs}", f"v_mul_f32 v{vq}, 0x3a800000, v{vq}",
             f"v_fma_f32 v{vq}, -v{vs}, v{vs}, v{vq}", f"v_max_f32 v{vq}, 0, v{vq}"]
        o += self.round_bf16(vs) + self.round_bf16(vq)
        o += [f"v_add_f32 v{vq}, 0x{EPS_BITS:08x}, v{vq}"] + self.round_bf16(vq)
        o += [f"v_sqrt_f32 v{vq}, v{vq}", "s_nop 0"] + self.round_bf16(vq)
        o += [f"v_rcp_f32 v{vq}, v{vq}", "s_nop 0"]
        return o
    def xred(self, regs, tmps, op="v_add_f32", steps=("v_permlane16_swap_b32", "v_permlane32_swap_b32")):
        o = []
        for sw in steps:
            o += [f"v_mov_b32 v{t}, v{v}" for v, t in zip(regs, tmps)]
            o += ["s_nop 1"]
            o += [f"{sw} v{v}, v{t}" for v, t in zip(regs, tmps)]
            o += [f"{op} v{v}, v{v}, v{t}" for v, t in zip(regs, tmps)]
        return o

    def mix(self, dmas, side):
        if not dmas: return list(side)
        out = []; n = len(dmas); k = 0
        for i, d in enumerate(dmas):
            out.append(d)
            want = (len(side) * (i + 1)) // n
            out += side[k:want]; k = want
        return out

    def chunk(self, work, budget):
        out = []; c = 0
        while work and (c + work[0][0] <= budget or not out):
            k, it = work.pop(0); c += k; out.append(it)
        return out
    def atomize(self, instrs):
        tm = [f"s{sT}", f"s{sT2}", f"s{sT3}"]
        def toks(x): return re.findall(r"[a-z_0-9]+", x)
        n = len(instrs); end = list(range(n))
        for i, x in enumerate(instrs):
            if not isinstance(x, str) or not x.startswith("s_") or x.startswith(("s_waitcnt", "s_nop")): continue
            t = toks(x)
            if t[0].startswith("s_cmp"):
                for j in range(i + 1, n):
                    if isinstance(instrs[j], str) and instrs[j].startswith("s_cselect"): end[i] = j; break
                continue
            d = t[1]
            if d not in tm: continue
            for j in range(i + 1, n):
                y = instrs[j]
                if not isinstance(y, str): continue
                ty = toks(y)
                if d in ty[2:]: end[i] = j
                if ty[1:2] == [d] and y.startswith("s_"): break
        out = []; i = 0
        while i < n:
            k = end[i]; j = i
            while j < k:
                j += 1; k = max(k, end[j])
            out.append(instrs[i] if k == i else list(instrs[i:k + 1])); i = k + 1
        return out
    def costed(self, instrs):
        w = []
        for x in self.atomize(instrs):
            if isinstance(x, list) and all(isinstance(y, str) for y in x):
                w.append((sum(1 if y.startswith("v_") else 0.5 for y in x), x)); continue
            if isinstance(x, (list, tuple)): w.append((4, x))
            elif callable(x): w.append((4, x))
            elif x.startswith(("v_exp", "v_rcp", "v_sqrt")): w.append((2, x))
            elif x.startswith("v_"): w.append((1, x))
            else: w.append((0.5, x))
        return w
    def run_period(self, dmas, items):
        seq = self.mix(dmas, items)
        for x in seq:
            if callable(x): x()
            else: self.emit([x])

    def selector(self, S, t0, t1):
        o = [f"v_lshrrev_b32 v{t0}, 4, v{vL16}", f"v_and_b32 v{t1}, 1, v{t0}", f"v_lshlrev_b32 v{t1}, 4, v{t1}", f"v_lshlrev_b32 v{t1}, v{t1}, v{S}",
             f"v_bfe_u32 v{t0}, v{t0}, 1, 3"]
        o = [f"v_mov_b32 v{S}, 0x3f80"] + o
        for d in range(4): o += [f"v_cmp_eq_u32 vcc, {d}, v{t0}", "s_nop 1", f"v_cndmask_b32 v{S+d}, 0, v{t1}, vcc"]
        return o
    def side_flag(self, which):
        e = self.e
        e(f"v_mov_b32 v{vF0}, 0"); e(f"v_mov_b32 v{vF1}, 1"); e(f"s_lshl_b32 s{sT}, s2, 2"); e(f"s_add_u32 s{sT}, s{sT}, {WS_SF + 1024 * which}")
        e("s_mov_b64 exec, 1")
        e(f"buffer_store_dword v{vF1}, v{vF0}, s[{sWS}:{sWS+3}], s{sT} offen sc0 sc1")
        e("s_mov_b64 exec, -1")
    def apoll4_issue(self, vm, which, G):
        self.e(f"s_mov_b32 s{sT}, {WS_SF + 1024 * which}")
        self.e(f"buffer_load_dwordx4 v[{G}:{G+3}], v{vL16}, s[{sWS}:{sWS+3}], s{sT} offen sc0 sc1"); vm.issue("p4")
    def apoll4_check(self, vm, which, G, skip=()):
        e = self.e; l = self.lab("a4")
        self.wait(vm.need("p4"))
        for r, v in skip:
            e(f"s_cmp_eq_u32 s{r}, {v}"); e(f"s_cbranch_scc1 {l}")
        e(f"v_and_b32 v{G}, v{G}, v{G+1}"); e(f"v_and_b32 v{G+2}, v{G+2}, v{G+3}"); e(f"v_and_b32 v{G}, v{G}, v{G+2}")
        e(f"v_cmp_ne_u32 vcc, 1, v{G}")
        e(f"s_cbranch_vccz {l}")
        self.poll4(WS_SF + 1024 * which, None, G)
        self.label(l)

    def poll4(self, off, T0, G):
        e = self.e
        lp, ld = self.lab("p4"), self.lab("p4")
        e(f"s_mov_b32 s{sT}, {off}"); e(f"s_mov_b32 s{sT2}, {POLL}")
        self.label(lp)
        e(f"buffer_load_dwordx4 v[{G}:{G+3}], v{vL16}, s[{sWS}:{sWS+3}], s{sT} offen sc0 sc1")
        e("s_waitcnt vmcnt(0)")
        e(f"v_and_b32 v{G}, v{G}, v{G+1}"); e(f"v_and_b32 v{G+2}, v{G+2}, v{G+3}"); e(f"v_and_b32 v{G}, v{G}, v{G+2}")
        e(f"v_cmp_ne_u32 vcc, 1, v{G}")
        e(f"s_cbranch_vccz {ld}")
        e("s_sleep 1"); e(f"s_sub_u32 s{sT2}, s{sT2}, 1"); e(f"s_cmp_lg_u32 s{sT2}, 0"); e(f"s_cbranch_scc1 {lp}")
        self.label(ld)

    def grp(self, vm, tag, pre, ins, post=()):
        def f():
            vm.issue(tag); self.emit(list(pre) + [ins] + list(post))
        return f

    def w_unit(self, n, P):
        n = n % 132; slot = (n % 6) * WSLOT; tag = ("W", n)
        def lds(srd, pats, so): return [f"buffer_load_dwordx4 v{p}, s[{srd}:{srd+3}], s{so} offen{f' offset:{1024 * i}' if i else ''} lds" for i, p in enumerate(pats)]
        def adv(inc, msk): return [f"s_add_u32 s{sRw}, s{sRw}, {inc}", f"s_and_b32 s{sRw}, s{sRw}, {msk}"]
        def sinc(order, st):
            if st == 31: return []
            d = 1 if st % 2 == 0 else (2 * (uord(order[st // 2 + 1]) - uord(order[st // 2])) - 1) % 32
            return adv(d * 2048, 0xffff)
        ident = list(range(16))
        if n < 32:
            init = [f"s_lshl_b32 s{sRw}, s{self.rot0}, 12"] if n == 0 else []
            return tag, f"s_add_u32 m0, s{sM3}, {slot}", init + [f"s_mul_i32 s{sD0}, s{sRw}, 96"], lds(sQKV, P["g1"], sD0), sinc(ident, n)
        if n < 40:
            init = [f"s_lshl_b32 s{sRw}, s{sWM}, 1", f"s_add_u32 s{sRw}, s{sN4}, s{sRw}", f"s_and_b32 s{sRw}, s{sRw}, 15", f"s_lshl_b32 s{sRw}, s{sRw}, 17"] if n == 32 else []
            return tag, f"s_add_u32 m0, s{sM4}, {slot}", init, lds(sWO, P["g2"], sRw), adv((5 if n == 35 else 4) << 17, (16 << 17) - 1)
        if n < 72:
            init = [f"s_lshl_b32 s{sRw}, s{sN4}, 12"] if n == 40 else []
            return tag, f"s_add_u32 m0, s{sM4}, {slot}", init + [f"s_mul_i32 s{sD0}, s{sRw}, 112"], lds(sW3A, P["g3a"], sD0), sinc(ident, n - 40)
        if n < 104:
            st = n - 72; init = []
            if st in (0, self.xw0):
                init = [f"s_add_u32 s{sRw}, s{sN4}, {uord(BORD[st // 2])}", f"s_and_b32 s{sRw}, s{sRw}, 15", f"s_lshl_b32 s{sRw}, s{sRw}, 12"]
                if st & 1: init.append(f"s_add_u32 s{sRw}, s{sRw}, 2048")
            ld = lds(sW3B, P["g3b"][:2], sD0) + [f"buffer_load_dwordx4 v{P['g3b'][2]}, s[{sWS}:{sWS+3}], s{sRw} offen offset:2048 lds"]
            return tag, f"s_add_u32 m0, s{sM3}, {slot}", init + [f"s_mul_i32 s{sD0}, s{sRw}, 112"], ld, sinc(BORD, st)
        u = n - 104
        if u < 24:
            p = u & 7; c = u >> 3
            colA = 224 * p + (96 if p & 1 else 0); colF = 224 * p + (32 if p & 1 else 128)
            row = [colA, colA + 32, colF][c]; base = sB6 if c < 2 else sB7
        else:
            row = 448 * (u - 24) + 192; base = sB7
        pre = []; post = []
        if u == 24:
            pre = [f"v_add_u32 v{P['g4'][i]}, {i * 4 * 2048}, v{P['g4'][i]}" for i in range(1, 4)] + [f"s_mul_i32 s{sD0}, s{sWN}, {12 * 2048}", f"s_sub_u32 s{sB7}, s{sB7}, s{sD0}"]
        if u == 27:
            post = [f"v_subrev_u32 v{P['g4'][i]}, {i * 4 * 2048}, v{P['g4'][i]}" for i in range(1, 4)] + [f"s_mul_i32 s{sD0}, s{sWN}, {12 * 2048}", f"s_add_u32 s{sB7}, s{sB7}, s{sD0}"]
        return tag, f"s_add_u32 m0, s{sM4}, {slot}", pre + [f"s_add_u32 s{sD0}, s{base}, {row * 2048}"], lds(sW2, P["g4"], sD0), post

    def w_start(self, n, lim): self.wn = n; self.wlim = lim; self.wi = 0
    def w_take(self, vm, P, units, freed, extra=0):
        out = []; fresh = True; left = None
        while True:
            if self.wn - 6 > freed or self.wn >= self.wlim: break
            tag, m0, setup, ld, adv = self.w_unit(self.wn, P)
            if left is None: left = units * len(ld) + extra
            if left == 0: break
            i = self.wi; pre = []
            if i == 0: pre = (setup[:-1] + [m0, setup[-1]]) if setup else [m0, "s_nop 0"]
            elif fresh: pre = [m0, "s_nop 0"]
            out.append(self.grp(vm, tag if i == len(ld) - 1 else (tag, i), pre, ld[i], adv if i == len(ld) - 1 else ()))
            fresh = False; left -= 1; self.wi += 1
            if self.wi == len(ld): self.wi = 0; self.wn += 1
        return out
    def hasb(self, s): return (not self.b2) or (s & 1) == 1
    def kneed(self, base, s, last):
        return [self.wneed(n) for n in range(base + s + 1, base + s + (3 if self.b2 else 2)) if n <= last]
    def kfree(self, base, s): return base + (s if self.hasb(s) else s - 1)
    def wneed(self, n):
        assert n < self.wn, (n, self.wn)
        return ("W", n % 132)

    def a_issue(self, vm, tag, slot, vA, glit=None, inc=None, part=None, srd=sWS, pats=None, lbase=None):
        pats = pats or [vA] * 4
        lb = LA + slot * 16384 if lbase is None else lbase
        so = sRa if glit is None else sDa
        g = []
        for i in (range(4) if part is None else (2 * part, 2 * part + 1)):
            pre = []
            if i == 0 or (part == 1 and i == 2):
                pre = [f"s_add_u32 m0, s{sM4}, {lb}", f"s_mov_b32 s{sDa}, {glit}" if glit is not None else "s_nop 0"]
            off = f" offset:{1024 * i}" if i else ""
            g.append(self.grp(vm, tag, pre, f"buffer_load_dwordx4 v{pats[i]}, s[{srd}:{srd+3}], s{so} offen{off} lds", inc if (i == 3 and inc) else ()))
        return g
    def ainc(self, d, stride=16384):
        return [f"s_add_u32 s{sRa}, s{sRa}, {(d % 16) * stride}", f"s_and_b32 s{sRa}, s{sRa}, {16 * stride - 1}"]

    def reloc(self, dst, src, mask, sidx, off, size):
        if not self.opt.get("rel"):
            if dst == src: return []
            return [f"s_mov_b32 s{dst+i}, s{src+i}" for i in range(4)]
        o = [f"s_add_u32 s{sT}, s{sWS}, {off}", f"s_addc_u32 s{sT2}, s{sWS+1}, 0", f"s_lshr_b32 s{sT3}, {mask}, s{sidx}", f"s_and_b32 s{sT3}, s{sT3}, 1",
             f"s_cselect_b32 s{dst}, s{sT}, s{src}", f"s_cselect_b32 s{dst+1}, s{sT2}, s{src+1}"]
        if dst != src: o += [f"s_mov_b32 s{dst+2}, {size}", f"s_mov_b32 s{dst+3}, 0x00020000"]
        return o
    def reloc13(self, dst, mask):
        return [f"s_lshl_b32 s{sD1}, s{sWM}, 23", f"s_add_u32 s{sD1}, s{sD1}, {WS_C13 + 256}"] + self.reloc(dst, sW13, mask, sNT, f"s{sD1}", 1024 * 7168)
    def reloc2(self): return self.reloc(sW2, sW2, 0x0c0c, sN4, WS_C2 + 256, 0)

    def swz128(self, t0, t1, t2):
        return [f"v_lshrrev_b32 v{t0}, 7, v{vL16}", f"v_and_b32 v{t1}, 0x70, v{vL16}",
                f"v_and_b32 v{t2}, 6, v{t0}", f"v_lshlrev_b32 v{t2}, 4, v{t2}", f"v_xor_b32 v{t1}, v{t1}, v{t2}"]
    def pat_g1(self, P, t0, t1, t2, first):
        o = self.swz128(t0, t1, t2)
        if first: o += [f"v_and_b32 v{t2}, 4, v{t0}", f"v_add_u32 v{t0}, v{t0}, v{t2}"]
        o += [f"v_mul_u32_u24 v{t0}, 6144, v{t0}", f"v_add3_u32 v{t0}, v{t0}, v{t1}, s{sB1}"]
        for i in range(3):
            o += [f"s_lshr_b32 s{sT}, s{sM3}, 10", f"s_add_u32 s{sT}, s{sT}, {i}", f"s_and_b32 s{sT2}, s{sT}, 3"]
            if first: o += [f"s_and_b32 s{sT3}, s{sT2}, 1", f"s_lshl_b32 s{sT3}, s{sT3}, 4", f"s_and_b32 s{sT2}, s{sT2}, 2", f"s_lshl_b32 s{sT2}, s{sT2}, 1", f"s_add_u32 s{sT2}, s{sT2}, s{sT3}"]
            else: o += [f"s_lshl_b32 s{sT2}, s{sT2}, 3"]
            o += [f"s_mul_i32 s{sT2}, s{sT2}, 6144", f"s_lshr_b32 s{sT}, s{sT}, 2", f"s_lshl_b32 s{sT}, s{sT}, 11", f"s_add_u32 s{sT}, s{sT}, s{sT2}",
                  f"s_sub_u32 s{sT}, s{sT}, {1024 * i}", f"v_add_u32 v{P['g1'][i]}, s{sT}, v{t0}"]
        return o
    def pat_128(self, regs, pitch, t0, t1, t2, sb):
        o = self.swz128(t0, t1, t2) + [f"v_mul_u32_u24 v{t0}, {pitch}, v{t0}", f"v_add3_u32 v{regs[0]}, v{t0}, v{t1}, s{sb}"]
        for i in range(1, len(regs)): o.append(f"v_add_u32 v{regs[i]}, {i * (8 * pitch - 1024)}, v{regs[0]}")
        return o
    def pat_g3b(self, regs, t0, t1, t2):
        return self.pat_128(regs[:2], 7168, t0, t1, t2, sB4) + [f"v_add_u32 v{regs[2]}, s{sB5}, v{vL16}"]
    def pat_256(self, regs, pitch, t0, t1, t2, sb=None):
        o = [f"v_and_b32 v{t1}, 0xf0, v{vL16}", f"v_lshrrev_b32 v{t0}, 8, v{vL16}", f"v_lshlrev_b32 v{t2}, 5, v{t0}", f"v_xor_b32 v{t1}, v{t1}, v{t2}",
             f"v_mul_u32_u24 v{t0}, {pitch}, v{t0}"] + ([f"v_add_u32 v{t0}, s{sb}, v{t0}"] if sb else []) + [f"v_add_u32 v{regs[0]}, v{t0}, v{t1}",
             f"v_xor_b32 v{t1}, 0x80, v{t1}", f"v_add_u32 v{t0}, v{t0}, v{t1}", f"v_add_u32 v{regs[1]}, {4 * pitch - 1024}, v{t0}"]
        for i in (2, 3): o.append(f"v_add_u32 v{regs[i]}, {8 * pitch - 2048}, v{regs[i-2]}")
        return o
    def bases(self):
        e = self.e
        e(f"s_lshl_b32 s{sB1}, s{sN4}, 7")
        e(f"s_lshl_b32 s{sT}, s{sWN}, 16"); e(f"s_add_u32 s{sB2}, s{sB1}, s{sT}")
        e(f"s_mul_i32 s{sT}, s{sWN}, {16 * 7168}"); e(f"s_mul_i32 s{sT2}, s{sNT}, 448"); e(f"s_add_u32 s{sT}, s{sT}, s{sT2}")
        e(f"s_and_b32 s{sT2}, s{sNT}, 1"); e(f"s_mul_i32 s{sT2}, s{sT2}, 192")
        e(f"s_add_u32 s{sB3}, s{sT}, s{sT2}"); e(f"s_sub_u32 s{sB4}, s{sT}, s{sT2}"); e(f"s_add_u32 s{sB4}, s{sB4}, 256")
        e(f"s_lshl_b32 s{sT}, s{sWM}, 4"); e(f"s_add_u32 s{sT}, s{sT}, s{sNT}"); e(f"s_lshl_b32 s{sT}, s{sT}, 6"); e(f"s_add_u32 s{sT}, s{sT}, s{sWN}")
        e(f"s_lshl_b32 s{sT}, s{sT}, 10"); e(f"s_add_u32 s{sB5}, s{sT}, {WS_RT - 2048}")
        e(f"s_and_b32 s{sT}, s{sN4}, 1"); e(f"s_mul_i32 s{sT}, s{sT}, {1792 * 2048}"); e(f"s_lshr_b32 s{sT2}, s{sN4}, 1"); e(f"s_lshl_b32 s{sT2}, s{sT2}, 8")
        e(f"s_add_u32 s{sT}, s{sT}, s{sT2}"); e(f"s_lshl_b32 s{sT2}, s{sWN}, 15"); e(f"s_add_u32 s{sT}, s{sT}, s{sT2}")
        e(f"s_lshl_b32 s{sT2}, s{sWM}, 16"); e(f"s_add_u32 s{sB7}, s{sT}, s{sT2}"); e(f"s_add_u32 s{sB6}, s{sB7}, s{sT2}")

    def step(self, path, name, mf, reads, vmw=None, bar=True, last=None, extra=None, lg=0):
        self.wait(vmw, lg)
        if bar: self.bar(path, name)
        self.al()
        oth = [[r] for r in reads]
        if last is None: last = len(reads) - 1
        sl = spread(len(reads), 0, last)
        if extra:
            for s, x in extra:
                oth.append(x + [".p2align 3"]); sl.append(s)
        self.emit(place(mf, oth, sl))

    def looped(self, path, nsteps, body, fn, pre=1):
        trips = (nsteps - pre - 1) // body
        l = self.lab("loop")
        self.e(f"s_mov_b32 s{sCnt}, {trips}")
        for s in range(pre): fn(s, None)
        self.emit([".p2align 3", "#LOOP"])
        self.label(l)
        nb0 = len(self.bars.get(path, []))
        for s in range(pre, pre + body): fn(s, "cnt" if s == pre + body - 1 else None)
        self.e(f"s_cbranch_scc1 {l}")
        self.emit(["#ENDLOOP"])
        names = self.bars[path][nb0:]
        for t in range(1, trips):
            for nm in names: self.bars[path].append((nm[0], nm[1] + t * body))
        for s in range(pre + trips * body, nsteps): fn(s, None)

    CNT = [f"s_sub_u32 s{sCnt}, s{sCnt}, 1", f"s_cmp_lg_u32 s{sCnt}, 0"]

    def xcc_word(self, r):
        return [f"s_getreg_b32 s{r}, hwreg(HW_REG_XCC_ID, 0, 4)"] + ([f"s_lshr_b32 s{r}, s2, 7"] if self.opt.get("slow") else []) + \
               [f"s_mul_i32 s{sT}, s{r}, s{r}", f"s_lshl_b32 s{sT}, s{sT}, 15", f"s_lshl_b32 s{r}, s{r}, 6", f"s_add_u32 s{r}, s{r}, s{sT}", f"s_add_u32 s{r}, s{r}, 1"]

    def x_prep(self):
        e = self.e
        l3, ld = self.lab("xp"), self.lab("xp")
        D = 0; AC = 64; T = 80
        vO, vS0, vS1, vS2 = 100, 235, 102, 103
        lz = self.lab("xz")
        e(f"s_cmp_lg_u32 s{sLW}, 0"); e(f"s_cbranch_scc1 {lz}")
        e(f"v_mov_b32 v{vS2}, 0"); e(f"v_lshrrev_b32 v{vO}, 2, v{vL16}")
        e(f"s_lshl_b32 s{sT}, s2, 8"); e(f"s_add_u32 s{sT}, s{sT}, {WS_FL}")
        e(f"buffer_store_dword v{vS2}, v{vO}, s[{sWS}:{sWS+3}], s{sT} offen sc0 sc1")
        e(f"v_lshlrev_b32 v{vO}, 6, v{vL16}")
        e(f"s_lshl_b32 s{sT}, s2, 2"); e(f"s_add_u32 s{sT}, s{sT}, {WS_SF}")
        e("s_mov_b64 exec, 15")
        e(f"buffer_store_dword v{vS2}, v{vO}, s[{sWS}:{sWS+3}], s{sT} offen sc0 sc1")
        e("s_mov_b64 exec, -1")
        self.label(lz)
        e(f"s_getpc_b64 s[{sAT}:{sAT+1}]")
        self.label("K_pc")
        e(f"s_mov_b32 s{sAT+2}, K_end-K_pc")
        e(f"s_mov_b32 s{sAT+3}, 0x00020000")
        e(f"s_lshr_b32 s{sT}, s2, 3"); e(f"s_lshl_b32 s{sT}, s{sT}, 2"); e(f"s_add_u32 s{sT}, s{sT}, s{sLW}"); e(f"s_lshl_b32 s{sT}, s{sT}, 10")
        e(f"v_lshlrev_b32 v{vO}, 3, v{vL16}")
        e("s_mov_b64 exec, 0xff")
        e(f"buffer_load_dword v{vS0}, v{vO}, s[{sAT}:{sAT+3}], s{sT} offen")
        e("s_mov_b64 exec, -1")
        lz = self.lab("xz")
        e(f"s_cmp_lg_u32 s{sLW}, 0"); e(f"s_cbranch_scc1 {lz}")
        self.emit(self.xcc_word(sD0))
        e(f"v_mov_b32 v{vF1}, s{sD0}"); e(f"s_and_b32 s{sT}, s2, 7"); e(f"s_lshl_b32 s{sT}, s{sT}, 5"); e(f"v_mov_b32 v{vF0}, 0")
        e("s_waitcnt vmcnt(1)")
        e("s_mov_b64 exec, 1")
        e(f"buffer_atomic_add v{vF1}, v{vF0}, s[{sDBG}:{sDBG+3}], s{sT} offen sc1")
        e("s_mov_b64 exec, -1")
        self.label(lz)

    def out_addr(self, T0, T1, sd):
        return [f"v_and_b32 v{T0}, 0xf0, v{vL16}", f"v_lshlrev_b32 v{T0}, 7, v{T0}",
                f"v_and_b32 v{T1}, 0x100, v{vL16}", f"v_lshrrev_b32 v{T1}, 3, v{T1}", f"v_add_u32 v{T0}, v{T0}, v{T1}",
                f"v_and_b32 v{T1}, 0x200, v{vL16}", f"v_lshrrev_b32 v{T1}, 5, v{T1}", f"v_add_u32 v{T0}, v{T0}, v{T1}",
                f"s_lshl_b32 s{sd}, s{sMT}, 18", f"s_lshl_b32 s{sT2}, s{sWM}, 17", f"s_add_u32 s{sd}, s{sd}, s{sT2}",
                f"s_lshl_b32 s{sT2}, s{sN4}, 7", f"s_add_u32 s{sd}, s{sd}, s{sT2}", f"s_lshl_b32 s{sT2}, s{sWN}, 6", f"s_add_u32 s{sd}, s{sd}, s{sT2}"]

    def waddr128(self, dst, sel, t0, t1, t2, nt=2):
        e = self.e
        e(f"v_lshrrev_b32 v{t0}, 6, v{vL16}")
        e(f"v_lshrrev_b32 v{t1}, 1, v{t0}"); e(f"v_and_b32 v{t1}, 3, v{t1}")
        e(f"s_lshl_b32 s{sT}, s{sel}, 1")
        e(f"v_xor_b32 v{t1}, s{sT}, v{t1}")
        e(f"v_lshlrev_b32 v{t0}, 7, v{t0}")
        e(f"v_lshl_add_u32 v{t0}, v{t1}, 5, v{t0}")
        e(f"v_and_b32 v{t1}, 0x30, v{vL16}"); e(f"v_lshrrev_b32 v{t1}, 1, v{t1}")
        e(f"v_add_u32 v{dst}, v{t0}, v{t1}")
        e(f"v_xor_b32 v{dst+1}, 32, v{dst}")
        for t in range(2): e(f"v_add_u32 v{dst+2+t}, {3 * WSLOT}, v{dst+t}")

    def waddr256(self, dst, xs, sbase, t0, t1):
        o = [f"v_lshrrev_b32 v{t0}, 6, v{vL16}", f"v_and_b32 v{t1}, 7, v{t0}", f"v_xor_b32 v{t1}, s{sbase}, v{t1}",
             f"v_lshlrev_b32 v{t0}, 8, v{t0}", f"v_lshl_add_u32 v{t0}, v{t1}, 5, v{t0}",
             f"v_and_b32 v{t1}, 0x30, v{vL16}", f"v_lshrrev_b32 v{t1}, 1, v{t1}", f"v_add_u32 v{t0}, v{t0}, v{t1}"]
        for t in range(4): o.append(f"v_xor_b32 v{dst+t}, {xs[t] << 5}, v{t0}")
        for t in range(4): o.append(f"v_add_u32 v{dst+4+t}, {3 * WSLOT}, v{dst+t}")
        return o

    def x_g1(self):
        e = self.e; P = "X"
        ACCQ, ACCK, ACCV, XF, WF = 0, 32, 72, 112, 152
        vXa, vWa = 200, 202
        vL, vG, vI, vT0, vT1, vT2, vT3, vOA = 206, 207, 208, 209, 210, 211, 212, 213
        def aq(j, ab): return ACCQ + ((j - 1) * 2 + ab) * 4
        def ak(j, ab): return ACCK + (j * 2 + ab) * 4
        def av(j, ab): return ACCV + (j * 2 + ab) * 4
        def xf(b, j): return XF + b * 20 + j * 4
        def wf(b, seg, ab): return WF + b * 24 + (seg * 2 + ab) * 4
        self.lanes(vL, vG, vI)
        l2, l3 = self.lab("g1"), self.lab("g1")
        e(f"s_lshl_b32 s{sT}, s{sWM}, 13"); e(f"s_add_u32 s{sT}, s{sT}, {LA}")
        e(f"s_cmp_lg_u32 s{sLAY}, 0"); e(f"s_cbranch_scc1 {l2}")
        e(f"v_and_b32 v{vT1}, 6, v{vI}"); e(f"v_xor_b32 v{vT1}, v{vT1}, v{vG}"); e(f"v_lshlrev_b32 v{vT1}, 4, v{vT1}")
        e(f"v_lshl_add_u32 v{vXa}, v{vI}, 7, v{vT1}"); e(f"v_xor_b32 v{vXa+1}, 64, v{vXa}")
        e(f"s_branch {l3}")
        self.label(l2)
        e(f"v_mov_b32 v{vXa}, v{vL16}"); e(f"v_add_u32 v{vXa+1}, 1024, v{vL16}")
        self.label(l3)
        e(f"v_add_u32 v{vXa}, s{sT}, v{vXa}"); e(f"v_add_u32 v{vXa+1}, s{sT}, v{vXa+1}")
        self.waddr128(vWa, sWN, vT0, vT1, vT2)
        e(f"s_add_u32 s{sGa}, s{sTile}, s{sOo}")
        SEL, vQa, vVa, vCq, vCv, ONES = 214, 218, 219, 220, 221, 222
        sM = sAT; sOdd = sAT + 8; sInv = sAT + 10
        e(f"v_lshlrev_b32 v{vT0}, 2, v{vG}"); e(f"v_sub_u32 v{vT0}, v{vI}, v{vT0}")
        for r in range(4): e(f"v_cmp_le_i32 s[{sM+2*r}:{sM+2*r+1}], {r}, v{vT0}")
        e(f"v_and_b32 v{vT1}, 1, v{vI}"); e(f"v_cmp_eq_u32 s[{sOdd}:{sOdd+1}], 1, v{vT1}")
        e(f"v_sub_u32 v{vT0}, v{vT0}, v{vT1}")
        e(f"v_mov_b32 v{vT3}, 0x0c0c0c0c")
        for k in range(2):
            e(f"v_mov_b32 v{vT1}, {hex([0x0c0c0100, 0x0c0c0302][k])}"); e(f"v_mov_b32 v{vT2}, {hex([0x01000c0c, 0x03020c0c][k])}")
            e(f"v_cmp_le_i32 vcc, {2 * k}, v{vT0}")
            e(f"v_cndmask_b32 v{vT1}, v{vT1}, v{vT2}, s[{sOdd}:{sOdd+1}]")
            e(f"s_not_b64 s[{sInv+2*k}:{sInv+2*k+1}], vcc")
            e(f"v_cndmask_b32 v{SEL+k}, v{vT1}, v{vT3}, vcc")
            e(f"v_cndmask_b32 v{SEL+2+k}, v{vT3}, v{vT1}, vcc")
        e(f"s_or_b32 s{sT}, s{sMT}, s{sWM}"); e(f"s_cmp_eq_u32 s{sT}, 0")
        for k in range(2): e(f"s_cselect_b64 s[{sInv+2*k}:{sInv+2*k+1}], s[{sInv+2*k}:{sInv+2*k+1}], 0")
        e(f"s_lshl_b32 s{sT}, s{sWM}, 8"); e(f"s_add_u32 s{sT}, s{sT}, {L_ST}")
        e(f"v_lshlrev_b32 v{vQa}, 2, v{vI}"); e(f"v_add_u32 v{vQa}, s{sT}, v{vQa}")
        e(f"v_lshlrev_b32 v{vVa}, 4, v{vG}"); e(f"v_add_u32 v{vVa}, s{sT}, v{vVa}")
        e(f"s_lshl_b32 s{sT}, s{sWN}, 7"); e(f"s_add_u32 s{sT}, s{sT}, {L_CSQ}")
        e(f"v_lshlrev_b32 v{vCq}, 4, v{vG}"); e(f"v_add_u32 v{vCq}, s{sT}, v{vCq}")
        e(f"v_lshlrev_b32 v{vCv}, 2, v{vI}"); e(f"v_add_u32 v{vCv}, s{sT}, v{vCv}")
        for i in range(4): e(f"v_mov_b32 v{ONES+i}, 0x3f803f80")
        e(f"v_mov_b32 v{vOA}, {L_MODE}")
        self.emit(self.out_addr(vL, vT1, sDa))
        CS, CSV, NMq, RSq, NMv, RSv = 152, 168, 112, 118, 132, 176
        tab = [f"ds_read_b128 v[{CS+4*k}:{CS+4*k+3}], v{vCq} offset:{256 * (k >> 1) + 64 * (k & 1)}" for k in range(4)]
        tab += [f"ds_read_b32 v{NMq+j}, v{vQa} offset:{64 * j}" for j in range(5)]
        tab += [f"ds_read_b32 v{RSq+j}, v{vQa} offset:{576 + 64 * j}" for j in range(5)]
        tab += [f"ds_read_b32 v{CSV+ab}, v{vCv} offset:{512 + 64 * ab}" for ab in range(2)]
        tab += [f"ds_read_b32 v170, v{vOA}"]
        def reads(s):
            b = s & 1; u = s >> 1; sl = s % 6
            xr = [f"ds_read_b128 v[{xf(b,j)}:{xf(b,j)+3}], v{vXa + (s & 1)} offset:{(u % 3) * 18432 + j * 2048}" for j in range(5)]
            wr = []
            for seg in range(3):
                for ab in range(2):
                    r = wf(b, seg, ab); ad = vWa + 2 * (sl // 3) + ab; off = (sl % 3) * WSLOT + seg * 4096
                    wr.append(f"ds_read_b64_tr_b16 v[{r}:{r+1}], v{ad} offset:{off}")
                    wr.append(f"ds_read_b64_tr_b16 v[{r+2}:{r+3}], v{ad} offset:{off + 2048}")
            return wr[0:2] + xr[1:] + wr[2:6] + xr[0:1] + wr[6:]
        def mf(s):
            b = s & 1; m = []; c = "0" if s == 0 else None
            for ab in range(2):
                for j in snake((1, 2, 3, 4), ab): m.append(mfma(aq(j, ab), wf(b, 0, ab), xf(b, j), c))
            for ab in range(2):
                for j in snake((1, 2, 3, 4, 0), ab): m.append(mfma(ak(j, ab), wf(b, 1, ab), xf(b, j), c))
            for ab in range(2):
                for j in snake(range(5), ab): m.append(mfma(av(j, ab), xf(b, j), wf(b, 2, ab), c))
            return m
        lq = self.lab("g1")
        e(f"s_cmp_eq_u32 s{sLAY}, 0"); e(f"s_cbranch_scc1 {lq}")
        e("s_waitcnt vmcnt(0) lgkmcnt(0)"); e("s_barrier")
        self.wg_flags(self.FG(4), self.FL(0, 64))
        self.stats_out(sSTo, 226)
        self.label(lq)
        self.ts(0)
        self.bar(P, ("G1", -1))
        self.ts(1); self.tsc(16)
        self.emit(reads(0))
        def fn(s, ex):
            extra = []
            if ex: extra.append((24, self.CNT))
            if s == 31:
                lr = self.lab("g1"); x = [f"s_cmp_lg_u32 s{sLAY}, 0", f"s_cbranch_scc1 {lr}"]
                for rt in range(4):
                    x += [f"buffer_load_dwordx4 v[{236+4*rt}:{239+4*rt}], v{vL}, s[{sX0}:{sX0+3}], s{sDa} offen", f"s_add_u32 s{sDa}, s{sDa}, {16 * 2048}"]
                extra.append((25, x + [f"@{lr}"]))
            self.step(P, ("G1", s), mf(s), reads(s + 1) if s < 31 else tab, vmw=(0 if s == 3 - (not self.b2) else None), bar=self.hasb(s), last=20, extra=extra)
        self.looped(P, 32, 6, fn)
        self.ts(2); self.tsc(17)
        def pk(op, d, srcs):
            ops = []; sel = []; selhi = []
            for kind, r in srcs:
                if kind == 'p': ops.append(f"v[{r}:{r+1}]"); sel.append(0); selhi.append(1)
                else: ops.append(f"v[{r & ~1}:{(r & ~1) + 1}]"); sel.append(r & 1); selhi.append(r & 1)
            e(f"{op} v[{d}:{d+1}], " + ", ".join(ops) + f" op_sel:[{','.join(map(str, sel))}] op_sel_hi:[{','.join(map(str, selhi))}]")
        e("s_waitcnt lgkmcnt(0)")
        self.al()
        for j in range(5):
            e(f"ds_read_b128 v[{NMv+4*j}:{NMv+4*j+3}], v{vVa} offset:{64 * j}")
            e(f"ds_read_b128 v[{RSv+4*j}:{RSv+4*j+3}], v{vVa} offset:{576 + 64 * j}")
        def pack4(b):
            for i in range(4): e(f"v_cvt_pk_bf16_f32 v{b+i}, v{b+2*i}, v{b+2*i+1}")
        for j in range(1, 5):
            b = aq(j, 0)
            for i in range(4): pk("v_pk_fma_f32", b + 2 * i, [('b', NMq + j), ('p', CS + 2 * i), ('p', b + 2 * i)])
        for j in range(5):
            b = ak(j, 0)
            for i in range(4): pk("v_pk_fma_f32", b + 2 * i, [('b', NMq + j), ('p', CS + 8 + 2 * i), ('p', b + 2 * i)])
        for j in range(1, 5): pack4(aq(j, 0))
        for j in range(5):
            b = ak(j, 0)
            for i in range(4): pk("v_pk_mul_f32", b + 2 * i, [('b', RSq + j), ('p', b + 2 * i)])
        for j in range(5): pack4(ak(j, 0))
        e(f"v_readfirstlane_b32 s{sMODE}, v170")
        e("s_waitcnt lgkmcnt(0)")
        def Sc(j): return aq(j, 1)
        def Sp(j): return ak(j, 1)
        for j in range(1, 5):
            e(mfma(Sc(j), ak(j, 0), aq(j, 0), "0"))
            e(mfma(Sp(j), ak(j - 1, 0), aq(j, 0), "0"))
        VP = [226, 152]
        for j in range(5):
            for ab in range(2):
                c = av(j, ab)
                for r in (0, 2): pk("v_pk_fma_f32", c + r, [('p', NMv + 4 * j + r), ('b', CSV + ab), ('p', c + r)])
        J = range(1, 5)
        for j in J:
            for r in range(4): e(f"v_cndmask_b32 v{Sp(j)+r}, v{Sp(j)+r}, v{Sc(j)+r}, s[{sM+2*r}:{sM+2*r+1}]")
        for j in J:
            e(f"v_cndmask_b32 v{Sp(j)}, v{Sp(j)}, v{Sp(j)+1}, s[{sOdd}:{sOdd+1}]")
            e(f"v_cndmask_b32 v{Sp(j)+1}, v{Sp(j)+2}, v{Sp(j)+3}, s[{sOdd}:{sOdd+1}]")
        e(f"v_mov_b32 v{vT0}, 0xf149f2ca")
        for k in range(2): e(f"v_cndmask_b32 v{Sp(1)+k}, v{Sp(1)+k}, v{vT0}, s[{sInv+2*k}:{sInv+2*k+1}]")
        MX = {j: Sp(j) + 2 for j in J}
        for j in J: e(f"v_max_f32 v{MX[j]}, v{Sp(j)}, v{Sp(j)+1}")
        fill = []
        for j in range(5):
            for ab in range(2):
                c = av(j, ab)
                for r in (0, 2): fill.append((c + r, RSv + 4 * j + r))
        def F(n):
            for _ in range(n):
                d, r = fill.pop(0); pk("v_pk_mul_f32", d, [('p', r), ('p', d)])
        F(2)
        e(f"v_permlane32_swap_b32 v{MX[1]}, v{MX[3]}"); e(f"v_permlane32_swap_b32 v{MX[2]}, v{MX[4]}")
        e(f"v_max_f32 v{MX[1]}, v{MX[1]}, v{MX[3]}"); e(f"v_max_f32 v{MX[2]}, v{MX[2]}, v{MX[4]}")
        F(2)
        e(f"v_permlane16_swap_b32 v{MX[1]}, v{MX[2]}")
        e(f"v_max_f32 v{MX[1]}, v{MX[1]}, v{MX[2]}")
        e(f"v_mov_b32 v{MX[2]}, v{MX[1]}")
        F(2)
        e(f"v_permlane16_swap_b32 v{MX[1]}, v{MX[2]}")
        e(f"v_mov_b32 v{MX[3]}, v{MX[1]}"); e(f"v_mov_b32 v{MX[4]}, v{MX[2]}")
        F(2)
        e(f"v_permlane32_swap_b32 v{MX[1]}, v{MX[3]}"); e(f"v_permlane32_swap_b32 v{MX[2]}, v{MX[4]}")
        sc = f32bits((32 ** -0.5) * 1.4426950408889634)
        for j in J: e(f"v_mul_f32 v{RSq+j}, 0x{sc:08x}, v{RSq+j}")
        for j in J:
            for k in range(2): e(f"v_sub_f32 v{Sp(j)+k}, v{Sp(j)+k}, v{MX[j]}")
        for j in J:
            for k in range(2): e(f"v_mul_f32 v{Sp(j)+k}, v{RSq+j}, v{Sp(j)+k}")
        for j in J:
            for k in range(2): e(f"v_exp_f32 v{Sp(j)+k}, v{Sp(j)+k}")
        self.al()
        F(len(fill))
        for j in J: e(f"v_cvt_pk_bf16_f32 v{Sp(j)}, v{Sp(j)}, v{Sp(j)+1}")
        for j in range(5):
            for ab in range(2):
                c = av(j, ab)
                e(f"v_cvt_pk_bf16_f32 v{VP[ab]+2*j}, v{c}, v{c+1}"); e(f"v_cvt_pk_bf16_f32 v{VP[ab]+2*j+1}, v{c+2}, v{c+3}")
        for j in J:
            for k in range(4): e(f"v_perm_b32 v{Sc(j)+k}, v{Sp(j)}, v{Sp(j)}, v{SEL+k}")
        def OO(j): return 72 + 8 * (j - 1)
        e(f"s_add_u32 s{sT}, s{sGa}, 4096")
        for j in J: e(mfma(aq(j, 0), ONES, Sc(j), "0"))
        for j in J:
            for ab in range(2): e(mfma(OO(j) + 4 * ab, VP[ab] + 2 * (j - 1), Sc(j), "0"))
        for j in J: e(f"v_rcp_f32 v{aq(j,0)}, v{aq(j,0)}")
        for j in J:
            if j == 4: e("s_nop 1")
            for i in range(4): pk("v_pk_mul_f32", OO(j) + 2 * i, [('b', aq(j, 0)), ('p', OO(j) + 2 * i)])
            pack4(OO(j))
            e(f"buffer_store_dwordx4 v[{OO(j)}:{OO(j)+3}], v{vL16}, s[{sWS}:{sWS+3}], s{sGa if j < 3 else sT} offen offset:{2048 * ((j - 1) & 1)} sc0 sc1")
        self.ts(3)

    def silu_group(self, cg, cu, E, RL, I2, O, NM=None, sg=None, su=None):
        o = []
        if NM is not None: o += [f"v_fmac_f32 v{cg+r}, v{NM}, v{sg+r}" for r in range(4)]
        o += [f"v_mul_f32 v{E+r}, v{RL}, v{cg+r}" for r in range(4)]
        if NM is not None: o += [f"v_fmac_f32 v{cu+r}, v{NM}, v{su+r}" for r in range(4)]
        o += [f"v_exp_f32 v{E+r}, v{E+r}" for r in range(4)]
        o += [f"v_mul_f32 v{cg+r}, v{cg+r}, v{cu+r}" for r in range(4)]
        o += [f"v_fma_f32 v{E+r}, v{E+r}, v{I2}, v{I2}" for r in range(4)]
        o += [f"v_rcp_f32 v{E+r}, v{E+r}" for r in range(4)]
        o += [f"v_mul_f32 v{cg+r}, v{cg+r}, v{E+r}" for r in range(4)]
        ab = self.opt.get("abl")
        if ab == 1: o = ["v_nop"] * 24 + ["v_nop", "v_nop"] * 8 if NM is not None else ["v_nop"] * 32
        if ab == 2: o = [x if not x.startswith(("v_exp", "v_rcp")) else "v_nop" for x in o] + ["v_nop"] * 8
        if ab == 3: o = []
        if ab == 4: o = o[:len(o) // 2]
        o += [f"v_cvt_pk_bf16_f32 v{O}, v{cg}, v{cg+1}", f"v_cvt_pk_bf16_f32 v{O+1}, v{cg+2}, v{cg+3}"]
        return o

    def stat_regs(self, MR, NM, RL, I2, t0):
        o = [f"s_lshl_b32 s{sT}, s{sWM}, 9", f"s_add_u32 s{sT}, s{sT}, {L_ST}", f"v_and_b32 v{t0}, 0xf0, v{vL16}", f"v_lshrrev_b32 v{t0}, 1, v{t0}",
             f"v_add_u32 v{t0}, s{sT}, v{t0}"]
        o += [f"ds_read_b64 v[{MR+2*rt}:{MR+2*rt+1}], v{t0} offset:{128*rt}" for rt in range(4)]
        o += ["s_waitcnt lgkmcnt(0)"]
        for rt in range(4):
            o += [f"v_sub_f32 v{NM+rt}, 0, v{MR+2*rt}", f"v_mul_f32 v{RL+rt}, 0xbfb8aa3b, v{MR+2*rt+1}", f"v_mul_f32 v{I2+rt}, v{MR+2*rt+1}, v{MR+2*rt+1}"]
        o += [f"v_rcp_f32 v{I2+rt}, v{I2+rt}" for rt in range(4)] + ["s_nop 0"]
        return o

    def unpack(self, dst, src):
        return [f"v_lshlrev_b32 v{dst}, 16, v{src}", f"v_and_b32 v{dst+1}, 0xffff0000, v{src}"]

    def res_epilogue(self, acc, sX, PK, T, own=False):
        e = self.e
        e(f"s_add_u32 s{sD0}, s{sTile}, s{sX}"); e(f"s_add_u32 s{sD1}, s{sD0}, 4096")
        for rt in range(4):
            for t in range(2):
                c = acc(t, rt)
                e(f"v_cvt_pk_bf16_f32 v{PK+4*rt+2*t}, v{c}, v{c+1}"); e(f"v_cvt_pk_bf16_f32 v{PK+4*rt+2*t+1}, v{c+2}, v{c+3}")
            e(f"buffer_store_dwordx4 v[{PK+4*rt}:{PK+4*rt+3}], v{vL16}, s[{sWS}:{sWS+3}], s{sD0 + (rt >> 1)} offen offset:{2048 * (rt & 1)} sc0 sc1")
        if own:
            e(f"s_and_b32 s{sT}, s{sTile}, 0x3fff"); e(f"s_add_u32 s{sT}, s{sT}, {LA}"); e(f"v_add_u32 v{T}, s{sT}, v{vL16}")
            for rt in range(4): e(f"ds_write_b128 v{T}, v[{PK+4*rt}:{PK+4*rt+3}] offset:{2048 * rt}")
        S = T; Q = T + 4; ON = T + 8
        e(f"v_mov_b32 v{ON}, 0x3f803f80")
        for i in range(4):
            for rt in range(4):
                e(f"v_dot2_f32_bf16 v{S+rt}, v{PK+4*rt+i}, v{ON}, {f'v{S+rt}' if i else 0}")
                e(f"v_dot2_f32_bf16 v{Q+rt}, v{PK+4*rt+i}, v{PK+4*rt+i}, {f'v{Q+rt}' if i else 0}")
        e(f"s_lshl_b32 s{sT}, s{sLW}, 9"); e(f"s_add_u32 s{sT}, s{sT}, {L_SS}")
        e("s_nop 1")
        for B in (S, Q):
            e(f"v_permlane32_swap_b32 v{B}, v{B+2}"); e(f"v_permlane32_swap_b32 v{B+1}, v{B+3}")
        for B in (S, Q):
            e(f"v_add_f32 v{B}, v{B}, v{B+2}"); e(f"v_add_f32 v{B+1}, v{B+1}, v{B+3}")
        e(f"v_lshrrev_b32 v{ON}, 1, v{vL16}"); e(f"v_add_u32 v{ON}, s{sT}, v{ON}")
        for B in (S, Q): e(f"v_permlane16_swap_b32 v{B}, v{B+1}")
        e(f"v_add_f32 v{S}, v{S}, v{S+1}"); e(f"v_add_f32 v{S+1}, v{Q}, v{Q+1}")
        e(f"ds_write_b64 v{ON}, v[{S}:{S+1}]")

    def stats_out(self, sST, T):
        e = self.e; l = self.lab("so")
        e(f"s_cmp_lg_u32 s{sLW}, 0"); e(f"s_cbranch_scc1 {l}")
        e(f"v_add_u32 v{T+8}, {L_SS}, v{vL16}")
        e(f"ds_read_b128 v[{T}:{T+3}], v{T+8}"); e(f"ds_read_b128 v[{T+4}:{T+7}], v{T+8} offset:1024")
        e(f"s_lshl_b32 s{sT}, s{sN4}, 10"); e(f"s_add_u32 s{sT}, s{sT}, s{sST}")
        e("s_waitcnt lgkmcnt(0)")
        for r in range(4): e(f"v_add_f32 v{T+r}, v{T+r}, v{T+4+r}")
        e(f"buffer_store_dwordx4 v[{T}:{T+3}], v{vL16}, s[{sWS}:{sWS+3}], s{sT} offen sc0 sc1")
        self.label(l)

    def x_g2(self):
        e = self.e; P = "X"
        ACC, XF, WF, vXa, vWa = 0, 32, 104, 136, 137
        R, T0, T1, T2 = 236, 152, 153, 154
        g2c = self.opt.get("g2c", 0)
        def acc(t, rt): return ACC + (t * 4 + rt) * 4
        def xf(b, h, rt): return XF + b * 32 + h * 16 + rt * 4
        def wf(b, h, t): return WF + b * 16 + h * 8 + t * 4
        e(f"s_lshl_b32 s{sT}, s{sWM}, 13"); e(f"s_add_u32 s{sT}, s{sT}, {LA}")
        e(f"v_add_u32 v{vXa}, s{sT}, v{vL16}")
        self.waddr128(vWa, sWN, T0, T1, T2)
        lr = self.lab("g2")
        e(f"s_cmp_lg_u32 s{sLAY}, 0"); e(f"s_cbranch_scc1 {lr}")
        e("s_waitcnt vmcnt(4)")
        for rt in range(4):
            e(f"v_permlane16_swap_b32 v{R+4*rt}, v{R+4*rt+2}"); e(f"v_permlane16_swap_b32 v{R+4*rt+1}, v{R+4*rt+3}")
        self.label(lr)
        for rt in range(4):
            for t in range(2):
                for k in range(2): self.emit(self.unpack(acc(t, rt) + 2 * k, R + 4 * rt + 2 * t + k))
        def reads(u):
            b = u & 1; o = []
            sl = (32 + (u >> 1)) % 6
            for h in range(2):
                wr = []
                for t in range(2):
                    r = wf(b, h, t); ad = vWa + 2 * (sl // 3) + t; off = (sl % 3) * WSLOT + ((u & 1) * 2 + h) * 4096
                    wr += [f"ds_read_b64_tr_b16 v[{r}:{r+1}], v{ad} offset:{off}", f"ds_read_b64_tr_b16 v[{r+2}:{r+3}], v{ad} offset:{off + 2048}"]
                xr = [f"ds_read_b128 v[{xf(b,h,rt)}:{xf(b,h,rt)+3}], v{vXa} offset:{(u % 3) * 16384 + rt * 2048 + h * 1024}" for rt in range(4)]
                o.append((xr, wr))
            if g2c: return o[0][0] + o[1][0] + o[0][1][:2] + o[1][1][:2] + o[0][1][2:] + o[1][1][2:]
            return sum([wr[0:2] + xr + wr[2:] for xr, wr in o], [])
        def mf(u):
            b = u & 1
            return [mfma(acc(t, rt), wf(b, h, t), xf(b, h, rt)) for t in range(2) for i, rt in enumerate(snake(range(4), t)) for h in snake(range(2), i)]
        self.ts(4)
        e("s_waitcnt vmcnt(0)")
        self.bar(P, ("G2", -2))
        self.wg_flags(self.FG(0), self.FL(0, 0))
        self.ts(5)
        self.bar(P, ("G2", -1))
        self.ts(6); self.tsc(18)
        self.emit(reads(0))
        if self.opt.get("own", 0): self.x_g3a_setup()
        for u in range(16):
            if g2c:
                self.step(P, ("G2", u), mf(u), reads(u + 1) if u < 15 else [], last=15, lg=4, extra=[(7, [f"s_waitcnt lgkmcnt({8 if u < 15 else 0})"])])
            else: self.step(P, ("G2", u), mf(u), reads(u + 1) if u < 15 else [], last=int(self.opt.get("g2last", 11)))
        self.ts(7); self.tsc(19)
        e("s_nop 7")
        self.res_epilogue(acc, sXm, 192, 208, self.opt.get("own", 0))
        self.ts(8)

    def a3(self, mat, t, rt): return ((mat * 4 + t) * 4 + rt) * 4
    def a4(self, t, rt): return 128 + (t * 4 + rt) * 4
    V4X, V4W = 243, 244
    XP = {"g3b": [236, 237, 242], "g4": [238, 239, 240, 241]}
    vXA = 191

    def x_g3a_setup(self):
        e = self.e
        vXa, vWa, T0, T1, T2 = 224, 225, 233, 234, 235
        e(f"s_lshl_b32 s{sT}, s{sWM}, 13"); e(f"s_add_u32 s{sT}, s{sT}, {LA}")
        e(f"v_add_u32 v{vXa}, s{sT}, v{vL16}")
        e(f"s_lshl_b32 s{sT2}, s{sWN}, 2")
        self.emit(self.waddr256(vWa, [0, 1, 2, 3], sT2, T0, T1))
        self.emit(self.pat_g3b(self.XP["g3b"], T0, T1, T2)); self.emit(self.pat_256(self.XP["g4"], 2048, T0, T1, T2))
        e(f"v_mov_b32 v{self.V4X}, v{vXa}")
        e(f"s_and_b32 s{sT2}, s{sN4}, 1"); e(f"s_lshl_b32 s{sT2}, s{sT2}, 2"); e(f"s_lshl_b32 s{sT}, s{sWN}, 1"); e(f"s_add_u32 s{sT2}, s{sT2}, s{sT}")
        self.emit(self.waddr256(self.V4W, [0, 1, 4, 5], sT2, T0, T1))
        self.h_bases()
        self.emit(self.reloc13(sW3B, 0x4008)); self.emit(self.reloc2())
        e(f"s_add_u32 s{sGa}, s{sXm}, s{sM4}")
        e(f"s_lshl_b32 s{sRa}, s{sN4}, 14")

    def x_g3a(self):
        e = self.e; P = "X"
        XF, WF, vXa, vWa = 128, 160, 224, 225
        own = self.opt.get("own", 0)
        if not own: self.x_g3a_setup()
        def xf(b, rt): return XF + b * 16 + rt * 4
        def wf(b, mat, t): return WF + b * 32 + (mat * 4 + t) * 4
        def reads(s):
            b = s & 1; sl = (40 + s) % 6
            xr = [f"ds_read_b128 v[{xf(b,rt)}:{xf(b,rt)+3}], v{vXa} offset:{((s >> 1) % 3) * 16384 + rt * 2048 + (s & 1) * 1024}" for rt in range(4)]
            wr = []
            for t in range(4):
                for mat in range(2):
                    r = wf(b, mat, t); ad = vWa + 4 * (sl // 3) + t; off = (sl % 3) * WSLOT + mat * 8192
                    wr += [f"ds_read_b64_tr_b16 v[{r}:{r+1}], v{ad} offset:{off}", f"ds_read_b64_tr_b16 v[{r+2}:{r+3}], v{ad} offset:{off + 4096}"]
            return wr[0:2] + xr + wr[2:]
        def mf(s):
            b = s & 1
            return [mfma(self.a3(mat, t, rt), wf(b, mat, t), xf(b, rt), "0" if s == 0 else None) for t in range(4) for mat in range(2) for rt in snake(range(4), mat)]
        if not own:
            e("s_waitcnt vmcnt(0) lgkmcnt(0)")
            self.bar(P, ("G3A", -2))
            self.wg_flags(None, self.FL(0, 32))
            self.stats_out(sSTm, 208)
        else: e("s_waitcnt lgkmcnt(0)")
        self.ts(9)
        self.bar(P, ("G3A", -1))
        self.ts(10); self.tsc(20)
        self.emit(reads(0))
        def fn(s, ex):
            extra = []
            if ex: extra.append((28, self.CNT))
            if own and s == 0:
                self.step(P, None, mf(0), reads(1), bar=False, last=23)
                e("s_waitcnt vmcnt(0)")
                self.bar(P, ("G3A", 0))
                self.wg_flags(None, self.FL(0, 32))
                return
            self.step(P, ("G3A", s), mf(s), reads(s + 1) if s < 31 else [], vmw=(0 if s == 3 - (not self.b2) else None), bar=self.hasb(s), last=23, extra=extra)
        self.looped(P, 32, 6, fn)
        self.ts(11); self.tsc(21)

    def h_bases(self):
        e = self.e
        e(f"s_and_b32 s{sT}, s{sN4}, 1"); e(f"s_mul_i32 s{sT}, s{sT}, {28 * 16384}"); e(f"s_add_u32 s{sHx}, s{sHo}, s{sT}")
        e(f"s_and_b32 s{sT}, s{sNT}, 7"); e(f"s_lshl_b32 s{sT}, s{sT}, 14"); e(f"s_and_b32 s{sT2}, s{sTile}, 0x3fff")
        e(f"s_add_u32 s{sT}, s{sT}, s{sT2}"); e(f"s_add_u32 s{sGh}, s{sT}, s{sHx}")
        e(f"s_and_b32 s{sT}, s{sNT}, 6"); e(f"s_add_u32 s{sT}, s{sT}, 48"); e(f"s_lshl_b32 s{sT}, s{sT}, 13")
        e(f"s_and_b32 s{sT2}, s{sNT}, 1"); e(f"s_lshl_b32 s{sT2}, s{sT2}, 10"); e(f"s_add_u32 s{sT}, s{sT}, s{sT2}")
        e(f"s_lshl_b32 s{sT2}, s{sWM}, 13"); e(f"s_add_u32 s{sT}, s{sT}, s{sT2}"); e(f"s_lshl_b32 s{sT2}, s{sWN}, 9"); e(f"s_add_u32 s{sT}, s{sT}, s{sT2}")
        e(f"s_add_u32 s{sGs}, s{sT}, s{sHx}")

    def epi_loop(self, P, ph, n, vm, work, budget, lag, need, dmas, flags, dead, hook=None, hasb=lambda s: True):
        pend = []
        for s in range(n):
            if hasb(s):
                ready = [b for b, p in pend if p <= s]
                gate = bool(work) and work[0][1] == ("GATE",)
                self.pb(P, (ph, s), vm.need(*(need(s) + [("H", b) for b in ready])), 0 if gate else None)
                for b in ready: self.wg_flag_if(b & 3, flags[b])
                pend = [(b, p) for b, p in pend if p > s]
            if hook: hook(s)
            dm = dmas(s)
            its = []
            if work and work[0][1] == ("GATE",): work.pop(0)
            if work:
                its = self.chunk(work, budget(s))
                if ("GATE",) in its:
                    k = its.index(("GATE",)); work[0:0] = self.costed(its[k:]); its = its[:k]
            items = []
            for it in its:
                if isinstance(it, tuple) and it[0] == "FLAG":
                    assert s + lag <= dead[it[1]], (ph, it, s)
                    pend.append((it[1], s + lag)); self.info.append(f"{ph}: flag {it[1]} work done in period {s}")
                else: items.append(it)
            self.run_period(dm, items)
        assert not work and not pend, (ph, len(work), pend)
        self.tr_flush(P)

    def x_g3b(self):
        e = self.e; P = "XL"; vm = VM()
        NM, RL, I2, CS, E, OUT = 192, 196, 200, 204, 220, 224
        PT = self.XP
        T0, vCS = 232, 235
        e("s_setprio 1")
        vA = self.vXA
        e(f"v_add_u32 v{vA}, s{sGa}, v{vL16}")
        work = ["s_nop 7"] + self.stat_regs(E, NM, RL, I2, T0)
        work += [f"s_lshl_b32 s{sT}, s{sWN}, 8", f"s_add_u32 s{sT}, s{sT}, {L_CSA}", f"v_lshrrev_b32 v{vCS}, 8, v{vL16}", f"v_lshlrev_b32 v{vCS}, 4, v{vCS}", f"v_add_u32 v{vCS}, s{sT}, v{vCS}"]
        for b in range(2):
            for t in range(2):
                for mat in range(2):
                    c = CS + (t * 2 + mat) * 4
                    work.append(f"ds_read_b128 v[{c}:{c+3}], v{vCS} offset:{mat * 512 + (2 * b + t) * 64}")
            work.append("s_waitcnt lgkmcnt(0)")
            for rt in range(4):
                O = OUT + 4 * (rt & 1)
                for t in range(2):
                    work += self.silu_group(self.a3(0, 2 * b + t, rt), self.a3(1, 2 * b + t, rt), E, RL + rt, I2 + rt, O + 2 * t, NM + rt, CS + t * 8, CS + t * 8 + 4)
                work.append(self.grp(vm, ("H", b), [f"s_add_u32 s{sT}, s{sGh}, {b * 8 * 16384 + rt * 2048}"],
                                     f"buffer_store_dwordx4 v[{O}:{O+3}], v{vL16}, s[{sWS}:{sWS+3}], s{sT} offen sc0 sc1"))
            work.append(("FLAG", b))
        self.w_start(72 + self.xw0, 109 - self.b2)
        def need(s): return self.kneed(72, s, 104) + ([("A", 16 + (s + 1) // 2)] if s & 1 else [])
        def hook(s):
            if s == 7 and self.opt.get("rel"):
                l = self.lab("cf")
                e(f"s_xor_b32 s{sT}, s{sLW}, 3"); e(f"s_or_b32 s{sT}, s{sLAY}, s{sT}"); e(f"s_cbranch_scc1 {l}")
                self.side_flag(3)
                self.label(l)
            if s == 21 and self.opt.get("rel"): self.apoll4_issue(vm, 3, 184)
            if s == 24 and self.opt.get("rel"): self.apoll4_check(vm, 3, 184, [(sLAY, 1)])
            if s == 25: self.apoll_issue(vm, self.FL(1, 0), 8, T0)
            if s == 27:
                self.apoll_check(vm, self.FL(1, 0), 8, T0)
                e(f"s_add_u32 s{sGa}, s{sHx}, s{sM4}"); e(f"v_add_u32 v{vA}, s{sGa}, v{vL16}")
            if s == 31:
                assert not wk
                self.emit(self.g4_reads(0))
        def dmas(s):
            dm = []
            if s >= 1:
                idx = 16 + (s - 1) // 2 + 3; part = (s - 1) & 1
                if idx < 32:
                    t = idx - 16
                    dm = self.a_issue(vm, ("A", idx), idx % 3, vA, None, self.ainc(uord(BORD[t + 1]) - uord(BORD[t])) if t < 15 else None, part)
                elif s < 31: dm = self.a_issue(vm, ("A", idx), idx % 3, vA, (idx - 32) * 16384, None, part)
                else: dm = self.a_issue(vm, ("A", idx), idx % 3, vA, (idx - 32) * 16384)
            return dm + self.w_take(vm, PT, 1, self.kfree(72, s))
        bud = float(self.opt.get("budX", 28))
        wk = self.costed(work)
        self.epi_loop(P, "G3B", 32, vm, wk, lambda s: bud, int(self.opt.get("lagX", 4)), need, dmas,
                      [self.FL(1, 0), self.FL(1, 32)], [25, 31], hook, self.hasb)
        assert self.wn == 109 - self.b2, self.wn
        e("s_setprio 0")
        self.g4w = [vm.need(("W", 104 + u + 1), ("A", 32 + u + 1)) for u in range(7)]

    def g4_reads(self, u):
        b = u & 1; sl = (104 + u) % 6; o = []
        for h in range(2):
            xr = [f"ds_read_b128 v[{64*b+16*h+4*rt}:{64*b+16*h+4*rt+3}], v{self.V4X} offset:{((32 + u) % 3) * 16384 + rt * 2048 + h * 1024}" for rt in range(4)]
            wr = []
            for t in range(4):
                r = 64 * b + 32 + 16 * h + 4 * t; ad = self.V4W + 4 * (sl // 3) + t; off = (sl % 3) * WSLOT + h * 8192
                wr += [f"ds_read_b64_tr_b16 v[{r}:{r+1}], v{ad} offset:{off}", f"ds_read_b64_tr_b16 v[{r+2}:{r+3}], v{ad} offset:{off + 4096}"]
            o += wr[0:2] + xr + wr[2:]
        return o

    def x_g4(self):
        e = self.e; P = "X"
        T0, T1 = 192, 193
        SP, RP, RS = 0, 16, 196
        def mf(u):
            b = u & 1; o = []
            for t in range(4):
                for i, rt in enumerate(snake(range(4), t)):
                    for k, h in enumerate(snake(range(2), i)):
                        o.append(mfma(self.a4(t, rt), 64 * b + 32 + 16 * h + 4 * t, 64 * b + 16 * h + 4 * rt, "0" if u == 0 and k == 0 else None))
            return o
        e(f"s_lshl_b32 s{sT}, s{sN4}, 14"); e(f"s_add_u32 s{sT}, s{sT}, s{sM4}")
        e(f"s_add_u32 s{sT}, s{sT}, s{sOo}"); e(f"s_add_u32 s{sGa}, s{sT}, {WS_P}")
        e(f"s_xor_b32 s{sGh}, s{sGa}, {1 << 14}")
        e(f"s_add_u32 s{sD0}, s{sTile}, s{sXm}"); e(f"s_add_u32 s{sD1}, s{sD0}, 4096")
        self.ts(12); self.tsc(22)
        def res(rt): return [f"buffer_load_dwordx4 v[{RS+4*rt}:{RS+4*rt+3}], v{vL16}, s[{sWS}:{sWS+3}], s{sD0 + (rt >> 1)} offen offset:{2048 * (rt & 1)}"]
        def fn(u, ex):
            extra = []
            if ex: extra.append((29, self.CNT))
            if u == 27:
                extra += [(1 + 3 * rt, res(rt)) for rt in range(4)]
                if self.opt.get("xe"): extra += [(16 + 3 * rt, [f"buffer_load_dwordx4 v[{RP+4*rt}:{RP+4*rt+3}], v{vL16}, s[{sWS}:{sWS+3}], s{sGh} offen offset:{1024 * rt} sc0 sc1"]) for rt in range(4)]
            self.step(P, ("G4", u), mf(u), self.g4_reads(u + 1) if u < 27 else [], vmw=(self.g4w[u] if u < 7 else None), last=26, extra=extra)
        self.looped(P, 28, 6, fn)
        self.ts(13); self.tsc(23)
        e("s_nop 7")
        for rt in range(4):
            for t in range(2):
                c = self.a4(2 + t, rt); p = SP + 4 * rt + 2 * t
                e(f"v_cvt_pk_bf16_f32 v{p}, v{c}, v{c+1}"); e(f"v_cvt_pk_bf16_f32 v{p+1}, v{c+2}, v{c+3}")
            for i in range(4): e(f"v_min_u32 v{SP+4*rt+i}, -2, v{SP+4*rt+i}")
            e(f"buffer_store_dwordx4 v[{SP+4*rt}:{SP+4*rt+3}], v{vL16}, s[{sWS}:{sWS+3}], s{sGa} offen offset:{1024 * rt} sc0 sc1")
        def addin(R):
            for rt in range(4):
                for t in range(2):
                    U = 160 + 4 * (t + 2 * (rt & 1))
                    for k in range(2): self.emit(self.unpack(U + 2 * k, R + 4 * rt + 2 * t + k))
                    c = self.a4(t, rt)
                    for k in range(2): e(f"v_pk_add_f32 v[{c+2*k}:{c+2*k+1}], v[{c+2*k}:{c+2*k+1}], v[{U+2*k}:{U+2*k+1}]")
        e("s_waitcnt vmcnt(8)" if self.opt.get("xe") else "s_waitcnt vmcnt(4)")
        addin(RS)
        lp, ld, lc = self.lab("poll"), self.lab("pd"), self.lab("pc")
        e(f"s_mov_b32 s{sT2}, {POLL}")
        if self.opt.get("xe"):
            e("s_waitcnt vmcnt(4)")
            e(f"s_branch {lc}")
        self.label(lp)
        for rt in range(4):
            e(f"buffer_load_dwordx4 v[{RP+4*rt}:{RP+4*rt+3}], v{vL16}, s[{sWS}:{sWS+3}], s{sGh} offen offset:{1024 * rt} sc0 sc1")
        e("s_waitcnt vmcnt(0)")
        self.label(lc)
        e(f"v_max3_u32 v{T0}, v{RP}, v{RP+1}, v{RP+2}"); e(f"v_max3_u32 v{T1}, v{RP+3}, v{RP+4}, v{RP+5}")
        for k in range(6, 14, 4):
            e(f"v_max3_u32 v{T0}, v{T0}, v{RP+k}, v{RP+k+1}"); e(f"v_max3_u32 v{T1}, v{T1}, v{RP+k+2}, v{RP+k+3}")
        e(f"v_max3_u32 v{T0}, v{T0}, v{RP+14}, v{RP+15}"); e(f"v_max_u32 v{T0}, v{T0}, v{T1}")
        e(f"v_cmp_eq_u32 vcc, -1, v{T0}")
        e(f"s_cbranch_vccz {ld}")
        e(f"s_sub_u32 s{sT2}, s{sT2}, 1"); e(f"s_cmp_lg_u32 s{sT2}, 0"); e(f"s_cbranch_scc1 {lp}")
        self.label(ld)
        addin(RP)
        self.ts(14)
        self.tr_dump("X")

    def x_final(self):
        e = self.e
        T0, T1, PK = 192, 193, 0
        self.emit(self.out_addr(T0, T1, sT))
        for rt in range(4):
            for t in range(2):
                c = self.a4(t, rt)
                e(f"v_cvt_pk_bf16_f32 v{PK+4*rt+2*t}, v{c}, v{c+1}"); e(f"v_cvt_pk_bf16_f32 v{PK+4*rt+2*t+1}, v{c+2}, v{c+3}")
            e("s_nop 1")
            e(f"v_permlane16_swap_b32 v{PK+4*rt}, v{PK+4*rt+2}"); e(f"v_permlane16_swap_b32 v{PK+4*rt+1}, v{PK+4*rt+3}")
            e(f"buffer_store_dwordx4 v[{PK+4*rt}:{PK+4*rt+3}], v{T0}, s[{sOUT}:{sOUT+3}], s{sT} offen{self.opt.get('osc', '_sc0_sc1').replace('_', ' ')}")
            e(f"s_add_u32 s{sT}, s{sT}, {16 * 2048}")

    YP = {"g1": [200, 201, 202], "g2": [203, 204, 205, 206], "g3a": [207, 208, 209, 210], "g3b": [211, 212, 222], "g4": [213, 214, 215, 216]}
    YAP = [217, 218, 219, 220]
    YT = [224, 225, 226, 227]
    vHP, vPL = 221, 251
    sJ, sJo, sXc, sRt = sAT, sAT + 4, sAT + 5, sAT + 6
    sHm = sAT + 12

    sP2, sJk = sAT + 14, 3
    def trickle(self, n):
        o = []
        for _ in range(n):
            if self.tk < 112:
                o.append(f"s_load_dword s{self.sJk}, s[{self.sP2}:{self.sP2+1}], {64 * self.tk}"); self.tk += 1
        return o
    sJi = sAT + 7
    def jobid(self):
        r = self.sJi
        return [f"s_add_u32 s{sT}, s{sN4}, 4", f"s_and_b32 s{sT2}, s{sT}, 7", f"s_lshr_b32 s{sT}, s{sT}, 3", f"s_and_b32 s{sT}, s{sT}, 1",
                f"s_lshl_b32 s{sT2}, s{sT2}, 1", f"s_add_u32 s{sT}, s{sT}, s{sT2}", f"s_lshl_b32 s{r}, s{sT}, 4", f"s_add_u32 s{r}, s{r}, s{sMT}"]

    def g1_src(self, first):
        e = self.e; T0, T1, T2, _ = self.YT; AP = self.YAP
        if first:
            e(f"s_lshl_b32 s{sT}, s{sMT}, 18"); e(f"s_lshl_b32 s{sT2}, s{sM4}, 4"); e(f"s_add_u32 s{sGa}, s{sT}, s{sT2}")
            e(f"s_lshl_b32 s{sT2}, s{sWM}, 14"); e(f"s_add_u32 s{sGh}, s{sT}, s{sT2}"); e(f"s_sub_u32 s{sGh}, s{sGh}, 32768")
            self.emit(self.pat_128(AP, 2048, T0, T1, T2, sGa))
            e(f"s_lshl_b32 s{sRa}, s{sDa}, 7")
        else:
            for i in range(4): e(f"s_mov_b32 s{sA1+i}, s{sWS+i}")
            e(f"s_add_u32 s{sGa}, s{sX2}, s{sM4}")
            e(f"s_lshl_b32 s{sT2}, s{sWM}, 10"); e(f"s_add_u32 s{sGh}, s{sX2}, s{sT2}"); e(f"s_sub_u32 s{sGh}, s{sGh}, {ARENA - 14336}")
            e(f"v_add_u32 v{AP[0]}, s{sGa}, v{vL16}")
            e(f"s_lshl_b32 s{sRa}, s{sN4}, 14")
        e(f"s_cmp_eq_u32 s{sMT}, 0"); e(f"s_cselect_b32 s{sGh}, {OOB}, s{sGh}")
        e(f"s_sub_u32 s{sGh}, s{sGh}, s{sGa}"); e(f"v_add_u32 v{self.vHP}, s{sGh}, v{AP[0]}")
        e(f"s_lshl_b32 s{sSu}, s{sWM}, 10")
        e(f"s_cmp_eq_u32 s{sWN}, 0"); e(f"s_cselect_b32 s{self.sHm}, -1, 0"); e(f"s_not_b32 s{self.sHm+1}, s{self.sHm}")

    def g1_a(self, vm, first, u, part=None):
        g = []; base = LA + (u % 3) * 18432
        if part in (None, 0):
            g.append(self.grp(vm, ("A", u), [f"s_add_u32 m0, s{sSu}, {base}", f"s_mov_b64 exec, s[{self.sHm}:{self.sHm+1}]"],
                              f"buffer_load_dwordx4 v{self.vHP}, s[{sA1}:{sA1+3}], s{sRa} offen lds", ["s_mov_b64 exec, -1"]))
        inc = self.ainc(uord(u + 1) - uord(u), 128 if first else 16384) if u < 15 else None
        return g + self.a_issue(vm, ("A", u), 0, self.YAP[0], None, inc, part, sA1, self.YAP if first else None, base + 2048)

    def stats_gather(self, vm, s, s0, sST, R, AC, fin, so=0, fast=False):
        e = self.e; T0, T1, T2, T3 = self.YT; it = []
        if s == s0:
            it.append([f"v_and_b32 v{T2}, 0xf0, v{vL16}", f"v_and_b32 v{T3}, 0x300, v{vL16}", f"v_lshl_add_u32 v{T3}, v{T3}, 2, v{T2}",
                       f"s_lshl_b32 s{self.sRt}, s{sLW}, 8", f"s_add_u32 s{self.sRt}, s{self.sRt}, s{sST}"] +
                      ([f"s_add_u32 s{self.sRt}, s{self.sRt}, {so}"] if so else []))
        for k in range(4):
            if s != s0 + (k // 3 if fast else k): continue
            it.append(self.grp(vm, "S", [], f"buffer_load_dwordx4 v[{R+4*k}:{R+4*k+3}], v{T3}, s[{sWS}:{sWS+3}], s{self.sRt} offen", [f"s_add_u32 s{self.sRt}, s{self.sRt}, 4096"]))
        if fast: s0 -= 3
        if s == s0 + 6:
            self.wait(vm.need("S"))
            it += [f"v_add_f32 v{R+r}, v{R+r}, v{R+4+r}" for r in range(4)] + [f"v_add_f32 v{R+8+r}, v{R+8+r}, v{R+12+r}" for r in range(4)]
            it += [f"v_add_f32 v{AC+r}, v{R+r}, v{R+8+r}" for r in range(4)]
            it += self.xred(list(range(AC, AC + 4)), list(range(R, R + 4)), steps=("v_permlane16_swap_b32",))
        if s == s0 + 7:
            it += self.xred(list(range(AC, AC + 4)), list(range(R, R + 4)), steps=("v_permlane32_swap_b32",))
        if s == s0 + 8: it += self.finish_stats(AC, AC + 1)
        if s == s0 + 9: it += self.finish_stats(AC + 2, AC + 3) + fin
        return it

    def y_start(self, vm):
        e = self.e; T0, T1, T2, T3 = self.YT; PT = self.YP
        self.emit(self.pat_g1(PT, T0, T1, T2, True))
        e(f"s_and_b32 s{sT}, s{sMT}, 4"); e(f"s_lshl_b32 s{sT}, s{sT}, 1"); e(f"s_lshr_b32 s{sT2}, s{sMT}, 3"); e(f"s_add_u32 s{sT}, s{sT}, s{sT2}")
        e(f"s_add_u32 s{sDa}, s{sT}, s{sN4}"); e(f"s_and_b32 s{sDa}, s{sDa}, 15")
        self.rot0 = sDa
        self.w_start(0, 38)
        self.run_period(self.w_take(vm, PT, 1, 0), [])
        self.rot0 = sN4
        self.g1_src(True)
        tpos = int(self.opt.get("tpos", 2))
        for n in range(6):
            if n: self.run_period(self.w_take(vm, PT, 1, 0), [])
            if n == tpos: self.y_touch(vm)
            if n < 3: self.run_period(self.g1_a(vm, True, n), [])
            if n == int(self.opt.get("xsp", 3)):
                XS = 144
                e(f"s_add_u32 s{sT}, s{sM4}, {LA + 2048}"); e(f"v_add_u32 v{T0}, s{sT}, v{vL16}"); e(f"v_mov_b32 v{T1}, 0x3f803f80")
                self.wait(vm.need(("A", 0)))
                for i in range(4): e(f"ds_read_b128 v[{XS+4*i}:{XS+4*i+3}], v{T0} offset:{1024 * i}")
                e("s_waitcnt lgkmcnt(0)")
                for k in range(4):
                    for i in range(4):
                        e(f"v_dot2_f32_bf16 v{XS+16+2*i}, v{XS+4*i+k}, v{T1}, {f'v{XS+16+2*i}' if k else 0}")
                        e(f"v_dot2_f32_bf16 v{XS+17+2*i}, v{XS+4*i+k}, v{XS+4*i+k}, {f'v{XS+17+2*i}' if k else 0}")
        if tpos > 5: self.y_touch(vm)

    def y_touch(self, vm):
        e = self.e; T0 = self.YT[3]
        sJ = self.sJ
        e("s_cmp_lt_u32 s2, 128")
        e(f"s_cselect_b32 s{sJ}, s{sAT+8}, s{sAT+10}"); e(f"s_cselect_b32 s{sJ+1}, s{sAT+9}, s{sAT+11}")
        e(f"s_mov_b32 s{sJ+2}, {1024 * 7168}"); e(f"s_mov_b32 s{sJ+3}, 0x00020000")
        e(f"s_and_b32 s{sT}, s2, 127"); e(f"s_mul_i32 s{sT}, s{sT}, {448 * 128}"); e(f"s_lshl_b32 s{sT2}, s{sLW}, 14"); e(f"s_add_u32 s{sT}, s{sT}, s{sT2}")
        e(f"v_lshlrev_b32 v{T0}, 3, v{vL16}")
        e(f"buffer_load_dword v{self.vPL}, v{T0}, s[{sJ}:{sJ+3}], s{sT} offen"); vm.issue("t")
        l, l2 = self.lab("t"), self.lab("t")
        e(f"s_cmp_eq_u32 s{sLW}, 3"); e(f"s_cbranch_scc1 {l}")
        e(f"s_add_u32 s{sT}, s{sT}, 8192")
        e(f"buffer_load_dword v{self.vPL}, v{T0}, s[{sJ}:{sJ+3}], s{sT} offen"); e(f"s_branch {l2}")
        self.label(l)
        e(f"s_lshl_b32 s{sT}, s2, 13")
        e(f"buffer_load_dword v{self.vPL}, v{T0}, s[{sWO}:{sWO+3}], s{sT} offen")
        self.label(l2); vm.issue("t")

    def y_g1(self, vm, first):
        e = self.e; P = "Y1" if first else "Y"; T0, T1, T2, T3 = self.YT; PT = self.YP; vPL = self.vPL
        sJ, sJo, sXc, sRt = self.sJ, self.sJo, self.sXc, self.sRt
        JB, RB, G, CQ, vJ, vR, vHs = 0, 64, 72, 76, 96, 97, 98
        if not first:
            self.g1_src(False)
            e(f"s_add_u32 s{sD0}, s{sFL}, {(64 - 128) & 0xffffffff}"); e(f"s_add_u32 s{sD1}, s{sFl}, {4 * 2048 - 128}")
            e(f"s_and_b32 s{sT}, s{sMT}, 3")
            e(f"s_cselect_b32 s{sD0}, s{sD0}, s{sD1}"); e(f"s_cselect_b32 s{sD1}, 28, 60")
            e(f"s_add_u32 s{sT}, s{sFL}, 64")
            e(f"s_cmp_eq_u32 s{sMT}, 0"); e(f"s_cselect_b32 s{sD0}, s{sT}, s{sD0}"); e(f"s_cselect_b32 s{sD1}, 28, s{sD1}")
            e(f"v_lshrrev_b32 v{T0}, 2, v{vL16}"); e(f"v_and_b32 v{T0}, 60, v{T0}")
            e(f"v_min_u32 v{T1}, s{sD1}, v{T0}"); e(f"v_add_u32 v{T1}, s{sD0}, v{T1}")
            e(f"v_min_u32 v{T0}, 28, v{T0}"); e(f"v_add_u32 v{T0}, s{sT}, v{T0}")
            e(f"v_cmp_gt_u32 vcc, 256, v{vL16}"); e(f"v_lshlrev_b32 v{T2}, 3, v{vL16}"); e(f"v_and_b32 v{T2}, 0xfff, v{T2}")
            e(f"v_cndmask_b32 v{T0}, v{T1}, v{T0}, vcc")
            e(f"s_add_u32 s{sDa}, s{sGa}, s{sRa}")
            e("s_barrier")
            e(f"buffer_load_dword v{vPL}, v{T2}, s[{sWS}:{sWS+3}], s{sDa} offen sc0 sc1")
            lp, ld = self.lab("poll"), self.lab("pd")
            e(f"s_mov_b32 s{sT2}, {POLL}")
            self.label(lp)
            e(f"buffer_load_dword v{T1}, v{T0}, s[{sWS}:{sWS+3}], 0 offen sc0 sc1")
            e("s_waitcnt vmcnt(0)")
            e(f"v_cmp_ne_u32 vcc, 0x01010101, v{T1}"); e(f"s_cbranch_vccz {ld}")
            e("s_sleep 1"); e(f"s_sub_u32 s{sT2}, s{sT2}, 1"); e(f"s_cmp_lg_u32 s{sT2}, 0"); e(f"s_cbranch_scc1 {lp}")
            self.label(ld)
            vm.clear()
            for u in range(3): self.run_period(self.g1_a(vm, False, u), [])
        SL, QA, QB, XS, vQ = 120, 124, 128, 144, 172
        def qcol(s):
            l = self.lab("qc")
            e(f"s_and_b32 s{sT}, s{sMT}, 3"); e(f"s_cmp_lg_u32 s{sT}, {s >> 1}"); e(f"s_cbranch_scc1 {l}")
            if s % 6 >= 3: e(f"v_add_u32 v{vF0}, {3 * WSLOT}, v{vQ}")
            for i in range(4): e(f"ds_read_b128 v[{QB+4*i}:{QB+4*i+3}], v{vF0 if s % 6 >= 3 else vQ} offset:{(s % 3) * WSLOT + 1024 * i}")
            e("s_waitcnt lgkmcnt(0)")
            for i in range(4): e(mfma(QA, SL, QB + 4 * i, "0" if (s & 1) == 0 and i == 0 else None))
            e("s_nop 7")
            self.label(l)
        if first:
            self.emit(self.selector(SL, T0, T1))
            self.emit(self.swz128(T0, T1, T2)); e(f"v_lshl_add_u32 v{vQ}, v{T0}, 7, v{T1}")
            e(f"s_min_u32 s{sT}, s{sLW}, 2"); e(f"s_lshl_b32 s{sT}, s{sT}, 12"); e(f"v_add_u32 v{vQ}, s{sT}, v{vQ}")
        e("s_setprio 1")
        self.pb(P, ("G1", -1), vm.need(("W", 0), ("W", self.b2), ("A", 0)))
        if first:
            qcol(0)
        self.w_start(6, 38)
        j0 = int(self.opt.get("j0", 10)); jn = int(self.opt.get("jn", 1)); g = int(self.opt.get("gat", 14)); r0 = int(self.opt.get("r0", 10)); pf = 10 + self.b2
        jsch = [int(x) for x in str(self.opt.get("jsch", "4_5_6_8_9_11_12_13_15_16_17_19_27_28_29_30")).split("_")]
        for s in range(32):
            if self.hasb(s):
                need = self.kneed(0, s, 31) + ([("A", (s + 1) // 2)] if s & 1 else []) + (["p"] if s == pf else [])
                self.pb(P, ("G1", s), vm.need(*need), 0 if s == 31 else None)
            it = []; post = []
            if first:
                if s < 7: post.append(lambda s=s: qcol(s + 1))
                if s == 0:
                    for m in ("quad_perm:[1,0,3,2]", "quad_perm:[2,3,0,1]", "row_half_mirror"):
                        it += [f"v_add_f32_dpp v{XS+16+i}, v{XS+16+i}, v{XS+16+i} {m} row_mask:0xf bank_mask:0xf" for i in range(8)]
                if s == 1:
                    sel = [f"v_and_b32 v{T0}, 0x70, v{vL16}"]
                    for i in range(1, 4):
                        sel += [[f"v_cmp_eq_u32 vcc, {16 * i}, v{T0}", "s_nop 1", f"v_cndmask_b32 v{XS+16}, v{XS+16}, v{XS+16+2*i}, vcc", f"v_cndmask_b32 v{XS+17}, v{XS+17}, v{XS+17+2*i}, vcc"]]
                    sel += [f"v_lshrrev_b32 v{T1}, 7, v{vL16}", f"v_lshlrev_b32 v{T1}, 3, v{T1}", f"v_lshl_add_u32 v{T0}, v{T0}, 2, v{T1}"]
                    it += sel
                    post.append(self.grp(vm, "p", [f"s_lshl_b32 s{sT}, s{sN4}, 10", f"s_lshr_b32 s{sT2}, s{sM4}, 4", f"s_add_u32 s{sT}, s{sT}, s{sT2}", f"s_add_u32 s{sT}, s{sT}, s{sSTo}",
                                                   f"s_add_u32 s{sT}, s{sT}, {64 * KB}", f"s_mov_b32 s{sEX}, 0x0f0f0f0f", f"s_mov_b32 s{sEX+1}, 0x0f0f0f0f", f"s_mov_b64 exec, s[{sEX}:{sEX+1}]"],
                                         f"buffer_store_dwordx2 v[{XS+16}:{XS+17}], v{T0}, s[{sWS}:{sWS+3}], s{sT} offen sc0 sc1", ["s_mov_b64 exec, -1"]))
                if s == 7:
                    it += [f"v_add_f32_dpp v{QA+r}, v{QA+r}, v{QA+r} row_ror:8 row_mask:0xf bank_mask:0xf" for r in range(4)]
                    it += [f"v_and_b32 v{T0}, 0x70, v{vL16}", f"v_lshrrev_b32 v{T1}, 4, v{vL16}", f"v_and_b32 v{T1}, 16, v{T1}", f"v_lshl_add_u32 v{T0}, v{T0}, 1, v{T1}"]
                    post.append(self.grp(vm, "p", [f"s_mul_i32 s{sT}, s{sMT}, 12288", f"s_lshl_b32 s{sT2}, s{sLW}, 12", f"s_add_u32 s{sT}, s{sT}, s{sT2}",
                                                   f"s_lshl_b32 s{sT2}, s{sN4}, 8", f"s_add_u32 s{sT}, s{sT}, s{sT2}", f"s_add_u32 s{sT}, s{sT}, {WS_CSQ}",
                                                   f"s_cmp_lt_u32 s{sLW}, 3", f"s_cselect_b32 s{sT}, s{sT}, {OOB}", "s_mov_b64 exec, 0x00ff00ff"],
                                         f"buffer_store_dwordx4 v[{QA}:{QA+3}], v{T0}, s[{sWS}:{sWS+3}], s{sT} offen sc0 sc1", ["s_mov_b64 exec, -1"]))
                if s == 8: it += self.atomize(self.pat_128(PT["g2"], 2048, T0, T1, T2, sB2))
                if s == 2:
                    it.append(self.jobid() + [f"s_lshr_b32 s{sT}, s{self.sJi}, 1", f"s_cmp_lt_u32 s{sT}, 56",
                               f"s_cselect_b32 s{sJ}, s{sAT+8}, s{sAT+10}", f"s_cselect_b32 s{sJ+1}, s{sAT+9}, s{sAT+11}",
                               f"s_cselect_b32 s{sT2}, 0, 56", f"s_sub_u32 s{sT}, s{sT}, s{sT2}", f"s_lshl_b32 s{sJo}, s{sT}, 7",
                               f"s_and_b32 s{sT}, s{self.sJi}, 1", f"s_lshl_b32 s{sT}, s{sT}, 2", f"s_add_u32 s{sT}, s{sT}, s{sLW}", f"s_mul_i32 s{sT}, s{sT}, {128 * 7168}",
                               f"s_add_u32 s{sJo}, s{sJo}, s{sT}", f"s_cmp_lt_u32 s{self.sJi}, 224", f"s_cselect_b32 s{sJo}, s{sJo}, {OOB}"])
                    it += [f"v_lshrrev_b32 v{vJ}, 7, v{vL16}", f"v_mul_u32_u24 v{vJ}, 7168, v{vJ}", f"v_and_b32 v{T0}, 0x70, v{vL16}", f"v_add_u32 v{vJ}, v{vJ}, v{T0}"]
                    it += [f"v_lshrrev_b32 v{vR}, 6, v{vL16}", f"v_mul_u32_u24 v{vR}, 7168, v{vR}", f"v_lshrrev_b32 v{T0}, 3, v{vL16}", f"v_and_b32 v{T0}, 0x20, v{T0}",
                           f"v_and_b32 v{T1}, 0x30, v{vL16}", f"v_xor_b32 v{T0}, v{T0}, v{T1}", f"v_add_u32 v{vR}, v{vR}, v{T0}"]
                if s == 3: it.append(self.xcc_word(sXc))
                if self.opt.get("tk", 0):
                    if s == 3:
                        self.tk = 0
                        it.append([f"s_lshl_b32 s{sT}, s2, 2", f"s_add_u32 s{sT}, s{sT}, s{sLW}", f"s_mul_i32 s{sT}, s{sT}, 7168",
                                   f"s_add_u32 s{self.sP2}, s{sW2}, s{sT}", f"s_addc_u32 s{self.sP2+1}, s{sW2+1}, 0"])
                    if 7 <= s < 27: it += self.trickle(3)
                if s == pf:
                    def hs():
                        l = self.lab("hs")
                        e(f"s_cmp_lg_u32 s{sLW}, 1"); e(f"s_cbranch_scc1 {l}")
                        self.side_flag(0)
                        self.label(l)
                    post.append(hs)
                if s == r0:
                    it.append([f"s_lshr_b32 s{sT}, s2, 3", f"s_lshl_b32 s{sT}, s{sT}, 1", f"s_add_u32 s{sT}, s{sT}, s{sWN}", f"s_and_b32 s{sT2}, s2, 7",
                               f"s_lshl_b32 s{sGs}, s{sWM}, 3", f"s_add_u32 s{sGs}, s{sGs}, s{sT2}", f"s_lshl_b32 s{sGs}, s{sGs}, 7", f"s_add_u32 s{sGs}, s{sGs}, s{sT}",
                               f"s_lshl_b32 s{sGs}, s{sGs}, 10", f"s_add_u32 s{sGs}, s{sGs}, {WS_RT}",
                               f"s_mul_i32 s{sT}, s{sT}, {16 * 7168}", f"s_mul_i32 s{sT2}, s{sT2}, 896", f"s_add_u32 s{sEX}, s{sT}, s{sT2}"])
                    for h in range(2):
                        it.append(self.grp(vm, "R", [], f"buffer_load_dwordx4 v[{RB+4*h}:{RB+4*h+3}], v{vR}, s[{sW13}:{sW13+3}], s{sEX} offen offset:{384 + 64 * h}"))
                st0 = int(self.opt.get("st0", 31))
                for h in range(2):
                    if s == min(st0 + 3 + h, 31):
                        assert "R" not in vm.ops
                        post.append(self.grp(vm, "r", [], f"buffer_store_dwordx4 v[{RB+4*h}:{RB+4*h+3}], v{vL16}, s[{sWS}:{sWS+3}], s{sGs} offen sc0 sc1", [f"s_add_u32 s{sGs}, s{sGs}, 65536"]))
                CB, vC = 104, 99
                if s == r0 - 2 and self.opt.get("rel"):
                    it.append([f"v_lshrrev_b32 v{vC}, 8, v{vL16}", f"v_mul_u32_u24 v{vC}, 7168, v{vC}", f"v_and_b32 v{T0}, 0xf0, v{vL16}", f"v_add_u32 v{vC}, v{vC}, v{T0}",
                               f"s_mul_i32 s{sT}, s2, {4 * 7168}", f"v_add_u32 v{vC}, s{sT}, v{vC}"])
                for k in range(3 if self.opt.get("rel") else 0):
                    pre = [f"s_cmp_eq_u32 s{sWN}, 0", f"s_movk_i32 s{sT}, {(11, 19, 26)[k] * 128}", f"s_cselect_b32 s{sT}, s{sT}, {(35, 42, 51)[k] * 128}"]
                    if s == r0 + 2 + 2 * k: post.append(self.grp(vm, "C", pre, f"buffer_load_dwordx4 v[{CB+4*k}:{CB+4*k+3}], v{vC}, s[{sW13}:{sW13+3}], s{sT} offen"))
                    if s == min(st0 + k, 31):
                        assert "C" not in vm.ops
                        pre += [f"s_lshl_b32 s{sT2}, s{sWM}, 23", f"s_add_u32 s{sT}, s{sT}, s{sT2}", f"s_add_u32 s{sT}, s{sT}, {WS_C13 + 256}"]
                        post.append(self.grp(vm, "r", pre, f"buffer_store_dwordx4 v[{CB+4*k}:{CB+4*k+3}], v{vC}, s[{sWS}:{sWS+3}], s{sT} offen sc0 sc1"))
                for k in range(16):
                    if jsch[k] != s: continue
                    b = JB + 4 * k
                    post.append(self.grp(vm, "J", [], f"buffer_load_dwordx4 v[{b}:{b+3}], v{vJ}, s[{sJ}:{sJ+3}], s{sJo} offen", [f"s_add_u32 s{sJo}, s{sJo}, {8 * 7168}"]))
                if s == g:
                    e(f"v_lshlrev_b32 v{T3}, 1, v{vL16}"); e(f"v_and_b32 v{T3}, 0xff, v{T3}")
                    e(f"buffer_load_dword v{vHs}, v{T3}, s[{sDBG}:{sDBG+3}], 0 offen sc0 sc1"); vm.issue("hs")
                if s == g + 3:
                    lp, ld_ = self.lab("hs"), self.lab("hs")
                    self.wait(vm.need("hs"))
                    e(f"s_mov_b32 s{sT2}, {POLL}")
                    self.label(lp)
                    e(f"v_and_b32 v{T1}, 63, v{vHs}")
                    e(f"v_cmp_ne_u32 vcc, 32, v{T1}")
                    e(f"s_cbranch_vccz {ld_}")
                    e(f"buffer_load_dword v{vHs}, v{T3}, s[{sDBG}:{sDBG+3}], 0 offen sc0 sc1")
                    e("s_waitcnt vmcnt(0)")
                    e(f"s_sub_u32 s{sT2}, s{sT2}, 1"); e(f"s_cmp_lg_u32 s{sT2}, 0"); e(f"s_cbranch_scc1 {lp}")
                    self.label(ld_)
                    self.apoll4_issue(vm, 0, G)
                    it.append([f"s_and_b32 s{sT}, s2, 7", f"s_lshl_b32 s{sT2}, s{sXc}, 5", f"v_readlane_b32 s{sT}, v{vHs}, s{sT}", "s_nop 3",
                               f"s_cmp_lg_u32 s{sT}, s{sT2}", f"s_cselect_b32 s{sMODE}, 1, 0",
                               f"v_mov_b32 v{T0}, {L_MODE}", f"v_mov_b32 v{T1}, s{sMODE}", "s_mov_b64 exec, 1", f"ds_write_b32 v{T0}, v{T1}", "s_mov_b64 exec, -1"])
                vC0, vC1 = 173, 174
                if s == g + 4:
                    it += self.atomize([f"v_and_b32 v{vC0}, 0xf0, v{vL16}", f"v_min_u32 v{vC0}, 0xb0, v{vC0}", f"s_mul_i32 s{sT}, s{sLW}, 192", f"v_add_u32 v{vC0}, s{sT}, v{vC0}",
                                        f"v_lshrrev_b32 v{T0}, 8, v{vC0}", f"v_and_b32 v{T1}, 0xff, v{vC0}", f"v_lshl_add_u32 v{T0}, v{T0}, 12, v{T1}",
                                        f"v_lshrrev_b32 v{T1}, 8, v{vL16}", f"v_mul_u32_u24 v{T1}, 12288, v{T1}", f"s_lshl_b32 s{sT}, s{sN4}, 8", f"v_add3_u32 v{vC1}, v{T0}, v{T1}, s{sT}"])
                if s == g + 6: self.apoll4_check(vm, 0, G)
                if g + 8 <= s < g + 10:
                    for k in (2 * (s - g - 8), 2 * (s - g - 8) + 1):
                        it.append(self.grp(vm, "g1", [f"s_mov_b32 s{sT}, {WS_CSQ + 49152 * k}"], f"buffer_load_dwordx4 v[{CQ+4*k}:{CQ+4*k+3}], v{vC1}, s[{sWS}:{sWS+3}], s{sT} offen sc1"))
                if s == g + 15:
                    self.wait(vm.need("g1"))
                    it += [f"v_add_f32 v{CQ+r}, v{CQ+r}, v{CQ+4+r}" for r in range(4)] + [f"v_add_f32 v{CQ+8+r}, v{CQ+8+r}, v{CQ+12+r}" for r in range(4)]
                    it += [f"v_add_f32 v{CQ+r}, v{CQ+r}, v{CQ+8+r}" for r in range(4)]
                    it += self.xred(list(range(CQ, CQ + 4)), list(range(CQ + 4, CQ + 8)), steps=("v_permlane16_swap_b32",))
                if s == g + 16:
                    it += self.xred(list(range(CQ, CQ + 4)), list(range(CQ + 4, CQ + 8)), steps=("v_permlane32_swap_b32",))
                    it += [f"v_add_u32 v{vC0}, {L_CSQ}, v{vC0}", ["s_mov_b64 exec, 0xfff", f"ds_write_b128 v{vC0}, v[{CQ}:{CQ+3}]", "s_mov_b64 exec, -1"]]
                if s == int(self.opt.get("w2at", 99)):
                    it.append(self.grp(vm, "t", [f"v_lshlrev_b32 v{T0}, 3, v{vL16}", f"s_lshl_b32 s{sT}, s2, 2", f"s_add_u32 s{sT}, s{sT}, s{sLW}", f"s_lshl_b32 s{sT}, s{sT}, 13"],
                                       f"buffer_load_dword v{vPL}, v{T0}, s[{sW2}:{sW2+3}], s{sT} offen"))
            else:
                if s == 2 + self.b2: post.append(lambda: self.wg_flag_if(0, self.FG(7)))
                if s == 7 + self.b2:
                    e(f"v_lshrrev_b32 v{T0}, 2, v{vL16}"); e(f"v_and_b32 v{T1}, 64, v{T0}"); e(f"v_and_b32 v{T0}, 60, v{T0}")
                    e(f"s_cmp_eq_u32 s{sMT}, 0"); e(f"s_cselect_b32 s{sT}, 0, 2")
                    e(f"v_mul_lo_u32 v{T1}, v{T1}, s{sT}"); e(f"v_sub_u32 v{vHs}, v{T0}, v{T1}"); e(f"v_add_u32 v{vHs}, {7 * 2048}, v{vHs}")
                    e(f"buffer_load_dword v{vPL}, v{vHs}, s[{sWS}:{sWS+3}], s{sFl} offen sc0 sc1"); vm.issue("ap")
                if s == 10 + self.b2:
                    lp, ld = self.lab("poll"), self.lab("pd")
                    self.wait(vm.need("ap"))
                    e(f"s_mov_b32 s{sT2}, {POLL}")
                    self.label(lp)
                    e(f"v_cmp_ne_u32 vcc, 0x01010101, v{vPL}"); e(f"s_cbranch_vccz {ld}")
                    e(f"buffer_load_dword v{vPL}, v{vHs}, s[{sWS}:{sWS+3}], s{sFl} offen sc0 sc1"); e("s_waitcnt vmcnt(0)")
                    e(f"s_sub_u32 s{sT2}, s{sT2}, 1"); e(f"s_cmp_lg_u32 s{sT2}, 0"); e(f"s_cbranch_scc1 {lp}")
                    self.label(ld)
            R0, AC, H, vH = 144, 160, 164, 175
            s0 = g + 6 if first else 11
            so = 64 * KB if first else 0
            fin = [[f"v_lshrrev_b32 v{T2}, 1, v{T2}", f"s_lshl_b32 s{sT}, s{sLW}, 7", f"s_add_u32 s{sT}, s{sT}, {L_ST + 64}", f"v_add_u32 v{T2}, s{sT}, v{T2}",
                    f"v_sub_f32 v{AC}, 0, v{AC}", f"v_sub_f32 v{AC+2}, 0, v{AC+2}",
                    "s_mov_b64 exec, 0xffff", f"ds_write2_b32 v{T2}, v{AC}, v{AC+2} offset0:0 offset1:1", f"ds_write2_b32 v{T2}, v{AC+1}, v{AC+3} offset0:144 offset1:145", "s_mov_b64 exec, -1"]]
            it += self.stats_gather(vm, s, s0, sSTo, R0, AC, fin, so, first)
            h0 = s0 + 1 if first else 16
            h1 = s0 + 6 if first else 21
            if s == h0:
                it.append([f"v_lshrrev_b32 v{T0}, 7, v{vL16}", f"v_and_b32 v{vH}, 0x70, v{vL16}", f"v_lshl_add_u32 v{T0}, v{T0}, 10, v{vH}",
                           f"s_sub_u32 s{sEX}, s{sSTo}, {ARENA - 896 - so}", f"s_cmp_eq_u32 s{sMT}, 0", f"s_cselect_b32 s{sEX}, {OOB}, s{sEX}"])
                for k in range(2):
                    it.append(self.grp(vm, "h", [], f"buffer_load_dwordx4 v[{H+4*k}:{H+4*k+3}], v{T0}, s[{sWS}:{sWS+3}], s{sEX} offen", [f"s_add_u32 s{sEX}, s{sEX}, 8192"]))
            if s == h1:
                self.wait(vm.need("h"))
                it += [f"v_add_f32 v{H+r}, v{H+r}, v{H+4+r}" for r in range(4)] + ["s_nop 1"]
                it += [f"v_add_f32_dpp v{H+r}, v{H+r}, v{H+r} row_ror:8 row_mask:0xf bank_mask:0xf" for r in range(4)]
                if not first: it += self.xred(list(range(H, H + 4)), list(range(H + 4, H + 8)), steps=("v_permlane16_swap_b32",))
            if s == h1 + 1:
                if first: it += self.xred(list(range(H, H + 4)), list(range(H + 4, H + 8)), steps=("v_permlane16_swap_b32",))
                it += self.xred(list(range(H, H + 4)), list(range(H + 4, H + 8)), steps=("v_permlane32_swap_b32",))
            if s == h1 + 2: it += self.finish_stats(H, H + 1)
            if s == h1 + (2 if first else 3):
                it += self.finish_stats(H + 2, H + 3)
                it += [f"v_lshrrev_b32 v{vH}, 1, v{vH}", f"v_add_u32 v{vH}, {L_ST}, v{vH}", f"v_sub_f32 v{H}, 0, v{H}", f"v_sub_f32 v{H+2}, 0, v{H+2}",
                       [f"s_lshl_b32 s{sT}, s{sLW}, 1", f"s_lshl_b64 exec, 3, s{sT}",
                        f"ds_write2_b32 v{vH}, v{H}, v{H+2} offset0:0 offset1:1", f"ds_write2_b32 v{vH}, v{H+1}, v{H+3} offset0:144 offset1:145", "s_mov_b64 exec, -1"]]
            dm = []
            if s >= 1 and (s - 1) // 2 + 3 < 16: dm = self.g1_a(vm, first, (s - 1) // 2 + 3, (s - 1) & 1)
            self.run_period(dm + self.w_take(vm, PT, 2 if s == 31 else 1, self.kfree(0, s)), it)
            self.run_period([], post)
        assert self.wn == 38 and g + 16 <= 30
        self.tr_flush(P)
        e("s_setprio 0")

    def job_finish(self):
        e = self.e; T0, T1 = self.YT[:2]; JB = 0
        l = self.lab("jf")
        e(f"s_cmp_lg_u32 s{sLAY}, 0"); e(f"s_cbranch_scc1 {l}")
        if True:
            AC, S = 100, 104
            self.emit(self.selector(S, T0, T1)); e("s_nop 1")
            for i in range(16): e(mfma(AC, S, JB + 4 * i, "0" if i == 0 else None))
            e(f"s_and_b32 s{sT2}, s{self.sJi}, 1"); e(f"s_lshl_b32 s{sT2}, s{sT2}, 2"); e(f"s_add_u32 s{sT2}, s{sT2}, s{sLW}"); e(f"s_mul_i32 s{sT2}, s{sT2}, 28672")
            e(f"s_lshr_b32 s{sT}, s{self.sJi}, 1"); e(f"s_lshl_b32 s{sT}, s{sT}, 8")
            e(f"s_add_u32 s{sT}, s{sT}, s{sT2}"); e(f"s_add_u32 s{sT}, s{sT}, {WS_CS13}")
            e(f"s_cmp_lt_u32 s{self.sJi}, 224"); e(f"s_cselect_b32 s{sT}, s{sT}, {OOB}")
            e(f"v_and_b32 v{T0}, 0x70, v{vL16}"); e(f"v_lshrrev_b32 v{T1}, 4, v{vL16}"); e(f"v_and_b32 v{T1}, 16, v{T1}"); e(f"v_lshl_add_u32 v{T0}, v{T0}, 1, v{T1}")
            e("s_nop 2")
            for r in range(4): e(f"v_add_f32_dpp v{AC+r}, v{AC+r}, v{AC+r} row_ror:8 row_mask:0xf bank_mask:0xf")
            e("s_mov_b64 exec, 0x00ff00ff")
            e(f"buffer_store_dwordx4 v[{AC}:{AC+3}], v{T0}, s[{sWS}:{sWS+3}], s{sT} offen sc0 sc1")
            e("s_mov_b64 exec, -1")
        self.label(l)

    def y_g2(self):
        e = self.e; P = "Y"; vm = VM(); T0, T1, T2, _ = self.YT; PT = self.YP; vPL = self.vPL
        e(f"v_lshlrev_b32 v{T0}, 7, v{vL16}")
        e(f"s_lshl_b32 s{sT}, s{sWN}, 19"); e(f"s_add_u32 s{sT}, s{sT}, s{sRw}"); e(f"s_and_b32 s{sT}, s{sT}, {(16 << 17) - 1}"); e(f"s_add_u32 s{sT}, s{sT}, s{sB1}")
        e(f"buffer_load_dword v{vPL}, v{T0}, s[{sWO}:{sWO+3}], s{sT} offen")
        for i in range(4): e(f"v_mov_b32 v{112+i}, -1")
        e(f"s_lshl_b32 s{sRa}, s{sN4}, 14")
        vA = self.YAP[0]
        e(f"s_add_u32 s{sGa}, s{sOo}, s{sM4}"); e(f"v_add_u32 v{vA}, s{sGa}, v{vL16}")
        e(f"s_add_u32 s{sT}, s{sGa}, s{sRa}"); e(f"s_add_u32 s{sT}, s{sT}, {WS_P}")
        for i in range(4): e(f"buffer_store_dwordx4 v[112:115], v{vL16}, s[{sWS}:{sWS+3}], s{sT} offen offset:{1024 * i} sc0 sc1")
        l = self.lab("cp")
        e(f"s_cmp_lg_u32 s{sLAY}, 0"); e(f"s_cbranch_scc1 {l}")
        self.emit(self.pat_256(PT["g3a"], 7168, T0, T1, T2, sB3) + self.pat_g3b(PT["g3b"], T0, T1, T2) + self.pat_256(PT["g4"], 2048, T0, T1, T2))
        self.emit(self.reloc13(sW3A, 0)); self.emit(self.reloc13(sW3B, 0x4008))
        self.label(l)
        self.warm("A")
        def A(u): return self.a_issue(vm, ("A", u), u % 3, vA, None, self.ainc(uord(u + 1) - uord(u)) if u < 15 else None)
        self.bar(P, ("G2", -2))
        self.run_period(A(0), [])
        self.pb(P, ("G2", -1), 0)
        self.poll_flags(self.FL(0, 0), 8); vm.clear()
        self.run_period(A(1) + A(2), [])
        npre = int(self.opt.get("g2pre", 4)); g2w = int(self.opt.get("g2w", 13))
        g2c = int(self.opt.get("g2c", 0))
        sched = {1 + g2c: 1, 3 + g2c: 1}
        for k in range(npre): sched[min(g2w + k, 15)] = sched.get(min(g2w + k, 15), 0) + 1
        self.w_start(38, 72 + self.xw0)
        for u in range(16):
            need = ([("A", u + 1)] if u < 15 else []) + ([self.wneed(32 + (u + 1) // 2)] if (u & 1 and u < 15) else [])
            self.pb(P, ("G2", u), vm.need(*need))
            if u == 3: self.apoll_issue(vm, self.FG(0), 16, vPL)
            if u == 5: self.apoll_check(vm, self.FG(0), 16, vPL)
            self.run_period((A(u + 3) if u + 3 < 16 else []) + self.w_take(vm, PT, sched.get(u, 0), 32 + (u - 1 - g2c) // 2), [])
        self.job_finish()
        return vm

    def b3(self, mat, t, rt): return ((mat * 3 + t) * 4 + rt) * 4
    VBX, VBW, YRL, YI2 = 176, 177, 184, 188

    def y_g3a(self, vm):
        e = self.e; P = "Y"; T0, T1, T2, T3 = self.YT; PT = self.YP; vPL = self.vPL
        R = 96; AC = 192; NM = 196; CS = 96; CT = 128
        vA = self.YAP[0]
        e(f"s_add_u32 s{sGa}, s{sXm}, s{sM4}"); e(f"s_lshl_b32 s{sRa}, s{sN4}, 14"); e(f"v_add_u32 v{vA}, s{sGa}, v{vL16}")
        self.h_bases()
        def A(u, part=None): return self.a_issue(vm, ("A", u), u % 3, vA, None, self.ainc(uord(u + 1) - uord(u)) if u < 15 else None, part)
        own = self.opt.get("own", 0)
        if own:
            assert not self.b2
            e(f"v_lshlrev_b32 v{T0}, 3, v{vL16}"); e(f"v_and_b32 v{T0}, 0xfff, v{T0}"); e(f"s_add_u32 s{sDa}, s{sGa}, s{sRa}")
            self.emit(self.ainc(2))
            self.pb(P, ("G3A", -1), vm.need(self.wneed(40), self.wneed(41)))
            self.stats_out(sSTm, 144)
        else:
            self.bar(P, ("G3A", -2))
            self.run_period(A(0), [])
            self.pb(P, ("G3A", -1), 0); vm.clear()
            self.apoll_issue(vm, self.FL(0, 32), 8, vPL)
        e("s_setprio 1")
        work = self.stat_regs(R, NM, self.YRL, self.YI2, T0)
        work += [f"v_lshrrev_b32 v{T0}, 8, v{vL16}", f"v_lshlrev_b32 v{T0}, 4, v{T0}", f"v_add_u32 v{T0}, {L_CSB}, v{T0}",
                 f"s_and_b32 s{sT2}, s{sNT}, 1", f"s_add_u32 s{sT}, s{sT2}, s{sWN}", f"s_lshl_b32 s{sT}, s{sT}, 7", f"v_add_u32 v{T1}, s{sT}, v{T0}",
                 f"s_xor_b32 s{sT2}, s{sT2}, 1", f"s_lshl_b32 s{sT2}, s{sT2}, 2", f"s_add_u32 s{sT2}, s{sT2}, s{sWN}", f"s_lshl_b32 s{sT2}, s{sT2}, 6", f"v_add_u32 v{T0}, s{sT2}, v{T0}"]
        for mat in range(2):
            for t in range(3):
                c = CS + (mat * 3 + t) * 4
                work.append(f"ds_read_b128 v[{c}:{c+3}], v{T1 if t < 2 else T0} offset:{mat * 512 + (64 * t if t < 2 else 0)}")
        work.append("s_waitcnt lgkmcnt(0)")
        for mat in range(2):
            for t in range(3):
                for rt in range(4):
                    work += [f"v_mul_f32 v{self.b3(mat,t,rt)+r}, v{NM+rt}, v{CS+(mat*3+t)*4+r}" for r in range(4)]
        work = self.costed(work)
        vW = self.VBW
        addr = [f"s_lshl_b32 s{sT}, s{sWM}, 13", f"s_add_u32 s{sT}, s{sT}, {LA}", f"v_add_u32 v{self.VBX}, s{sT}, v{vL16}",
                f"v_lshrrev_b32 v{T0}, 6, v{vL16}", f"v_lshrrev_b32 v{T1}, 1, v{T0}", f"v_and_b32 v{T1}, 3, v{T1}",
                f"s_lshl_b32 s{sT}, s{sWN}, 1", f"v_xor_b32 v{T1}, s{sT}, v{T1}", f"v_lshlrev_b32 v{T1}, 5, v{T1}", f"v_lshl_add_u32 v{T1}, v{T0}, 7, v{T1}",
                f"v_and_b32 v{vW+3}, 0x30, v{vL16}", f"v_lshrrev_b32 v{vW+3}, 1, v{vW+3}",
                f"v_add_u32 v{vW}, v{T1}, v{vW+3}", f"v_xor_b32 v{vW+1}, 32, v{vW}",
                f"v_lshrrev_b32 v{T1}, 2, v{T0}", f"v_and_b32 v{T1}, 1, v{T1}", f"v_xor_b32 v{T1}, s{sWN}, v{T1}", f"v_lshlrev_b32 v{T1}, 5, v{T1}",
                f"v_lshl_add_u32 v{T1}, v{T0}, 6, v{T1}", f"v_add_u32 v{T1}, v{T1}, v{vW+3}", f"v_add_u32 v{vW+2}, 2048, v{T1}"]
        addr += [f"v_add_u32 v{vW+3+t}, {3 * WSLOT}, v{vW+t}" for t in range(3)]
        c0 = 22; S0 = 9 + self.b2; C1 = 10
        cu0 = int(self.opt.get("cu0", 99))
        for s in range(32):
            if self.hasb(s):
                need = self.kneed(40, s, 99) + ([("A", (s + 1) // 2)] if s & 1 else [])
                self.pb(P, ("G3A", s), vm.need(*need), 0 if s == c0 - self.b2 else None)
            it = []; dm = []; post = []
            if s == 0:
                if own:
                    e(f"buffer_load_dword v{vPL}, v{T0}, s[{sWS}:{sWS+3}], s{sDa} offen sc0 sc1")
                    self.poll_flags(self.FL(0, 32), 8); vm.clear()
                else: self.apoll_check(vm, self.FL(0, 32), 8, vPL)
                dm = A(1) + A(2)
            if s == 2 + self.b2: post.append(lambda: self.wg_flag_if(0, self.FG(6)))
            if s == 2:
                def cf():
                    l = self.lab("cf")
                    e(f"s_xor_b32 s{sT}, s{sLW}, 1"); e(f"s_or_b32 s{sT}, s{sLAY}, s{sT}"); e(f"s_cbranch_scc1 {l}")
                    self.side_flag(1)
                    self.label(l)
                post.append(cf)
            if s == S0 - 3: self.apoll_issue(vm, self.FG(6), 16, vPL)
            if s == S0: self.apoll_check(vm, self.FG(6), 16, vPL)
            fin = [[f"s_lshl_b32 s{sT}, s{sLW}, 8", f"s_add_u32 s{sT}, s{sT}, {L_ST}", f"v_add_u32 v{T2}, s{sT}, v{T2}", "s_mov_b64 exec, 0xffff", f"ds_write_b128 v{T2}, v[{AC}:{AC+3}]", "s_mov_b64 exec, -1"]]
            it += self.stats_gather(vm, s, S0, sSTm, R, AC, fin)
            if s == C1: self.apoll4_issue(vm, 1, CT)
            if s == C1 + 3:
                self.apoll4_check(vm, 1, CT, [(sLAY, 1)])
                l = self.lab("cs")
                e(f"s_cmp_lg_u32 s{sLAY}, 0"); e(f"s_cbranch_scc1 {l}")
                e(f"s_and_b32 s{sT}, s{sNT}, 1"); e(f"s_mul_i32 s{sT2}, s{sT}, 384")
                e(f"s_xor_b32 s{sT}, s{sT}, 1"); e(f"s_lshl_b32 s{sT}, s{sT}, 9")
                e(f"s_cmp_eq_u32 s{sWN}, 0"); e(f"s_cselect_b32 s{sT}, s{sT2}, s{sT}")
                e(f"s_mul_i32 s{sT2}, s{sNT}, 896"); e(f"s_add_u32 s{sT}, s{sT}, s{sT2}")
                e(f"s_mul_i32 s{sT2}, s{sWM}, 14336"); e(f"s_add_u32 s{sT}, s{sT}, s{sT2}"); e(f"s_add_u32 s{sT}, s{sT}, {WS_CS13}")
                e(f"v_lshrrev_b32 v{T0}, 9, v{vL16}"); e(f"v_mul_u32_u24 v{T0}, 28672, v{T0}"); e(f"v_and_b32 v{T1}, 0x1f0, v{vL16}"); e(f"v_add_u32 v{T0}, v{T0}, v{T1}")
                for k in range(4):
                    e(f"buffer_load_dwordx4 v[{CT+4*k}:{CT+4*k+3}], v{T0}, s[{sWS}:{sWS+3}], s{sT} offen sc1")
                    e(f"s_add_u32 s{sT}, s{sT}, 57344")
                self.label(l)
                ct_after = ("A", (s - 1) // 2 + 3)
            if s == C1 + 7:
                assert ct_after not in vm.ops
                l = self.lab("cs")
                e(f"s_cmp_lg_u32 s{sLAY}, 0"); e(f"s_cbranch_scc1 {l}")
                for r in range(4): e(f"v_add_f32 v{CT+r}, v{CT+r}, v{CT+4+r}"); e(f"v_add_f32 v{CT+8+r}, v{CT+8+r}, v{CT+12+r}")
                for r in range(4): e(f"v_add_f32 v{CT+r}, v{CT+r}, v{CT+8+r}")
                self.emit(self.xred(list(range(CT, CT + 4)), list(range(CT + 4, CT + 8)), steps=("v_permlane32_swap_b32",)))
                e(f"s_lshl_b32 s{sT}, s{sLW}, 9"); e(f"s_add_u32 s{sT}, s{sT}, {L_CSA}"); e(f"v_and_b32 v{T1}, 0x1f0, v{vL16}"); e(f"v_add_u32 v{T0}, s{sT}, v{T1}")
                e("s_mov_b64 exec, 0xffffffff"); e(f"ds_write_b128 v{T0}, v[{CT}:{CT+3}]"); e("s_mov_b64 exec, -1")
                self.label(l)
            if self.opt.get("tk", 0) and 0 <= s < 18 and self.tk < 112:
                l = self.lab("tk")
                it.append([f"s_cmp_lg_u32 s{sLAY}, 0", f"s_cbranch_scc1 {l}"] + self.trickle(3) + [f"@{l}"])
            if 4 <= s < 20 and s % 2 == 0 and not self.opt.get("tk", 0):
                def w2(s=s):
                    l = self.lab("w2")
                    e(f"s_lshl_b32 s{sT}, s{sLAY}, 4"); e(f"s_lshr_b32 s{sT2}, s{sMT}, 1"); e(f"s_add_u32 s{sT}, s{sT}, s{sT2}")
                    e(f"s_cmp_lg_u32 s{sT}, {(s - 4) // 2}"); e(f"s_cbranch_scc1 {l}")
                    e(f"v_lshlrev_b32 v{vF0}, 3, v{vL16}"); e(f"s_lshl_b32 s{sT}, s2, 2"); e(f"s_add_u32 s{sT}, s{sT}, s{sLW}"); e(f"s_lshl_b32 s{sT}, s{sT}, 13")
                    e(f"buffer_load_dword v250, v{vF0}, s[{sW2}:{sW2+3}], s{sT} offen")
                    self.label(l)
                post.append(w2)
            if s in (21, 26) and self.opt.get("rel"):
                def cp2(s=s):
                    l = self.lab("cp")
                    e(f"s_cmp_lg_u32 s{sLAY}, 0"); e(f"s_cbranch_scc1 {l}")
                    e(f"s_lshl_b32 s{sT}, s2, 2"); e(f"s_add_u32 s{sT}, s{sT}, s{sLW}"); e(f"s_lshl_b32 s{sT}, s{sT}, 13")
                    if s == 21:
                        e(f"v_and_b32 v{vF0}, 0x300, v{vL16}"); e(f"v_and_b32 v{vF1}, 0xf0, v{vL16}"); e(f"v_lshl_add_u32 v249, v{vF0}, 3, v{vF1}")
                        for k in range(2): e(f"buffer_load_dwordx4 v[{240+4*k}:{243+4*k}], v249, s[{sW2}:{sW2+3}], s{sT} offen offset:{256 + 1024 * k}")
                    else:
                        e(f"s_add_u32 s{sT}, s{sT}, {WS_C2 + 256}"); e("s_cmp_lt_u32 s2, 224"); e(f"s_cselect_b32 s{sT}, s{sT}, {OOB}")
                        for k in range(2): e(f"buffer_store_dwordx4 v[{240+4*k}:{243+4*k}], v249, s[{sWS}:{sWS+3}], s{sT} offen offset:{256 + 1024 * k} sc0 sc1")
                        self.emit(self.reloc2())
                    self.label(l)
                if s == 21: cp2(); cp_after = ("A", (s - 1) // 2 + 3)
                else:
                    assert cp_after not in vm.ops
                    post.append(cp2)
            if s == 20: it += self.atomize(addr)
            if s >= c0: it += self.chunk(work, float(self.opt.get("budC", 24)) if s < 30 else 1e9) if work else []
            if s >= 1 and (s - 1) // 2 + 3 < 16: dm = A((s - 1) // 2 + 3, (s - 1) & 1)
            self.run_period(dm + self.w_take(vm, PT, 1, self.kfree(40, s), 4 if s >= 27 else (1 if s >= cu0 and not S0 <= s < S0 + 4 else 0)), it)
            self.run_period([], post)
        assert not work and self.wn == 72 + self.xw0, self.wn
        assert not self.opt.get("tk", 0) or self.tk == 112
        self.tr_flush(P)
        e("s_setprio 0")
        self.g3bw = [vm.need(("W", 72 + s + 1), ("W", 72 + s + 1 + self.b2)) if self.hasb(s) else None for s in range(7)]
        assert 0 in self.g3bw

    def y_g3b(self):
        e = self.e; P = "YC"
        XF, WF = 96, 128
        vXa, vWa = self.VBX, self.VBW
        def xf(b, rt): return XF + b * 16 + rt * 4
        def wf(b, mat, t): return WF + b * 24 + (mat * 3 + t) * 4
        def reads(s):
            b = s & 1; sl = (72 + s) % 6
            xr = [f"ds_read_b128 v[{xf(b,rt)}:{xf(b,rt)+3}], v{vXa} offset:{((16 + (s >> 1)) % 3) * 16384 + rt * 2048 + (s & 1) * 1024}" for rt in range(4)]
            wr = []
            for t in range(3):
                for mat in range(2):
                    r = wf(b, mat, t); ad = vWa + 3 * (sl // 3) + t; off = (sl % 3) * WSLOT + mat * 6144
                    wr += [f"ds_read_b64_tr_b16 v[{r}:{r+1}], v{ad} offset:{off}", f"ds_read_b64_tr_b16 v[{r+2}:{r+3}], v{ad} offset:{off + 3072}"]
            return wr[0:2] + xr + wr[2:]
        def mf(s):
            b = s & 1
            return [mfma(self.b3(mat, t, rt), wf(b, mat, t), xf(b, rt)) for t in range(3) for mat in range(2) for rt in snake(range(4), mat)]
        self.emit(reads(0))
        e(f"s_add_u32 s{sGa}, s{sHx}, s{sM4}"); e(f"v_add_u32 v{self.YAP[0]}, s{sGa}, v{vL16}")
        def fn(s, ex):
            extra = []
            if ex: extra.append((20, self.CNT))
            self.step(P, ("G3B", s), mf(s), reads(s + 1) if s < 31 else [], vmw=(self.g3bw[s] if s < 7 else None), bar=self.hasb(s), last=17, extra=extra)
        self.looped(P, 32, 6, fn)

    def y_g4(self):
        e = self.e; P = "Y"; vm = VM(); T0, T1, T2, _ = self.YT; PT = self.YP; vPL = self.vPL
        E, OUT, vX = 96, 100, 120
        e("s_setprio 1")
        work = ["s_nop 7"]
        for rt in range(4):
            O = OUT + 4 * (rt & 1)
            for t in range(2):
                work += self.silu_group(self.b3(0, t, rt), self.b3(1, t, rt), E, self.YRL + rt, self.YI2 + rt, O + 2 * t)
            work.append(self.grp(vm, ("H", 0), [f"s_add_u32 s{sT}, s{sGh}, {16 * 16384 + rt * 2048}"],
                                 f"buffer_store_dwordx4 v[{O}:{O+3}], v{vL16}, s[{sWS}:{sWS+3}], s{sT} offen sc0 sc1"))
        work.append(("FLAG", 0))
        work += [f"v_and_b32 v{vX}, 0x100, v{vL16}", f"v_and_b32 v{vX+1}, 0x200, v{vL16}", f"v_lshrrev_b32 v{vX+1}, 1, v{vX+1}", f"v_lshl_add_u32 v{vX}, v{vX}, 3, v{vX+1}",
                 f"v_and_b32 v{vX+1}, 0xf0, v{vL16}", f"v_add_u32 v{vX}, v{vX}, v{vX+1}"]
        for k in range(2):
            O = OUT + 4 * k
            for i in range(2):
                rt = 2 * k + i
                work += self.silu_group(self.b3(0, 2, rt), self.b3(1, 2, rt), E, self.YRL + rt, self.YI2 + rt, O + 2 * i)
            work += [["s_nop 1", f"v_permlane16_swap_b32 v{O}, v{O+2}", f"v_permlane16_swap_b32 v{O+1}, v{O+3}"]]
            work.append(self.grp(vm, ("H", 1), [f"s_add_u32 s{sT}, s{sGs}, {4096 * k}"], f"buffer_store_dwordx4 v[{O}:{O+3}], v{vX}, s[{sWS}:{sWS+3}], s{sT} offen sc0 sc1"))
        work.append(("FLAG", 1))
        work += [f"s_cmp_eq_u32 s{sLAY}, 0", f"s_cselect_b32 s{sB1}, s{sB1}, {OOB}"] + self.pat_g1(PT, T0, T1, T2, False)
        work = self.costed(work)
        self.w_start(109 - self.b2, 138)
        def need(u): return [self.wneed(104 + u + 1), ("A", u + 1)] if u < 27 else []
        def hook(u):
            pd = int(self.opt.get("pd", 4))
            if u + pd in (8, 16, 24): self.apoll_issue(vm, self.FL(1, 4 * (u + pd)), 8, vPL)
            if u + 3 in (8, 16, 24): self.apoll_check(vm, self.FL(1, 4 * (u + 3)), 8, vPL)
            if u == 23: assert not work
        def dmas(u):
            return (self.a_issue(vm, ("A", u + 3), (32 + u + 3) % 3, self.YAP[0], (u + 3) * 16384) if u + 3 < 28 else []) + self.w_take(vm, PT, 2 if u in ((25, 26) if self.b2 else (25,)) else 1, 104 + u)
        bud = float(self.opt.get("budY", 40))
        self.epi_loop(P, "G4", 28, vm, work, lambda s: bud, int(self.opt.get("lagY", 2)), need, dmas, [self.FL(1, 64), self.FL(1, 96)], [13, 21], hook)
        assert self.wn == 138
        self.tr_dump("Y")
        e("s_setprio 0")

    def next_layer(self):
        e = self.e
        e(f"s_mov_b32 s{sLAY}, 1")
        e(f"s_add_u32 s{sOo}, s{sOo}, {256 * KB}"); e(f"s_add_u32 s{sXm}, s{sXm}, {512 * KB}"); e(f"s_add_u32 s{sHo}, s{sHo}, {896 * KB}")
        e(f"s_add_u32 s{sSTm}, s{sSTm}, {64 * KB}"); e(f"s_add_u32 s{sFl}, s{sFl}, {32 * KB}"); e(f"s_add_u32 s{sFL}, s{sFL}, {32 * KB}")

    def warm(self, which):
        self.emit([f"#WARM {which}"])

    def gen(self, name):
        e = self.e; a = self.a; self.info = []; self.xw0 = 6 - self.b2; self.rot0 = sN4
        kernel_header(a, name)
        e("s_cmp_ge_u32 s2, 256"); e("s_cbranch_scc0 K_go"); e("s_endpgm")
        self.label("K_go")
        K = sAT
        e(f"s_load_dwordx4 s[{K}:{K+3}], s[0:1], 0")
        e(f"s_load_dwordx2 s[{K+4}:{K+5}], s[0:1], 16")
        e(f"s_load_dwordx8 s[{K+8}:{K+15}], s[0:1], 32")
        e(f"s_load_dwordx4 s[{K+16}:{K+19}], s[0:1], 64")
        e("v_lshrrev_b32 v1, 6, v0"); e(f"v_and_b32 v{vL16}, 63, v0")
        e(f"v_readfirstlane_b32 s{sWAVE}, v1")
        e(f"v_lshlrev_b32 v{vL16}, 4, v{vL16}")
        if self.opt.get("ts"): e(f"v_mov_b32 v{vTS}, 0")
        e(f"s_and_b32 s{sT}, s2, 6"); e(f"s_lshl_b32 s{sT}, s{sT}, 1"); e(f"s_lshr_b32 s{sT2}, s2, 3"); e(f"s_and_b32 s{sT2}, s{sT2}, 3")
        e(f"s_add_u32 s{sMT}, s{sT}, s{sT2}")
        e(f"s_and_b32 s{sT}, s2, 1"); e(f"s_lshr_b32 s{sT2}, s2, 5")
        e(f"s_lshl_b32 s{sNT}, s{sT}, 3"); e(f"s_add_u32 s{sNT}, s{sNT}, s{sT2}")
        e(f"s_lshl_b32 s{sN4}, s{sT2}, 1"); e(f"s_add_u32 s{sN4}, s{sN4}, s{sT}")
        e(f"s_and_b32 s{sLW}, s{sWAVE}, 3"); e(f"s_and_b32 s{sWM}, s{sWAVE}, 1"); e(f"s_lshr_b32 s{sWN}, s{sLW}, 1")
        e(f"s_lshl_b32 s{sT}, s{sWM}, 1"); e(f"s_add_u32 s{sT}, s{sT}, s{sWN}"); e(f"s_mul_i32 s{sM3}, s{sT}, 3072"); e(f"s_lshl_b32 s{sM4}, s{sT}, 12")
        e(f"s_mov_b32 s{sMODE}, 1"); e(f"s_mov_b32 s{sLAY}, 0")
        e(f"s_lshl_b32 s{sOo}, s{sMT}, 22"); e(f"s_add_u32 s{sXm}, s{sOo}, {WS_X1}"); e(f"s_add_u32 s{sX2}, s{sOo}, {WS_X1 + 256 * KB}")
        e(f"s_add_u32 s{sHo}, s{sOo}, {WS_H}")
        e(f"s_add_u32 s{sSTm}, s{sOo}, {WS_ST}"); e(f"s_add_u32 s{sSTo}, s{sSTm}, {32 * KB}")
        e(f"s_lshl_b32 s{sFl}, s{sMT}, 7"); e(f"s_add_u32 s{sFl}, s{sFl}, {WS_FL}")
        self.bases()
        e("s_waitcnt lgkmcnt(0)")
        make_srd(a, sQKV, K + 2, K + 3, 1024 * 6144)
        make_srd(a, sA1, K, K + 1, 4 * MB)
        make_srd(a, sWS, K + 18, K + 19, 256 * MB)
        make_srd(a, sX0, K, K + 1, 4 * MB)
        make_srd(a, sWO, K + 4, K + 5, 1024 * 2048)
        e(f"s_cmp_eq_u32 s{sWM}, 0")
        e(f"s_cselect_b32 s{sW13}, s{K+8}, s{K+10}"); e(f"s_cselect_b32 s{sW13+1}, s{K+9}, s{K+11}")
        e(f"s_mov_b32 s{sW13+2}, {1024 * 7168}"); e(f"s_mov_b32 s{sW13+3}, 0x00020000")
        make_srd(a, sW2, K + 12, K + 13, 3584 * 2048)
        make_srd(a, sOUT, K + 14, K + 15, 4 * MB)
        make_srd(a, sDBG, K + 16, K + 17, 256)
        e(f"s_and_b32 s{sT}, s2, 1"); e(f"s_lshl_b32 s{sT}, s{sT}, 13"); e(f"s_add_u32 s{sT}, s{sT}, {16 * KB}"); e(f"s_add_u32 s{sFL}, s{sFl}, s{sT}")
        e(f"s_lshl_b32 s{sT}, s{sN4}, 14"); e(f"s_lshl_b32 s{sT2}, s{sWM}, 13"); e(f"s_add_u32 s{sT}, s{sT}, s{sT2}")
        e(f"s_lshl_b32 s{sT2}, s{sWN}, 10"); e(f"s_add_u32 s{sTile}, s{sT}, s{sT2}")
        self.ts(15)
        e(f"s_cmp_lt_u32 s{sWAVE}, 4"); e("s_cbranch_scc1 X_start")
        vm1 = VM(); self.y_start(vm1); e("s_branch Y_first")
        self.label("X_start")
        self.x_prep()
        self.label("X_layer")
        self.x_g1(); self.x_g2(); self.x_g3a(); self.x_g3b(); self.x_g4()
        e(f"s_cmp_lg_u32 s{sLAY}, 0"); e("s_cbranch_scc1 X_fin")
        self.res_epilogue(self.a4, sX2, 236, 226); self.bars["X"].append(("G4", 99))
        self.next_layer()
        e("s_branch X_layer")
        self.label("X_fin")
        self.x_final()
        if self.opt.get("ts"):
            e("s_waitcnt vmcnt(0)")
            self.ts(24)
            e(f"s_lshl_b32 s{sT}, s2, 2"); e(f"s_add_u32 s{sT}, s{sT}, s{sLW}"); e(f"s_lshl_b32 s{sT}, s{sT}, 8"); e(f"s_add_u32 s{sT}, s{sT}, {WS_TS}")
            e(f"v_lshrrev_b32 v1, 2, v{vL16}")
            e(f"buffer_store_dword v{vTS}, v1, s[{sWS}:{sWS+3}], s{sT} offen")
            if self.opt.get("dbgts") is not None:
                e(f"s_lshl_b32 s{sT}, s2, 2"); e(f"s_add_u32 s{sT}, s{sT}, s{sLW}"); e(f"s_cmp_lg_u32 s{sT}, {4 * int(self.opt['dbgts'])}"); e("s_cbranch_scc1 K_nod")
                e(f"v_readlane_b32 s{sT2}, v{vTS}, 15"); e("v_mov_b32 v1, 0"); e("s_mov_b64 exec, 1")
                for slot, k in zip([1, 2, 3, 4, 5, 6, 7, 9, 10, 11, 12, 13, 14, 15], [1, 2, 7, 11, 12, 13, 14, 33, 34, 39, 43, 44, 45, 56]):
                    e(f"v_readlane_b32 s{sT}, v{vTS}, {k}"); e("s_nop 3"); e(f"s_sub_u32 s{sT}, s{sT}, s{sT2}"); e(f"v_mov_b32 v2, s{sT}")
                    e(f"buffer_store_dword v2, v1, s[{sDBG}:{sDBG+3}], 0 offen offset:{4 * slot}"); e("s_nop 1")
                self.label("K_nod")
        e("s_endpgm")
        self.label("Y_first")
        self.y_g1(vm1, True); e("s_branch Y_g2")
        self.label("Y_layer")
        self.y_g1(VM(), False)
        self.label("Y_g2")
        vm = self.y_g2(); self.y_g3a(vm); self.y_g3b(); self.y_g4()
        e(f"s_cmp_lg_u32 s{sLAY}, 0"); e("s_cbranch_scc1 K_end")
        self.emit(self.reloc13(sW3A, 0x14a0))
        self.next_layer(); self.bars["Y"].append(("G4", 99)); self.warm("B"); e("s_branch Y_layer")
        self.label("K_end")
        e("s_endpgm")
        B = self.bars
        def ph(p, *names): return [x for x in B[p] if x[0] in names]
        assert B["XL"] == B["YC"] and B["X"] == B["Y"] and B["Y1"] == ph("Y", "G1"), "barrier mismatch"
        kernels.append((name, 256, 102))
        return a.text()


def full(opt):
    kernels.clear()
    g = Gen(opt)
    KN = "mega_kernel" if opt.get("list") else NAME + "_kernel"
    body = g.gen(KN)
    body = "\n".join(x for x in body.split("\n") if not x.startswith("#")) + "\n"
    t = build([(KN, 256, 512, 163840)], [body], single=not opt.get("list"))
    for x in g.info: print(x, file=sys.stderr)
    return t

if __name__ == "__main__":
    opt = parse_opts(sys.argv[2:])
    open(sys.argv[1], "w").write(full(opt))
```

```python
import sys, re
from common import *

KB = 1024
ARENA = 4 * MB
WS_O = 0
WS_X1 = 512 * KB
WS_P = 1280 * KB
WS_ST = 1792 * KB
WS_H = 2 * MB
WS_RT = 64 * MB
WS_ST0 = 67 * MB
WS_CSQ = 67 * MB + 256 * KB
WS_CS13 = 67 * MB + 512 * KB
WS_FL = 68 * MB
WS_SF = 68 * MB + 256 * KB
WS_TS = 69 * MB
WS_C13 = 80 * MB
WS_C2 = 96 * MB
OOB = 0x7f000000
POLL = 0x40000
WSLOT = 16384
LA = 98304
L_SG = LA + 49152
L_SS = L_SG + 8192
L_ST = 159744
L_CSQ = L_ST + 1152
L_CSA = L_CSQ + 768
L_CSB = L_CSA + 1024
L_MODE = L_CSB + 1024
sFL = 0
sTile = 1
sWAVE = 3
sWS, sQKV, sWO, sW13, sW2, sX0, sOUT, sDBG, sA1 = 4, 8, 12, 16, 20, 24, 28, 32, 36
sW3B, sW3A = 24, 28
sMT, sNT, sLW, sWM, sWN, sMODE, sLAY = 40, 41, 42, 43, 44, 45, 46
sOo, sX2, sXm, sHo, sN4, sSTm, sSTo, sFl = 47, 48, 49, 50, 51, 52, 53, 54
sT, sT2, sT3, sCnt = 55, 56, 57, 58
sD0, sD1 = 59, 60
sM3, sM4 = 61, 62
sB1, sB2, sB3, sB4, sB5, sB6, sB7 = 63, 64, 65, 66, 67, 68, 69
sEX = 70
sAT = 72
sGa, sGh, sGs, sSu, sDa, sRw, sRa, sHx = 88, 89, 90, 91, 92, 93, 94, 95
sTS = 96
vL16, vTS = 254, 255
vF0, vF1 = 252, 253
EPS_BITS = 0x3727c5ac

def uord(t):
    return 2 * t if t < 8 else 2 * (t - 8) + 1
def snake(n, k):
    return list(n) if k % 2 == 0 else list(n)[::-1]
BORD = [13, 14, 15] + list(range(13))

class VM:
    def __init__(self): self.ops = []; self.total = 0
    def issue(self, tag): self.ops.append(tag); self.total += 1
    def need(self, *tags):
        last = -1
        for i, t in enumerate(self.ops):
            if t in tags: last = i
        n = len(self.ops) - 1 - last
        if last < 0: return None
        self.ops = self.ops[last + 1:]
        return n
    def clear(self): self.ops = []


class Gen:
    def __init__(self, opt):
        self.opt = opt
        self.a = Asm()
        self.nlab = 0
        self.bars = {}
        self.trp = {}
        for k, v in dict(tst="99_1_1", jb="11_10", r0=24.0, w2p=14.0, tpos=7.0, w0=3.0, a0=2.0).items(): opt.setdefault(k, v)
        self.b2 = int(opt.get("b2", 0))
    def e(self, s): self.a.e(s)
    def lab(self, p="L"):
        self.nlab += 1
        return f"{p}_{self.nlab}"
    def label(self, l): self.a.label(l)
    def al(self): self.a.raw("    .p2align 3")
    def bar(self, path, name):
        self.bars.setdefault(path, []).append(name)
        self.e("s_barrier")
    PH0 = {"G1": 1, "G2": 34, "G3A": 51, "G3B": 83, "G4": 115}
    def tr_flush(self, path):
        p = self.trp.pop(path[0], None)
        if p is None: return
        l = self.lab("tr")
        self.e("s_waitcnt lgkmcnt(0)")
        self.e(f"s_cmp_lg_u32 s{sLAY}, {int(self.opt['trace'])}"); self.e(f"s_cbranch_scc1 {l}")
        for k in range(3):
            if path[0] == "X": i = p[1] * 3 + k; reg = 233 + i // 64
            else: i = (self.PH0[p[0]] + p[1]) * 3 + k; reg = 228 + i // 64
            self.e(f"v_writelane_b32 v{reg}, s{96 + 2 * k}, {i % 64}")
        self.label(l)
    def pb(self, path, name, vm=None, lgkm=None):
        tr = self.opt.get("trace") is not None
        if tr:
            if path[0] not in self.trp: self.e("s_waitcnt lgkmcnt(0)")
            self.tr_flush(path)
            self.e("s_memtime s[96:97]")
            lgkm = None
        self.wait(vm, lgkm)
        if tr: self.e("s_memtime s[98:99]")
        self.bar(path, name)
        if tr:
            self.e("s_memtime s[100:101]")
            self.trp[path[0]] = name
    def tr_dump(self, grp):
        if self.opt.get("trace") is None: return
        e = self.e; l = self.lab("td")
        e(f"s_cmp_lg_u32 s{sLAY}, {int(self.opt['trace'])}"); e(f"s_cbranch_scc1 {l}")
        e(f"s_lshl_b32 s{sT}, s2, 3"); e(f"s_add_u32 s{sT}, s{sT}, s{sLW}"); e(f"s_add_u32 s{sT}, s{sT}, {0 if grp == 'X' else 4}"); e(f"s_lshl_b32 s{sT}, s{sT}, 11"); e(f"s_add_u32 s{sT}, s{sT}, {WS_TS + MB}")
        e(f"v_lshrrev_b32 v{vF0}, 2, v{vL16}")
        for k in range(2 if grp == "X" else 7):
            e(f"buffer_store_dword v{(233 if grp == 'X' else 228) + k}, v{vF0}, s[{sWS}:{sWS+3}], s{sT} offen offset:{256 * k}")
        self.label(l)
    def wait(self, vm=None, lgkm=None):
        p = []
        if vm is not None:
            assert vm <= 63
            p.append(f"vmcnt({vm})")
        if lgkm is not None: p.append(f"lgkmcnt({lgkm})")
        if p: self.e("s_waitcnt " + " ".join(p))
    def ts(self, k):
        sp = self.opt.get("spin")
        if sp:
            kk, ly, tk = [int(x) for x in sp.split("_")]
            if k == 15: self.e("s_memrealtime s[100:101]"); self.e("s_waitcnt lgkmcnt(0)")
            if k == kk:
                l, l2 = self.lab("sp"), self.lab("sp")
                self.e(f"s_cmp_lg_u32 s{sLAY}, {ly}"); self.e(f"s_cbranch_scc1 {l2}")
                self.label(l)
                self.e("s_memrealtime s[98:99]"); self.e("s_waitcnt lgkmcnt(0)"); self.e("s_sub_u32 s98, s98, s100")
                self.e(f"s_cmp_lt_u32 s98, {tk}"); self.e(f"s_cbranch_scc1 {l}")
                self.label(l2)
        if self.opt.get("ts"):
            self.e(f"s_memrealtime s[{sTS}:{sTS+1}]")
            self.e(f"s_lshl_b32 s{sT3}, s{sLAY}, 5")
            self.e(f"s_add_u32 m0, s{sT3}, {k}")
            self.e("s_waitcnt lgkmcnt(0)")
            self.e(f"v_writelane_b32 v{vTS}, s{sTS}, m0")
    def tsc(self, k):
        if self.opt.get("ts"):
            self.e(f"s_memtime s[{sTS}:{sTS+1}]")
            self.e(f"s_lshl_b32 s{sT3}, s{sLAY}, 5")
            self.e(f"s_add_u32 m0, s{sT3}, {k}")
            self.e("s_waitcnt lgkmcnt(0)")
            self.e(f"v_writelane_b32 v{vTS}, s{sTS}, m0")

    def lanes(self, vL, vG=None, vI=None):
        self.e(f"v_lshrrev_b32 v{vL}, 4, v{vL16}")
        if vG is not None: self.e(f"v_lshrrev_b32 v{vG}, 8, v{vL16}")
        if vI is not None: self.e(f"v_and_b32 v{vI}, 15, v{vL}")

    def store(self, instr):
        l1, l2 = self.lab("st"), self.lab("st")
        return [f"s_cmp_eq_u32 s{sMODE}, 0", f"s_cbranch_scc1 {l1}", instr + " sc0 sc1", f"s_branch {l2}", f"@{l1}", instr, f"@{l2}"]

    def emit(self, seq):
        for x in seq:
            if isinstance(x, (list, tuple)): self.emit(x)
            elif x.startswith("@"): self.label(x[1:])
            elif x.startswith("."): self.a.raw("    " + x)
            elif x.startswith("#"): self.a.raw(x)
            else: self.e(x)

    @staticmethod
    def FG(kind): return (sFl, kind * 2048)
    @staticmethod
    def FL(line, off): return (sFL, line * 2048 + off)
    def wg_flag(self, fa):
        e = self.e; loc = fa[0] == sFL
        if loc: e(f"s_lshr_b32 s{sT}, s2, 5"); e(f"s_lshl_b32 s{sT}, s{sT}, 2")
        else: e(f"s_lshl_b32 s{sT}, s{sN4}, 2")
        e(f"s_add_u32 s{sT}, s{sT}, s{fa[0]}")
        e(f"v_mov_b32 v{vF0}, {fa[1]}"); e(f"v_mov_b32 v{vF1}, 0x01010101")
        e("s_mov_b64 exec, 1")
        ins = f"buffer_store_dword v{vF1}, v{vF0}, s[{sWS}:{sWS+3}], s{sT} offen"
        self.emit(self.store(ins) if loc else [ins + " sc0 sc1"])
        e("s_mov_b64 exec, -1")
    def wg_flags(self, fg, fl):
        self.wg_flag_if(2, fl)
        if fg is not None: self.wg_flag_if(3, fg)
    def wg_flag_if(self, lw, fa):
        l = self.lab("wf")
        self.e(f"s_cmp_lg_u32 s{sLW}, {lw}"); self.e(f"s_cbranch_scc1 {l}")
        self.wg_flag(fa)
        self.label(l)
    def fl_addr(self, fa, nl):
        lim = f"s{nl[1]}" if isinstance(nl, tuple) else str(4 * (nl - 1))
        return [f"v_lshrrev_b32 v{vF0}, 2, v{vL16}", f"v_min_u32 v{vF0}, {lim}, v{vF0}", f"s_add_u32 s{sT}, s{fa[0]}, {fa[1] & 0xffffffff}"]
    def poll_flags(self, fa, nl):
        lp, ld = self.lab("poll"), self.lab("pd")
        self.emit(self.fl_addr(fa, nl))
        self.e(f"s_mov_b32 s{sT2}, {POLL}")
        self.label(lp)
        self.e(f"buffer_load_dword v{vF1}, v{vF0}, s[{sWS}:{sWS+3}], s{sT} offen sc0 sc1")
        self.e("s_waitcnt vmcnt(0)")
        self.e(f"v_cmp_ne_u32 vcc, 0x01010101, v{vF1}")
        self.e(f"s_cbranch_vccz {ld}")
        if self.opt.get("psleep", 1): self.e(f"s_sleep {int(self.opt.get('psleep', 1))}")
        self.e(f"s_sub_u32 s{sT2}, s{sT2}, 1")
        self.e(f"s_cmp_lg_u32 s{sT2}, 0")
        self.e(f"s_cbranch_scc1 {lp}")
        self.label(ld)
    def apoll_issue(self, vm, fa, nl, vP):
        self.emit(self.fl_addr(fa, nl))
        self.e(f"buffer_load_dword v{vP}, v{vF0}, s[{sWS}:{sWS+3}], s{sT} offen sc0 sc1"); vm.issue("ap")
    def apoll_check(self, vm, fa, nl, vP, skip=()):
        e = self.e; l = self.lab("ap")
        self.wait(vm.need("ap"))
        e(f"v_cmp_ne_u32 vcc, 0x01010101, v{vP}")
        e(f"s_cbranch_vccz {l}")
        for r, v in skip:
            e(f"s_cmp_eq_u32 s{r}, {v}"); e(f"s_cbranch_scc1 {l}")
        self.poll_flags(fa, nl)
        self.label(l)
    def round_bf16(self, v): return [f"v_cvt_pk_bf16_f32 v{v}, v{v}, v{v}", f"v_lshlrev_b32 v{v}, 16, v{v}"]
    def finish_stats(self, vs, vq):
        o = [f"v_mul_f32 v{vs}, 0x3a800000, v{vs}", f"v_mul_f32 v{vq}, 0x3a800000, v{vq}",
             f"v_fma_f32 v{vq}, -v{vs}, v{vs}, v{vq}", f"v_max_f32 v{vq}, 0, v{vq}"]
        o += self.round_bf16(vs) + self.round_bf16(vq)
        o += [f"v_add_f32 v{vq}, 0x{EPS_BITS:08x}, v{vq}"] + self.round_bf16(vq)
        o += [f"v_sqrt_f32 v{vq}, v{vq}", "s_nop 0"] + self.round_bf16(vq)
        o += [f"v_rcp_f32 v{vq}, v{vq}", "s_nop 0"]
        return o
    def xred(self, regs, tmps, op="v_add_f32", steps=("v_permlane16_swap_b32", "v_permlane32_swap_b32")):
        o = []
        for sw in steps:
            o += [f"v_mov_b32 v{t}, v{v}" for v, t in zip(regs, tmps)]
            o += ["s_nop 1"]
            o += [f"{sw} v{v}, v{t}" for v, t in zip(regs, tmps)]
            o += [f"{op} v{v}, v{v}, v{t}" for v, t in zip(regs, tmps)]
        return o

    def mix(self, dmas, side):
        if not dmas: return list(side)
        out = []; n = len(dmas); k = 0
        for i, d in enumerate(dmas):
            out.append(d)
            want = (len(side) * (i + 1)) // n
            out += side[k:want]; k = want
        return out

    def chunk(self, work, budget):
        out = []; c = 0
        while work and (c + work[0][0] <= budget or not out):
            k, it = work.pop(0); c += k; out.append(it)
        return out
    def atomize(self, instrs):
        tm = [f"s{sT}", f"s{sT2}", f"s{sT3}"]
        def toks(x): return re.findall(r"[a-z_0-9]+", x)
        n = len(instrs); end = list(range(n))
        for i, x in enumerate(instrs):
            if not isinstance(x, str) or not x.startswith("s_") or x.startswith(("s_waitcnt", "s_nop")): continue
            t = toks(x)
            if t[0].startswith("s_cmp"):
                for j in range(i + 1, n):
                    if isinstance(instrs[j], str) and instrs[j].startswith("s_cselect"): end[i] = j; break
                continue
            d = t[1]
            if d not in tm: continue
            for j in range(i + 1, n):
                y = instrs[j]
                if not isinstance(y, str): continue
                ty = toks(y)
                if d in ty[2:]: end[i] = j
                if ty[1:2] == [d] and y.startswith("s_"): break
        out = []; i = 0
        while i < n:
            k = end[i]; j = i
            while j < k:
                j += 1; k = max(k, end[j])
            out.append(instrs[i] if k == i else list(instrs[i:k + 1])); i = k + 1
        return out
    def costed(self, instrs):
        w = []
        for x in self.atomize(instrs):
            if isinstance(x, list) and all(isinstance(y, str) for y in x):
                w.append((sum(1 if y.startswith("v_") else 0.5 for y in x), x)); continue
            if isinstance(x, (list, tuple)): w.append((4, x))
            elif callable(x): w.append((4, x))
            elif x.startswith(("v_exp", "v_rcp", "v_sqrt")): w.append((2, x))
            elif x.startswith("v_"): w.append((1, x))
            else: w.append((0.5, x))
        return w
    def run_period(self, dmas, items):
        seq = self.mix(dmas, items)
        for x in seq:
            if callable(x): x()
            else: self.emit([x])

    def selector(self, S, t0, t1):
        o = [f"v_lshrrev_b32 v{t0}, 4, v{vL16}", f"v_and_b32 v{t1}, 1, v{t0}", f"v_lshlrev_b32 v{t1}, 4, v{t1}", f"v_lshlrev_b32 v{t1}, v{t1}, v{S}",
             f"v_bfe_u32 v{t0}, v{t0}, 1, 3"]
        o = [f"v_mov_b32 v{S}, 0x3f80"] + o
        for d in range(4): o += [f"v_cmp_eq_u32 vcc, {d}, v{t0}", "s_nop 1", f"v_cndmask_b32 v{S+d}, 0, v{t1}, vcc"]
        return o
    def side_flag(self, which):
        e = self.e
        e(f"v_mov_b32 v{vF0}, 0"); e(f"v_mov_b32 v{vF1}, 1"); e(f"s_lshl_b32 s{sT}, s2, 2"); e(f"s_add_u32 s{sT}, s{sT}, {WS_SF + 1024 * which}")
        e("s_mov_b64 exec, 1")
        e(f"buffer_store_dword v{vF1}, v{vF0}, s[{sWS}:{sWS+3}], s{sT} offen sc0 sc1")
        e("s_mov_b64 exec, -1")
    def apoll4_issue(self, vm, which, G):
        self.e(f"s_mov_b32 s{sT}, {WS_SF + 1024 * which}")
        self.e(f"buffer_load_dwordx4 v[{G}:{G+3}], v{vL16}, s[{sWS}:{sWS+3}], s{sT} offen sc0 sc1"); vm.issue("p4")
    def apoll4_check(self, vm, which, G, skip=()):
        e = self.e; l = self.lab("a4")
        self.wait(vm.need("p4"))
        for r, v in skip:
            e(f"s_cmp_eq_u32 s{r}, {v}"); e(f"s_cbranch_scc1 {l}")
        e(f"v_and_b32 v{G}, v{G}, v{G+1}"); e(f"v_and_b32 v{G+2}, v{G+2}, v{G+3}"); e(f"v_and_b32 v{G}, v{G}, v{G+2}")
        e(f"v_cmp_ne_u32 vcc, 1, v{G}")
        e(f"s_cbranch_vccz {l}")
        self.poll4(WS_SF + 1024 * which, None, G)
        self.label(l)

    def poll4(self, off, T0, G):
        e = self.e
        lp, ld = self.lab("p4"), self.lab("p4")
        e(f"s_mov_b32 s{sT}, {off}"); e(f"s_mov_b32 s{sT2}, {POLL}")
        self.label(lp)
        e(f"buffer_load_dwordx4 v[{G}:{G+3}], v{vL16}, s[{sWS}:{sWS+3}], s{sT} offen sc0 sc1")
        e("s_waitcnt vmcnt(0)")
        e(f"v_and_b32 v{G}, v{G}, v{G+1}"); e(f"v_and_b32 v{G+2}, v{G+2}, v{G+3}"); e(f"v_and_b32 v{G}, v{G}, v{G+2}")
        e(f"v_cmp_ne_u32 vcc, 1, v{G}")
        e(f"s_cbranch_vccz {ld}")
        e("s_sleep 1"); e(f"s_sub_u32 s{sT2}, s{sT2}, 1"); e(f"s_cmp_lg_u32 s{sT2}, 0"); e(f"s_cbranch_scc1 {lp}")
        self.label(ld)

    def grp(self, vm, tag, pre, ins, post=()):
        def f():
            vm.issue(tag); self.emit(list(pre) + [ins] + list(post))
        return f

    def w_unit(self, n, P):
        n = n % 132; slot = (n % 6) * WSLOT; tag = ("W", n)
        def lds(srd, pats, so): return [f"buffer_load_dwordx4 v{p}, s[{srd}:{srd+3}], s{so} offen{f' offset:{1024 * i}' if i else ''} lds" for i, p in enumerate(pats)]
        def adv(inc, msk): return [f"s_add_u32 s{sRw}, s{sRw}, {inc}", f"s_and_b32 s{sRw}, s{sRw}, {msk}"]
        def sinc(order, st):
            if st == 31: return []
            d = 1 if st % 2 == 0 else (2 * (uord(order[st // 2 + 1]) - uord(order[st // 2])) - 1) % 32
            return adv(d * 2048, 0xffff)
        ident = list(range(16))
        if n < 32:
            init = [f"s_lshl_b32 s{sRw}, s{self.rot0}, 12"] if n == 0 else []
            return tag, f"s_add_u32 m0, s{sM3}, {slot}", init + [f"s_mul_i32 s{sD0}, s{sRw}, 96"], lds(sQKV, P["g1"], sD0), sinc(ident, n)
        if n < 40:
            init = [f"s_lshl_b32 s{sRw}, s{sWM}, 1", f"s_add_u32 s{sRw}, s{sN4}, s{sRw}", f"s_and_b32 s{sRw}, s{sRw}, 15", f"s_lshl_b32 s{sRw}, s{sRw}, 17"] if n == 32 else []
            return tag, f"s_add_u32 m0, s{sM4}, {slot}", init, lds(sWO, P["g2"], sRw), adv((5 if n == 35 else 4) << 17, (16 << 17) - 1)
        if n < 72:
            init = [f"s_lshl_b32 s{sRw}, s{sN4}, 12"] if n == 40 else []
            return tag, f"s_add_u32 m0, s{sM4}, {slot}", init + [f"s_mul_i32 s{sD0}, s{sRw}, 112"], lds(sW3A, P["g3a"], sD0), sinc(ident, n - 40)
        if n < 104:
            st = n - 72; init = []
            if st in (0, self.xw0):
                init = [f"s_add_u32 s{sRw}, s{sN4}, {uord(BORD[st // 2])}", f"s_and_b32 s{sRw}, s{sRw}, 15", f"s_lshl_b32 s{sRw}, s{sRw}, 12"]
                if st & 1: init.append(f"s_add_u32 s{sRw}, s{sRw}, 2048")
            ld = lds(sW3B, P["g3b"][:2], sD0) + [f"buffer_load_dwordx4 v{P['g3b'][2]}, s[{sWS}:{sWS+3}], s{sRw} offen offset:2048 lds"]
            return tag, f"s_add_u32 m0, s{sM3}, {slot}", init + [f"s_mul_i32 s{sD0}, s{sRw}, 112"], ld, sinc(BORD, st)
        u = n - 104
        if u < 24:
            p = u & 7; c = u >> 3
            colA = 224 * p + (96 if p & 1 else 0); colF = 224 * p + (32 if p & 1 else 128)
            row = [colA, colA + 32, colF][c]; base = sB6 if c < 2 else sB7
        else:
            row = 448 * (u - 24) + 192; base = sB7
        pre = []; post = []
        if u == 24:
            pre = [f"v_add_u32 v{P['g4'][i]}, {i * 4 * 2048}, v{P['g4'][i]}" for i in range(1, 4)] + [f"s_mul_i32 s{sD0}, s{sWN}, {12 * 2048}", f"s_sub_u32 s{sB7}, s{sB7}, s{sD0}"]
        if u == 27:
            post = [f"v_subrev_u32 v{P['g4'][i]}, {i * 4 * 2048}, v{P['g4'][i]}" for i in range(1, 4)] + [f"s_mul_i32 s{sD0}, s{sWN}, {12 * 2048}", f"s_add_u32 s{sB7}, s{sB7}, s{sD0}"]
        return tag, f"s_add_u32 m0, s{sM4}, {slot}", pre + [f"s_add_u32 s{sD0}, s{base}, {row * 2048}"], lds(sW2, P["g4"], sD0), post

    def w_start(self, n, lim): self.wn = n; self.wlim = lim; self.wi = 0
    def w_take(self, vm, P, units, freed, extra=0):
        out = []; fresh = True; left = None
        while True:
            if self.wn - 6 > freed or self.wn >= self.wlim: break
            tag, m0, setup, ld, adv = self.w_unit(self.wn, P)
            if left is None: left = units * len(ld) + extra
            if left == 0: break
            i = self.wi; pre = []
            if i == 0: pre = (setup[:-1] + [m0, setup[-1]]) if setup else [m0, "s_nop 0"]
            elif fresh: pre = [m0, "s_nop 0"]
            out.append(self.grp(vm, tag if i == len(ld) - 1 else (tag, i), pre, ld[i], adv if i == len(ld) - 1 else ()))
            fresh = False; left -= 1; self.wi += 1
            if self.wi == len(ld): self.wi = 0; self.wn += 1
        return out
    def hasb(self, s): return (not self.b2) or (s & 1) == 1
    def kneed(self, base, s, last):
        return [self.wneed(n) for n in range(base + s + 1, base + s + (3 if self.b2 else 2)) if n <= last]
    def kfree(self, base, s): return base + (s if self.hasb(s) else s - 1)
    def wneed(self, n):
        assert n < self.wn, (n, self.wn)
        return ("W", n % 132)

    def a_issue(self, vm, tag, slot, vA, glit=None, inc=None, part=None, srd=sWS, pats=None, lbase=None):
        pats = pats or [vA] * 4
        lb = LA + slot * 16384 if lbase is None else lbase
        so = sRa if glit is None else sDa
        g = []
        for i in (range(4) if part is None else (2 * part, 2 * part + 1)):
            pre = []
            if i == 0 or (part == 1 and i == 2):
                pre = [f"s_add_u32 m0, s{sM4}, {lb}", f"s_mov_b32 s{sDa}, {glit}" if glit is not None else "s_nop 0"]
            off = f" offset:{1024 * i}" if i else ""
            g.append(self.grp(vm, tag, pre, f"buffer_load_dwordx4 v{pats[i]}, s[{srd}:{srd+3}], s{so} offen{off} lds", inc if (i == 3 and inc) else ()))
        return g
    def ainc(self, d, stride=16384):
        return [f"s_add_u32 s{sRa}, s{sRa}, {(d % 16) * stride}", f"s_and_b32 s{sRa}, s{sRa}, {16 * stride - 1}"]

    def reloc(self, dst, src, mask, sidx, off, size):
        if not self.opt.get("rel"):
            if dst == src: return []
            return [f"s_mov_b32 s{dst+i}, s{src+i}" for i in range(4)]
        o = [f"s_add_u32 s{sT}, s{sWS}, {off}", f"s_addc_u32 s{sT2}, s{sWS+1}, 0", f"s_lshr_b32 s{sT3}, {mask}, s{sidx}", f"s_and_b32 s{sT3}, s{sT3}, 1",
             f"s_cselect_b32 s{dst}, s{sT}, s{src}", f"s_cselect_b32 s{dst+1}, s{sT2}, s{src+1}"]
        if dst != src: o += [f"s_mov_b32 s{dst+2}, {size}", f"s_mov_b32 s{dst+3}, 0x00020000"]
        return o
    def reloc13(self, dst, mask):
        return [f"s_lshl_b32 s{sD1}, s{sWM}, 23", f"s_add_u32 s{sD1}, s{sD1}, {WS_C13 + 256}"] + self.reloc(dst, sW13, mask, sNT, f"s{sD1}", 1024 * 7168)
    def reloc2(self): return self.reloc(sW2, sW2, 0x0c0c, sN4, WS_C2 + 256, 0)

    def swz128(self, t0, t1, t2):
        return [f"v_lshrrev_b32 v{t0}, 7, v{vL16}", f"v_and_b32 v{t1}, 0x70, v{vL16}",
                f"v_and_b32 v{t2}, 6, v{t0}", f"v_lshlrev_b32 v{t2}, 4, v{t2}", f"v_xor_b32 v{t1}, v{t1}, v{t2}"]
    def pat_g1(self, P, t0, t1, t2, first):
        o = self.swz128(t0, t1, t2)
        if first: o += [f"v_and_b32 v{t2}, 4, v{t0}", f"v_add_u32 v{t0}, v{t0}, v{t2}"]
        o += [f"v_mul_u32_u24 v{t0}, 6144, v{t0}", f"v_add3_u32 v{t0}, v{t0}, v{t1}, s{sB1}"]
        for i in range(3):
            o += [f"s_lshr_b32 s{sT}, s{sM3}, 10", f"s_add_u32 s{sT}, s{sT}, {i}", f"s_and_b32 s{sT2}, s{sT}, 3"]
            if first: o += [f"s_and_b32 s{sT3}, s{sT2}, 1", f"s_lshl_b32 s{sT3}, s{sT3}, 4", f"s_and_b32 s{sT2}, s{sT2}, 2", f"s_lshl_b32 s{sT2}, s{sT2}, 1", f"s_add_u32 s{sT2}, s{sT2}, s{sT3}"]
            else: o += [f"s_lshl_b32 s{sT2}, s{sT2}, 3"]
            o += [f"s_mul_i32 s{sT2}, s{sT2}, 6144", f"s_lshr_b32 s{sT}, s{sT}, 2", f"s_lshl_b32 s{sT}, s{sT}, 11", f"s_add_u32 s{sT}, s{sT}, s{sT2}",
                  f"s_sub_u32 s{sT}, s{sT}, {1024 * i}", f"v_add_u32 v{P['g1'][i]}, s{sT}, v{t0}"]
        return o
    def pat_128(self, regs, pitch, t0, t1, t2, sb):
        o = self.swz128(t0, t1, t2) + [f"v_mul_u32_u24 v{t0}, {pitch}, v{t0}", f"v_add3_u32 v{regs[0]}, v{t0}, v{t1}, s{sb}"]
        for i in range(1, len(regs)): o.append(f"v_add_u32 v{regs[i]}, {i * (8 * pitch - 1024)}, v{regs[0]}")
        return o
    def pat_g3b(self, regs, t0, t1, t2):
        return self.pat_128(regs[:2], 7168, t0, t1, t2, sB4) + [f"v_add_u32 v{regs[2]}, s{sB5}, v{vL16}"]
    def pat_256(self, regs, pitch, t0, t1, t2, sb=None):
        o = [f"v_and_b32 v{t1}, 0xf0, v{vL16}", f"v_lshrrev_b32 v{t0}, 8, v{vL16}", f"v_lshlrev_b32 v{t2}, 5, v{t0}", f"v_xor_b32 v{t1}, v{t1}, v{t2}",
             f"v_mul_u32_u24 v{t0}, {pitch}, v{t0}"] + ([f"v_add_u32 v{t0}, s{sb}, v{t0}"] if sb else []) + [f"v_add_u32 v{regs[0]}, v{t0}, v{t1}",
             f"v_xor_b32 v{t1}, 0x80, v{t1}", f"v_add_u32 v{t0}, v{t0}, v{t1}", f"v_add_u32 v{regs[1]}, {4 * pitch - 1024}, v{t0}"]
        for i in (2, 3): o.append(f"v_add_u32 v{regs[i]}, {8 * pitch - 2048}, v{regs[i-2]}")
        return o
    def bases(self):
        e = self.e
        e(f"s_lshl_b32 s{sB1}, s{sN4}, 7")
        e(f"s_lshl_b32 s{sT}, s{sWN}, 16"); e(f"s_add_u32 s{sB2}, s{sB1}, s{sT}")
        e(f"s_mul_i32 s{sT}, s{sWN}, {16 * 7168}"); e(f"s_mul_i32 s{sT2}, s{sNT}, 448"); e(f"s_add_u32 s{sT}, s{sT}, s{sT2}")
        e(f"s_and_b32 s{sT2}, s{sNT}, 1"); e(f"s_mul_i32 s{sT2}, s{sT2}, 192")
        e(f"s_add_u32 s{sB3}, s{sT}, s{sT2}"); e(f"s_sub_u32 s{sB4}, s{sT}, s{sT2}"); e(f"s_add_u32 s{sB4}, s{sB4}, 256")
        e(f"s_lshl_b32 s{sT}, s{sWM}, 4"); e(f"s_add_u32 s{sT}, s{sT}, s{sNT}"); e(f"s_lshl_b32 s{sT}, s{sT}, 6"); e(f"s_add_u32 s{sT}, s{sT}, s{sWN}")
        e(f"s_lshl_b32 s{sT}, s{sT}, 10"); e(f"s_add_u32 s{sB5}, s{sT}, {WS_RT - 2048}")
        e(f"s_and_b32 s{sT}, s{sN4}, 1"); e(f"s_mul_i32 s{sT}, s{sT}, {1792 * 2048}"); e(f"s_lshr_b32 s{sT2}, s{sN4}, 1"); e(f"s_lshl_b32 s{sT2}, s{sT2}, 8")
        e(f"s_add_u32 s{sT}, s{sT}, s{sT2}"); e(f"s_lshl_b32 s{sT2}, s{sWN}, 15"); e(f"s_add_u32 s{sT}, s{sT}, s{sT2}")
        e(f"s_lshl_b32 s{sT2}, s{sWM}, 16"); e(f"s_add_u32 s{sB7}, s{sT}, s{sT2}"); e(f"s_add_u32 s{sB6}, s{sB7}, s{sT2}")

    def step(self, path, name, mf, reads, vmw=None, bar=True, last=None, extra=None, lg=0):
        self.wait(vmw, lg)
        if bar: self.bar(path, name)
        self.al()
        oth = [[r] for r in reads]
        if last is None: last = len(reads) - 1
        sl = spread(len(reads), 0, last)
        if extra:
            for s, x in extra:
                oth.append(x + [".p2align 3"]); sl.append(s)
        self.emit(place(mf, oth, sl))

    def looped(self, path, nsteps, body, fn, pre=1):
        trips = (nsteps - pre - 1) // body
        l = self.lab("loop")
        self.e(f"s_mov_b32 s{sCnt}, {trips}")
        for s in range(pre): fn(s, None)
        self.emit([".p2align 3", "#LOOP"])
        self.label(l)
        nb0 = len(self.bars.get(path, []))
        for s in range(pre, pre + body): fn(s, "cnt" if s == pre + body - 1 else None)
        self.e(f"s_cbranch_scc1 {l}")
        self.emit(["#ENDLOOP"])
        names = self.bars[path][nb0:]
        for t in range(1, trips):
            for nm in names: self.bars[path].append((nm[0], nm[1] + t * body))
        for s in range(pre + trips * body, nsteps): fn(s, None)

    CNT = [f"s_sub_u32 s{sCnt}, s{sCnt}, 1", f"s_cmp_lg_u32 s{sCnt}, 0"]

    def xcc_word(self, r):
        return [f"s_getreg_b32 s{r}, hwreg(HW_REG_XCC_ID, 0, 4)"] + ([f"s_lshr_b32 s{r}, s2, 7"] if self.opt.get("slow") else []) + \
               [f"s_mul_i32 s{sT}, s{r}, s{r}", f"s_lshl_b32 s{sT}, s{sT}, 15", f"s_lshl_b32 s{r}, s{r}, 6", f"s_add_u32 s{r}, s{r}, s{sT}", f"s_add_u32 s{r}, s{r}, 1"]

    def x_prep(self):
        e = self.e
        l3, ld = self.lab("xp"), self.lab("xp")
        D = 0; AC = 64; T = 80
        vO, vS0, vS1, vS2 = 100, 235, 102, 103
        lz = self.lab("xz")
        e(f"s_cmp_lg_u32 s{sLW}, 0"); e(f"s_cbranch_scc1 {lz}")
        e(f"v_mov_b32 v{vS2}, 0"); e(f"v_lshrrev_b32 v{vO}, 2, v{vL16}")
        e(f"s_lshl_b32 s{sT}, s2, 8"); e(f"s_add_u32 s{sT}, s{sT}, {WS_FL}")
        e(f"buffer_store_dword v{vS2}, v{vO}, s[{sWS}:{sWS+3}], s{sT} offen sc0 sc1")
        e(f"v_lshlrev_b32 v{vO}, 6, v{vL16}")
        e(f"s_lshl_b32 s{sT}, s2, 2"); e(f"s_add_u32 s{sT}, s{sT}, {WS_SF}")
        e("s_mov_b64 exec, 15")
        e(f"buffer_store_dword v{vS2}, v{vO}, s[{sWS}:{sWS+3}], s{sT} offen sc0 sc1")
        e("s_mov_b64 exec, -1")
        self.label(lz)
        e(f"s_getpc_b64 s[{sAT}:{sAT+1}]")
        self.label("K_pc")
        e(f"s_mov_b32 s{sAT+2}, K_end-K_pc")
        e(f"s_mov_b32 s{sAT+3}, 0x00020000")
        e(f"s_lshr_b32 s{sT}, s2, 3"); e(f"s_lshl_b32 s{sT}, s{sT}, 2"); e(f"s_add_u32 s{sT}, s{sT}, s{sLW}"); e(f"s_lshl_b32 s{sT}, s{sT}, 10")
        e(f"v_lshlrev_b32 v{vO}, 3, v{vL16}")
        e("s_mov_b64 exec, 0xff")
        e(f"buffer_load_dword v{vS0}, v{vO}, s[{sAT}:{sAT+3}], s{sT} offen")
        e("s_mov_b64 exec, -1")
        lz = self.lab("xz")
        e(f"s_cmp_lg_u32 s{sLW}, 0"); e(f"s_cbranch_scc1 {lz}")
        self.emit(self.xcc_word(sD0))
        e(f"v_mov_b32 v{vF1}, s{sD0}"); e(f"s_and_b32 s{sT}, s2, 7"); e(f"s_lshl_b32 s{sT}, s{sT}, 5"); e(f"v_mov_b32 v{vF0}, 0")
        e("s_waitcnt vmcnt(1)")
        e("s_mov_b64 exec, 1")
        e(f"buffer_atomic_add v{vF1}, v{vF0}, s[{sDBG}:{sDBG+3}], s{sT} offen sc1")
        e("s_mov_b64 exec, -1")
        self.label(lz)

    def out_addr(self, T0, T1, sd):
        return [f"v_and_b32 v{T0}, 0xf0, v{vL16}", f"v_lshlrev_b32 v{T0}, 7, v{T0}",
                f"v_and_b32 v{T1}, 0x100, v{vL16}", f"v_lshrrev_b32 v{T1}, 3, v{T1}", f"v_add_u32 v{T0}, v{T0}, v{T1}",
                f"v_and_b32 v{T1}, 0x200, v{vL16}", f"v_lshrrev_b32 v{T1}, 5, v{T1}", f"v_add_u32 v{T0}, v{T0}, v{T1}",
                f"s_lshl_b32 s{sd}, s{sMT}, 18", f"s_lshl_b32 s{sT2}, s{sWM}, 17", f"s_add_u32 s{sd}, s{sd}, s{sT2}",
                f"s_lshl_b32 s{sT2}, s{sN4}, 7", f"s_add_u32 s{sd}, s{sd}, s{sT2}", f"s_lshl_b32 s{sT2}, s{sWN}, 6", f"s_add_u32 s{sd}, s{sd}, s{sT2}"]

    def waddr128(self, dst, sel, t0, t1, t2, nt=2):
        e = self.e
        e(f"v_lshrrev_b32 v{t0}, 6, v{vL16}")
        e(f"v_lshrrev_b32 v{t1}, 1, v{t0}"); e(f"v_and_b32 v{t1}, 3, v{t1}")
        e(f"s_lshl_b32 s{sT}, s{sel}, 1")
        e(f"v_xor_b32 v{t1}, s{sT}, v{t1}")
        e(f"v_lshlrev_b32 v{t0}, 7, v{t0}")
        e(f"v_lshl_add_u32 v{t0}, v{t1}, 5, v{t0}")
        e(f"v_and_b32 v{t1}, 0x30, v{vL16}"); e(f"v_lshrrev_b32 v{t1}, 1, v{t1}")
        e(f"v_add_u32 v{dst}, v{t0}, v{t1}")
        e(f"v_xor_b32 v{dst+1}, 32, v{dst}")
        for t in range(2): e(f"v_add_u32 v{dst+2+t}, {3 * WSLOT}, v{dst+t}")

    def waddr256(self, dst, xs, sbase, t0, t1):
        o = [f"v_lshrrev_b32 v{t0}, 6, v{vL16}", f"v_and_b32 v{t1}, 7, v{t0}", f"v_xor_b32 v{t1}, s{sbase}, v{t1}",
             f"v_lshlrev_b32 v{t0}, 8, v{t0}", f"v_lshl_add_u32 v{t0}, v{t1}, 5, v{t0}",
             f"v_and_b32 v{t1}, 0x30, v{vL16}", f"v_lshrrev_b32 v{t1}, 1, v{t1}", f"v_add_u32 v{t0}, v{t0}, v{t1}"]
        for t in range(4): o.append(f"v_xor_b32 v{dst+t}, {xs[t] << 5}, v{t0}")
        for t in range(4): o.append(f"v_add_u32 v{dst+4+t}, {3 * WSLOT}, v{dst+t}")
        return o

    def x_g1(self):
        e = self.e; P = "X"
        ACCQ, ACCK, ACCV, XF, WF = 0, 32, 72, 112, 152
        vXa, vWa = 200, 202
        vL, vG, vI, vT0, vT1, vT2, vT3, vOA = 206, 207, 208, 209, 210, 211, 212, 213
        def aq(j, ab): return ACCQ + ((j - 1) * 2 + ab) * 4
        def ak(j, ab): return ACCK + (j * 2 + ab) * 4
        def av(j, ab): return ACCV + (j * 2 + ab) * 4
        def xf(b, j): return XF + b * 20 + j * 4
        def wf(b, seg, ab): return WF + b * 24 + (seg * 2 + ab) * 4
        self.lanes(vL, vG, vI)
        l2, l3 = self.lab("g1"), self.lab("g1")
        e(f"s_lshl_b32 s{sT}, s{sWM}, 13"); e(f"s_add_u32 s{sT}, s{sT}, {LA}")
        e(f"s_cmp_lg_u32 s{sLAY}, 0"); e(f"s_cbranch_scc1 {l2}")
        e(f"v_and_b32 v{vT1}, 6, v{vI}"); e(f"v_xor_b32 v{vT1}, v{vT1}, v{vG}"); e(f"v_lshlrev_b32 v{vT1}, 4, v{vT1}")
        e(f"v_lshl_add_u32 v{vXa}, v{vI}, 7, v{vT1}"); e(f"v_xor_b32 v{vXa+1}, 64, v{vXa}")
        e(f"s_branch {l3}")
        self.label(l2)
        e(f"v_mov_b32 v{vXa}, v{vL16}"); e(f"v_add_u32 v{vXa+1}, 1024, v{vL16}")
        self.label(l3)
        e(f"v_add_u32 v{vXa}, s{sT}, v{vXa}"); e(f"v_add_u32 v{vXa+1}, s{sT}, v{vXa+1}")
        self.waddr128(vWa, sWN, vT0, vT1, vT2)
        e(f"s_add_u32 s{sGa}, s{sTile}, s{sOo}")
        SEL, vQa, vVa, vCq, vCv, ONES = 214, 218, 219, 220, 221, 222
        sM = sAT; sOdd = sAT + 8; sInv = sAT + 10
        e(f"v_lshlrev_b32 v{vT0}, 2, v{vG}"); e(f"v_sub_u32 v{vT0}, v{vI}, v{vT0}")
        for r in range(4): e(f"v_cmp_le_i32 s[{sM+2*r}:{sM+2*r+1}], {r}, v{vT0}")
        e(f"v_and_b32 v{vT1}, 1, v{vI}"); e(f"v_cmp_eq_u32 s[{sOdd}:{sOdd+1}], 1, v{vT1}")
        e(f"v_sub_u32 v{vT0}, v{vT0}, v{vT1}")
        e(f"v_mov_b32 v{vT3}, 0x0c0c0c0c")
        for k in range(2):
            e(f"v_mov_b32 v{vT1}, {hex([0x0c0c0100, 0x0c0c0302][k])}"); e(f"v_mov_b32 v{vT2}, {hex([0x01000c0c, 0x03020c0c][k])}")
            e(f"v_cmp_le_i32 vcc, {2 * k}, v{vT0}")
            e(f"v_cndmask_b32 v{vT1}, v{vT1}, v{vT2}, s[{sOdd}:{sOdd+1}]")
            e(f"s_not_b64 s[{sInv+2*k}:{sInv+2*k+1}], vcc")
            e(f"v_cndmask_b32 v{SEL+k}, v{vT1}, v{vT3}, vcc")
            e(f"v_cndmask_b32 v{SEL+2+k}, v{vT3}, v{vT1}, vcc")
        e(f"s_or_b32 s{sT}, s{sMT}, s{sWM}"); e(f"s_cmp_eq_u32 s{sT}, 0")
        for k in range(2): e(f"s_cselect_b64 s[{sInv+2*k}:{sInv+2*k+1}], s[{sInv+2*k}:{sInv+2*k+1}], 0")
        e(f"s_lshl_b32 s{sT}, s{sWM}, 8"); e(f"s_add_u32 s{sT}, s{sT}, {L_ST}")
        e(f"v_lshlrev_b32 v{vQa}, 2, v{vI}"); e(f"v_add_u32 v{vQa}, s{sT}, v{vQa}")
        e(f"v_lshlrev_b32 v{vVa}, 4, v{vG}"); e(f"v_add_u32 v{vVa}, s{sT}, v{vVa}")
        e(f"s_lshl_b32 s{sT}, s{sWN}, 7"); e(f"s_add_u32 s{sT}, s{sT}, {L_CSQ}")
        e(f"v_lshlrev_b32 v{vCq}, 4, v{vG}"); e(f"v_add_u32 v{vCq}, s{sT}, v{vCq}")
        e(f"v_lshlrev_b32 v{vCv}, 2, v{vI}"); e(f"v_add_u32 v{vCv}, s{sT}, v{vCv}")
        for i in range(4): e(f"v_mov_b32 v{ONES+i}, 0x3f803f80")
        e(f"v_mov_b32 v{vOA}, {L_MODE}")
        self.emit(self.out_addr(vL, vT1, sDa))
        CS, CSV, NMq, RSq, NMv, RSv = 152, 168, 112, 118, 132, 176
        tab = [f"ds_read_b128 v[{CS+4*k}:{CS+4*k+3}], v{vCq} offset:{256 * (k >> 1) + 64 * (k & 1)}" for k in range(4)]
        tab += [f"ds_read_b32 v{NMq+j}, v{vQa} offset:{64 * j}" for j in range(5)]
        tab += [f"ds_read_b32 v{RSq+j}, v{vQa} offset:{576 + 64 * j}" for j in range(5)]
        tab += [f"ds_read_b32 v{CSV+ab}, v{vCv} offset:{512 + 64 * ab}" for ab in range(2)]
        tab += [f"ds_read_b32 v170, v{vOA}"]
        def reads(s):
            b = s & 1; u = s >> 1; sl = s % 6
            xr = [f"ds_read_b128 v[{xf(b,j)}:{xf(b,j)+3}], v{vXa + (s & 1)} offset:{(u % 3) * 18432 + j * 2048}" for j in range(5)]
            wr = []
            for seg in range(3):
                for ab in range(2):
                    r = wf(b, seg, ab); ad = vWa + 2 * (sl // 3) + ab; off = (sl % 3) * WSLOT + seg * 4096
                    wr.append(f"ds_read_b64_tr_b16 v[{r}:{r+1}], v{ad} offset:{off}")
                    wr.append(f"ds_read_b64_tr_b16 v[{r+2}:{r+3}], v{ad} offset:{off + 2048}")
            return wr[0:2] + xr[1:] + wr[2:6] + xr[0:1] + wr[6:]
        def mf(s):
            b = s & 1; m = []; c = "0" if s == 0 else None
            for ab in range(2):
                for j in snake((1, 2, 3, 4), ab): m.append(mfma(aq(j, ab), wf(b, 0, ab), xf(b, j), c))
            for ab in range(2):
                for j in snake((1, 2, 3, 4, 0), ab): m.append(mfma(ak(j, ab), wf(b, 1, ab), xf(b, j), c))
            for ab in range(2):
                for j in snake(range(5), ab): m.append(mfma(av(j, ab), xf(b, j), wf(b, 2, ab), c))
            return m
        lq = self.lab("g1")
        e(f"s_cmp_eq_u32 s{sLAY}, 0"); e(f"s_cbranch_scc1 {lq}")
        e("s_waitcnt vmcnt(0) lgkmcnt(0)"); e("s_barrier")
        self.wg_flags(self.FG(4), self.FL(0, 64))
        self.stats_out(sSTo, 226)
        self.label(lq)
        self.ts(0)
        self.bar(P, ("G1", -1))
        self.ts(1); self.tsc(16)
        self.emit(reads(0))
        def fn(s, ex):
            extra = []
            if ex: extra.append((24, self.CNT))
            if s == 31:
                lr = self.lab("g1"); x = [f"s_cmp_lg_u32 s{sLAY}, 0", f"s_cbranch_scc1 {lr}"]
                for rt in range(4):
                    x += [f"buffer_load_dwordx4 v[{236+4*rt}:{239+4*rt}], v{vL}, s[{sX0}:{sX0+3}], s{sDa} offen", f"s_add_u32 s{sDa}, s{sDa}, {16 * 2048}"]
                extra.append((25, x + [f"@{lr}"]))
            self.step(P, ("G1", s), mf(s), reads(s + 1) if s < 31 else tab, vmw=(0 if s == 3 - (not self.b2) else None), bar=self.hasb(s), last=20, extra=extra)
        self.looped(P, 32, 6, fn)
        self.ts(2); self.tsc(17)
        def pk(op, d, srcs):
            ops = []; sel = []; selhi = []
            for kind, r in srcs:
                if kind == 'p': ops.append(f"v[{r}:{r+1}]"); sel.append(0); selhi.append(1)
                else: ops.append(f"v[{r & ~1}:{(r & ~1) + 1}]"); sel.append(r & 1); selhi.append(r & 1)
            e(f"{op} v[{d}:{d+1}], " + ", ".join(ops) + f" op_sel:[{','.join(map(str, sel))}] op_sel_hi:[{','.join(map(str, selhi))}]")
        e("s_waitcnt lgkmcnt(0)")
        self.al()
        for j in range(5):
            e(f"ds_read_b128 v[{NMv+4*j}:{NMv+4*j+3}], v{vVa} offset:{64 * j}")
            e(f"ds_read_b128 v[{RSv+4*j}:{RSv+4*j+3}], v{vVa} offset:{576 + 64 * j}")
        def pack4(b):
            for i in range(4): e(f"v_cvt_pk_bf16_f32 v{b+i}, v{b+2*i}, v{b+2*i+1}")
        for j in range(1, 5):
            b = aq(j, 0)
            for i in range(4): pk("v_pk_fma_f32", b + 2 * i, [('b', NMq + j), ('p', CS + 2 * i), ('p', b + 2 * i)])
        for j in range(5):
            b = ak(j, 0)
            for i in range(4): pk("v_pk_fma_f32", b + 2 * i, [('b', NMq + j), ('p', CS + 8 + 2 * i), ('p', b + 2 * i)])
        for j in range(1, 5): pack4(aq(j, 0))
        for j in range(5):
            b = ak(j, 0)
            for i in range(4): pk("v_pk_mul_f32", b + 2 * i, [('b', RSq + j), ('p', b + 2 * i)])
        for j in range(5): pack4(ak(j, 0))
        e(f"v_readfirstlane_b32 s{sMODE}, v170")
        e("s_waitcnt lgkmcnt(0)")
        def Sc(j): return aq(j, 1)
        def Sp(j): return ak(j, 1)
        for j in range(1, 5):
            e(mfma(Sc(j), ak(j, 0), aq(j, 0), "0"))
            e(mfma(Sp(j), ak(j - 1, 0), aq(j, 0), "0"))
        VP = [226, 152]
        for j in range(5):
            for ab in range(2):
                c = av(j, ab)
                for r in (0, 2): pk("v_pk_fma_f32", c + r, [('p', NMv + 4 * j + r), ('b', CSV + ab), ('p', c + r)])
        J = range(1, 5)
        for j in J:
            for r in range(4): e(f"v_cndmask_b32 v{Sp(j)+r}, v{Sp(j)+r}, v{Sc(j)+r}, s[{sM+2*r}:{sM+2*r+1}]")
        for j in J:
            e(f"v_cndmask_b32 v{Sp(j)}, v{Sp(j)}, v{Sp(j)+1}, s[{sOdd}:{sOdd+1}]")
            e(f"v_cndmask_b32 v{Sp(j)+1}, v{Sp(j)+2}, v{Sp(j)+3}, s[{sOdd}:{sOdd+1}]")
        e(f"v_mov_b32 v{vT0}, 0xf149f2ca")
        for k in range(2): e(f"v_cndmask_b32 v{Sp(1)+k}, v{Sp(1)+k}, v{vT0}, s[{sInv+2*k}:{sInv+2*k+1}]")
        MX = {j: Sp(j) + 2 for j in J}
        for j in J: e(f"v_max_f32 v{MX[j]}, v{Sp(j)}, v{Sp(j)+1}")
        fill = []
        for j in range(5):
            for ab in range(2):
                c = av(j, ab)
                for r in (0, 2): fill.append((c + r, RSv + 4 * j + r))
        def F(n):
            for _ in range(n):
                d, r = fill.pop(0); pk("v_pk_mul_f32", d, [('p', r), ('p', d)])
        F(2)
        e(f"v_permlane32_swap_b32 v{MX[1]}, v{MX[3]}"); e(f"v_permlane32_swap_b32 v{MX[2]}, v{MX[4]}")
        e(f"v_max_f32 v{MX[1]}, v{MX[1]}, v{MX[3]}"); e(f"v_max_f32 v{MX[2]}, v{MX[2]}, v{MX[4]}")
        F(2)
        e(f"v_permlane16_swap_b32 v{MX[1]}, v{MX[2]}")
        e(f"v_max_f32 v{MX[1]}, v{MX[1]}, v{MX[2]}")
        e(f"v_mov_b32 v{MX[2]}, v{MX[1]}")
        F(2)
        e(f"v_permlane16_swap_b32 v{MX[1]}, v{MX[2]}")
        e(f"v_mov_b32 v{MX[3]}, v{MX[1]}"); e(f"v_mov_b32 v{MX[4]}, v{MX[2]}")
        F(2)
        e(f"v_permlane32_swap_b32 v{MX[1]}, v{MX[3]}"); e(f"v_permlane32_swap_b32 v{MX[2]}, v{MX[4]}")
        sc = f32bits((32 ** -0.5) * 1.4426950408889634)
        for j in J: e(f"v_mul_f32 v{RSq+j}, 0x{sc:08x}, v{RSq+j}")
        for j in J:
            for k in range(2): e(f"v_sub_f32 v{Sp(j)+k}, v{Sp(j)+k}, v{MX[j]}")
        for j in J:
            for k in range(2): e(f"v_mul_f32 v{Sp(j)+k}, v{RSq+j}, v{Sp(j)+k}")
        for j in J:
            for k in range(2): e(f"v_exp_f32 v{Sp(j)+k}, v{Sp(j)+k}")
        self.al()
        F(len(fill))
        for j in J: e(f"v_cvt_pk_bf16_f32 v{Sp(j)}, v{Sp(j)}, v{Sp(j)+1}")
        for j in range(5):
            for ab in range(2):
                c = av(j, ab)
                e(f"v_cvt_pk_bf16_f32 v{VP[ab]+2*j}, v{c}, v{c+1}"); e(f"v_cvt_pk_bf16_f32 v{VP[ab]+2*j+1}, v{c+2}, v{c+3}")
        for j in J:
            for k in range(4): e(f"v_perm_b32 v{Sc(j)+k}, v{Sp(j)}, v{Sp(j)}, v{SEL+k}")
        def OO(j): return 72 + 8 * (j - 1)
        e(f"s_add_u32 s{sT}, s{sGa}, 4096")
        for j in J: e(mfma(aq(j, 0), ONES, Sc(j), "0"))
        for j in J:
            for ab in range(2): e(mfma(OO(j) + 4 * ab, VP[ab] + 2 * (j - 1), Sc(j), "0"))
        for j in J: e(f"v_rcp_f32 v{aq(j,0)}, v{aq(j,0)}")
        for j in J:
            if j == 4: e("s_nop 1")
            for i in range(4): pk("v_pk_mul_f32", OO(j) + 2 * i, [('b', aq(j, 0)), ('p', OO(j) + 2 * i)])
            pack4(OO(j))
            e(f"buffer_store_dwordx4 v[{OO(j)}:{OO(j)+3}], v{vL16}, s[{sWS}:{sWS+3}], s{sGa if j < 3 else sT} offen offset:{2048 * ((j - 1) & 1)} sc0 sc1")
        self.ts(3)

    def silu_group(self, cg, cu, E, RL, I2, O, NM=None, sg=None, su=None):
        o = []
        if NM is not None: o += [f"v_fmac_f32 v{cg+r}, v{NM}, v{sg+r}" for r in range(4)]
        o += [f"v_mul_f32 v{E+r}, v{RL}, v{cg+r}" for r in range(4)]
        if NM is not None: o += [f"v_fmac_f32 v{cu+r}, v{NM}, v{su+r}" for r in range(4)]
        o += [f"v_exp_f32 v{E+r}, v{E+r}" for r in range(4)]
        o += [f"v_mul_f32 v{cg+r}, v{cg+r}, v{cu+r}" for r in range(4)]
        o += [f"v_fma_f32 v{E+r}, v{E+r}, v{I2}, v{I2}" for r in range(4)]
        o += [f"v_rcp_f32 v{E+r}, v{E+r}" for r in range(4)]
        o += [f"v_mul_f32 v{cg+r}, v{cg+r}, v{E+r}" for r in range(4)]
        ab = self.opt.get("abl")
        if ab == 1: o = ["v_nop"] * 24 + ["v_nop", "v_nop"] * 8 if NM is not None else ["v_nop"] * 32
        if ab == 2: o = [x if not x.startswith(("v_exp", "v_rcp")) else "v_nop" for x in o] + ["v_nop"] * 8
        if ab == 3: o = []
        if ab == 4: o = o[:len(o) // 2]
        o += [f"v_cvt_pk_bf16_f32 v{O}, v{cg}, v{cg+1}", f"v_cvt_pk_bf16_f32 v{O+1}, v{cg+2}, v{cg+3}"]
        return o

    def stat_regs(self, MR, NM, RL, I2, t0):
        o = [f"s_lshl_b32 s{sT}, s{sWM}, 9", f"s_add_u32 s{sT}, s{sT}, {L_ST}", f"v_and_b32 v{t0}, 0xf0, v{vL16}", f"v_lshrrev_b32 v{t0}, 1, v{t0}",
             f"v_add_u32 v{t0}, s{sT}, v{t0}"]
        o += [f"ds_read_b64 v[{MR+2*rt}:{MR+2*rt+1}], v{t0} offset:{128*rt}" for rt in range(4)]
        o += ["s_waitcnt lgkmcnt(0)"]
        for rt in range(4):
            o += [f"v_sub_f32 v{NM+rt}, 0, v{MR+2*rt}", f"v_mul_f32 v{RL+rt}, 0xbfb8aa3b, v{MR+2*rt+1}", f"v_mul_f32 v{I2+rt}, v{MR+2*rt+1}, v{MR+2*rt+1}"]
        o += [f"v_rcp_f32 v{I2+rt}, v{I2+rt}" for rt in range(4)] + ["s_nop 0"]
        return o

    def unpack(self, dst, src):
        return [f"v_lshlrev_b32 v{dst}, 16, v{src}", f"v_and_b32 v{dst+1}, 0xffff0000, v{src}"]

    def res_epilogue(self, acc, sX, PK, T, own=False):
        e = self.e
        e(f"s_add_u32 s{sD0}, s{sTile}, s{sX}"); e(f"s_add_u32 s{sD1}, s{sD0}, 4096")
        for rt in range(4):
            for t in range(2):
                c = acc(t, rt)
                e(f"v_cvt_pk_bf16_f32 v{PK+4*rt+2*t}, v{c}, v{c+1}"); e(f"v_cvt_pk_bf16_f32 v{PK+4*rt+2*t+1}, v{c+2}, v{c+3}")
            e(f"buffer_store_dwordx4 v[{PK+4*rt}:{PK+4*rt+3}], v{vL16}, s[{sWS}:{sWS+3}], s{sD0 + (rt >> 1)} offen offset:{2048 * (rt & 1)} sc0 sc1")
        if own:
            e(f"s_and_b32 s{sT}, s{sTile}, 0x3fff"); e(f"s_add_u32 s{sT}, s{sT}, {LA}"); e(f"v_add_u32 v{T}, s{sT}, v{vL16}")
            for rt in range(4): e(f"ds_write_b128 v{T}, v[{PK+4*rt}:{PK+4*rt+3}] offset:{2048 * rt}")
        S = T; Q = T + 4; ON = T + 8
        e(f"v_mov_b32 v{ON}, 0x3f803f80")
        for i in range(4):
            for rt in range(4):
                e(f"v_dot2_f32_bf16 v{S+rt}, v{PK+4*rt+i}, v{ON}, {f'v{S+rt}' if i else 0}")
                e(f"v_dot2_f32_bf16 v{Q+rt}, v{PK+4*rt+i}, v{PK+4*rt+i}, {f'v{Q+rt}' if i else 0}")
        e(f"s_lshl_b32 s{sT}, s{sLW}, 9"); e(f"s_add_u32 s{sT}, s{sT}, {L_SS}")
        e("s_nop 1")
        for B in (S, Q):
            e(f"v_permlane32_swap_b32 v{B}, v{B+2}"); e(f"v_permlane32_swap_b32 v{B+1}, v{B+3}")
        for B in (S, Q):
            e(f"v_add_f32 v{B}, v{B}, v{B+2}"); e(f"v_add_f32 v{B+1}, v{B+1}, v{B+3}")
        e(f"v_lshrrev_b32 v{ON}, 1, v{vL16}"); e(f"v_add_u32 v{ON}, s{sT}, v{ON}")
        for B in (S, Q): e(f"v_permlane16_swap_b32 v{B}, v{B+1}")
        e(f"v_add_f32 v{S}, v{S}, v{S+1}"); e(f"v_add_f32 v{S+1}, v{Q}, v{Q+1}")
        e(f"ds_write_b64 v{ON}, v[{S}:{S+1}]")

    def stats_out(self, sST, T):
        e = self.e; l = self.lab("so")
        e(f"s_cmp_lg_u32 s{sLW}, 0"); e(f"s_cbranch_scc1 {l}")
        e(f"v_add_u32 v{T+8}, {L_SS}, v{vL16}")
        e(f"ds_read_b128 v[{T}:{T+3}], v{T+8}"); e(f"ds_read_b128 v[{T+4}:{T+7}], v{T+8} offset:1024")
        e(f"s_lshl_b32 s{sT}, s{sN4}, 10"); e(f"s_add_u32 s{sT}, s{sT}, s{sST}")
        e("s_waitcnt lgkmcnt(0)")
        for r in range(4): e(f"v_add_f32 v{T+r}, v{T+r}, v{T+4+r}")
        e(f"buffer_store_dwordx4 v[{T}:{T+3}], v{vL16}, s[{sWS}:{sWS+3}], s{sT} offen sc0 sc1")
        self.label(l)

    def x_g2(self):
        e = self.e; P = "X"
        ACC, XF, WF, vXa, vWa = 0, 32, 104, 136, 137
        R, T0, T1, T2 = 236, 152, 153, 154
        g2c = self.opt.get("g2c", 0)
        def acc(t, rt): return ACC + (t * 4 + rt) * 4
        def xf(b, h, rt): return XF + b * 32 + h * 16 + rt * 4
        def wf(b, h, t): return WF + b * 16 + h * 8 + t * 4
        e(f"s_lshl_b32 s{sT}, s{sWM}, 13"); e(f"s_add_u32 s{sT}, s{sT}, {LA}")
        e(f"v_add_u32 v{vXa}, s{sT}, v{vL16}")
        self.waddr128(vWa, sWN, T0, T1, T2)
        lr = self.lab("g2")
        e(f"s_cmp_lg_u32 s{sLAY}, 0"); e(f"s_cbranch_scc1 {lr}")
        e("s_waitcnt vmcnt(4)")
        for rt in range(4):
            e(f"v_permlane16_swap_b32 v{R+4*rt}, v{R+4*rt+2}"); e(f"v_permlane16_swap_b32 v{R+4*rt+1}, v{R+4*rt+3}")
        self.label(lr)
        for rt in range(4):
            for t in range(2):
                for k in range(2): self.emit(self.unpack(acc(t, rt) + 2 * k, R + 4 * rt + 2 * t + k))
        def reads(u):
            b = u & 1; o = []
            sl = (32 + (u >> 1)) % 6
            for h in range(2):
                wr = []
                for t in range(2):
                    r = wf(b, h, t); ad = vWa + 2 * (sl // 3) + t; off = (sl % 3) * WSLOT + ((u & 1) * 2 + h) * 4096
                    wr += [f"ds_read_b64_tr_b16 v[{r}:{r+1}], v{ad} offset:{off}", f"ds_read_b64_tr_b16 v[{r+2}:{r+3}], v{ad} offset:{off + 2048}"]
                xr = [f"ds_read_b128 v[{xf(b,h,rt)}:{xf(b,h,rt)+3}], v{vXa} offset:{(u % 3) * 16384 + rt * 2048 + h * 1024}" for rt in range(4)]
                o.append((xr, wr))
            if g2c: return o[0][0] + o[1][0] + o[0][1][:2] + o[1][1][:2] + o[0][1][2:] + o[1][1][2:]
            return sum([wr[0:2] + xr + wr[2:] for xr, wr in o], [])
        def mf(u):
            b = u & 1
            return [mfma(acc(t, rt), wf(b, h, t), xf(b, h, rt)) for t in range(2) for i, rt in enumerate(snake(range(4), t)) for h in snake(range(2), i)]
        self.ts(4)
        e("s_waitcnt vmcnt(0)")
        self.bar(P, ("G2", -2))
        self.wg_flags(self.FG(0), self.FL(0, 0))
        self.ts(5)
        self.bar(P, ("G2", -1))
        self.ts(6); self.tsc(18)
        self.emit(reads(0))
        if self.opt.get("own", 0): self.x_g3a_setup()
        for u in range(16):
            if g2c:
                self.step(P, ("G2", u), mf(u), reads(u + 1) if u < 15 else [], last=15, lg=4, extra=[(7, [f"s_waitcnt lgkmcnt({8 if u < 15 else 0})"])])
            else: self.step(P, ("G2", u), mf(u), reads(u + 1) if u < 15 else [], last=int(self.opt.get("g2last", 11)))
        self.ts(7); self.tsc(19)
        e("s_nop 7")
        self.res_epilogue(acc, sXm, 192, 208, self.opt.get("own", 0))
        self.ts(8)

    def a3(self, mat, t, rt): return ((mat * 4 + t) * 4 + rt) * 4
    def a4(self, t, rt): return 128 + (t * 4 + rt) * 4
    V4X, V4W = 243, 244
    XP = {"g3b": [236, 237, 242], "g4": [238, 239, 240, 241]}
    vXA = 191

    def x_g3a_setup(self):
        e = self.e
        vXa, vWa, T0, T1, T2 = 224, 225, 233, 234, 235
        e(f"s_lshl_b32 s{sT}, s{sWM}, 13"); e(f"s_add_u32 s{sT}, s{sT}, {LA}")
        e(f"v_add_u32 v{vXa}, s{sT}, v{vL16}")
        e(f"s_lshl_b32 s{sT2}, s{sWN}, 2")
        self.emit(self.waddr256(vWa, [0, 1, 2, 3], sT2, T0, T1))
        self.emit(self.pat_g3b(self.XP["g3b"], T0, T1, T2)); self.emit(self.pat_256(self.XP["g4"], 2048, T0, T1, T2))
        e(f"v_mov_b32 v{self.V4X}, v{vXa}")
        e(f"s_and_b32 s{sT2}, s{sN4}, 1"); e(f"s_lshl_b32 s{sT2}, s{sT2}, 2"); e(f"s_lshl_b32 s{sT}, s{sWN}, 1"); e(f"s_add_u32 s{sT2}, s{sT2}, s{sT}")
        self.emit(self.waddr256(self.V4W, [0, 1, 4, 5], sT2, T0, T1))
        self.h_bases()
        self.emit(self.reloc13(sW3B, 0x4008)); self.emit(self.reloc2())
        e(f"s_add_u32 s{sGa}, s{sXm}, s{sM4}")
        e(f"s_lshl_b32 s{sRa}, s{sN4}, 14")

    def x_g3a(self):
        e = self.e; P = "X"
        XF, WF, vXa, vWa = 128, 160, 224, 225
        own = self.opt.get("own", 0)
        if not own: self.x_g3a_setup()
        def xf(b, rt): return XF + b * 16 + rt * 4
        def wf(b, mat, t): return WF + b * 32 + (mat * 4 + t) * 4
        def reads(s):
            b = s & 1; sl = (40 + s) % 6
            xr = [f"ds_read_b128 v[{xf(b,rt)}:{xf(b,rt)+3}], v{vXa} offset:{((s >> 1) % 3) * 16384 + rt * 2048 + (s & 1) * 1024}" for rt in range(4)]
            wr = []
            for t in range(4):
                for mat in range(2):
                    r = wf(b, mat, t); ad = vWa + 4 * (sl // 3) + t; off = (sl % 3) * WSLOT + mat * 8192
                    wr += [f"ds_read_b64_tr_b16 v[{r}:{r+1}], v{ad} offset:{off}", f"ds_read_b64_tr_b16 v[{r+2}:{r+3}], v{ad} offset:{off + 4096}"]
            return wr[0:2] + xr + wr[2:]
        def mf(s):
            b = s & 1
            return [mfma(self.a3(mat, t, rt), wf(b, mat, t), xf(b, rt), "0" if s == 0 else None) for t in range(4) for mat in range(2) for rt in snake(range(4), mat)]
        if not own:
            e("s_waitcnt vmcnt(0) lgkmcnt(0)")
            self.bar(P, ("G3A", -2))
            self.wg_flags(None, self.FL(0, 32))
            self.stats_out(sSTm, 208)
        else: e("s_waitcnt lgkmcnt(0)")
        self.ts(9)
        self.bar(P, ("G3A", -1))
        self.ts(10); self.tsc(20)
        self.emit(reads(0))
        def fn(s, ex):
            extra = []
            if ex: extra.append((28, self.CNT))
            if own and s == 0:
                self.step(P, None, mf(0), reads(1), bar=False, last=23)
                e("s_waitcnt vmcnt(0)")
                self.bar(P, ("G3A", 0))
                self.wg_flags(None, self.FL(0, 32))
                return
            self.step(P, ("G3A", s), mf(s), reads(s + 1) if s < 31 else [], vmw=(0 if s == 3 - (not self.b2) else None), bar=self.hasb(s), last=23, extra=extra)
        self.looped(P, 32, 6, fn)
        self.ts(11); self.tsc(21)

    def h_bases(self):
        e = self.e
        e(f"s_and_b32 s{sT}, s{sN4}, 1"); e(f"s_mul_i32 s{sT}, s{sT}, {28 * 16384}"); e(f"s_add_u32 s{sHx}, s{sHo}, s{sT}")
        e(f"s_and_b32 s{sT}, s{sNT}, 7"); e(f"s_lshl_b32 s{sT}, s{sT}, 14"); e(f"s_and_b32 s{sT2}, s{sTile}, 0x3fff")
        e(f"s_add_u32 s{sT}, s{sT}, s{sT2}"); e(f"s_add_u32 s{sGh}, s{sT}, s{sHx}")
        e(f"s_and_b32 s{sT}, s{sNT}, 6"); e(f"s_add_u32 s{sT}, s{sT}, 48"); e(f"s_lshl_b32 s{sT}, s{sT}, 13")
        e(f"s_and_b32 s{sT2}, s{sNT}, 1"); e(f"s_lshl_b32 s{sT2}, s{sT2}, 10"); e(f"s_add_u32 s{sT}, s{sT}, s{sT2}")
        e(f"s_lshl_b32 s{sT2}, s{sWM}, 13"); e(f"s_add_u32 s{sT}, s{sT}, s{sT2}"); e(f"s_lshl_b32 s{sT2}, s{sWN}, 9"); e(f"s_add_u32 s{sT}, s{sT}, s{sT2}")
        e(f"s_add_u32 s{sGs}, s{sT}, s{sHx}")

    def epi_loop(self, P, ph, n, vm, work, budget, lag, need, dmas, flags, dead, hook=None, hasb=lambda s: True):
        pend = []
        for s in range(n):
            if hasb(s):
                ready = [b for b, p in pend if p <= s]
                gate = bool(work) and work[0][1] == ("GATE",)
                self.pb(P, (ph, s), vm.need(*(need(s) + [("H", b) for b in ready])), 0 if gate else None)
                for b in ready: self.wg_flag_if(b & 3, flags[b])
                pend = [(b, p) for b, p in pend if p > s]
            if hook: hook(s)
            dm = dmas(s)
            its = []
            if work and work[0][1] == ("GATE",): work.pop(0)
            if work:
                its = self.chunk(work, budget(s))
                if ("GATE",) in its:
                    k = its.index(("GATE",)); work[0:0] = self.costed(its[k:]); its = its[:k]
            items = []
            for it in its:
                if isinstance(it, tuple) and it[0] == "FLAG":
                    assert s + lag <= dead[it[1]], (ph, it, s)
                    pend.append((it[1], s + lag)); self.info.append(f"{ph}: flag {it[1]} work done in period {s}")
                else: items.append(it)
            self.run_period(dm, items)
        assert not work and not pend, (ph, len(work), pend)
        self.tr_flush(P)

    def x_g3b(self):
        e = self.e; P = "XL"; vm = VM()
        NM, RL, I2, CS, E, OUT = 192, 196, 200, 204, 220, 224
        PT = self.XP
        T0, vCS = 232, 235
        e("s_setprio 1")
        vA = self.vXA
        e(f"v_add_u32 v{vA}, s{sGa}, v{vL16}")
        work = ["s_nop 7"] + self.stat_regs(E, NM, RL, I2, T0)
        work += [f"s_lshl_b32 s{sT}, s{sWN}, 8", f"s_add_u32 s{sT}, s{sT}, {L_CSA}", f"v_lshrrev_b32 v{vCS}, 8, v{vL16}", f"v_lshlrev_b32 v{vCS}, 4, v{vCS}", f"v_add_u32 v{vCS}, s{sT}, v{vCS}"]
        for b in range(2):
            for t in range(2):
                for mat in range(2):
                    c = CS + (t * 2 + mat) * 4
                    work.append(f"ds_read_b128 v[{c}:{c+3}], v{vCS} offset:{mat * 512 + (2 * b + t) * 64}")
            work.append("s_waitcnt lgkmcnt(0)")
            for rt in range(4):
                O = OUT + 4 * (rt & 1)
                for t in range(2):
                    work += self.silu_group(self.a3(0, 2 * b + t, rt), self.a3(1, 2 * b + t, rt), E, RL + rt, I2 + rt, O + 2 * t, NM + rt, CS + t * 8, CS + t * 8 + 4)
                work.append(self.grp(vm, ("H", b), [f"s_add_u32 s{sT}, s{sGh}, {b * 8 * 16384 + rt * 2048}"],
                                     f"buffer_store_dwordx4 v[{O}:{O+3}], v{vL16}, s[{sWS}:{sWS+3}], s{sT} offen sc0 sc1"))
            work.append(("FLAG", b))
        self.w_start(72 + self.xw0, 109 - self.b2)
        def need(s): return self.kneed(72, s, 104) + ([("A", 16 + (s + 1) // 2)] if s & 1 else [])
        def hook(s):
            if s == 7 and self.opt.get("rel"):
                l = self.lab("cf")
                e(f"s_xor_b32 s{sT}, s{sLW}, 3"); e(f"s_or_b32 s{sT}, s{sLAY}, s{sT}"); e(f"s_cbranch_scc1 {l}")
                self.side_flag(3)
                self.label(l)
            if s == 21 and self.opt.get("rel"): self.apoll4_issue(vm, 3, 184)
            if s == 24 and self.opt.get("rel"): self.apoll4_check(vm, 3, 184, [(sLAY, 1)])
            if s == 25: self.apoll_issue(vm, self.FL(1, 0), 8, T0)
            if s == 27:
                self.apoll_check(vm, self.FL(1, 0), 8, T0)
                e(f"s_add_u32 s{sGa}, s{sHx}, s{sM4}"); e(f"v_add_u32 v{vA}, s{sGa}, v{vL16}")
            if s == 31:
                assert not wk
                self.emit(self.g4_reads(0))
        def dmas(s):
            dm = []
            if s >= 1:
                idx = 16 + (s - 1) // 2 + 3; part = (s - 1) & 1
                if idx < 32:
                    t = idx - 16
                    dm = self.a_issue(vm, ("A", idx), idx % 3, vA, None, self.ainc(uord(BORD[t + 1]) - uord(BORD[t])) if t < 15 else None, part)
                elif s < 31: dm = self.a_issue(vm, ("A", idx), idx % 3, vA, (idx - 32) * 16384, None, part)
                else: dm = self.a_issue(vm, ("A", idx), idx % 3, vA, (idx - 32) * 16384)
            return dm + self.w_take(vm, PT, 1, self.kfree(72, s))
        bud = float(self.opt.get("budX", 28))
        wk = self.costed(work)
        self.epi_loop(P, "G3B", 32, vm, wk, lambda s: bud, int(self.opt.get("lagX", 4)), need, dmas,
                      [self.FL(1, 0), self.FL(1, 32)], [25, 31], hook, self.hasb)
        assert self.wn == 109 - self.b2, self.wn
        e("s_setprio 0")
        self.g4w = [vm.need(("W", 104 + u + 1), ("A", 32 + u + 1)) for u in range(7)]

    def g4_reads(self, u):
        b = u & 1; sl = (104 + u) % 6; o = []
        for h in range(2):
            xr = [f"ds_read_b128 v[{64*b+16*h+4*rt}:{64*b+16*h+4*rt+3}], v{self.V4X} offset:{((32 + u) % 3) * 16384 + rt * 2048 + h * 1024}" for rt in range(4)]
            wr = []
            for t in range(4):
                r = 64 * b + 32 + 16 * h + 4 * t; ad = self.V4W + 4 * (sl // 3) + t; off = (sl % 3) * WSLOT + h * 8192
                wr += [f"ds_read_b64_tr_b16 v[{r}:{r+1}], v{ad} offset:{off}", f"ds_read_b64_tr_b16 v[{r+2}:{r+3}], v{ad} offset:{off + 4096}"]
            o += wr[0:2] + xr + wr[2:]
        return o

    def x_g4(self):
        e = self.e; P = "X"
        T0, T1 = 192, 193
        SP, RP, RS = 0, 16, 196
        def mf(u):
            b = u & 1; o = []
            for t in range(4):
                for i, rt in enumerate(snake(range(4), t)):
                    for k, h in enumerate(snake(range(2), i)):
                        o.append(mfma(self.a4(t, rt), 64 * b + 32 + 16 * h + 4 * t, 64 * b + 16 * h + 4 * rt, "0" if u == 0 and k == 0 else None))
            return o
        e(f"s_lshl_b32 s{sT}, s{sN4}, 14"); e(f"s_add_u32 s{sT}, s{sT}, s{sM4}")
        e(f"s_add_u32 s{sT}, s{sT}, s{sOo}"); e(f"s_add_u32 s{sGa}, s{sT}, {WS_P}")
        e(f"s_xor_b32 s{sGh}, s{sGa}, {1 << 14}")
        e(f"s_add_u32 s{sD0}, s{sTile}, s{sXm}"); e(f"s_add_u32 s{sD1}, s{sD0}, 4096")
        self.ts(12); self.tsc(22)
        def res(rt): return [f"buffer_load_dwordx4 v[{RS+4*rt}:{RS+4*rt+3}], v{vL16}, s[{sWS}:{sWS+3}], s{sD0 + (rt >> 1)} offen offset:{2048 * (rt & 1)}"]
        def fn(u, ex):
            extra = []
            if ex: extra.append((29, self.CNT))
            if u == 27:
                extra += [(1 + 3 * rt, res(rt)) for rt in range(4)]
                if self.opt.get("xe"): extra += [(16 + 3 * rt, [f"buffer_load_dwordx4 v[{RP+4*rt}:{RP+4*rt+3}], v{vL16}, s[{sWS}:{sWS+3}], s{sGh} offen offset:{1024 * rt} sc0 sc1"]) for rt in range(4)]
            self.step(P, ("G4", u), mf(u), self.g4_reads(u + 1) if u < 27 else [], vmw=(self.g4w[u] if u < 7 else None), last=26, extra=extra)
        self.looped(P, 28, 6, fn)
        self.ts(13); self.tsc(23)
        e("s_nop 7")
        for rt in range(4):
            for t in range(2):
                c = self.a4(2 + t, rt); p = SP + 4 * rt + 2 * t
                e(f"v_cvt_pk_bf16_f32 v{p}, v{c}, v{c+1}"); e(f"v_cvt_pk_bf16_f32 v{p+1}, v{c+2}, v{c+3}")
            for i in range(4): e(f"v_min_u32 v{SP+4*rt+i}, -2, v{SP+4*rt+i}")
            e(f"buffer_store_dwordx4 v[{SP+4*rt}:{SP+4*rt+3}], v{vL16}, s[{sWS}:{sWS+3}], s{sGa} offen offset:{1024 * rt} sc0 sc1")
        def addin(R):
            for rt in range(4):
                for t in range(2):
                    U = 160 + 4 * (t + 2 * (rt & 1))
                    for k in range(2): self.emit(self.unpack(U + 2 * k, R + 4 * rt + 2 * t + k))
                    c = self.a4(t, rt)
                    for k in range(2): e(f"v_pk_add_f32 v[{c+2*k}:{c+2*k+1}], v[{c+2*k}:{c+2*k+1}], v[{U+2*k}:{U+2*k+1}]")
        e("s_waitcnt vmcnt(8)" if self.opt.get("xe") else "s_waitcnt vmcnt(4)")
        addin(RS)
        lp, ld, lc = self.lab("poll"), self.lab("pd"), self.lab("pc")
        e(f"s_mov_b32 s{sT2}, {POLL}")
        if self.opt.get("xe"):
            e("s_waitcnt vmcnt(4)")
            e(f"s_branch {lc}")
        self.label(lp)
        for rt in range(4):
            e(f"buffer_load_dwordx4 v[{RP+4*rt}:{RP+4*rt+3}], v{vL16}, s[{sWS}:{sWS+3}], s{sGh} offen offset:{1024 * rt} sc0 sc1")
        e("s_waitcnt vmcnt(0)")
        self.label(lc)
        e(f"v_max3_u32 v{T0}, v{RP}, v{RP+1}, v{RP+2}"); e(f"v_max3_u32 v{T1}, v{RP+3}, v{RP+4}, v{RP+5}")
        for k in range(6, 14, 4):
            e(f"v_max3_u32 v{T0}, v{T0}, v{RP+k}, v{RP+k+1}"); e(f"v_max3_u32 v{T1}, v{T1}, v{RP+k+2}, v{RP+k+3}")
        e(f"v_max3_u32 v{T0}, v{T0}, v{RP+14}, v{RP+15}"); e(f"v_max_u32 v{T0}, v{T0}, v{T1}")
        e(f"v_cmp_eq_u32 vcc, -1, v{T0}")
        e(f"s_cbranch_vccz {ld}")
        e(f"s_sub_u32 s{sT2}, s{sT2}, 1"); e(f"s_cmp_lg_u32 s{sT2}, 0"); e(f"s_cbranch_scc1 {lp}")
        self.label(ld)
        addin(RP)
        self.ts(14)
        self.tr_dump("X")

    def x_final(self):
        e = self.e
        T0, T1, PK = 192, 193, 0
        self.emit(self.out_addr(T0, T1, sT))
        for rt in range(4):
            for t in range(2):
                c = self.a4(t, rt)
                e(f"v_cvt_pk_bf16_f32 v{PK+4*rt+2*t}, v{c}, v{c+1}"); e(f"v_cvt_pk_bf16_f32 v{PK+4*rt+2*t+1}, v{c+2}, v{c+3}")
            e("s_nop 1")
            e(f"v_permlane16_swap_b32 v{PK+4*rt}, v{PK+4*rt+2}"); e(f"v_permlane16_swap_b32 v{PK+4*rt+1}, v{PK+4*rt+3}")
            e(f"buffer_store_dwordx4 v[{PK+4*rt}:{PK+4*rt+3}], v{T0}, s[{sOUT}:{sOUT+3}], s{sT} offen{self.opt.get('osc', '_sc0_sc1').replace('_', ' ')}")
            e(f"s_add_u32 s{sT}, s{sT}, {16 * 2048}")

    YP = {"g1": [200, 201, 202], "g2": [203, 204, 205, 206], "g3a": [207, 208, 209, 210], "g3b": [211, 212, 222], "g4": [213, 214, 215, 216]}
    YAP = [217, 218, 219, 220]
    YT = [224, 225, 226, 227]
    vHP, vPL = 221, 251
    sJ, sJo, sXc, sRt = sAT, sAT + 4, sAT + 5, sAT + 6
    sHm = sAT + 12

    sP2, sJk = sAT + 14, 3
    def trickle(self, n):
        o = []
        for _ in range(n):
            if self.tk < 112:
                o.append(f"s_load_dword s{self.sJk}, s[{self.sP2}:{self.sP2+1}], {64 * self.tk}"); self.tk += 1
        return o
    sJi = sAT + 7
    def jobid(self):
        r = self.sJi
        return [f"s_add_u32 s{sT}, s{sN4}, 4", f"s_and_b32 s{sT2}, s{sT}, 7", f"s_lshr_b32 s{sT}, s{sT}, 3", f"s_and_b32 s{sT}, s{sT}, 1",
                f"s_lshl_b32 s{sT2}, s{sT2}, 1", f"s_add_u32 s{sT}, s{sT}, s{sT2}", f"s_lshr_b32 s{sT2}, s{sMT}, 1", f"s_mul_i32 s{sT2}, s{sT2}, 14", f"s_add_u32 s{sT2}, s{sT2}, s{sT}", f"s_lshl_b32 s{sT2}, s{sT2}, 1",
                f"s_and_b32 s{r}, s{sMT}, 1", f"s_add_u32 s{r}, s{r}, s{sT2}", f"s_cmp_lt_u32 s{sT}, {0 if self.opt.get('nojob') else 14}", f"s_cselect_b32 s{r}, s{r}, 255"]

    def g1_src(self, first):
        e = self.e; T0, T1, T2, _ = self.YT; AP = self.YAP
        if first:
            e(f"s_lshl_b32 s{sT}, s{sMT}, 18"); e(f"s_lshl_b32 s{sT2}, s{sM4}, 4"); e(f"s_add_u32 s{sGa}, s{sT}, s{sT2}")
            e(f"s_lshl_b32 s{sT2}, s{sWM}, 14"); e(f"s_add_u32 s{sGh}, s{sT}, s{sT2}"); e(f"s_sub_u32 s{sGh}, s{sGh}, 32768")
            self.emit(self.pat_128(AP, 2048, T0, T1, T2, sGa))
            e(f"s_lshl_b32 s{sRa}, s{sDa}, 7")
        else:
            for i in range(4): e(f"s_mov_b32 s{sA1+i}, s{sWS+i}")
            e(f"s_add_u32 s{sGa}, s{sX2}, s{sM4}")
            e(f"s_lshl_b32 s{sT2}, s{sWM}, 10"); e(f"s_add_u32 s{sGh}, s{sX2}, s{sT2}"); e(f"s_sub_u32 s{sGh}, s{sGh}, {ARENA - 14336}")
            e(f"v_add_u32 v{AP[0]}, s{sGa}, v{vL16}")
            e(f"s_lshl_b32 s{sRa}, s{sN4}, 14")
        e(f"s_cmp_eq_u32 s{sMT}, 0"); e(f"s_cselect_b32 s{sGh}, {OOB}, s{sGh}")
        e(f"s_sub_u32 s{sGh}, s{sGh}, s{sGa}"); e(f"v_add_u32 v{self.vHP}, s{sGh}, v{AP[0]}")
        e(f"s_lshl_b32 s{sSu}, s{sWM}, 10")
        e(f"s_cmp_eq_u32 s{sWN}, 0"); e(f"s_cselect_b32 s{self.sHm}, -1, 0"); e(f"s_not_b32 s{self.sHm+1}, s{self.sHm}")

    def g1_a(self, vm, first, u, part=None):
        g = []; base = LA + (u % 3) * 18432
        if part in (None, 0):
            g.append(self.grp(vm, ("A", u), [f"s_add_u32 m0, s{sSu}, {base}", f"s_mov_b64 exec, s[{self.sHm}:{self.sHm+1}]"],
                              f"buffer_load_dwordx4 v{self.vHP}, s[{sA1}:{sA1+3}], s{sRa} offen lds", ["s_mov_b64 exec, -1"]))
        inc = self.ainc(uord(u + 1) - uord(u), 128 if first else 16384) if u < 15 else None
        return g + self.a_issue(vm, ("A", u), 0, self.YAP[0], None, inc, part, sA1, self.YAP if first else None, base + 2048)

    def stats_gather(self, vm, s, s0, sST, R, AC, fin, so=0, fast=False):
        e = self.e; T0, T1, T2, T3 = self.YT; it = []
        if s == s0:
            it.append([f"v_and_b32 v{T2}, 0xf0, v{vL16}", f"v_and_b32 v{T3}, 0x300, v{vL16}", f"v_lshl_add_u32 v{T3}, v{T3}, 2, v{T2}",
                       f"s_lshl_b32 s{self.sRt}, s{sLW}, 8", f"s_add_u32 s{self.sRt}, s{self.sRt}, s{sST}"] +
                      ([f"s_add_u32 s{self.sRt}, s{self.sRt}, {so}"] if so else []))
        for k in range(4):
            if s != s0 + (k // 3 if fast else k): continue
            it.append(self.grp(vm, "S", [], f"buffer_load_dwordx4 v[{R+4*k}:{R+4*k+3}], v{T3}, s[{sWS}:{sWS+3}], s{self.sRt} offen", [f"s_add_u32 s{self.sRt}, s{self.sRt}, 4096"]))
        if fast: s0 -= 3
        if s == s0 + 6:
            self.wait(vm.need("S"))
            it += [f"v_add_f32 v{R+r}, v{R+r}, v{R+4+r}" for r in range(4)] + [f"v_add_f32 v{R+8+r}, v{R+8+r}, v{R+12+r}" for r in range(4)]
            it += [f"v_add_f32 v{AC+r}, v{R+r}, v{R+8+r}" for r in range(4)]
            it += self.xred(list(range(AC, AC + 4)), list(range(R, R + 4)), steps=("v_permlane16_swap_b32",))
        if s == s0 + 7:
            it += self.xred(list(range(AC, AC + 4)), list(range(R, R + 4)), steps=("v_permlane32_swap_b32",))
        if s == s0 + 8: it += self.finish_stats(AC, AC + 1)
        if s == s0 + 9: it += self.finish_stats(AC + 2, AC + 3) + fin
        return it

    def y_start(self, vm):
        e = self.e; T0, T1, T2, T3 = self.YT; PT = self.YP
        self.emit(self.pat_g1(PT, T0, T1, T2, True))
        e(f"s_and_b32 s{sT}, s{sMT}, 4"); e(f"s_lshl_b32 s{sT}, s{sT}, 1"); e(f"s_lshr_b32 s{sT2}, s{sMT}, 3"); e(f"s_add_u32 s{sT}, s{sT}, s{sT2}")
        e(f"s_add_u32 s{sDa}, s{sT}, s{sN4}"); e(f"s_and_b32 s{sDa}, s{sDa}, 15")
        self.rot0 = sDa
        self.w_start(0, 38)
        self.run_period(self.w_take(vm, PT, 1, 0), [])
        self.rot0 = sN4
        self.g1_src(True)
        tpos = int(self.opt.get("tpos", 2))
        w0 = int(self.opt.get("w0", 6)); a0 = int(self.opt.get("a0", 3))
        for n in range(w0):
            if n: self.run_period(self.w_take(vm, PT, 1, 0), [])
            if n == tpos: self.y_touch(vm)
            if n < a0: self.run_period(self.g1_a(vm, True, n), [])
            if n == min(int(self.opt.get("xsp", 3)), w0 - 1):
                XS = 144
                e(f"s_add_u32 s{sT}, s{sM4}, {LA + 2048}"); e(f"v_add_u32 v{T0}, s{sT}, v{vL16}"); e(f"v_mov_b32 v{T1}, 0x3f803f80")
                self.wait(vm.need(("A", 0)))
                for i in range(4): e(f"ds_read_b128 v[{XS+4*i}:{XS+4*i+3}], v{T0} offset:{1024 * i}")
                e("s_waitcnt lgkmcnt(0)")
                for k in range(4):
                    for i in range(4):
                        e(f"v_dot2_f32_bf16 v{XS+16+2*i}, v{XS+4*i+k}, v{T1}, {f'v{XS+16+2*i}' if k else 0}")
                        e(f"v_dot2_f32_bf16 v{XS+17+2*i}, v{XS+4*i+k}, v{XS+4*i+k}, {f'v{XS+17+2*i}' if k else 0}")
        if tpos == 6: self.y_touch(vm)

    def y_touch(self, vm):
        e = self.e; T0 = self.YT[3]
        sJ = self.sJ
        if self.opt.get("tst") is not None:
            e(f"s_lshl_b32 s{sT}, s2, 2"); e(f"s_add_u32 s{sT}, s{sT}, s{sLW}"); e(f"s_lshl_b32 s{sT}, s{sT}, 11")
            e(f"v_lshlrev_b32 v176, 3, v{vL16}")
            e("s_mov_b64 exec, 0xffff")
            e(f"buffer_load_dword v{self.vPL}, v176, s[{sWO}:{sWO+3}], s{sT} offen"); vm.issue("t")
            e("s_mov_b64 exec, -1")
            e(f"s_mov_b32 s{sJ+2}, {1024 * 7168}"); e(f"s_mov_b32 s{sJ+3}, 0x00020000")
            e(f"s_lshl_b32 s{sT}, s2, 1"); e(f"s_add_u32 s{sT}, s{sT}, s{sWN}"); e(f"s_mul_i32 s{sHx}, s{sT}, {112 * 128}")
            return
        e("s_cmp_lt_u32 s2, 128")
        e(f"s_cselect_b32 s{sJ}, s{sAT+8}, s{sAT+10}"); e(f"s_cselect_b32 s{sJ+1}, s{sAT+9}, s{sAT+11}")
        e(f"s_mov_b32 s{sJ+2}, {1024 * 7168}"); e(f"s_mov_b32 s{sJ+3}, 0x00020000")
        e(f"s_and_b32 s{sT}, s2, 127"); e(f"s_mul_i32 s{sT}, s{sT}, {448 * 128}"); e(f"s_lshl_b32 s{sT2}, s{sLW}, 14"); e(f"s_add_u32 s{sT}, s{sT}, s{sT2}")
        e(f"v_lshlrev_b32 v{T0}, 3, v{vL16}")
        e(f"buffer_load_dword v{self.vPL}, v{T0}, s[{sJ}:{sJ+3}], s{sT} offen"); vm.issue("t")
        l, l2 = self.lab("t"), self.lab("t")
        e(f"s_cmp_eq_u32 s{sLW}, 3"); e(f"s_cbranch_scc1 {l}")
        e(f"s_add_u32 s{sT}, s{sT}, 8192")
        e(f"buffer_load_dword v{self.vPL}, v{T0}, s[{sJ}:{sJ+3}], s{sT} offen"); e(f"s_branch {l2}")
        self.label(l)
        e(f"s_lshl_b32 s{sT}, s2, 13")
        e(f"buffer_load_dword v{self.vPL}, v{T0}, s[{sWO}:{sWO+3}], s{sT} offen")
        self.label(l2); vm.issue("t")

    def y_g1(self, vm, first):
        e = self.e; P = "Y1" if first else "Y"; T0, T1, T2, T3 = self.YT; PT = self.YP; vPL = self.vPL
        sJ, sJo, sXc, sRt = self.sJ, self.sJo, self.sXc, self.sRt
        JB, RB, G, CQ, vJ, vR, vHs = 0, 64, 72, 76, 96, 97, 98
        if not first:
            self.g1_src(False)
            e(f"s_add_u32 s{sD0}, s{sFL}, {(64 - 128) & 0xffffffff}"); e(f"s_add_u32 s{sD1}, s{sFl}, {4 * 2048 - 128}")
            e(f"s_and_b32 s{sT}, s{sMT}, 3")
            e(f"s_cselect_b32 s{sD0}, s{sD0}, s{sD1}"); e(f"s_cselect_b32 s{sD1}, 28, 60")
            e(f"s_add_u32 s{sT}, s{sFL}, 64")
            e(f"s_cmp_eq_u32 s{sMT}, 0"); e(f"s_cselect_b32 s{sD0}, s{sT}, s{sD0}"); e(f"s_cselect_b32 s{sD1}, 28, s{sD1}")
            e(f"v_lshrrev_b32 v{T0}, 2, v{vL16}"); e(f"v_and_b32 v{T0}, 60, v{T0}")
            e(f"v_min_u32 v{T1}, s{sD1}, v{T0}"); e(f"v_add_u32 v{T1}, s{sD0}, v{T1}")
            e(f"v_min_u32 v{T0}, 28, v{T0}"); e(f"v_add_u32 v{T0}, s{sT}, v{T0}")
            e(f"v_cmp_gt_u32 vcc, 256, v{vL16}"); e(f"v_lshlrev_b32 v{T2}, 3, v{vL16}"); e(f"v_and_b32 v{T2}, 0xfff, v{T2}")
            e(f"v_cndmask_b32 v{T0}, v{T1}, v{T0}, vcc")
            e(f"s_add_u32 s{sDa}, s{sGa}, s{sRa}")
            e("s_barrier")
            e(f"buffer_load_dword v{vPL}, v{T2}, s[{sWS}:{sWS+3}], s{sDa} offen sc0 sc1")
            lp, ld = self.lab("poll"), self.lab("pd")
            e(f"s_mov_b32 s{sT2}, {POLL}")
            self.label(lp)
            e(f"buffer_load_dword v{T1}, v{T0}, s[{sWS}:{sWS+3}], 0 offen sc0 sc1")
            e("s_waitcnt vmcnt(0)")
            e(f"v_cmp_ne_u32 vcc, 0x01010101, v{T1}"); e(f"s_cbranch_vccz {ld}")
            e("s_sleep 1"); e(f"s_sub_u32 s{sT2}, s{sT2}, 1"); e(f"s_cmp_lg_u32 s{sT2}, 0"); e(f"s_cbranch_scc1 {lp}")
            self.label(ld)
            vm.clear()
            for u in range(3): self.run_period(self.g1_a(vm, False, u), [])
        SL, QA, QB, XS, vQ = 120, 124, 128, 144, 172
        def qcol(s):
            l = self.lab("qc")
            e(f"s_and_b32 s{sT}, s{sMT}, 3"); e(f"s_cmp_lg_u32 s{sT}, {s >> 1}"); e(f"s_cbranch_scc1 {l}")
            if s % 6 >= 3: e(f"v_add_u32 v{vF0}, {3 * WSLOT}, v{vQ}")
            for i in range(4): e(f"ds_read_b128 v[{QB+4*i}:{QB+4*i+3}], v{vF0 if s % 6 >= 3 else vQ} offset:{(s % 3) * WSLOT + 1024 * i}")
            e("s_waitcnt lgkmcnt(0)")
            for i in range(4): e(mfma(QA, SL, QB + 4 * i, "0" if (s & 1) == 0 and i == 0 else None))
            e("s_nop 7")
            self.label(l)
        if first:
            self.emit(self.selector(SL, T0, T1))
            self.emit(self.swz128(T0, T1, T2)); e(f"v_lshl_add_u32 v{vQ}, v{T0}, 7, v{T1}")
            e(f"s_min_u32 s{sT}, s{sLW}, 2"); e(f"s_lshl_b32 s{sT}, s{sT}, 12"); e(f"v_add_u32 v{vQ}, s{sT}, v{vQ}")
        e("s_setprio 1")
        self.pb(P, ("G1", -1), vm.need(("W", 0), ("W", self.b2), ("A", 0)))
        if first:
            for n in range(int(self.opt.get("a0", 3)), 3): self.run_period(self.g1_a(vm, True, n), [])
            if int(self.opt["tpos"]) == 7: self.y_touch(vm)
            qcol(0)
        self.w_start(int(self.opt.get("w0", 6)) if first else 6, 38)
        cu1 = int(self.opt.get("cu1", 27))
        j0 = int(self.opt.get("j0", 10)); jn = int(self.opt.get("jn", 1)); g = int(self.opt.get("gat", 14)); r0 = int(self.opt.get("r0", 10)); pf = 10 + self.b2
        marks = []
        assert not self.b2
        jsch = [int(x) for x in str(self.opt.get("jsch", "4_5_6_8_9_11_12_13_15_16_17_19_27_28_29_30")).split("_")]
        for s in range(32):
            if self.hasb(s):
                need = self.kneed(0, s, 31) + ([("A", (s + 1) // 2)] if s & 1 else []) + (["p"] if s == pf else [])
                marks.append(vm.total)
                before = vm.total - len(vm.ops)
                n = vm.need(*need)
                if first and self.opt.get("jrx", 0) and n is not None and self.opt.get("trace") is None:
                    p0, span = [int(x) for x in str(self.opt["jb"]).split("_")]
                    qs = [q for q in range(max(p0, s - 5), min(s, p0 + span)) if vm.total - n <= marks[q + 1]]
                    if qs:
                        l, l2 = self.lab("rx"), self.lab("rx")
                        e(f"s_sub_u32 s{sT}, s{sHx}, {qs[0] - p0}"); e(f"s_cmp_lt_u32 s{sT}, {len(qs)}"); e(f"s_cbranch_scc1 {l}")
                        self.wait(n); e(f"s_branch {l2}"); self.label(l); self.wait(n + 16 - int(self.opt.get("jsp", 0))); self.label(l2)
                        n = None
                self.pb(P, ("G1", s), n, 0 if s == 31 else None)
            it = []; post = []; last = []
            if first:
                if s < 7: post.append(lambda s=s: qcol(s + 1))
                if s == 0:
                    for m in ("quad_perm:[1,0,3,2]", "quad_perm:[2,3,0,1]", "row_half_mirror"):
                        it += [f"v_add_f32_dpp v{XS+16+i}, v{XS+16+i}, v{XS+16+i} {m} row_mask:0xf bank_mask:0xf" for i in range(8)]
                if s == 1:
                    sel = [f"v_and_b32 v{T0}, 0x70, v{vL16}"]
                    for i in range(1, 4):
                        sel += [[f"v_cmp_eq_u32 vcc, {16 * i}, v{T0}", "s_nop 1", f"v_cndmask_b32 v{XS+16}, v{XS+16}, v{XS+16+2*i}, vcc", f"v_cndmask_b32 v{XS+17}, v{XS+17}, v{XS+17+2*i}, vcc"]]
                    sel += [f"v_lshrrev_b32 v{T1}, 7, v{vL16}", f"v_lshlrev_b32 v{T1}, 3, v{T1}", f"v_lshl_add_u32 v{T0}, v{T0}, 2, v{T1}"]
                    it += sel
                    post.append(self.grp(vm, "p", [f"s_lshl_b32 s{sT}, s{sN4}, 10", f"s_lshr_b32 s{sT2}, s{sM4}, 4", f"s_add_u32 s{sT}, s{sT}, s{sT2}", f"s_add_u32 s{sT}, s{sT}, s{sSTo}",
                                                   f"s_add_u32 s{sT}, s{sT}, {64 * KB}", f"s_mov_b32 s{sEX}, 0x0f0f0f0f", f"s_mov_b32 s{sEX+1}, 0x0f0f0f0f", f"s_mov_b64 exec, s[{sEX}:{sEX+1}]"],
                                         f"buffer_store_dwordx2 v[{XS+16}:{XS+17}], v{T0}, s[{sWS}:{sWS+3}], s{sT} offen sc0 sc1", ["s_mov_b64 exec, -1"]))
                if s == 7:
                    it += [f"v_add_f32_dpp v{QA+r}, v{QA+r}, v{QA+r} row_ror:8 row_mask:0xf bank_mask:0xf" for r in range(4)]
                    it += [f"v_and_b32 v{T0}, 0x70, v{vL16}", f"v_lshrrev_b32 v{T1}, 4, v{vL16}", f"v_and_b32 v{T1}, 16, v{T1}", f"v_lshl_add_u32 v{T0}, v{T0}, 1, v{T1}"]
                    post.append(self.grp(vm, "p", [f"s_mul_i32 s{sT}, s{sMT}, 12288", f"s_lshl_b32 s{sT2}, s{sLW}, 12", f"s_add_u32 s{sT}, s{sT}, s{sT2}",
                                                   f"s_lshl_b32 s{sT2}, s{sN4}, 8", f"s_add_u32 s{sT}, s{sT}, s{sT2}", f"s_add_u32 s{sT}, s{sT}, {WS_CSQ}",
                                                   f"s_cmp_lt_u32 s{sLW}, 3", f"s_cselect_b32 s{sT}, s{sT}, {OOB}", "s_mov_b64 exec, 0x00ff00ff"],
                                         f"buffer_store_dwordx4 v[{QA}:{QA+3}], v{T0}, s[{sWS}:{sWS+3}], s{sT} offen sc0 sc1", ["s_mov_b64 exec, -1"]))
                if s == 8: it += self.atomize(self.pat_128(PT["g2"], 2048, T0, T1, T2, sB2))
                if s == 2:
                    it.append(self.jobid() + [f"s_lshr_b32 s{sT}, s{self.sJi}, 1", f"s_cmp_lt_u32 s{sT}, 56",
                               f"s_cselect_b32 s{sJ}, s{sAT+8}, s{sAT+10}", f"s_cselect_b32 s{sJ+1}, s{sAT+9}, s{sAT+11}",
                               f"s_cselect_b32 s{sT2}, 0, 56", f"s_sub_u32 s{sT}, s{sT}, s{sT2}", f"s_lshl_b32 s{sJo}, s{sT}, 7",
                               f"s_and_b32 s{sT}, s{self.sJi}, 1", f"s_lshl_b32 s{sT}, s{sT}, 2", f"s_add_u32 s{sT}, s{sT}, s{sLW}", f"s_mul_i32 s{sT}, s{sT}, {128 * 7168}",
                               f"s_add_u32 s{sJo}, s{sJo}, s{sT}", f"s_cmp_lt_u32 s{self.sJi}, 224", f"s_cselect_b32 s{sJo}, s{sJo}, {OOB}"])
                    it += [f"v_lshrrev_b32 v{vJ}, 7, v{vL16}", f"v_mul_u32_u24 v{vJ}, 7168, v{vJ}", f"v_and_b32 v{T0}, 0x70, v{vL16}", f"v_add_u32 v{vJ}, v{vJ}, v{T0}"]
                    it += [f"v_lshrrev_b32 v{vR}, 6, v{vL16}", f"v_mul_u32_u24 v{vR}, 7168, v{vR}", f"v_lshrrev_b32 v{T0}, 3, v{vL16}", f"v_and_b32 v{T0}, 0x20, v{T0}",
                           f"v_and_b32 v{T1}, 0x30, v{vL16}", f"v_xor_b32 v{T0}, v{T0}, v{T1}", f"v_add_u32 v{vR}, v{vR}, v{T0}"]
                if s == 3: it.append(self.xcc_word(sXc))
                if self.opt.get("tst") is not None:
                    p0, span, nb = [int(x) for x in str(self.opt["tst"]).split("_")]
                    for b in range(nb):
                        if p0 + b * span <= s < p0 + (b + 1) * span:
                            l = self.lab("ts"); nl = 112 // nb
                            x = [f"s_lshr_b32 s{sT}, s2, 3", f"s_mul_i32 s{sT}, s{sT}, {span}", f"s_lshr_b32 s{sT}, s{sT}, 5",
                                 f"s_cmp_lg_u32 s{sT}, {s - p0 - b * span}", f"s_cbranch_scc1 {l}"]
                            for k in range(0, nl, 64):
                                n = min(64, nl - k)
                                if n < 64: x += [f"s_mov_b32 s{sEX}, -1" if n >= 32 else f"s_mov_b32 s{sEX}, {hex((1 << n) - 1)}", f"s_mov_b32 s{sEX+1}, {hex((1 << max(n - 32, 0)) - 1)}", f"s_mov_b64 exec, s[{sEX}:{sEX+1}]"]
                                x += [f"buffer_load_dword v250, v176, s[{sW13}:{sW13+3}], s{sHx} offen", f"s_add_u32 s{sHx}, s{sHx}, {128 * n}"]
                            post.append(x + ["s_mov_b64 exec, -1", f"@{l}"])
                if self.opt.get("tk", 0):
                    if s == 3:
                        self.tk = 0
                        it.append([f"s_lshl_b32 s{sT}, s2, 2", f"s_add_u32 s{sT}, s{sT}, s{sLW}", f"s_mul_i32 s{sT}, s{sT}, 7168",
                                   f"s_add_u32 s{self.sP2}, s{sW2}, s{sT}", f"s_addc_u32 s{self.sP2+1}, s{sW2+1}, 0"])
                    if 7 <= s < 27: it += self.trickle(3)
                if s == pf:
                    def hs():
                        l = self.lab("hs")
                        e(f"s_cmp_lg_u32 s{sLW}, 1"); e(f"s_cbranch_scc1 {l}")
                        self.side_flag(0)
                        self.label(l)
                    post.append(hs)
                if s == r0:
                    it.append([f"s_lshr_b32 s{sT}, s2, 3", f"s_lshl_b32 s{sT}, s{sT}, 1", f"s_add_u32 s{sT}, s{sT}, s{sWN}", f"s_and_b32 s{sT2}, s2, 7",
                               f"s_lshl_b32 s{sGs}, s{sWM}, 3", f"s_add_u32 s{sGs}, s{sGs}, s{sT2}", f"s_lshl_b32 s{sGs}, s{sGs}, 7", f"s_add_u32 s{sGs}, s{sGs}, s{sT}",
                               f"s_lshl_b32 s{sGs}, s{sGs}, 10", f"s_add_u32 s{sGs}, s{sGs}, {WS_RT}",
                               f"s_mul_i32 s{sT}, s{sT}, {16 * 7168}", f"s_mul_i32 s{sT2}, s{sT2}, 896", f"s_add_u32 s{sEX}, s{sT}, s{sT2}"])
                    for h in range(2):
                        it.append(self.grp(vm, "R", [], f"buffer_load_dwordx4 v[{RB+4*h}:{RB+4*h+3}], v{vR}, s[{sW13}:{sW13+3}], s{sEX} offen offset:{384 + 64 * h}"))
                st0 = int(self.opt.get("st0", 31))
                for h in range(2):
                    if s == min(st0 + 3 + h, 31):
                        assert "R" not in vm.ops
                        post.append(self.grp(vm, "r", [], f"buffer_store_dwordx4 v[{RB+4*h}:{RB+4*h+3}], v{vL16}, s[{sWS}:{sWS+3}], s{sGs} offen sc0 sc1", [f"s_add_u32 s{sGs}, s{sGs}, 65536"]))
                CB, vC = 104, 99
                if s == r0 - 2 and self.opt.get("rel"):
                    it.append([f"v_lshrrev_b32 v{vC}, 8, v{vL16}", f"v_mul_u32_u24 v{vC}, 7168, v{vC}", f"v_and_b32 v{T0}, 0xf0, v{vL16}", f"v_add_u32 v{vC}, v{vC}, v{T0}",
                               f"s_mul_i32 s{sT}, s2, {4 * 7168}", f"v_add_u32 v{vC}, s{sT}, v{vC}"])
                for k in range(3 if self.opt.get("rel") else 0):
                    pre = [f"s_cmp_eq_u32 s{sWN}, 0", f"s_movk_i32 s{sT}, {(11, 19, 26)[k] * 128}", f"s_cselect_b32 s{sT}, s{sT}, {(35, 42, 51)[k] * 128}"]
                    if s == r0 + 2 + 2 * k: post.append(self.grp(vm, "C", pre, f"buffer_load_dwordx4 v[{CB+4*k}:{CB+4*k+3}], v{vC}, s[{sW13}:{sW13+3}], s{sT} offen"))
                    if s == min(st0 + k, 31):
                        assert "C" not in vm.ops
                        pre += [f"s_lshl_b32 s{sT2}, s{sWM}, 23", f"s_add_u32 s{sT}, s{sT}, s{sT2}", f"s_add_u32 s{sT}, s{sT}, {WS_C13 + 256}"]
                        post.append(self.grp(vm, "r", pre, f"buffer_store_dwordx4 v[{CB+4*k}:{CB+4*k+3}], v{vC}, s[{sWS}:{sWS+3}], s{sT} offen sc0 sc1"))
                if self.opt.get("jb") is not None:
                    p0, span = [int(x) for x in str(self.opt["jb"]).split("_")]
                    if p0 <= s < p0 + span:
                        l = self.lab("jb")
                        if s == p0:
                            pm = [f"s_and_b32 s{sT}, s{sMT}, 3", f"s_lshl_b32 s{sT}, s{sT}, 2", f"s_lshr_b32 s{sT2}, s{sMT}, 2", f"s_add_u32 s{sT}, s{sT}, s{sT2}"] if self.opt.get("pm", 1) else [f"s_mov_b32 s{sT}, s{sMT}"]
                            post.append(pm + [f"s_mul_i32 s{sT}, s{sT}, {span}", f"s_lshr_b32 s{sHx}, s{sT}, 4"])
                        if (s - p0) not in [(i * span) >> 4 for i in range(16)]: x = None
                        else: x = [f"s_cmp_lg_u32 s{sHx}, {s - p0}", f"s_cbranch_scc1 {l}",
                             f"s_call_b64 s[{sEX}:{sEX+1}], Y_burst", f"@{l}"]
                        if x: last.append(x)
                for k in range(16):
                    if self.opt.get("jb") is not None:
                        if k < 16 - int(self.opt.get("jsp", 0)) or s != int(self.opt.get("jsa", 31)): continue
                    elif jsch[k] != s: continue
                    b = JB + 4 * k
                    post.append(self.grp(vm, "J", [], f"buffer_load_dwordx4 v[{b}:{b+3}], v{vJ}, s[{sJ}:{sJ+3}], s{sJo} offen", [f"s_add_u32 s{sJo}, s{sJo}, {8 * 7168}"]))
                if s == g:
                    e(f"v_lshlrev_b32 v{T3}, 1, v{vL16}"); e(f"v_and_b32 v{T3}, 0xff, v{T3}")
                    e(f"buffer_load_dword v{vHs}, v{T3}, s[{sDBG}:{sDBG+3}], 0 offen sc0 sc1"); vm.issue("hs")
                if s == g + 3:
                    lp, ld_ = self.lab("hs"), self.lab("hs")
                    self.wait(vm.need("hs"))
                    e(f"s_mov_b32 s{sT2}, {POLL}")
                    self.label(lp)
                    e(f"v_and_b32 v{T1}, 63, v{vHs}")
                    e(f"v_cmp_ne_u32 vcc, 32, v{T1}")
                    e(f"s_cbranch_vccz {ld_}")
                    e(f"buffer_load_dword v{vHs}, v{T3}, s[{sDBG}:{sDBG+3}], 0 offen sc0 sc1")
                    e("s_waitcnt vmcnt(0)")
                    e(f"s_sub_u32 s{sT2}, s{sT2}, 1"); e(f"s_cmp_lg_u32 s{sT2}, 0"); e(f"s_cbranch_scc1 {lp}")
                    self.label(ld_)
                    self.apoll4_issue(vm, 0, G)
                    it.append([f"s_and_b32 s{sT}, s2, 7", f"s_lshl_b32 s{sT2}, s{sXc}, 5", f"v_readlane_b32 s{sT}, v{vHs}, s{sT}", "s_nop 3",
                               f"s_cmp_lg_u32 s{sT}, s{sT2}", f"s_cselect_b32 s{sMODE}, 1, 0",
                               f"v_mov_b32 v{T0}, {L_MODE}", f"v_mov_b32 v{T1}, s{sMODE}", "s_mov_b64 exec, 1", f"ds_write_b32 v{T0}, v{T1}", "s_mov_b64 exec, -1"])
                vC0, vC1 = 173, 174
                if s == g + 4:
                    it += self.atomize([f"v_and_b32 v{vC0}, 0xf0, v{vL16}", f"v_min_u32 v{vC0}, 0xb0, v{vC0}", f"s_mul_i32 s{sT}, s{sLW}, 192", f"v_add_u32 v{vC0}, s{sT}, v{vC0}",
                                        f"v_lshrrev_b32 v{T0}, 8, v{vC0}", f"v_and_b32 v{T1}, 0xff, v{vC0}", f"v_lshl_add_u32 v{T0}, v{T0}, 12, v{T1}",
                                        f"v_lshrrev_b32 v{T1}, 8, v{vL16}", f"v_mul_u32_u24 v{T1}, 12288, v{T1}", f"s_lshl_b32 s{sT}, s{sN4}, 8", f"v_add3_u32 v{vC1}, v{T0}, v{T1}, s{sT}"])
                if s == g + 6: self.apoll4_check(vm, 0, G)
                if g + 8 <= s < g + 10:
                    for k in (2 * (s - g - 8), 2 * (s - g - 8) + 1):
                        it.append(self.grp(vm, "g1", [f"s_mov_b32 s{sT}, {WS_CSQ + 49152 * k}"], f"buffer_load_dwordx4 v[{CQ+4*k}:{CQ+4*k+3}], v{vC1}, s[{sWS}:{sWS+3}], s{sT} offen sc1"))
                if s == g + 15:
                    self.wait(vm.need("g1"))
                    it += [f"v_add_f32 v{CQ+r}, v{CQ+r}, v{CQ+4+r}" for r in range(4)] + [f"v_add_f32 v{CQ+8+r}, v{CQ+8+r}, v{CQ+12+r}" for r in range(4)]
                    it += [f"v_add_f32 v{CQ+r}, v{CQ+r}, v{CQ+8+r}" for r in range(4)]
                    it += self.xred(list(range(CQ, CQ + 4)), list(range(CQ + 4, CQ + 8)), steps=("v_permlane16_swap_b32",))
                if s == g + 16:
                    it += self.xred(list(range(CQ, CQ + 4)), list(range(CQ + 4, CQ + 8)), steps=("v_permlane32_swap_b32",))
                    it += [f"v_add_u32 v{vC0}, {L_CSQ}, v{vC0}", ["s_mov_b64 exec, 0xfff", f"ds_write_b128 v{vC0}, v[{CQ}:{CQ+3}]", "s_mov_b64 exec, -1"]]
                if s == int(self.opt.get("w2at", 99)):
                    it.append(self.grp(vm, "t", [f"v_lshlrev_b32 v{T0}, 3, v{vL16}", f"s_lshl_b32 s{sT}, s2, 2", f"s_add_u32 s{sT}, s{sT}, s{sLW}", f"s_lshl_b32 s{sT}, s{sT}, 13"],
                                       f"buffer_load_dword v{vPL}, v{T0}, s[{sW2}:{sW2+3}], s{sT} offen"))
            else:
                if s == 2 + self.b2: post.append(lambda: self.wg_flag_if(0, self.FG(7)))
                if s == 7 + self.b2:
                    e(f"v_lshrrev_b32 v{T0}, 2, v{vL16}"); e(f"v_and_b32 v{T1}, 64, v{T0}"); e(f"v_and_b32 v{T0}, 60, v{T0}")
                    e(f"s_cmp_eq_u32 s{sMT}, 0"); e(f"s_cselect_b32 s{sT}, 0, 2")
                    e(f"v_mul_lo_u32 v{T1}, v{T1}, s{sT}"); e(f"v_sub_u32 v{vHs}, v{T0}, v{T1}"); e(f"v_add_u32 v{vHs}, {7 * 2048}, v{vHs}")
                    e(f"buffer_load_dword v{vPL}, v{vHs}, s[{sWS}:{sWS+3}], s{sFl} offen sc0 sc1"); vm.issue("ap")
                if s == 10 + self.b2:
                    lp, ld = self.lab("poll"), self.lab("pd")
                    self.wait(vm.need("ap"))
                    e(f"s_mov_b32 s{sT2}, {POLL}")
                    self.label(lp)
                    e(f"v_cmp_ne_u32 vcc, 0x01010101, v{vPL}"); e(f"s_cbranch_vccz {ld}")
                    e(f"buffer_load_dword v{vPL}, v{vHs}, s[{sWS}:{sWS+3}], s{sFl} offen sc0 sc1"); e("s_waitcnt vmcnt(0)")
                    e(f"s_sub_u32 s{sT2}, s{sT2}, 1"); e(f"s_cmp_lg_u32 s{sT2}, 0"); e(f"s_cbranch_scc1 {lp}")
                    self.label(ld)
            R0, AC, H, vH = 144, 160, 164, 175
            s0 = g + 6 if first else 11
            so = 64 * KB if first else 0
            fin = [[f"v_lshrrev_b32 v{T2}, 1, v{T2}", f"s_lshl_b32 s{sT}, s{sLW}, 7", f"s_add_u32 s{sT}, s{sT}, {L_ST + 64}", f"v_add_u32 v{T2}, s{sT}, v{T2}",
                    f"v_sub_f32 v{AC}, 0, v{AC}", f"v_sub_f32 v{AC+2}, 0, v{AC+2}",
                    "s_mov_b64 exec, 0xffff", f"ds_write2_b32 v{T2}, v{AC}, v{AC+2} offset0:0 offset1:1", f"ds_write2_b32 v{T2}, v{AC+1}, v{AC+3} offset0:144 offset1:145", "s_mov_b64 exec, -1"]]
            it += self.stats_gather(vm, s, s0, sSTo, R0, AC, fin, so, first)
            h0 = s0 + 1 if first else 16
            h1 = s0 + 6 if first else 21
            if s == h0:
                it.append([f"v_lshrrev_b32 v{T0}, 7, v{vL16}", f"v_and_b32 v{vH}, 0x70, v{vL16}", f"v_lshl_add_u32 v{T0}, v{T0}, 10, v{vH}",
                           f"s_sub_u32 s{sEX}, s{sSTo}, {ARENA - 896 - so}", f"s_cmp_eq_u32 s{sMT}, 0", f"s_cselect_b32 s{sEX}, {OOB}, s{sEX}"])
                for k in range(2):
                    it.append(self.grp(vm, "h", [], f"buffer_load_dwordx4 v[{H+4*k}:{H+4*k+3}], v{T0}, s[{sWS}:{sWS+3}], s{sEX} offen", [f"s_add_u32 s{sEX}, s{sEX}, 8192"]))
            if s == h1:
                self.wait(vm.need("h"))
                it += [f"v_add_f32 v{H+r}, v{H+r}, v{H+4+r}" for r in range(4)] + ["s_nop 1"]
                it += [f"v_add_f32_dpp v{H+r}, v{H+r}, v{H+r} row_ror:8 row_mask:0xf bank_mask:0xf" for r in range(4)]
                if not first: it += self.xred(list(range(H, H + 4)), list(range(H + 4, H + 8)), steps=("v_permlane16_swap_b32",))
            if s == h1 + 1:
                if first: it += self.xred(list(range(H, H + 4)), list(range(H + 4, H + 8)), steps=("v_permlane16_swap_b32",))
                it += self.xred(list(range(H, H + 4)), list(range(H + 4, H + 8)), steps=("v_permlane32_swap_b32",))
            if s == h1 + 2: it += self.finish_stats(H, H + 1)
            if s == h1 + (2 if first else 3):
                it += self.finish_stats(H + 2, H + 3)
                it += [f"v_lshrrev_b32 v{vH}, 1, v{vH}", f"v_add_u32 v{vH}, {L_ST}, v{vH}", f"v_sub_f32 v{H}, 0, v{H}", f"v_sub_f32 v{H+2}, 0, v{H+2}",
                       [f"s_lshl_b32 s{sT}, s{sLW}, 1", f"s_lshl_b64 exec, 3, s{sT}",
                        f"ds_write2_b32 v{vH}, v{H}, v{H+2} offset0:0 offset1:1", f"ds_write2_b32 v{vH}, v{H+1}, v{H+3} offset0:144 offset1:145", "s_mov_b64 exec, -1"]]
            dm = []
            if s >= 1 and (s - 1) // 2 + 3 < 16: dm = self.g1_a(vm, first, (s - 1) // 2 + 3, (s - 1) & 1)
            self.run_period(dm + self.w_take(vm, PT, 6 if s == 31 else (2 if s >= 27 else 1), self.kfree(0, s), 1 if cu1 <= s < 27 and s % 2 == 0 else 0), it)
            self.run_period([], post + last)
        assert self.wn == 38 and g + 16 <= 30
        self.tr_flush(P)
        e("s_setprio 0")

    def job_finish(self):
        e = self.e; T0, T1 = self.YT[:2]; JB = 0
        l = self.lab("jf")
        e(f"s_cmp_lg_u32 s{sLAY}, 0"); e(f"s_cbranch_scc1 {l}")
        if True:
            AC, S = 100, 104
            self.emit(self.selector(S, T0, T1)); e("s_nop 1")
            for i in range(16): e(mfma(AC, S, JB + 4 * i, "0" if i == 0 else None))
            e(f"s_and_b32 s{sT2}, s{self.sJi}, 1"); e(f"s_lshl_b32 s{sT2}, s{sT2}, 2"); e(f"s_add_u32 s{sT2}, s{sT2}, s{sLW}"); e(f"s_mul_i32 s{sT2}, s{sT2}, 28672")
            e(f"s_lshr_b32 s{sT}, s{self.sJi}, 1"); e(f"s_lshl_b32 s{sT}, s{sT}, 8")
            e(f"s_add_u32 s{sT}, s{sT}, s{sT2}"); e(f"s_add_u32 s{sT}, s{sT}, {WS_CS13}")
            e(f"s_cmp_lt_u32 s{self.sJi}, 224"); e(f"s_cselect_b32 s{sT}, s{sT}, {OOB}")
            e(f"v_and_b32 v{T0}, 0x70, v{vL16}"); e(f"v_lshrrev_b32 v{T1}, 4, v{vL16}"); e(f"v_and_b32 v{T1}, 16, v{T1}"); e(f"v_lshl_add_u32 v{T0}, v{T0}, 1, v{T1}")
            e("s_nop 2")
            for r in range(4): e(f"v_add_f32_dpp v{AC+r}, v{AC+r}, v{AC+r} row_ror:8 row_mask:0xf bank_mask:0xf")
            e("s_mov_b64 exec, 0x00ff00ff")
            e(f"buffer_store_dwordx4 v[{AC}:{AC+3}], v{T0}, s[{sWS}:{sWS+3}], s{sT} offen sc0 sc1")
            e("s_mov_b64 exec, -1")
        self.label(l)

    def y_g2(self):
        e = self.e; P = "Y"; vm = VM(); T0, T1, T2, _ = self.YT; PT = self.YP; vPL = self.vPL
        e(f"v_lshlrev_b32 v{T0}, 7, v{vL16}")
        e(f"s_lshl_b32 s{sT}, s{sWN}, 19"); e(f"s_add_u32 s{sT}, s{sT}, s{sRw}"); e(f"s_and_b32 s{sT}, s{sT}, {(16 << 17) - 1}"); e(f"s_add_u32 s{sT}, s{sT}, s{sB1}")
        e(f"buffer_load_dword v{vPL}, v{T0}, s[{sWO}:{sWO+3}], s{sT} offen")
        for i in range(4): e(f"v_mov_b32 v{112+i}, -1")
        e(f"s_lshl_b32 s{sRa}, s{sN4}, 14")
        vA = self.YAP[0]
        e(f"s_add_u32 s{sGa}, s{sOo}, s{sM4}"); e(f"v_add_u32 v{vA}, s{sGa}, v{vL16}")
        e(f"s_add_u32 s{sT}, s{sGa}, s{sRa}"); e(f"s_add_u32 s{sT}, s{sT}, {WS_P}")
        for i in range(4): e(f"buffer_store_dwordx4 v[112:115], v{vL16}, s[{sWS}:{sWS+3}], s{sT} offen offset:{1024 * i} sc0 sc1")
        l = self.lab("cp")
        e(f"s_cmp_lg_u32 s{sLAY}, 0"); e(f"s_cbranch_scc1 {l}")
        self.emit(self.pat_256(PT["g3a"], 7168, T0, T1, T2, sB3) + self.pat_g3b(PT["g3b"], T0, T1, T2) + self.pat_256(PT["g4"], 2048, T0, T1, T2))
        self.emit(self.reloc13(sW3A, 0)); self.emit(self.reloc13(sW3B, 0x4008))
        self.label(l)
        self.warm("A")
        def A(u): return self.a_issue(vm, ("A", u), u % 3, vA, None, self.ainc(uord(u + 1) - uord(u)) if u < 15 else None)
        self.bar(P, ("G2", -2))
        self.run_period(A(0), [])
        self.pb(P, ("G2", -1), 0)
        self.poll_flags(self.FL(0, 0), 8); vm.clear()
        self.run_period(A(1) + A(2), [])
        npre = int(self.opt.get("g2pre", 4)); g2w = int(self.opt.get("g2w", 13))
        g2c = int(self.opt.get("g2c", 0))
        sched = {1 + g2c: 1, 3 + g2c: 1}
        for k in range(npre): sched[min(g2w + k, 15)] = sched.get(min(g2w + k, 15), 0) + 1
        self.w_start(38, 72 + self.xw0)
        for u in range(16):
            need = ([("A", u + 1)] if u < 15 else []) + ([self.wneed(32 + (u + 1) // 2)] if (u & 1 and u < 15) else [])
            self.pb(P, ("G2", u), vm.need(*need))
            if u == 3: self.apoll_issue(vm, self.FG(0), 16, vPL)
            if u == 5: self.apoll_check(vm, self.FG(0), 16, vPL)
            self.run_period((A(u + 3) if u + 3 < 16 else []) + self.w_take(vm, PT, sched.get(u, 0), 32 + (u - 1 - g2c) // 2), [])
        self.job_finish()
        return vm

    def b3(self, mat, t, rt): return ((mat * 3 + t) * 4 + rt) * 4
    VBX, VBW, YRL, YI2 = 176, 177, 184, 188

    def y_g3a(self, vm):
        e = self.e; P = "Y"; T0, T1, T2, T3 = self.YT; PT = self.YP; vPL = self.vPL
        R = 96; AC = 192; NM = 196; CS = 96; CT = 128
        vA = self.YAP[0]
        e(f"s_add_u32 s{sGa}, s{sXm}, s{sM4}"); e(f"s_lshl_b32 s{sRa}, s{sN4}, 14"); e(f"v_add_u32 v{vA}, s{sGa}, v{vL16}")
        self.h_bases()
        def A(u, part=None): return self.a_issue(vm, ("A", u), u % 3, vA, None, self.ainc(uord(u + 1) - uord(u)) if u < 15 else None, part)
        own = self.opt.get("own", 0)
        if own:
            assert not self.b2
            e(f"v_lshlrev_b32 v{T0}, 3, v{vL16}"); e(f"v_and_b32 v{T0}, 0xfff, v{T0}"); e(f"s_add_u32 s{sDa}, s{sGa}, s{sRa}")
            self.emit(self.ainc(2))
            self.pb(P, ("G3A", -1), vm.need(self.wneed(40), self.wneed(41)))
            self.stats_out(sSTm, 144)
        else:
            self.bar(P, ("G3A", -2))
            self.run_period(A(0), [])
            self.pb(P, ("G3A", -1), 0); vm.clear()
            self.apoll_issue(vm, self.FL(0, 32), 8, vPL)
        e("s_setprio 1")
        work = self.stat_regs(R, NM, self.YRL, self.YI2, T0)
        work += [f"v_lshrrev_b32 v{T0}, 8, v{vL16}", f"v_lshlrev_b32 v{T0}, 4, v{T0}", f"v_add_u32 v{T0}, {L_CSB}, v{T0}",
                 f"s_and_b32 s{sT2}, s{sNT}, 1", f"s_add_u32 s{sT}, s{sT2}, s{sWN}", f"s_lshl_b32 s{sT}, s{sT}, 7", f"v_add_u32 v{T1}, s{sT}, v{T0}",
                 f"s_xor_b32 s{sT2}, s{sT2}, 1", f"s_lshl_b32 s{sT2}, s{sT2}, 2", f"s_add_u32 s{sT2}, s{sT2}, s{sWN}", f"s_lshl_b32 s{sT2}, s{sT2}, 6", f"v_add_u32 v{T0}, s{sT2}, v{T0}"]
        for mat in range(2):
            for t in range(3):
                c = CS + (mat * 3 + t) * 4
                work.append(f"ds_read_b128 v[{c}:{c+3}], v{T1 if t < 2 else T0} offset:{mat * 512 + (64 * t if t < 2 else 0)}")
        work.append("s_waitcnt lgkmcnt(0)")
        for mat in range(2):
            for t in range(3):
                for rt in range(4):
                    work += [f"v_mul_f32 v{self.b3(mat,t,rt)+r}, v{NM+rt}, v{CS+(mat*3+t)*4+r}" for r in range(4)]
        work = self.costed(work)
        vW = self.VBW
        addr = [f"s_lshl_b32 s{sT}, s{sWM}, 13", f"s_add_u32 s{sT}, s{sT}, {LA}", f"v_add_u32 v{self.VBX}, s{sT}, v{vL16}",
                f"v_lshrrev_b32 v{T0}, 6, v{vL16}", f"v_lshrrev_b32 v{T1}, 1, v{T0}", f"v_and_b32 v{T1}, 3, v{T1}",
                f"s_lshl_b32 s{sT}, s{sWN}, 1", f"v_xor_b32 v{T1}, s{sT}, v{T1}", f"v_lshlrev_b32 v{T1}, 5, v{T1}", f"v_lshl_add_u32 v{T1}, v{T0}, 7, v{T1}",
                f"v_and_b32 v{vW+3}, 0x30, v{vL16}", f"v_lshrrev_b32 v{vW+3}, 1, v{vW+3}",
                f"v_add_u32 v{vW}, v{T1}, v{vW+3}", f"v_xor_b32 v{vW+1}, 32, v{vW}",
                f"v_lshrrev_b32 v{T1}, 2, v{T0}", f"v_and_b32 v{T1}, 1, v{T1}", f"v_xor_b32 v{T1}, s{sWN}, v{T1}", f"v_lshlrev_b32 v{T1}, 5, v{T1}",
                f"v_lshl_add_u32 v{T1}, v{T0}, 6, v{T1}", f"v_add_u32 v{T1}, v{T1}, v{vW+3}", f"v_add_u32 v{vW+2}, 2048, v{T1}"]
        addr += [f"v_add_u32 v{vW+3+t}, {3 * WSLOT}, v{vW+t}" for t in range(3)]
        c0 = 22; S0 = 9 + self.b2; C1 = 10
        cu0 = int(self.opt.get("cu0", 99))
        for s in range(32):
            if self.hasb(s):
                need = self.kneed(40, s, 99) + ([("A", (s + 1) // 2)] if s & 1 else [])
                self.pb(P, ("G3A", s), vm.need(*need), 0 if s == c0 - self.b2 else None)
            it = []; dm = []; post = []
            if s == 0:
                if own:
                    e(f"buffer_load_dword v{vPL}, v{T0}, s[{sWS}:{sWS+3}], s{sDa} offen sc0 sc1")
                    self.poll_flags(self.FL(0, 32), 8); vm.clear()
                else: self.apoll_check(vm, self.FL(0, 32), 8, vPL)
                dm = A(1) + A(2)
            if s == 2 + self.b2: post.append(lambda: self.wg_flag_if(0, self.FG(6)))
            if s == 2:
                def cf():
                    l = self.lab("cf")
                    e(f"s_xor_b32 s{sT}, s{sLW}, 1"); e(f"s_or_b32 s{sT}, s{sLAY}, s{sT}"); e(f"s_cbranch_scc1 {l}")
                    self.side_flag(1)
                    self.label(l)
                post.append(cf)
            if s == S0 - 3: self.apoll_issue(vm, self.FG(6), 16, vPL)
            if s == S0: self.apoll_check(vm, self.FG(6), 16, vPL)
            fin = [[f"s_lshl_b32 s{sT}, s{sLW}, 8", f"s_add_u32 s{sT}, s{sT}, {L_ST}", f"v_add_u32 v{T2}, s{sT}, v{T2}", "s_mov_b64 exec, 0xffff", f"ds_write_b128 v{T2}, v[{AC}:{AC+3}]", "s_mov_b64 exec, -1"]]
            it += self.stats_gather(vm, s, S0, sSTm, R, AC, fin)
            if s == C1: self.apoll4_issue(vm, 1, CT)
            if s == C1 + 3:
                self.apoll4_check(vm, 1, CT, [(sLAY, 1)])
                l = self.lab("cs")
                e(f"s_cmp_lg_u32 s{sLAY}, 0"); e(f"s_cbranch_scc1 {l}")
                e(f"s_and_b32 s{sT}, s{sNT}, 1"); e(f"s_mul_i32 s{sT2}, s{sT}, 384")
                e(f"s_xor_b32 s{sT}, s{sT}, 1"); e(f"s_lshl_b32 s{sT}, s{sT}, 9")
                e(f"s_cmp_eq_u32 s{sWN}, 0"); e(f"s_cselect_b32 s{sT}, s{sT2}, s{sT}")
                e(f"s_mul_i32 s{sT2}, s{sNT}, 896"); e(f"s_add_u32 s{sT}, s{sT}, s{sT2}")
                e(f"s_mul_i32 s{sT2}, s{sWM}, 14336"); e(f"s_add_u32 s{sT}, s{sT}, s{sT2}"); e(f"s_add_u32 s{sT}, s{sT}, {WS_CS13}")
                e(f"v_lshrrev_b32 v{T0}, 9, v{vL16}"); e(f"v_mul_u32_u24 v{T0}, 28672, v{T0}"); e(f"v_and_b32 v{T1}, 0x1f0, v{vL16}"); e(f"v_add_u32 v{T0}, v{T0}, v{T1}")
                for k in range(4):
                    e(f"buffer_load_dwordx4 v[{CT+4*k}:{CT+4*k+3}], v{T0}, s[{sWS}:{sWS+3}], s{sT} offen sc1")
                    e(f"s_add_u32 s{sT}, s{sT}, 57344")
                self.label(l)
                ct_after = ("A", (s - 1) // 2 + 3)
            if s == C1 + 7:
                assert ct_after not in vm.ops
                l = self.lab("cs")
                e(f"s_cmp_lg_u32 s{sLAY}, 0"); e(f"s_cbranch_scc1 {l}")
                for r in range(4): e(f"v_add_f32 v{CT+r}, v{CT+r}, v{CT+4+r}"); e(f"v_add_f32 v{CT+8+r}, v{CT+8+r}, v{CT+12+r}")
                for r in range(4): e(f"v_add_f32 v{CT+r}, v{CT+r}, v{CT+8+r}")
                self.emit(self.xred(list(range(CT, CT + 4)), list(range(CT + 4, CT + 8)), steps=("v_permlane32_swap_b32",)))
                e(f"s_lshl_b32 s{sT}, s{sLW}, 9"); e(f"s_add_u32 s{sT}, s{sT}, {L_CSA}"); e(f"v_and_b32 v{T1}, 0x1f0, v{vL16}"); e(f"v_add_u32 v{T0}, s{sT}, v{T1}")
                e("s_mov_b64 exec, 0xffffffff"); e(f"ds_write_b128 v{T0}, v[{CT}:{CT+3}]"); e("s_mov_b64 exec, -1")
                self.label(l)
            if self.opt.get("tk", 0) and 0 <= s < 18 and self.tk < 112:
                l = self.lab("tk")
                it.append([f"s_cmp_lg_u32 s{sLAY}, 0", f"s_cbranch_scc1 {l}"] + self.trickle(3) + [f"@{l}"])
            w2p = self.opt.get("w2p")
            if w2p is not None and 0 <= s - int(w2p) < 16:
                def w2(s=s):
                    l = self.lab("w2"); k = s - int(w2p)
                    e(f"s_lshl_b32 s{sT}, s{sLAY}, 4"); e(f"s_add_u32 s{sT}, s{sT}, s{sMT}")
                    e(f"s_cmp_lg_u32 s{sT}, {(k & 3) * 4 + (k >> 2)}"); e(f"s_cbranch_scc1 {l}")
                    e(f"s_call_b64 s[{sEX}:{sEX+1}], Y_w2")
                    self.label(l)
                post.append(w2)
            if 4 <= s < 20 and s % 2 == 0 and not self.opt.get("tk", 0) and w2p is None and not self.opt.get("w2b"):
                def w2(s=s):
                    l = self.lab("w2")
                    e(f"s_lshl_b32 s{sT}, s{sLAY}, 4"); e(f"s_lshr_b32 s{sT2}, s{sMT}, 1"); e(f"s_add_u32 s{sT}, s{sT}, s{sT2}")
                    e(f"s_cmp_lg_u32 s{sT}, {(s - 4) // 2}"); e(f"s_cbranch_scc1 {l}")
                    e(f"v_lshlrev_b32 v{vF0}, 3, v{vL16}"); e(f"s_lshl_b32 s{sT}, s2, 2"); e(f"s_add_u32 s{sT}, s{sT}, s{sLW}"); e(f"s_lshl_b32 s{sT}, s{sT}, 13")
                    e(f"buffer_load_dword v250, v{vF0}, s[{sW2}:{sW2+3}], s{sT} offen")
                    self.label(l)
                post.append(w2)
            if s in (21, 26) and self.opt.get("rel"):
                def cp2(s=s):
                    l = self.lab("cp")
                    e(f"s_cmp_lg_u32 s{sLAY}, 0"); e(f"s_cbranch_scc1 {l}")
                    e(f"s_lshl_b32 s{sT}, s2, 2"); e(f"s_add_u32 s{sT}, s{sT}, s{sLW}"); e(f"s_lshl_b32 s{sT}, s{sT}, 13")
                    if s == 21:
                        e(f"v_and_b32 v{vF0}, 0x300, v{vL16}"); e(f"v_and_b32 v{vF1}, 0xf0, v{vL16}"); e(f"v_lshl_add_u32 v249, v{vF0}, 3, v{vF1}")
                        for k in range(2): e(f"buffer_load_dwordx4 v[{240+4*k}:{243+4*k}], v249, s[{sW2}:{sW2+3}], s{sT} offen offset:{256 + 1024 * k}")
                    else:
                        e(f"s_add_u32 s{sT}, s{sT}, {WS_C2 + 256}"); e("s_cmp_lt_u32 s2, 224"); e(f"s_cselect_b32 s{sT}, s{sT}, {OOB}")
                        for k in range(2): e(f"buffer_store_dwordx4 v[{240+4*k}:{243+4*k}], v249, s[{sWS}:{sWS+3}], s{sT} offen offset:{256 + 1024 * k} sc0 sc1")
                        self.emit(self.reloc2())
                    self.label(l)
                if s == 21: cp2(); cp_after = ("A", (s - 1) // 2 + 3)
                else:
                    assert cp_after not in vm.ops
                    post.append(cp2)
            if s == 20: it += self.atomize(addr)
            if s >= c0: it += self.chunk(work, float(self.opt.get("budC", 24)) if s < 30 else 1e9) if work else []
            if s >= 1 and (s - 1) // 2 + 3 < 16: dm = A((s - 1) // 2 + 3, (s - 1) & 1)
            self.run_period(dm + self.w_take(vm, PT, 1, self.kfree(40, s), 4 if s >= 27 else (1 if s >= cu0 and not S0 <= s < S0 + 4 else 0)), it)
            self.run_period([], post)
        assert not work and self.wn == 72 + self.xw0, self.wn
        assert not self.opt.get("tk", 0) or self.tk == 112
        self.tr_flush(P)
        e("s_setprio 0")
        self.g3bw = [vm.need(("W", 72 + s + 1), ("W", 72 + s + 1 + self.b2)) if self.hasb(s) else None for s in range(7)]
        assert 0 in self.g3bw

    def y_g3b(self):
        e = self.e; P = "YC"
        XF, WF = 96, 128
        vXa, vWa = self.VBX, self.VBW
        def xf(b, rt): return XF + b * 16 + rt * 4
        def wf(b, mat, t): return WF + b * 24 + (mat * 3 + t) * 4
        def reads(s):
            b = s & 1; sl = (72 + s) % 6
            xr = [f"ds_read_b128 v[{xf(b,rt)}:{xf(b,rt)+3}], v{vXa} offset:{((16 + (s >> 1)) % 3) * 16384 + rt * 2048 + (s & 1) * 1024}" for rt in range(4)]
            wr = []
            for t in range(3):
                for mat in range(2):
                    r = wf(b, mat, t); ad = vWa + 3 * (sl // 3) + t; off = (sl % 3) * WSLOT + mat * 6144
                    wr += [f"ds_read_b64_tr_b16 v[{r}:{r+1}], v{ad} offset:{off}", f"ds_read_b64_tr_b16 v[{r+2}:{r+3}], v{ad} offset:{off + 3072}"]
            return wr[0:2] + xr + wr[2:]
        def mf(s):
            b = s & 1
            return [mfma(self.b3(mat, t, rt), wf(b, mat, t), xf(b, rt)) for t in range(3) for mat in range(2) for rt in snake(range(4), mat)]
        self.emit(reads(0))
        e(f"s_add_u32 s{sGa}, s{sHx}, s{sM4}"); e(f"v_add_u32 v{self.YAP[0]}, s{sGa}, v{vL16}")
        def fn(s, ex):
            extra = []
            if ex: extra.append((20, self.CNT))
            self.step(P, ("G3B", s), mf(s), reads(s + 1) if s < 31 else [], vmw=(self.g3bw[s] if s < 7 else None), bar=self.hasb(s), last=17, extra=extra)
        self.looped(P, 32, 6, fn)

    def y_g4(self):
        e = self.e; P = "Y"; vm = VM(); T0, T1, T2, _ = self.YT; PT = self.YP; vPL = self.vPL
        E, OUT, vX = 96, 100, 120
        e("s_setprio 1")
        work = ["s_nop 7"]
        for rt in range(4):
            O = OUT + 4 * (rt & 1)
            for t in range(2):
                work += self.silu_group(self.b3(0, t, rt), self.b3(1, t, rt), E, self.YRL + rt, self.YI2 + rt, O + 2 * t)
            work.append(self.grp(vm, ("H", 0), [f"s_add_u32 s{sT}, s{sGh}, {16 * 16384 + rt * 2048}"],
                                 f"buffer_store_dwordx4 v[{O}:{O+3}], v{vL16}, s[{sWS}:{sWS+3}], s{sT} offen sc0 sc1"))
        work.append(("FLAG", 0))
        work += [f"v_and_b32 v{vX}, 0x100, v{vL16}", f"v_and_b32 v{vX+1}, 0x200, v{vL16}", f"v_lshrrev_b32 v{vX+1}, 1, v{vX+1}", f"v_lshl_add_u32 v{vX}, v{vX}, 3, v{vX+1}",
                 f"v_and_b32 v{vX+1}, 0xf0, v{vL16}", f"v_add_u32 v{vX}, v{vX}, v{vX+1}"]
        for k in range(2):
            O = OUT + 4 * k
            for i in range(2):
                rt = 2 * k + i
                work += self.silu_group(self.b3(0, 2, rt), self.b3(1, 2, rt), E, self.YRL + rt, self.YI2 + rt, O + 2 * i)
            work += [["s_nop 1", f"v_permlane16_swap_b32 v{O}, v{O+2}", f"v_permlane16_swap_b32 v{O+1}, v{O+3}"]]
            work.append(self.grp(vm, ("H", 1), [f"s_add_u32 s{sT}, s{sGs}, {4096 * k}"], f"buffer_store_dwordx4 v[{O}:{O+3}], v{vX}, s[{sWS}:{sWS+3}], s{sT} offen sc0 sc1"))
        work.append(("FLAG", 1))
        work += [f"s_cmp_eq_u32 s{sLAY}, 0", f"s_cselect_b32 s{sB1}, s{sB1}, {OOB}"] + self.pat_g1(PT, T0, T1, T2, False)
        work = self.costed(work)
        self.w_start(109 - self.b2, 138)
        def need(u): return [self.wneed(104 + u + 1), ("A", u + 1)] if u < 27 else []
        def hook(u):
            pd = int(self.opt.get("pd", 4))
            if u + pd in (8, 16, 24): self.apoll_issue(vm, self.FL(1, 4 * (u + pd)), 8, vPL)
            if u + 3 in (8, 16, 24): self.apoll_check(vm, self.FL(1, 4 * (u + 3)), 8, vPL)
            if u == 23: assert not work
        def dmas(u):
            return (self.a_issue(vm, ("A", u + 3), (32 + u + 3) % 3, self.YAP[0], (u + 3) * 16384) if u + 3 < 28 else []) + self.w_take(vm, PT, 2 if u in ((25, 26) if self.b2 else (25,)) else 1, 104 + u)
        bud = float(self.opt.get("budY", 40))
        self.epi_loop(P, "G4", 28, vm, work, lambda s: bud, int(self.opt.get("lagY", 2)), need, dmas, [self.FL(1, 64), self.FL(1, 96)], [13, 21], hook)
        assert self.wn == 138
        self.tr_dump("Y")
        e("s_setprio 0")

    def next_layer(self):
        e = self.e
        e(f"s_mov_b32 s{sLAY}, 1")
        e(f"s_add_u32 s{sOo}, s{sOo}, {256 * KB}"); e(f"s_add_u32 s{sXm}, s{sXm}, {512 * KB}"); e(f"s_add_u32 s{sHo}, s{sHo}, {896 * KB}")
        e(f"s_add_u32 s{sSTm}, s{sSTm}, {64 * KB}"); e(f"s_add_u32 s{sFl}, s{sFl}, {32 * KB}"); e(f"s_add_u32 s{sFL}, s{sFL}, {32 * KB}")

    def warm(self, which):
        self.emit([f"#WARM {which}"])

    def gen(self, name):
        e = self.e; a = self.a; self.info = []; self.xw0 = 6 - self.b2; self.rot0 = sN4
        kernel_header(a, name)
        e("s_cmp_ge_u32 s2, 256"); e("s_cbranch_scc0 K_go"); e("s_endpgm")
        self.label("K_go")
        K = sAT
        e(f"s_load_dwordx4 s[{K}:{K+3}], s[0:1], 0")
        e(f"s_load_dwordx2 s[{K+4}:{K+5}], s[0:1], 16")
        e(f"s_load_dwordx8 s[{K+8}:{K+15}], s[0:1], 32")
        e(f"s_load_dwordx4 s[{K+16}:{K+19}], s[0:1], 64")
        e("v_lshrrev_b32 v1, 6, v0"); e(f"v_and_b32 v{vL16}, 63, v0")
        e(f"v_readfirstlane_b32 s{sWAVE}, v1")
        e(f"v_lshlrev_b32 v{vL16}, 4, v{vL16}")
        if self.opt.get("ts"): e(f"v_mov_b32 v{vTS}, 0")
        e(f"s_and_b32 s{sT}, s2, 6"); e(f"s_lshl_b32 s{sT}, s{sT}, 1"); e(f"s_lshr_b32 s{sT2}, s2, 3"); e(f"s_and_b32 s{sT2}, s{sT2}, 3")
        e(f"s_add_u32 s{sMT}, s{sT}, s{sT2}")
        e(f"s_and_b32 s{sT}, s2, 1"); e(f"s_lshr_b32 s{sT2}, s2, 5")
        e(f"s_lshl_b32 s{sNT}, s{sT}, 3"); e(f"s_add_u32 s{sNT}, s{sNT}, s{sT2}")
        e(f"s_lshl_b32 s{sN4}, s{sT2}, 1"); e(f"s_add_u32 s{sN4}, s{sN4}, s{sT}")
        e(f"s_and_b32 s{sLW}, s{sWAVE}, 3"); e(f"s_and_b32 s{sWM}, s{sWAVE}, 1"); e(f"s_lshr_b32 s{sWN}, s{sLW}, 1")
        e(f"s_lshl_b32 s{sT}, s{sWM}, 1"); e(f"s_add_u32 s{sT}, s{sT}, s{sWN}"); e(f"s_mul_i32 s{sM3}, s{sT}, 3072"); e(f"s_lshl_b32 s{sM4}, s{sT}, 12")
        e(f"s_mov_b32 s{sMODE}, 1"); e(f"s_mov_b32 s{sLAY}, 0")
        e(f"s_lshl_b32 s{sOo}, s{sMT}, 22"); e(f"s_add_u32 s{sXm}, s{sOo}, {WS_X1}"); e(f"s_add_u32 s{sX2}, s{sOo}, {WS_X1 + 256 * KB}")
        e(f"s_add_u32 s{sHo}, s{sOo}, {WS_H}")
        e(f"s_add_u32 s{sSTm}, s{sOo}, {WS_ST}"); e(f"s_add_u32 s{sSTo}, s{sSTm}, {32 * KB}")
        e(f"s_lshl_b32 s{sFl}, s{sMT}, 7"); e(f"s_add_u32 s{sFl}, s{sFl}, {WS_FL}")
        self.bases()
        e("s_waitcnt lgkmcnt(0)")
        make_srd(a, sQKV, K + 2, K + 3, 1024 * 6144)
        make_srd(a, sA1, K, K + 1, 4 * MB)
        make_srd(a, sWS, K + 18, K + 19, 256 * MB)
        make_srd(a, sX0, K, K + 1, 4 * MB)
        make_srd(a, sWO, K + 4, K + 5, 1024 * 2048)
        e(f"s_cmp_eq_u32 s{sWM}, 0")
        e(f"s_cselect_b32 s{sW13}, s{K+8}, s{K+10}"); e(f"s_cselect_b32 s{sW13+1}, s{K+9}, s{K+11}")
        e(f"s_mov_b32 s{sW13+2}, {1024 * 7168}"); e(f"s_mov_b32 s{sW13+3}, 0x00020000")
        make_srd(a, sW2, K + 12, K + 13, 3584 * 2048)
        make_srd(a, sOUT, K + 14, K + 15, 4 * MB)
        make_srd(a, sDBG, K + 16, K + 17, 256)
        e(f"s_and_b32 s{sT}, s2, 1"); e(f"s_lshl_b32 s{sT}, s{sT}, 13"); e(f"s_add_u32 s{sT}, s{sT}, {16 * KB}"); e(f"s_add_u32 s{sFL}, s{sFl}, s{sT}")
        e(f"s_lshl_b32 s{sT}, s{sN4}, 14"); e(f"s_lshl_b32 s{sT2}, s{sWM}, 13"); e(f"s_add_u32 s{sT}, s{sT}, s{sT2}")
        e(f"s_lshl_b32 s{sT2}, s{sWN}, 10"); e(f"s_add_u32 s{sTile}, s{sT}, s{sT2}")
        self.ts(15)
        e(f"s_cmp_lt_u32 s{sWAVE}, 4"); e("s_cbranch_scc1 X_start")
        vm1 = VM(); self.y_start(vm1); e("s_branch Y_first")
        self.label("X_start")
        self.x_prep()
        self.label("X_layer")
        self.x_g1(); self.x_g2(); self.x_g3a(); self.x_g3b(); self.x_g4()
        e(f"s_cmp_lg_u32 s{sLAY}, 0"); e("s_cbranch_scc1 X_fin")
        self.res_epilogue(self.a4, sX2, 236, 226); self.bars["X"].append(("G4", 99))
        self.next_layer()
        e("s_branch X_layer")
        self.label("X_fin")
        self.x_final()
        if self.opt.get("ts"):
            e("s_waitcnt vmcnt(0)")
            self.ts(24)
            e(f"s_lshl_b32 s{sT}, s2, 2"); e(f"s_add_u32 s{sT}, s{sT}, s{sLW}"); e(f"s_lshl_b32 s{sT}, s{sT}, 8"); e(f"s_add_u32 s{sT}, s{sT}, {WS_TS}")
            e(f"v_lshrrev_b32 v1, 2, v{vL16}")
            e(f"buffer_store_dword v{vTS}, v1, s[{sWS}:{sWS+3}], s{sT} offen")
            if self.opt.get("dbgts") is not None:
                e(f"s_lshl_b32 s{sT}, s2, 2"); e(f"s_add_u32 s{sT}, s{sT}, s{sLW}"); e(f"s_cmp_lg_u32 s{sT}, {4 * int(self.opt['dbgts'])}"); e("s_cbranch_scc1 K_nod")
                e(f"v_readlane_b32 s{sT2}, v{vTS}, 15"); e("v_mov_b32 v1, 0"); e("s_mov_b64 exec, 1")
                for slot, k in zip([1, 2, 3, 4, 5, 6, 7, 9, 10, 11, 12, 13, 14, 15], [1, 2, 7, 11, 12, 13, 14, 33, 34, 39, 43, 44, 45, 56]):
                    e(f"v_readlane_b32 s{sT}, v{vTS}, {k}"); e("s_nop 3"); e(f"s_sub_u32 s{sT}, s{sT}, s{sT2}"); e(f"v_mov_b32 v2, s{sT}")
                    e(f"buffer_store_dword v2, v1, s[{sDBG}:{sDBG+3}], 0 offen offset:{4 * slot}"); e("s_nop 1")
                self.label("K_nod")
        e("s_endpgm")
        self.label("Y_first")
        self.y_g1(vm1, True); e("s_branch Y_g2")
        if self.opt.get("jb") is not None:
            self.label("Y_burst")
            for k in range(16 - int(self.opt.get("jsp", 0))):
                e(f"buffer_load_dwordx4 v[{4*k}:{4*k+3}], v96, s[{self.sJ}:{self.sJ+3}], s{self.sJo} offen"); e(f"s_add_u32 s{self.sJo}, s{self.sJo}, {8 * 7168}")
            if not self.opt.get("w2b"): e(f"s_setpc_b64 s[{sEX}:{sEX+1}]")
            self.label("Y_w2")
            e(f"v_lshlrev_b32 v{vF0}, 3, v{vL16}"); e(f"s_lshl_b32 s{sT}, s{sMT}, 4"); e(f"s_add_u32 s{sT}, s{sT}, s{sN4}"); e(f"s_lshl_b32 s{sT}, s{sT}, 2")
            e(f"s_add_u32 s{sT}, s{sT}, s{sLW}"); e(f"s_mul_i32 s{sT}, s{sT}, 7168")
            e(f"s_mov_b32 exec_hi, 0xffffff")
            e(f"buffer_load_dword v250, v{vF0}, s[{sW2}:{sW2+3}], s{sT} offen")
            e("s_mov_b64 exec, -1")
            e(f"s_setpc_b64 s[{sEX}:{sEX+1}]")
        self.label("Y_layer")
        self.y_g1(VM(), False)
        self.label("Y_g2")
        vm = self.y_g2(); self.y_g3a(vm); self.y_g3b(); self.y_g4()
        e(f"s_cmp_lg_u32 s{sLAY}, 0"); e("s_cbranch_scc1 K_end")
        self.emit(self.reloc13(sW3A, 0x14a0))
        self.next_layer(); self.bars["Y"].append(("G4", 99)); self.warm("B"); e("s_branch Y_layer")
        self.label("K_end")
        e("s_endpgm")
        B = self.bars
        def ph(p, *names): return [x for x in B[p] if x[0] in names]
        assert B["XL"] == B["YC"] and B["X"] == B["Y"] and B["Y1"] == ph("Y", "G1"), "barrier mismatch"
        kernels.append((name, 256, 102))
        return a.text()


def full(opt):
    kernels.clear()
    g = Gen(opt)
    KN = "mega_kernel" if opt.get("list") else NAME + "_kernel"
    body = g.gen(KN)
    body = "\n".join(x for x in body.split("\n") if not x.startswith("#")) + "\n"
    t = build([(KN, 256, 512, 163840)], [body], single=not opt.get("list"))
    for x in g.info: print(x, file=sys.stderr)
    return t

if __name__ == "__main__":
    opt = parse_opts(sys.argv[2:])
    open(sys.argv[1], "w").write(full(opt))
```
